```python
import torch

def _softmax(x, axis=-1):
    return torch.softmax(x, dim=axis)

def _gelu(x):
    return torch.nn.functional.gelu(x, approximate='tanh')

def _silu(x):
    return torch.nn.functional.silu(x)

def _sigmoid(x):
    return torch.sigmoid(x)

def _layernorm(x, axis=-1, eps=1e-05):
    m = x.mean(dim=axis, keepdim=True)
    v = x.var(dim=axis, keepdim=True, unbiased=False)
    return (x - m) / torch.sqrt(v + eps)

def _scatter_add(tgt, idx, src, axis=0):
    return tgt.clone().index_add_(axis, idx, src)

def _segment_sum(src, seg, n):
    out = torch.zeros((n,) + src.shape[1:], dtype=src.dtype)
    return out.index_add_(0, seg, src)

def _pad(x, pw):
    flat = tuple((v for pair in reversed(pw) for v in pair))
    return torch.nn.functional.pad(x, flat)
kernel_name = 'interleave_layers__memory_aug_recurrent_mem_tr__spectral_gfnet__prompt'

def setup_inputs():

    _w = lambda a: (lambda t: t.to(torch.bfloat16) if t.is_floating_point() else t)(torch.as_tensor(a))

    def _A_setup():
        B, S, Dm = (1, 2048, 448)
        H, Dh = (16, 256)
        M, seg = (8, 32)
        seg = min(seg, S)
        S = S // seg * seg
        return {'x': _w((lambda *s: torch.randn(*s, dtype=torch.bfloat16) * 0.05)(B, S, Dm)), 'mem0': _w((lambda *s: torch.randn(*s, dtype=torch.bfloat16) * 0.2)(B, M, Dm)), 'Wq': _w((lambda *s: torch.randn(*s, dtype=torch.bfloat16) * 1.6)(Dm, H, Dh) * Dm ** (-0.5)), 'Wk': _w((lambda *s: torch.randn(*s, dtype=torch.bfloat16) * 1.6)(Dm, H, Dh) * Dm ** (-0.5)), 'Wv': _w((lambda *s: torch.randn(*s, dtype=torch.bfloat16) * 0.2)(Dm, H, Dh) * Dm ** (-0.5)), 'Wo': _w((lambda *s: torch.randn(*s, dtype=torch.bfloat16) * 0.2)(H, Dh, Dm) * (H * Dh) ** (-0.5)), 'seg_len': seg}
    _A_in = _A_setup()

    def _B_setup():
        B, S, D = (1, 2048, 448)
        Df = D // 2 + 1
        return {'x': _w((lambda *s: torch.randn(*s, dtype=torch.bfloat16) * 0.05)(B, S, D)), 'w_r': _w((lambda *s: torch.randn(*s, dtype=torch.bfloat16) * 0.4)(S, Df) * 0.02), 'w_i': _w((lambda *s: torch.randn(*s, dtype=torch.bfloat16) * 0.4)(S, Df) * 0.02)}
    _B_in = _B_setup()
    return {'A_x': _A_in['x'], 'A_mem0': _A_in['mem0'], 'A_Wq': _A_in['Wq'], 'A_Wk': _A_in['Wk'], 'A_Wv': _A_in['Wv'], 'A_Wo': _A_in['Wo'], 'A_seg_len': _A_in['seg_len'], 'B_x': _B_in['x'], 'B_w_r': _B_in['w_r'], 'B_w_i': _B_in['w_i']}

def reference(A_x, A_mem0, A_Wq, A_Wk, A_Wv, A_Wo, A_seg_len, B_x, B_w_r, B_w_i):

    def _A_ref(x, mem0, Wq, Wk, Wv, Wo, seg_len):
        B, S, Dm = x.shape
        H, Dh = (Wq.shape[1], Wq.shape[2])
        M = mem0.shape[1]
        scale = Dh ** (-0.5)
        n_seg = S // seg_len
        L = M + seg_len
        idx = torch.arange(L)
        mask = (idx[:, None] < M) | (idx[:, None] >= idx[None, :])
        mem = mem0
        outs = []
        for s in range(n_seg):
            xs = x[:, s * seg_len:(s + 1) * seg_len, :].clone()
            h = torch.concatenate([mem, xs], axis=1)
            q = torch.einsum('btd,dhe->bhte', h, Wq)
            k = torch.einsum('btd,dhe->bhte', h, Wk)
            v = torch.einsum('btd,dhe->bhte', h, Wv)
            scores = torch.einsum('bhqe,bhke->bhqk', q, k) * scale
            scores = torch.where(mask[None, None], scores, -1000000000.0)
            p = _softmax(scores, axis=-1)
            o = torch.einsum('bhqk,bhke->bhqe', p, v)
            o = torch.einsum('bhte,hed->btd', o, Wo)
            mem = o[:, :M, :].clone()
            outs.append(o[:, M:, :])
        return torch.concatenate(outs, axis=1)

    def _B_ref(x, w_r, w_i):
        B, S, D = x.shape
        X = (lambda x, axes=(-2, -1): torch.fft.rfft2(x.float(), dim=axes))(x, axes=(-2, -1))
        W = w_r + 1j * w_i
        X = X * W
        y = (lambda x, s, axes=(-2, -1): torch.fft.irfft2(x, s=s, dim=axes).to(torch.bfloat16))(X, (S, D), axes=(-2, -1))
        return y
    x = A_x
    x = x + _A_ref(_layernorm(x, axis=-1), A_mem0, A_Wq, A_Wk, A_Wv, A_Wo, A_seg_len)
    x = x + _B_ref(_layernorm(x, axis=-1), B_w_r, B_w_i)
    x = x + _A_ref(_layernorm(x, axis=-1), A_mem0, A_Wq, A_Wk, A_Wv, A_Wo, A_seg_len)
    x = x + _B_ref(_layernorm(x, axis=-1), B_w_r, B_w_i)
    return x
```

```python
class Asm:
    def __init__(self):
        self.l=[]; Asm.G[0]+=1; self.n=Asm.G[0]
    def __call__(self,s):
        for x in s.split('\n'):
            x=x.strip()
            if x: self.l.append(x)
    G=[0]
    def lab(self,p='L'):
        Asm.G[0]+=1; self.n=Asm.G[0]; return f'.L{p}_{self.n}'
    def text(self): return '\n'.join(self.l)+'\n'
def vr(a,n=1): return f'v{a}' if n==1 else f'v[{a}:{a+n-1}]'
def ar(a,n=1): return f'a{a}' if n==1 else f'a[{a}:{a+n-1}]'
def sr(a,n=1): return f's{a}' if n==1 else f's[{a}:{a+n-1}]'
def head(name):
    return f'.text\n.globl {name}\n.p2align 8\n.type {name},@function\n{name}:\n'
def kd(name, vgpr=256, agpr=0, sgpr=102):
    acc=(vgpr+3)//4*4
    return f'''.section .rodata,"a"
.p2align 6
.amdhsa_kernel {name}
.amdhsa_next_free_vgpr {acc+agpr if agpr else vgpr}
.amdhsa_next_free_sgpr {sgpr}
.amdhsa_accum_offset {acc}
.amdhsa_group_segment_fixed_size 0
.amdhsa_kernarg_size 104
.amdhsa_user_sgpr_count 2
.amdhsa_user_sgpr_kernarg_segment_ptr 1
.amdhsa_system_sgpr_workgroup_id_x 1
.end_amdhsa_kernel
.text
'''
def interleave(a, mf, fillers, per=2):
    q=list(fillers)
    for i,m in enumerate(mf):
        a(m)
        k=0
        while k<per and q and q[0][0]<=i:
            a(q.pop(0)[1]); k+=1
    for _,t in q: a(t)
```

```python
from common import *
from ln import *
B1_LDS=32*RS
def b1_kernel(name, stflags=''):
    a=Asm(); a.l.append(head(name)); ex=name+'_exit'
    S_W=17; S_TB=18; S_TL=19; S_MASK=20; S_ACT=22; TS=24
    X=[8,16,24,32]; F=[40,56,72,88]; T=[104,112,120,128]
    a(f'''s_cmp_ge_u32 s2, 256
    s_cbranch_scc1 {ex}
    s_load_dwordx2 s[4:5], s[0:1], {KA['ws']}
    v_lshrrev_b32 v1, 6, v0
    v_and_b32 v0, 63, v0
    s_lshr_b32 s{S_TB}, s2, 2
    s_and_b32 s{S_TL}, s2, 3
    v_readfirstlane_b32 s{S_W}, v1
    s_mov_b32 s{S_MASK}, 0xffff0000
    v_and_b32 v2, 31, v0
    v_cmp_gt_u32 s[{S_ACT}:{S_ACT+1}], 28, v2
    s_lshl_b32 s{S_TL}, s{S_TL}, 2
    s_waitcnt lgkmcnt(0)
    s_add_u32 s{S_TL}, s{S_TL}, s{S_W}''')
    srd(a,8,4,0x10000000)
    a(f'''s_lshl_b32 s{TS}, s{S_TB}, 5
    s_lshl_b32 s{TS+1}, s{S_W}, 3
    s_add_u32 s{TS}, s{TS}, s{TS+1}
    v_lshrrev_b32 v3, 5, v0
    v_add_u32 v4, s{TS}, v3
    v_mul_u32_u24 v4, 896, v4
    v_lshlrev_b32 v5, 5, v2
    v_add_u32 v4, v4, v5
    v_mov_b32 v6, 0x10000000
    v_cndmask_b32 v4, v6, v4, s[{S_ACT}:{S_ACT+1}]
    v_add_u32 v7, s{TS+1}, v3
    v_mul_u32_u24 v7, {RS}, v7
    v_add_u32 v7, v7, v5
    s_mov_b32 s{TS+2}, {ws.X1}
    s_add_u32 s{TS+3}, s{TS+2}, 3584''')
    for it in range(4):
        so=TS+2 if it<2 else TS+3; o=(it&1)*1792
        a(f'buffer_load_dwordx4 v[{X[it]}:{X[it]+3}], v4, s[8:11], s{so} offen offset:{o}')
        a(f'buffer_load_dwordx4 v[{X[it]+4}:{X[it]+7}], v4, s[8:11], s{so} offen offset:{o+16}')
    lnt=a.lab('b1nt')
    a(f'''v_lshlrev_b32 v1, 4, v0
    s_mul_i32 s{TS+4}, s{S_TL}, 28672
    s_add_u32 s{TS+4}, s{TS+4}, {ws.FW}
    s_cmp_ge_u32 s{S_TL}, 15
    s_cselect_b32 s{TS+5}, 0x10000000, 0
    v_add_u32 v1, s{TS+5}, v1''')
    for f in range(28):
        a(f'buffer_load_dwordx4 a[{4*f}:{4*f+3}], v1, s[8:11], s{TS+4} offen offset:{(f&3)*1024}')
        if (f&3)==3: a(f's_add_u32 s{TS+4}, s{TS+4}, 4096')
    a('s_waitcnt vmcnt(28)')
    ln_multi(a,[(X[i],F[i],T[i]) for i in range(4)],S_MASK,S_ACT)
    a(f's_mov_b64 s[{TS}:{TS+1}], exec\ns_mov_b64 exec, s[{S_ACT}:{S_ACT+1}]')
    for it in range(4):
        a(f'ds_write_b128 v7, v[{X[it]}:{X[it]+3}] offset:{it*2*RS}')
        a(f'ds_write_b128 v7, v[{X[it]+4}:{X[it]+7}] offset:{it*2*RS+16}')
    a(f's_mov_b64 exec, s[{TS}:{TS+1}]')
    a(f'''v_mul_u32_u24 v5, {RS}, v2
    v_lshlrev_b32 v6, 4, v3
    v_add_u32 v5, v5, v6
    s_lshl_b32 s{TS}, s{S_TL}, 5
    v_add_u32 v7, s{TS}, v2
    v_lshlrev_b32 v7, 12, v7
    v_add_u32 v7, v7, v6
    s_lshl_b32 s{TS}, s{S_TB}, 6
    s_add_u32 s{TS}, s{TS}, {ws.FT}
    s_waitcnt lgkmcnt(0)
    s_barrier
    s_cmp_ge_u32 s{S_TL}, 15
    s_cbranch_scc1 {ex}''')
    A=40
    for ks in range(28):
        a(f'ds_read_b128 v[{A+4*ks}:{A+4*ks+3}], v5 offset:{ks*32}')
        if ks==13: a('s_waitcnt lgkmcnt(8)')
    ACC=8
    a('s_waitcnt vmcnt(0)')
    for ks in range(28):
        if ks<28-14 and ks%2==0: a(f's_waitcnt lgkmcnt({max(0,min(14,12-ks))})') if False else None
    a('s_waitcnt lgkmcnt(14)')
    for ks in range(28):
        if ks==14: a('s_waitcnt lgkmcnt(0)')
        c='0' if ks==0 else f'v[{ACC}:{ACC+15}]'
        a(f'v_mfma_f32_32x32x16_bf16 v[{ACC}:{ACC+15}], v[{A+4*ks}:{A+4*ks+3}], a[{4*ks}:{4*ks+3}], {c}')
    a('s_nop 7\ns_nop 3')
    O=24
    for qp in range(2):
        q0=ACC+8*qp; q1=q0+4; o=O+4*qp
        a(f'''v_cvt_pk_bf16_f32 v{o}, v{q0}, v{q0+1}
        v_cvt_pk_bf16_f32 v{o+1}, v{q0+2}, v{q0+3}
        v_cvt_pk_bf16_f32 v{o+2}, v{q1}, v{q1+1}
        v_cvt_pk_bf16_f32 v{o+3}, v{q1+2}, v{q1+3}
        s_nop 1
        v_permlane32_swap_b32 v{o}, v{o+2}
        v_permlane32_swap_b32 v{o+1}, v{o+3}
        buffer_store_dwordx4 v[{o}:{o+3}], v7, s[8:11], s{TS} offen offset:{32*qp} {stflags}''')
    a(f's_waitcnt vmcnt(0)\n{ex}:\ns_endpgm')
    return a.text()+kd(name,vgpr=152,agpr=112)
if __name__=='__main__':
    t='.amdgcn_target "amdgcn-amd-amdhsa--gfx950"\n'+b1_kernel('b1_kernel')
    open('b1.s','w').write(t)
```

```python
from common import *
B3_LDS=29*1024
def b3_kernel(name, dst, stflags=''):
    a=Asm(); a.l.append(head(name)); ex=name+'_exit'
    S_W=17; S_TB=18; S_DT=19; TS=24
    VL=1; VTR=2; VX=3; RES=8; ACC=16; B=32; O=24
    a(f'''s_cmp_ge_u32 s2, 256
    s_cbranch_scc1 {ex}
    s_load_dwordx2 s[4:5], s[0:1], {KA['ws']}
    s_load_dwordx2 s[6:7], s[0:1], {KA['out']}
    v_lshrrev_b32 v1, 6, v0
    v_and_b32 v0, 63, v0
    s_lshr_b32 s{S_TB}, s2, 2
    s_and_b32 s{S_DT}, s2, 3
    v_readfirstlane_b32 s{S_W}, v1
    s_lshl_b32 s{S_DT}, s{S_DT}, 2
    s_waitcnt lgkmcnt(0)
    s_add_u32 s{S_DT}, s{S_DT}, s{S_W}''')
    srd(a,8,4,0x10000000)
    if dst=='out': srd(a,12,6,1835008); osrd,oso='s[12:15]','0'
    else: a(f's_mov_b32 s22, {dst}'); osrd,oso='s[8:11]','s22'
    a(f'''v_lshrrev_b32 v4, 2, v0
    v_lshlrev_b32 v4, 12, v4
    v_and_b32 v5, 3, v0
    v_lshlrev_b32 v5, 4, v5
    v_add_u32 v4, v4, v5
    s_lshl_b32 s{TS}, s{S_TB}, 6
    s_add_u32 s{TS}, s{TS}, {ws.GT}
    s_lshl_b32 s{TS+1}, s{S_W}, 16
    s_add_u32 s{TS}, s{TS}, s{TS+1}
    s_lshl_b32 s{TS+1}, s{S_W}, 10''')
    for n in range(8):
        lsk=a.lab('b3s')
        if n==7: a(f's_cmp_ge_u32 s{S_W}, 1\ns_cbranch_scc1 {lsk}')
        a(f's_add_u32 m0, s{TS+1}, {n*4096}\ns_add_u32 s{TS+2}, s{TS}, {n*4*65536}\nbuffer_load_dwordx4 v4, s[8:11], s{TS+2} offen lds')
        if n==7: a(f'{lsk}:')
    lidle=a.lab('b3idle')
    a(f's_cmp_ge_u32 s{S_DT}, 14\ns_cbranch_scc1 {lidle}')
    a(f'''v_and_b32 v5, 31, v0
    s_lshl_b32 s{TS}, s{S_TB}, 5
    v_add_u32 v6, s{TS}, v5
    v_mul_u32_u24 v6, 896, v6
    v_lshrrev_b32 v7, 5, v0
    v_lshlrev_b32 v7, 4, v7
    s_lshl_b32 s{TS}, s{S_DT}, 6
    v_add3_u32 v{VX}, v6, v7, s{TS}
    s_mov_b32 s{TS+3}, {ws.X1}
    v_lshlrev_b32 v{VL}, 4, v0
    s_mul_i32 s{TS}, s{S_DT}, {29*1024}
    s_add_u32 s{TS}, s{TS}, {ws.IV}''')
    for f in range(29):
        a(f'buffer_load_dwordx4 a[{4*f}:{4*f+3}], v{VL}, s[8:11], s{TS} offen offset:{(f&3)*1024}')
        if (f&3)==3: a(f's_add_u32 s{TS}, s{TS}, 4096')
    a(f'buffer_load_dwordx4 v[{RES}:{RES+3}], v{VX}, s[8:11], s{TS+3} offen')
    a(f'buffer_load_dwordx4 v[{RES+4}:{RES+7}], v{VX}, s[8:11], s{TS+3} offen offset:32')
    a(f'''v_lshrrev_b32 v5, 5, v0
    v_lshlrev_b32 v5, 9, v5
    v_lshrrev_b32 v6, 2, v0
    v_and_b32 v6, 3, v6
    v_lshlrev_b32 v6, 6, v6
    v_add_u32 v5, v5, v6
    v_lshrrev_b32 v6, 4, v0
    v_and_b32 v6, 1, v6
    v_lshlrev_b32 v6, 5, v6
    v_and_b32 v7, 3, v0
    v_lshlrev_b32 v7, 3, v7
    v_add3_u32 v{VTR}, v5, v6, v7
    s_waitcnt vmcnt(31)
    s_barrier''')
    for ks in range(29):
        a(f'ds_read_b64_tr_b16 v[{B+4*ks}:{B+4*ks+1}], v{VTR} offset:{ks*1024}')
        a(f'ds_read_b64_tr_b16 v[{B+4*ks+2}:{B+4*ks+3}], v{VTR} offset:{ks*1024+256}')
    a('s_waitcnt vmcnt(2) lgkmcnt(0)')
    for ks in range(29):
        c='0' if ks==0 else f'v[{ACC}:{ACC+15}]'
        a(f'v_mfma_f32_32x32x16_bf16 v[{ACC}:{ACC+15}], a[{4*ks}:{4*ks+3}], v[{B+4*ks}:{B+4*ks+3}], {c}')
    a('s_waitcnt vmcnt(0)\ns_nop 7\ns_nop 2')
    F=B
    for qp in range(2):
        q0=ACC+8*qp; q1=q0+4; o=B+8+4*qp; r=RES+4*qp
        a(f'''v_cvt_pk_bf16_f32 v{o}, v{q0}, v{q0+1}
        v_cvt_pk_bf16_f32 v{o+1}, v{q0+2}, v{q0+3}
        v_cvt_pk_bf16_f32 v{o+2}, v{q1}, v{q1+1}
        v_cvt_pk_bf16_f32 v{o+3}, v{q1+2}, v{q1+3}
        s_nop 1
        v_permlane32_swap_b32 v{o}, v{o+2}
        v_permlane32_swap_b32 v{o+1}, v{o+3}''')
        for q in range(4):
            a(f'''v_lshlrev_b32 v{F}, 16, v{o+q}
            v_and_b32 v{F+1}, 0xffff0000, v{o+q}
            v_lshlrev_b32 v{F+2}, 16, v{r+q}
            v_and_b32 v{F+3}, 0xffff0000, v{r+q}
            v_pk_add_f32 v[{F}:{F+1}], v[{F}:{F+1}], v[{F+2}:{F+3}]
            v_cvt_pk_bf16_f32 v{o+q}, v{F}, v{F+1}''')
        a(f'buffer_store_dwordx4 v[{o}:{o+3}], v{VX}, {osrd}, {oso} offen offset:{32*qp} {stflags}')
    a(f's_waitcnt vmcnt(0)\ns_endpgm\n{lidle}:\ns_waitcnt vmcnt(0)\ns_barrier\n{ex}:\ns_endpgm')
    return a.text()+kd(name,vgpr=B+116,agpr=116)
if __name__=='__main__':
    t='.amdgcn_target "amdgcn-amd-amdhsa--gfx950"\n'+b3_kernel('b3_kernel','out')
    open('b3.s','w').write(t)
```

```python
from asm import *
from lay import ws
KA=dict(x=0,mem0=8,wq=16,wk=24,wv=32,wo=40,wr=64,wi=72,out=80,dbg=88,ws=96)
def srd(a, s, karg_reg, nbytes):
    a(f'''s_mov_b32 s{s}, s{karg_reg}
    s_mov_b32 s{s+1}, s{karg_reg+1}
    s_mov_b32 s{s+2}, {nbytes}
    s_mov_b32 s{s+3}, 0x00020000''')
def div_const(a, dst, src, d, maxv):
    for sh in range(8,28):
        m=((1<<sh)+d-1)//d
        if all((x*m)>>sh==x//d for x in range(maxv)) and m*maxv<(1<<31):
            a(f's_mul_i32 s{dst}, s{src}, {m}\ns_lshr_b32 s{dst}, s{dst}, {sh}'); return
    raise Exception('no magic')
```

```python
from common import *
D_LDS=3*28672
def d_body(a, S_V, S_W4, S_Q, S_WAVE, nseg=16, stride=4, stflags='', nostore=False):
    TS=24; S_CI=32; S_XT=33; S_DO=34; S_BUF=35; S_NB=36; S_I=37; S_DL=38; S_DO2=39
    VL=1; VA=2; VST=3; VN=4
    ST=8
    ACC=[40,56]
    PK=72
    a(f'''v_lshlrev_b32 v{VL}, 4, v0
    s_lshl_b32 s{TS}, s{S_V}, 2
    s_add_u32 s{TS}, s{TS}, s{S_W4}
    s_lshl_b32 s{TS+1}, s{TS}, 2
    s_add_u32 s{TS+1}, s{TS+1}, s{S_WAVE}
    s_mul_i32 s{S_CI}, s{TS+1}, 28672
    s_add_u32 s{S_CI}, s{S_CI}, {ws.CI}
    s_mul_i32 s{S_XT}, s{S_Q}, 28672
    s_mul_i32 s{TS+2}, s{S_WAVE}, 7168
    s_add_u32 s{S_XT}, s{S_XT}, s{TS+2}
    s_add_u32 s{S_XT}, s{S_XT}, {ws.XT}
    s_mov_b32 s{S_DL}, s{TS+2}''')
    def dma(buf_s, extra=0):
        o=[]
        for t in range(7):
            o.append([f's_add_u32 m0, s{buf_s}, {t*1024}', f's_add_u32 s{TS+3}, s{S_XT}, {t*1024}', f'buffer_load_dwordx4 v{VL}, s[8:11], s{TS+3} offen lds'])
        return o
    a(f's_mov_b32 s{S_NB}, s{S_DL}')
    for g in dma(S_NB):
        for x in g: a(x)
    a(f's_add_u32 s{S_XT}, s{S_XT}, {stride*28672}\ns_add_u32 s{S_NB}, s{S_DL}, 28672')
    for f in range(28):
        a(f'buffer_load_dwordx4 a[{4*f}:{4*f+3}], v{VL}, s[8:11], s{S_CI} offen offset:{(f&3)*1024}')
        if (f&3)==3: a(f's_add_u32 s{S_CI}, s{S_CI}, 4096')
    for g in dma(S_NB):
        for x in g: a(x)
    a(f's_add_u32 s{S_XT}, s{S_XT}, {stride*28672}\ns_add_u32 s{S_NB}, s{S_DL}, {2*28672}')
    a(f'''v_lshrrev_b32 v5, 5, v0
    v_lshlrev_b32 v5, 11, v5
    v_and_b32 v6, 15, v0
    v_lshlrev_b32 v6, 4, v6
    v_lshrrev_b32 v7, 4, v0
    v_and_b32 v7, 1, v7
    v_lshlrev_b32 v7, 8, v7
    v_add3_u32 v5, v5, v6, v7
    s_lshr_b32 s{TS+1}, s{S_WAVE}, 1
    s_lshl_b32 s{TS+1}, s{TS+1}, 10
    s_and_b32 s{TS+2}, s{S_WAVE}, 1
    s_lshl_b32 s{TS+2}, s{TS+2}, 9
    s_add_u32 s{TS+1}, s{TS+1}, s{TS+2}
    v_add_u32 v{VST}, s{TS+1}, v5
    s_mul_i32 s{S_DO}, s{S_Q}, {14*32768}
    s_lshl_b32 s{TS}, s{TS}, 13
    s_add_u32 s{S_DO}, s{S_DO}, s{TS}
    s_add_u32 s{S_DO}, s{S_DO}, {ws.DI}
    v_mov_b32 v{VA}, v{VL}
    {'v_mov_b32 v3, 0x10000000' if nostore else ''}
    v_add_u32 v{VN}, 28672, v{VL}
    s_mov_b32 s{S_BUF}, 28672
    s_mov_b32 s{S_I}, 0
    s_waitcnt vmcnt(35)
    s_barrier''')
    def rd(k, vreg, stage):
        b=ST+8*stage
        return [f'ds_read_b128 v[{b}:{b+3}], v{vreg} offset:{k*1024}', f'ds_read_b128 v[{b+4}:{b+7}], v{vreg} offset:{14336+k*1024}']
    for k in range(2):
        for x in rd(k,VA,k): a(x)
    a('s_waitcnt vmcnt(0)')
    loop=a.lab('dloop');
    a(f'{loop}:')
    for par in range(2):
        acc=ACC[par]; pacc=ACC[par^1]
        epi=[]
        for tau in range(2):
            for ab in range(2):
                q=pacc+8*tau+4*ab; o=PK+4*tau+2*ab
                epi.append(f'v_cvt_pk_bf16_f32 v{o}, v{q}, v{q+1}'); epi.append(f'v_cvt_pk_bf16_f32 v{o+1}, v{q+2}, v{q+3}')
        lns=a.lab('dns')
        st=[f'buffer_store_dwordx4 v[{PK}:{PK+3}], v{VST}, s[8:11], s{S_DO} offen {stflags}',
            f's_add_u32 s{S_DO2}, s{S_DO}, 4096',
            f'buffer_store_dwordx4 v[{PK+4}:{PK+7}], v{VST}, s[8:11], s{S_DO2} offen {stflags}',
            f's_add_u32 s{S_DO}, s{S_DO}, {stride*14*32768}']
        dm=None
        for k in range(14):
            stage=(14*par+k)&3; b=ST+8*stage
            a('s_waitcnt lgkmcnt(2)')
            fl=[]
            k2=k+2
            fl+= rd(k2,VA,(stage+2)&3) if k2<14 else rd(k2-14,VN,(stage+2)&3)
            if k in (1,2): fl+=epi[4*(k-1):4*k]
            mf=[]
            for tau in range(2):
                for ab in range(2):
                    d=acc+8*tau+4*ab; f=tau*14+k
                    c='0' if k==0 else f'v[{d}:{d+3}]'
                    mf.append(f'v_mfma_f32_16x16x32_bf16 v[{d}:{d+3}], v[{b+4*ab}:{b+4*ab+3}], a[{4*f}:{4*f+3}], {c}')
            if k==3:
                a(mf[0]);
                for x in fl[:2]: a(x)
                if par==0: a(f's_cmp_eq_u32 s{S_I}, 0\ns_cbranch_scc1 {lns}')
                for x in st: a(x)
                if par==0: a(f'{lns}:')
                for m in mf[1:]: a(m)
                continue
            if k==7:
                a(mf[0])
                for x in fl[:2]: a(x)
                a('s_waitcnt vmcnt(2)\ns_barrier')
                for m in mf[1:]: a(m)
                dm=dma(S_NB)
                ld=a.lab('dnd')
                a(f's_add_u32 s{TS}, s{S_I}, {2+par}\ns_cmp_ge_u32 s{TS}, {nseg}\ns_cselect_b32 s{TS+4}, 0x10000000, 0')
                a(f'v_add_u32 v5, s{TS+4}, v{VL}')
                continue
            if dm is not None and k>=8:
                g=dm.pop(0); g=[g[0],g[1],g[2].replace(f'v{VL},','v5,')]
                fl+=g
                if k==13:
                    g=dm.pop(0); fl+=[g[0],g[1],g[2].replace(f'v{VL},','v5,')]
            q=list(fl)
            for j,m in enumerate(mf):
                a(m)
                n=(len(q)+(3-j))//(4-j) if j<3 else len(q)
                for _ in range(n): a(q.pop(0))
            if k==13:
                a(f'''s_add_u32 s{S_XT}, s{S_XT}, {stride*28672}
                v_mov_b32 v{VA}, v{VN}
                s_add_u32 s{S_BUF}, s{S_BUF}, 28672
                s_cmp_ge_u32 s{S_BUF}, {3*28672}
                s_cselect_b32 s{S_BUF}, 0, s{S_BUF}
                v_add_u32 v{VN}, s{S_BUF}, v{VL}
                s_add_u32 s{TS}, s{S_BUF}, 28672
                s_cmp_ge_u32 s{TS}, {3*28672}
                s_cselect_b32 s{TS}, 0, s{TS}
                s_add_u32 s{S_NB}, s{TS}, s{S_DL}''')
        assert not dm
    a(f's_add_u32 s{S_I}, s{S_I}, 2\ns_cmp_lt_u32 s{S_I}, {nseg}\ns_cbranch_scc1 {loop}')
    a('s_nop 7')
    pacc=ACC[1]
    for tau in range(2):
        for ab in range(2):
            q=pacc+8*tau+4*ab; o=PK+4*tau+2*ab
            a(f'v_cvt_pk_bf16_f32 v{o}, v{q}, v{q+1}\nv_cvt_pk_bf16_f32 v{o+1}, v{q+2}, v{q+3}')
    a(f'''buffer_store_dwordx4 v[{PK}:{PK+3}], v{VST}, s[8:11], s{S_DO} offen {stflags}
    s_add_u32 s{S_DO2}, s{S_DO}, 4096
    buffer_store_dwordx4 v[{PK+4}:{PK+7}], v{VST}, s[8:11], s{S_DO2} offen {stflags}
    s_waitcnt vmcnt(0) lgkmcnt(0)''')

def d_kernel(name,stflags='',nostore=False):
    a=Asm(); a.l.append(head(name)); ex=name+'_exit'
    a(f'''s_cmp_ge_u32 s2, 224
    s_cbranch_scc1 {ex}
    s_load_dwordx2 s[4:5], s[0:1], {KA['ws']}
    v_lshrrev_b32 v1, 6, v0
    v_and_b32 v0, 63, v0
    s_and_b32 s20, s2, 7
    s_lshr_b32 s21, s2, 3
    v_readfirstlane_b32 s17, v1
    s_and_b32 s18, s21, 3
    s_lshr_b32 s21, s21, 2
    s_lshl_b32 s21, s21, 3
    s_add_u32 s21, s21, s20
    s_lshr_b32 s16, s21, 2
    s_and_b32 s19, s21, 3
    s_waitcnt lgkmcnt(0)''')
    srd(a,8,4,0x10000000)
    d_body(a,16,19,18,17,stflags=stflags,nostore=nostore)
    a(f'{ex}:\ns_endpgm')
    return a.text()+kd(name,vgpr=80,agpr=112)
if __name__=='__main__':
    t='.amdgcn_target "amdgcn-amd-amdhsa--gfx950"\n'+d_kernel('d_kernel')
    open('d.s','w').write(t)
```

```python
from common import *
from ln import fbits
FFT_LDS=16384
def fft_kernel(name, stflags=''):
    a=Asm(); a.l.append(head(name)); ex=name+'_exit'
    S_W=17; TS=24
    VL=1; VTR=2; VW=3; VST=4; T=5
    C64=12; S64=20; N64=28; C32=36; S32=44; N32=52; TC=60; TSN=68
    WT=76
    XF=84
    Y=116
    BR=132; BI=136
    Z=140
    R=156
    a(f'''s_cmp_ge_u32 s2, 225
    s_cbranch_scc1 {ex}
    s_load_dwordx2 s[4:5], s[0:1], {KA['ws']}
    v_lshrrev_b32 v1, 6, v0
    v_and_b32 v0, 63, v0
    s_lshl_b32 s{TS}, s2, 12
    v_readfirstlane_b32 s{S_W}, v1
    v_lshlrev_b32 v{VL}, 4, v0
    s_waitcnt lgkmcnt(0)''')
    srd(a,8,4,0x10000000)
    a(f'''s_lshl_b32 s{TS+1}, s{S_W}, 10
    s_add_u32 s{TS+2}, s{TS}, s{TS+1}
    s_add_u32 s{TS+2}, s{TS+2}, {ws.FT}
    s_mov_b32 m0, s{TS+1}
    s_add_u32 s{TS+3}, s{TS+2}, {225*4096}
    buffer_load_dwordx4 v{VL}, s[8:11], s{TS+2} offen lds
    s_add_u32 m0, s{TS+1}, 4096
    s_lshl_b32 s{TS+4}, s2, 13
    buffer_load_dwordx4 v{VL}, s[8:11], s{TS+3} offen lds
    s_lshl_b32 s{TS+5}, s{S_W}, 11
    s_add_u32 s{TS+4}, s{TS+4}, s{TS+5}
    s_add_u32 s{TS+4}, s{TS+4}, {ws.WT}
    buffer_load_dwordx4 v[{WT}:{WT+3}], v{VL}, s[8:11], s{TS+4} offen
    buffer_load_dwordx4 v[{WT+4}:{WT+7}], v{VL}, s[8:11], s{TS+4} offen offset:1024''')
    a(f'''v_and_b32 v{T}, 15, v0
    v_lshrrev_b32 v{T+1}, 4, v0
    s_lshl_b32 s{TS+5}, s{S_W}, 4
    v_add_u32 v{T+2}, s{TS+5}, v{T}
    v_cvt_f32_u32 v{T+3}, v{T+2}
    v_cvt_f32_u32 v{T+4}, v{T+1}
    v_cvt_f32_u32 v{T+5}, v{T}''')
    def trig(dstc, dsts, n, revs):
        for i in range(0,n,2):
            for k in range(2):
                for x in revs[i+k]: a(x.replace('@',f'v{R+k}'))
                a(f'v_fract_f32 v{R+k}, v{R+k}')
            a(f'''v_cos_f32 v{R+2}, v{R}
            v_cos_f32 v{R+3}, v{R+1}
            v_sin_f32 v{R+4}, v{R}
            v_sin_f32 v{R+5}, v{R+1}''')
            if dstc is None: continue
            a(f's_nop 0\nv_cvt_pk_bf16_f32 v{dstc+i//2}, v{R+2}, v{R+3}\nv_cvt_pk_bf16_f32 v{dsts+i//2}, v{R+4}, v{R+5}')
    a(f'''v_mul_f32 v{T+6}, {hex(fbits(1/64.))}, v{T+3}
    v_mul_f32 v{R+6}, 8.0, v{T+4}'''.replace('8.0',hex(fbits(8.0))))
    revs=[]
    for kh in range(2):
        for u in range(8):
            revs.append([f'v_add_f32 @, {hex(fbits(float(32*kh+u)))}, v{R+6}', f'v_mul_f32 @, @, v{T+6}'])
    trig(C64,S64,16,revs)
    for i in range(8): a(f'v_xor_b32 v{N64+i}, 0x80008000, v{S64+i}')
    a(f'v_mul_f32 v{R+6}, 4.0, v{T+4}')
    revs=[]
    for t2 in range(2):
        for u in range(8):
            revs.append([f'v_add_f32 @, {hex(fbits(float(16*(u>>2)+(u&3))))}, v{R+6}', f'v_add_f32 v{R+7}, {hex(fbits(float(16*t2)))}, v{T+5}', f'v_mul_f32 @, @, v{R+7}', f'v_mul_f32 @, {hex(fbits(1/32.))}, @'])
    trig(C32,S32,16,revs)
    for i in range(8): a(f'v_xor_b32 v{N32+i}, 0x80008000, v{S32+i}')
    a(f'v_mul_f32 v{T+6}, {hex(fbits(1/2048.))}, v{T+3}')
    for t in range(2):
        for r in range(4):
            i=4*t+r
            a(f'''v_add_f32 v{R}, {hex(fbits(float(16*t+r)))}, v{R+6}
            v_mul_f32 v{R}, v{R}, v{T+6}
            v_cos_f32 v{TC+i}, v{R}
            v_sin_f32 v{TSN+i}, v{R}''')
    a(f'''v_lshlrev_b32 v{VTR}, 9, v{T+1}
    v_lshrrev_b32 v{R}, 2, v{T}
    v_lshlrev_b32 v{R}, 6, v{R}
    v_and_b32 v{R+1}, 3, v0
    v_lshlrev_b32 v{R+1}, 3, v{R+1}
    v_add3_u32 v{VTR}, v{VTR}, v{R}, v{R+1}
    v_lshlrev_b32 v{VW}, 6, v{T+2}
    v_lshlrev_b32 v{R}, 3, v{T+1}
    v_add_u32 v{VW}, v{VW}, v{R}
    v_lshlrev_b32 v{VST}, 6, v{T+2}
    v_and_b32 v{R}, 1, v{T+1}
    v_lshlrev_b32 v{R}, 5, v{R}
    v_lshrrev_b32 v{R+1}, 1, v{T+1}
    v_lshlrev_b32 v{R+1}, 4, v{R+1}
    v_add3_u32 v{VST}, v{VST}, v{R}, v{R+1}
    s_waitcnt vmcnt(2)
    s_barrier''')
    def xf(c,t,kh): return XF+16*c+8*t+4*kh
    def trreads(base):
        for c in range(2):
            for t in range(2):
                for kh in range(2):
                    for h in range(2):
                        r=xf(c,t,kh)+2*h
                        a(f'ds_read_b64_tr_b16 v[{r}:{r+1}], v{VTR} offset:{base+c*4096+kh*2048+h*256+t*32}')
    def y(c,t): return Y+8*c+4*t
    def dft64(Stab_re, Stab_im):
        first=set()
        for kh in range(2):
            for t in range(2):
                for c in range(2):
                    d=y(c,t); cc='0' if kh==0 else f'v[{d}:{d+3}]'
                    a(f'v_mfma_f32_16x16x32_bf16 v[{d}:{d+3}], v[{xf(c,t,kh)}:{xf(c,t,kh)+3}], v[{C64+4*kh}:{C64+4*kh+3}], {cc}')
        for kh in range(2):
            for t in range(2):
                for c in range(2):
                    d=y(c,t); tab=(Stab_re if c==0 else Stab_im)+4*kh
                    a(f'v_mfma_f32_16x16x32_bf16 v[{d}:{d+3}], v[{xf(1-c,t,kh)}:{xf(1-c,t,kh)+3}], v[{tab}:{tab+3}], v[{d}:{d+3}]')
    trreads(0)
    a('s_waitcnt lgkmcnt(0)')
    dft64(S64,N64)
    a('s_nop 7')
    def twiddle(src, sign, outre, outim):
        for t in range(2):
            for r in range(4):
                i=4*t+r; ar_=src+4*t+r; ai=src+8+4*t+r
                a(f'''v_mul_f32 v{R}, v{ar_}, v{TC+i}
                v_mul_f32 v{R+1}, v{ai}, v{TC+i}''')
                if sign<0:
                    a(f'v_fma_f32 v{R}, v{ai}, v{TSN+i}, v{R}\nv_fma_f32 v{ai}, -v{ar_}, v{TSN+i}, v{R+1}\nv_mov_b32 v{ar_}, v{R}')
                else:
                    a(f'v_fma_f32 v{R}, -v{ai}, v{TSN+i}, v{R}\nv_fma_f32 v{ai}, v{ar_}, v{TSN+i}, v{R+1}\nv_mov_b32 v{ar_}, v{R}')
    def pack(src, br, bi):
        for c,b in ((0,br),(1,bi)):
            for t in range(2):
                q=src+8*c+4*t
                a(f'v_cvt_pk_bf16_f32 v{b+2*t}, v{q}, v{q+1}\nv_cvt_pk_bf16_f32 v{b+2*t+1}, v{q+2}, v{q+3}')
    twiddle(Y,-1,None,None)
    pack(Y,BR,BI)
    for i in range(8): a(f'v_mul_f32 v{TC+i}, {hex(fbits(1/2048.))}, v{TC+i}\nv_mul_f32 v{TSN+i}, {hex(fbits(1/2048.))}, v{TSN+i}')
    def dft32(dst, Sre, Sim):
        for t in range(2):
            for c in range(2):
                d=dst+8*c+4*t; b=BR if c==0 else BI
                a(f'v_mfma_f32_16x16x32_bf16 v[{d}:{d+3}], v[{C32+4*t}:{C32+4*t+3}], v[{b}:{b+3}], 0')
        for t in range(2):
            for c in range(2):
                d=dst+8*c+4*t; b=BI if c==0 else BR; tab=(Sre if c==0 else Sim)+4*t
                a(f'v_mfma_f32_16x16x32_bf16 v[{d}:{d+3}], v[{tab}:{tab+3}], v[{b}:{b+3}], v[{d}:{d+3}]')
    dft32(Z,S32,N32)
    a('s_waitcnt vmcnt(0)\ns_nop 6')
    for t in range(2):
        for r in range(4):
            xr=Z+4*t+r; xi=Z+8+4*t+r; w=WT+4*t+r
            a(f'''v_lshlrev_b32 v{R}, 16, v{w}
            v_and_b32 v{R+1}, 0xffff0000, v{w}
            v_mul_f32 v{R+2}, v{xr}, v{R}
            v_mul_f32 v{R+3}, v{xi}, v{R}
            v_fma_f32 v{R+2}, -v{xi}, v{R+1}, v{R+2}
            v_fma_f32 v{xi}, v{xr}, v{R+1}, v{R+3}
            v_mov_b32 v{xr}, v{R+2}''')
    pack(Z,BR,BI)
    a('s_nop 1')
    dft32(Y,N32,S32)
    a('s_nop 7')
    twiddle(Y,+1,None,None)
    pack(Y,BR,BI)
    for c,b in ((0,BR),(1,BI)):
        for t in range(2):
            a(f'ds_write_b64 v{VW}, v[{b+2*t}:{b+2*t+1}] offset:{8192+c*4096+t*32}')
    a('s_waitcnt lgkmcnt(0)\ns_barrier')
    trreads(8192)
    a('s_waitcnt lgkmcnt(0)')
    dft64(N64,S64)
    a(f'''s_lshl_b32 s{TS}, s2, 12
    s_add_u32 s{TS}, s{TS}, {ws.GT}
    s_add_u32 s{TS+1}, s{TS}, {225*4096}
    s_nop 5''')
    for c in range(2):
        o=BR if c==0 else BI; t0=y(c,0); t1=y(c,1)
        a(f'''v_cvt_pk_bf16_f32 v{o}, v{t0}, v{t0+1}
        v_cvt_pk_bf16_f32 v{o+1}, v{t0+2}, v{t0+3}
        v_cvt_pk_bf16_f32 v{o+2}, v{t1}, v{t1+1}
        v_cvt_pk_bf16_f32 v{o+3}, v{t1+2}, v{t1+3}
        s_nop 1
        v_permlane16_swap_b32 v{o}, v{o+2}
        v_permlane16_swap_b32 v{o+1}, v{o+3}
        buffer_store_dwordx4 v[{o}:{o+3}], v{VST}, s[8:11], s{TS+c} offen {stflags}''')
    a(f's_waitcnt vmcnt(0)\n{ex}:\ns_endpgm')
    return a.text()+kd(name,vgpr=168)
if __name__=='__main__':
    t='.amdgcn_target "amdgcn-amd-amdhsa--gfx950"\n'+fft_kernel('fft_kernel')
    open('fft.s','w').write(t)
```

```python
from common import *
import math
def fold_kernel(name):
    a=Asm(); a.l.append(head(name))
    ex=name+'_exit'
    LA=0; LB=32768
    S_W=17; S_MAT=18; S_H=19; S_J=20; T0=21;T1=22;T2=23;T3=24; S_G=25; S_LB=26; S_RB=27; S_OB=28; S_IT=29; S_DL=30; S_SC=31
    a(f'''s_cmp_ge_u32 s2, 224
    s_cbranch_scc1 {ex}
    s_load_dwordx4 s[36:39], s[0:1], 16
    s_load_dwordx4 s[40:43], s[0:1], 32
    s_load_dwordx2 s[4:5], s[0:1], 96
    v_lshrrev_b32 v1, 6, v0
    v_and_b32 v0, 63, v0
    s_cmp_ge_u32 s2, 112
    s_cselect_b32 s{S_MAT}, 1, 0
    v_readfirstlane_b32 s{S_W}, v1
    s_mul_i32 s{T0}, s{S_MAT}, 112
    s_sub_u32 s{T0}, s2, s{T0}''')
    div_const(a,S_H,T0,7,112)
    a(f'''s_mul_i32 s{T1}, s{S_H}, 7
    s_sub_u32 s{S_J}, s{T0}, s{T1}
    s_waitcnt lgkmcnt(0)''')
    srd(a,8,4,0x10000000)
    a(f'''s_cmp_eq_u32 s{S_MAT}, 0
    s_cselect_b32 s12, s36, s40
    s_cselect_b32 s13, s37, s41
    s_mov_b32 s14, 3670016
    s_mov_b32 s15, 0x00020000
    s_cselect_b32 s44, s38, s42
    s_cselect_b32 s45, s39, s43
    s_mov_b32 s46, 3670016
    s_mov_b32 s47, 0x00020000''')
    a('''v_lshrrev_b32 v10, 5, v0
    v_and_b32 v11, 31, v0
    v_lshlrev_b32 v12, 13, v10''')
    for t in range(8):
        a(f'''v_add_u32 v13, {2*t}, v10
        v_xor_b32 v13, v13, v11
        v_lshlrev_b32 v13, 4, v13
        v_add_u32 v{2+t}, v13, v12''')
    a(f'''s_lshl_b32 s{T0}, s{S_J}, 6
    s_lshl_b32 s{T1}, s{S_W}, 4
    s_add_u32 s{T0}, s{T0}, s{T1}
    s_lshl_b32 s{T0}, s{T0}, 13
    s_lshl_b32 s{T1}, s{S_H}, 9
    s_add_u32 s{T0}, s{T0}, s{T1}
    s_lshl_b32 s{T2}, s{S_W}, 13''')
    for t in range(8):
        a(f'''s_add_u32 m0, s{T2}, {LA+t*1024}
        s_add_u32 s{T1}, s{T0}, {t*2*8192}
        buffer_load_dwordx4 v{2+t}, s[12:15], s{T1} offen lds''')
    a(f'''s_lshl_b32 s{S_LB}, s{S_W}, 14
    s_add_u32 s{S_LB}, s{S_LB}, {LB}''')
    a(f'''v_and_b32 v13, 15, v0
    v_xor_b32 v13, v13, v10
    v_lshlrev_b32 v13, 4, v13
    v_lshlrev_b32 v14, 9, v11
    v_add_u32 v14, v14, v13
    v_add_u32 v15, s{S_LB}, v14''')
    a(f'''v_lshrrev_b32 v13, 5, v0
    v_lshlrev_b32 v13, 9, v13
    v_lshrrev_b32 v17, 2, v0
    v_and_b32 v17, 3, v17
    v_lshlrev_b32 v17, 6, v17
    v_add_u32 v13, v13, v17
    v_lshrrev_b32 v17, 4, v0
    v_and_b32 v17, 1, v17
    v_lshlrev_b32 v17, 5, v17
    v_add_u32 v13, v13, v17
    v_and_b32 v17, 3, v0
    v_lshlrev_b32 v17, 3, v17
    v_add3_u32 v16, v13, v17, s{S_LB}''')
    a('''v_lshrrev_b32 v13, 2, v0
    v_mul_u32_u24 v13, 896, v13
    v_and_b32 v17, 3, v0
    v_lshlrev_b32 v17, 4, v17
    v_add_u32 v17, v17, v13''')
    a('''v_and_b32 v13, 15, v0
    v_lshlrev_b32 v18, 4, v10
    v_add_u32 v13, v13, v18
    v_lshlrev_b32 v13, 4, v13
    v_lshrrev_b32 v18, 4, v11
    v_mul_u32_u24 v19, 0x18800, v18
    v_mul_u32_u24 v18, 0x3800, v18
    v_add_u32 v18, v18, v13
    v_add_u32 v19, v19, v13''')
    eoff_pair=lambda c: 8*((c&15)>>2)+4*(c>>4)+(c&3)
    eoff_odd=lambda c: 112*(c>>4)+(c&15)
    def dmaB(kind):
        for t in range(16):
            if kind=='C':
                a(f's_add_u32 m0, s{S_LB}, {t*1024}\ns_add_u32 s{T1}, s{S_RB}, {t*16*896}\nbuffer_load_dwordx4 v17, s[44:47], s{T1} offen lds')
            else:
                eo=(eoff_pair if kind=='P' else eoff_odd)(2*t)
                a(f's_add_u32 m0, s{S_LB}, {t*1024}\ns_add_u32 s{T1}, s{S_RB}, {eo*8192}\nbuffer_load_dwordx4 v{2+(t&7)}, s[44:47], s{T1} offen lds')
    def setup_and_dma(tag):
        lC=a.lab('fC'); lO=a.lab('fO'); lE=a.lab('fE')
        a(f's_cmp_lg_u32 s{S_MAT}, 0\ns_cbranch_scc1 {lC}\ns_cmp_ge_u32 s{S_G}, 12\ns_cbranch_scc1 {lO}')
        div_const(a,T0,S_G,3,16)
        a(f'''s_mul_i32 s{T1}, s{T0}, 3
        s_sub_u32 s{T1}, s{S_G}, s{T1}
        s_mul_i32 s{T2}, s{T0}, 112
        s_lshl_b32 s{T3}, s{T1}, 5
        s_add_u32 s{T2}, s{T2}, s{T3}
        s_lshl_b32 s{T2}, s{T2}, 13
        s_lshl_b32 s{T3}, s{S_H}, 9
        s_add_u32 s{S_RB}, s{T2}, s{T3}''')
        dmaB('P')
        a(f's_branch {lE}\n{lO}:')
        a(f'''s_sub_u32 s{T0}, s{S_G}, 12
        s_mul_i32 s{T2}, s{T0}, 224
        s_add_u32 s{T2}, s{T2}, 96
        s_lshl_b32 s{T2}, s{T2}, 13
        s_lshl_b32 s{T3}, s{S_H}, 9
        s_add_u32 s{S_RB}, s{T2}, s{T3}''')
        dmaB('O')
        a(f's_branch {lE}\n{lC}:')
        a(f'''s_mul_i32 s{T2}, s{S_H}, 229376
        s_lshl_b32 s{T3}, s{S_G}, 6
        s_add_u32 s{S_RB}, s{T2}, s{T3}''')
        dmaB('C')
        a(f'{lE}:')
    a(f's_mov_b32 s{S_G}, s{S_W}')
    setup_and_dma(0)
    a(f's_waitcnt vmcnt(16)\ns_barrier')
    for ks in range(16):
        a(f'v_xor_b32 v13, {ks<<5}, v14')
        a(f'ds_read_b128 a[{4*ks}:{4*ks+3}], v13')
        a(f'ds_read_b128 a[{64+4*ks}:{64+4*ks+3}], v13 offset:16384')
    sc=math.log2(math.e)/16.0
    import struct
    scb=struct.unpack('<I',struct.pack('<f',sc))[0]
    a(f's_cmp_eq_u32 s{S_MAT}, 0\ns_cselect_b32 s{S_SC}, {hex(scb)}, 1.0')
    loop=a.lab('floop'); last=a.lab('flast'); l1=a.lab('fr'); l2=a.lab('fr')
    a(f'{loop}:')
    a('s_waitcnt vmcnt(0) lgkmcnt(0)')
    a(f's_cmp_lg_u32 s{S_MAT}, 0\ns_cbranch_scc1 {l1}')
    for ks in range(16):
        a(f'v_xor_b32 v13, {ks<<5}, v15\nds_read_b128 v[{64+4*ks}:{64+4*ks+3}], v13')
    a(f's_branch {l2}\n{l1}:')
    for ks in range(16):
        a(f'ds_read_b64_tr_b16 v[{64+4*ks}:{64+4*ks+1}], v16 offset:{ks*1024}')
        a(f'ds_read_b64_tr_b16 v[{64+4*ks+2}:{64+4*ks+3}], v16 offset:{ks*1024+256}')
    a(f'{l2}:')
    lC=a.lab('oC'); lO=a.lab('oO'); lE=a.lab('oE')
    a(f's_cmp_lg_u32 s{S_MAT}, 0\ns_cbranch_scc1 {lC}\ns_cmp_ge_u32 s{S_G}, 12\ns_cbranch_scc1 {lO}')
    div_const(a,T0,S_G,3,16)
    a(f'''s_mul_i32 s{T1}, s{T0}, 3
    s_sub_u32 s{T1}, s{S_G}, s{T1}
    s_lshl_b32 s{T2}, s{S_H}, 2
    s_add_u32 s{T2}, s{T2}, s{T0}
    s_mul_i32 s{T2}, s{T2}, 49
    s_mul_i32 s{T1}, s{T1}, 14
    s_add_u32 s{T2}, s{T2}, s{T1}
    s_add_u32 s{T2}, s{T2}, s{S_J}
    s_lshl_b32 s{T2}, s{T2}, 11
    s_add_u32 s{S_OB}, s{T2}, {ws.AI}
    v_mov_b32 v20, v18
    s_branch {lE}
    {lO}:
    s_sub_u32 s{T0}, s{S_G}, 12
    s_lshl_b32 s{T0}, s{T0}, 1
    s_lshl_b32 s{T2}, s{S_H}, 2
    s_add_u32 s{T2}, s{T2}, s{T0}
    s_mul_i32 s{T2}, s{T2}, 49
    s_add_u32 s{T2}, s{T2}, 42
    s_add_u32 s{T2}, s{T2}, s{S_J}
    s_lshl_b32 s{T2}, s{T2}, 11
    s_add_u32 s{S_OB}, s{T2}, {ws.AI}
    v_mov_b32 v20, v19
    s_branch {lE}
    {lC}:
    s_lshl_b32 s{T2}, s{S_G}, 4
    s_add_u32 s{T2}, s{T2}, s{S_H}
    s_mul_i32 s{T2}, s{T2}, 14
    s_add_u32 s{T2}, s{T2}, s{S_J}
    s_lshl_b32 s{T2}, s{T2}, 11
    s_add_u32 s{S_OB}, s{T2}, {ws.CI}
    v_mov_b32 v20, v18
    {lE}:''')
    a(f's_waitcnt lgkmcnt(0)\ns_add_u32 s{S_G}, s{S_G}, 4\ns_cmp_ge_u32 s{S_G}, 14\ns_cbranch_scc1 {last}')
    setup_and_dma(1)
    a(f'{last}:')
    for ks in range(16):
        for eta in range(2):
            c='0' if ks==0 else f'v[{128+16*eta}:{128+16*eta+15}]'
            a(f'v_mfma_f32_32x32x16_bf16 v[{128+16*eta}:{128+16*eta+15}], a[{64*eta+4*ks}:{64*eta+4*ks+3}], v[{64+4*ks}:{64+4*ks+3}], {c}')
    a('s_nop 7\ns_nop 3')
    for eta in range(2):
        b=128+16*eta
        if eta==1: a('s_nop 0')
        for r in range(16): a(f'v_mul_f32 v{b+r}, s{S_SC}, v{b+r}')
        for aa in range(2):
            o=24+4*aa+8*eta; q=b+8*aa
            a(f'''v_cvt_pk_bf16_f32 v{o}, v{q}, v{q+1}
            v_cvt_pk_bf16_f32 v{o+1}, v{q+4}, v{q+5}
            v_cvt_pk_bf16_f32 v{o+2}, v{q+2}, v{q+3}
            v_cvt_pk_bf16_f32 v{o+3}, v{q+6}, v{q+7}
            buffer_store_dwordx4 v[{o}:{o+3}], v20, s[8:11], s{S_OB} offen offset:{eta*1024+aa*512}''')
    a(f's_cmp_lt_u32 s{S_G}, 14\ns_cbranch_scc1 {loop}')
    a(f's_waitcnt vmcnt(0)\n{ex}:\ns_endpgm')
    return a.text()+kd(name,vgpr=160,agpr=128)
FOLD_LDS=32768+4*16384
```

```python
import re,sys
TRANS=('v_exp_f32','v_log_f32','v_rcp_f32','v_rsq_f32','v_sqrt_f32','v_sin_f32','v_cos_f32')
def regs(op):
    op=op.strip()
    m=re.fullmatch(r'([vas])(\d+)',op)
    if m: return {(m.group(1),int(m.group(2)))}
    m=re.fullmatch(r'([vas])\[(\d+):(\d+)\]',op)
    if m: return {(m.group(1),i) for i in range(int(m.group(2)),int(m.group(3))+1)}
    if op=='vcc': return {('s','vcc')}
    if op=='m0': return {('s','m0')}
    if op=='exec': return {('s','exec')}
    return set()
class I: pass
def parse(line):
    t=line.split(None,1); i=I(); i.op=t[0]; i.line=line
    rest=t[1] if len(t)>1 else ''
    ops=[x.strip() for x in re.split(r',(?![^\[]*\])',rest)]
    if ops:
        last=ops[-1].split()
        if last: ops[-1]=last[0]; i.mods=' '.join(last[1:])
        else: i.mods=''
    else: i.mods=''
    i.ops=ops
    op=i.op
    i.valu=op.startswith('v_') and not op.startswith(('v_mfma','v_smfmac'))
    i.mfma=op.startswith(('v_mfma','v_smfmac'))
    i.ds=op.startswith('ds_'); i.vmem=op.startswith(('buffer_','global_','flat_')); i.salu=op.startswith('s_')
    i.dpp=('_dpp' in op) or ('row_' in i.mods) ; i.trans=any(op.startswith(x) for x in TRANS)
    i.w=set(); i.r=set(); i.states=1
    R=[regs(o) for o in ops]
    i.src0=R[1] if len(R)>1 else set()
    if op=='s_nop': i.states=int(ops[0],0)+1
    elif i.mfma:
        i.D=R[0]; i.A=R[1]; i.B=R[2]
        if op.startswith('v_smfmac'): i.C=R[0]; i.idx=R[3]
        else: i.C=R[3]; i.idx=set()
        i.passes=8 if '32x32' in op else 4
        i.w=i.D; i.r=i.A|i.B|i.C|i.idx
    elif i.valu:
        if op.startswith('v_cmp'):
            i.w=R[0]; i.r=set().union(*R[1:])
        elif 'permlane' in op and 'swap' in op:
            i.w=R[0]|R[1]; i.r=R[0]|R[1]
        elif op.startswith('v_nop'): pass
        else:
            i.w=R[0]; i.r=set().union(*R[1:]) if len(R)>1 else set()
            if op.startswith(('v_cndmask','v_addc','v_subb')) and len(ops)==3: i.r|={('s','vcc')}
            if i.dpp or op.startswith(('v_fmac','v_mac')) or 'd16' in op: i.r|=R[0]
            if '_co_' in op: i.w|=R[1]
    elif i.ds:
        if op.startswith('ds_read') or op.startswith('ds_bpermute') or op.startswith('ds_swizzle'):
            i.w=R[0]; i.r=set().union(*R[1:])
        else: i.r=set().union(*R)
    elif i.vmem:
        lds=' lds' in (' '+i.mods)
        if 'load' in op and not lds: i.w=R[0]; i.r=set().union(*R[1:])
        elif 'atomic' in op:
            i.r=set().union(*R)
            if 'sc0' in i.mods: i.w=R[0]
        else: i.r=set().union(*R)
        i.lds=lds
        i.bigstore=('store' in op and ('x3' in op or 'x4' in op))
        i.data=R[0]
    elif i.salu:
        if op.startswith(('s_cmp','s_cbranch','s_branch','s_waitcnt','s_barrier','s_endpgm','s_sleep','s_setprio')): i.r=set().union(*R) if R else set()
        else:
            i.w=R[0] if R else set(); i.r=set().union(*R[1:]) if len(R)>1 else set()
            if 'saveexec' in op: i.w|={('s','exec')}
    return i
def isv(s): return {x for x in s if x[0] in 'va'}
def iss(s): return {x for x in s if x[0]=='s'}
def check(text, verbose=True):
    ins=[]
    for ln in text.split('\n'):
        ln=ln.split(';')[0].strip()
        if not ln or ln.startswith('.') and not ln.startswith('.L') or ln.endswith(':'):
            if ln.endswith(':'): ins.append(None if False else 'LAB')
            continue
        ins.append(parse(ln))
    probs=[]
    N=len(ins)
    for k,c in enumerate(ins):
        if c=='LAB': continue
        d=0
        for j in range(k-1,max(-1,k-40),-1):
            p=ins[j]
            if p=='LAB': continue
            if p.op in ('s_branch','s_endpgm','s_setpc_b64'): break
            need=0; why=''
            def N_(n,w):
                nonlocal need,why
                if n>need: need,why=n,w
            pw=isv(p.w);
            if p.valu:
                if c.valu and c.dpp and pw&c.src0: N_(2,'valu->dpp')
                if c.valu and 'permlane' in c.op and pw&c.r: N_(2,'valu->permlane')
                if c.op.startswith(('v_readfirstlane','v_readlane')) and pw&c.r: N_(1,'valu->readlane')
                if p.trans and c.valu and not c.trans and pw&c.r: N_(1,'trans->valu')
                if p.trans and (c.ds or c.vmem) and False: pass
                if c.mfma and pw&c.r: N_(2,'valu->mfma')
                sw=iss(p.w)
                if sw:
                    if c.valu and sw&c.r: N_(2,'valu sgpr->valu')
                    if c.vmem and sw&c.r: N_(5,'valu sgpr->vmem')
                    if c.mfma and ('s','exec') in sw: N_(4,'exec->mfma')
            if p.salu and ('s','m0') in p.w and c.vmem and getattr(c,'lds',False): N_(1,'m0->lds dma')
            if p.vmem and getattr(p,'bigstore',False):
                if c.valu and p.data&isv(c.w): N_(2,'store data WAR')
                elif (c.ds or c.vmem or c.mfma) and p.data&isv(c.w) and not (c.vmem or c.ds): N_(1,'store data WAR')
            if p.mfma:
                P=p.passes
                if c.mfma:
                    if p.D&(c.A|c.B|c.idx): N_(8 if P==4 else 12,'mfma D->AB')
                    if p.D&c.C and not (p.D==c.C and c.passes==P): N_(6 if P==4 else 10,'mfma D->C partial')
                    if p.D&c.D and not (p.D&c.C) : N_(6 if P==4 else 10,'mfma D->D waw?')
                elif (c.valu or c.ds or c.vmem):
                    if p.D&(isv(c.r)|isv(c.w)): N_(8 if P==4 else 12,'mfma D->valu/mem')
                if c.valu and p.C&isv(c.w): N_(3 if P==4 else 7,'mfma C WAR')
            if need>d and p.mfma:
                t=0; lastm=0; lp=p.passes; prev=p
                for q in ins[j+1:k+1]:
                    if q=='LAB': continue
                    t+=prev.states
                    if q.mfma:
                        t=max(t,lastm+lp); lastm=t; lp=q.passes
                    prev=q
                if t-1>=need: need=0
            if need>d: probs.append((k,c.line,p.line,need,d,why))
            d+=p.states
            if d>=20: break
    if verbose:
        for k,cl,pl,need,d,why in probs[:60]: print(f'HAZ {why}: need {need} have {d}\n    {pl}\n    {cl}')
        print('hazards:',len(probs))
    return probs
if __name__=='__main__':
    check(open(sys.argv[1]).read())
```

```python
from common import *
LXT=0; LXK=57344; LMA=114688; LS=131072
J1_LDS=LS+24576
NEG=0xf149f2ca
def j1_body(a, S_H, S_S0, S_WAVE, nseg, sstride, stflags=''):
    TS=24; S_AI=32; S_SEG=33; S_I=34; S_PX=35; S_PM=36; S_NXT=37; S_PAR=38
    MK=40
    MM=56
    VL=1; VB=2; VMK=3; VMKO=4; VXK=5; VXKO=6; VSW=7; VSR=8; VPX=9; VPM=10; T=11
    STG=16
    ACC=32
    KEY=88
    WV=120
    def acc(t,ab): return ACC+8*t+4*ab
    def wreg(f): return ar(4*f,4) if f<64 else vr(WV+4*(f-64),4)
    a(f'''v_lshlrev_b32 v{VL}, 4, v0
    s_lshl_b32 s{TS}, s{S_H}, 2
    s_add_u32 s{TS}, s{TS}, s{S_WAVE}
    s_mul_i32 s{S_AI}, s{TS}, {98*1024}
    s_add_u32 s{S_AI}, s{S_AI}, {ws.AI}
    s_mov_b32 s{S_SEG}, s{S_S0}''')
    def dma_list(par_sreg):
        o=[]
        pre=[f's_mul_i32 s{TS}, s{S_NXT}, 28672',
             f's_mul_i32 s{TS+1}, s{S_WAVE}, 7168',
             f's_add_u32 s{TS}, s{TS}, s{TS+1}',
             f's_mul_i32 s{TS+2}, s{par_sreg}, 28672',
             f's_add_u32 s{TS+2}, s{TS+2}, s{TS+1}',
             f's_mul_i32 s{TS+3}, s{S_NXT}, 7168',
             f's_lshl_b32 s{TS+5}, s{S_WAVE}, 10',
             f's_add_u32 s{TS+3}, s{TS+3}, s{TS+5}',
             f's_lshl_b32 s{TS+4}, s{par_sreg}, 13',
             f's_add_u32 s{TS+4}, s{TS+4}, s{TS+5}']
        o.append(pre)
        for t in range(7):
            o.append([f's_add_u32 m0, s{TS+2}, {LXT+t*1024}', f's_add_u32 s{TS+6}, s{TS}, {ws.XT+t*1024}', f'buffer_load_dwordx4 v{T+4}, s[8:11], s{TS+6} offen lds'])
        for t in range(7):
            o.append([f's_add_u32 m0, s{TS+2}, {LXK+t*1024}', f's_add_u32 s{TS+6}, s{TS}, {ws.XK+t*1024}', f'buffer_load_dwordx4 v{T+4}, s[8:11], s{TS+6} offen lds'])
        o.append([f's_add_u32 m0, s{TS+4}, {LMA}', f's_add_u32 s{TS+6}, s{TS+3}, {ws.MA}', f'buffer_load_dwordx4 v{T+4}, s[8:11], s{TS+6} offen lds'])
        o.append([f's_add_u32 m0, s{TS+4}, {LMA+4096}', f's_add_u32 s{TS+6}, s{TS+3}, {ws.MA+4096}', f'buffer_load_dwordx4 v{T+3}, s[8:11], s{TS+6} offen lds'])
        return o
    a(f'''s_mov_b32 s{S_NXT}, s{S_SEG}
    s_mov_b32 s{S_PAR}, 0
    v_mov_b32 v{T+4}, v{VL}
    s_cmp_eq_u32 s{S_WAVE}, 3
    s_cselect_b32 s{TS}, 0x10000000, 0
    v_add_u32 v{T+3}, s{TS}, v{VL}''')
    for g in dma_list(S_PAR):
        for x in g: a(x)
    for f in range(98):
        a(f'buffer_load_dwordx4 {wreg(f)}, v{VL}, s[8:11], s{S_AI} offen offset:{(f&3)*1024}')
        if (f&3)==3: a(f's_add_u32 s{S_AI}, s{S_AI}, 4096')
        if f==40: a('s_waitcnt vmcnt(20)')
        if f==80: a('s_waitcnt vmcnt(20)')
    a(f'''v_and_b32 v{T}, 15, v0
    v_lshrrev_b32 v{T+1}, 4, v0
    v_and_b32 v{T+2}, 7, v0
    v_lshlrev_b32 v{T+2}, 4, v{T+2}
    s_mul_i32 s{TS}, s{S_WAVE}, {14*128}
    s_add_u32 s{TS}, s{TS}, {LMA}
    v_lshlrev_b32 v{VMK}, 7, v{T+1}
    v_add3_u32 v{VMK}, v{VMK}, v{T+2}, s{TS}
    v_lshrrev_b32 v{VMKO}, 1, v{T+1}
    v_lshlrev_b32 v{VMKO}, 7, v{VMKO}
    v_and_b32 v{VB}, 1, v{T+1}
    v_lshlrev_b32 v{VB}, 3, v{VB}
    s_add_u32 s{TS}, s{TS}, {12*128}
    v_add3_u32 v{VMKO}, v{VMKO}, v{T+2}, s{TS}
    v_add_u32 v{VMKO}, v{VMKO}, v{VB}
    s_mul_i32 s{TS}, s{S_WAVE}, 7168
    s_add_u32 s{TS}, s{TS}, {LXK}
    v_add_u32 v{VXK}, s{TS}, v{VL}
    s_add_u32 s{TS}, s{TS}, 6144
    v_lshlrev_b32 v{VXKO}, 3, v0
    v_add_u32 v{VXKO}, s{TS}, v{VXKO}
    s_mul_i32 s{TS}, s{S_WAVE}, 6144
    s_add_u32 s{TS}, s{TS}, {LS}
    v_add_u32 v{VSW}, s{TS}, v{VL}
    s_and_b32 s{TS+1}, s{S_WAVE}, 1
    s_lshl_b32 s{TS}, s{TS+1}, 10
    s_add_u32 s{TS}, s{TS}, {LS}
    v_add_u32 v{VSR}, s{TS}, v{VL}''')
    a(f'''v_lshrrev_b32 v{KEY}, 3, v{T}
    v_lshlrev_b32 v{KEY}, 4, v{KEY}
    v_lshrrev_b32 v{KEY+1}, 2, v{T}
    v_and_b32 v{KEY+1}, 1, v{KEY+1}
    v_lshlrev_b32 v{KEY+1}, 2, v{KEY+1}
    v_and_b32 v{KEY+2}, 3, v{T}
    v_add3_u32 v{KEY}, v{KEY}, v{KEY+1}, v{KEY+2}
    s_lshl_b32 s{TS}, s{TS+1}, 3
    v_add_u32 v{KEY}, s{TS}, v{KEY}
    v_lshrrev_b32 v{KEY+1}, 1, v{T+1}
    v_lshlrev_b32 v{KEY+1}, 1, v{KEY+1}
    v_and_b32 v{KEY+2}, 1, v{T+1}
    v_lshlrev_b32 v{KEY+2}, 2, v{KEY+2}
    v_add_u32 v{KEY+1}, v{KEY+1}, v{KEY+2}''')
    for io in range(2):
        for r in range(4):
            a(f'v_add_u32 v{KEY+2}, {16*io+[0,1,8,9][r]}, v{KEY+1}\nv_cmp_le_u32 s[{MK+2*(4*io+r)}:{MK+2*(4*io+r)+1}], v{KEY+2}, v{KEY}')
    a(f'v_cmp_gt_u32 s[{MM}:{MM+1}], 2, v{T+1}')
    a(f'''s_lshr_b32 s{TS}, s{S_H}, 2
    s_lshr_b32 s{TS+2}, s{S_H}, 1
    s_and_b32 s{TS+2}, s{TS+2}, 1
    s_and_b32 s{TS+3}, s{S_H}, 1
    s_lshl_b32 s{TS+4}, s{TS}, 13
    s_lshl_b32 s{TS+5}, s{TS+2}, 12
    s_add_u32 s{TS+4}, s{TS+4}, s{TS+5}
    s_lshl_b32 s{TS+5}, s{TS+1}, 10
    s_add_u32 s{TS+4}, s{TS+4}, s{TS+5}
    s_lshl_b32 s{TS+5}, s{TS+3}, 9
    s_add_u32 s{TS+4}, s{TS+4}, s{TS+5}
    v_lshrrev_b32 v{KEY}, 5, v0
    v_lshlrev_b32 v{KEY}, 11, v{KEY}
    v_and_b32 v{KEY+1}, 31, v0
    v_lshlrev_b32 v{KEY+1}, 4, v{KEY+1}
    v_add3_u32 v{VPX}, v{KEY}, v{KEY+1}, s{TS+4}
    s_lshl_b32 s{TS+4}, s{TS}, 11
    s_lshl_b32 s{TS+6}, s{TS+1}, 10
    s_add_u32 s{TS+4}, s{TS+4}, s{TS+6}
    s_add_u32 s{TS+4}, s{TS+4}, s{TS+5}
    s_lshl_b32 s{TS+6}, s{TS+2}, 3
    s_add_u32 s{TS+4}, s{TS+4}, s{TS+6}
    s_add_u32 s{TS+4}, s{TS+4}, 32768
    v_add_u32 v{KEY+1}, s{TS+4}, v{KEY+1}
    v_mov_b32 v{KEY}, 0x10000000
    v_cndmask_b32 v{VPM}, v{KEY}, v{KEY+1}, s[{MM}:{MM+1}]''')
    a(f's_mov_b32 s{S_I}, 0\ns_waitcnt vmcnt(0)')
    loop=a.lab('j1loop')
    a(f'{loop}:\ns_barrier')
    a(f'''s_mul_i32 s{TS}, s{S_PAR}, 28672
    v_add_u32 v{VB}, s{TS}, v{VL}
    s_xor_b32 s{S_PAR}, s{S_PAR}, 1
    s_add_u32 s{S_NXT}, s{S_SEG}, {sstride}
    s_add_u32 s{TS}, s{S_I}, 1
    s_cmp_ge_u32 s{TS}, {nseg}
    s_cselect_b32 s{TS}, 0x10000000, 0
    v_add_u32 v{T+4}, s{TS}, v{VL}
    s_cmp_eq_u32 s{S_WAVE}, 3
    s_cselect_b32 s{TS}, 0x10000000, s{TS}
    v_add_u32 v{T+3}, s{TS}, v{VL}''')
    def rd(k,stage):
        b=STG+8*stage
        return [f'ds_read_b128 v[{b}:{b+3}], v{VB} offset:{LXT+k*1024}', f'ds_read_b128 v[{b+4}:{b+7}], v{VB} offset:{LXT+14336+k*1024}']
    for x in rd(0,0): a(x)
    dm=dma_list(S_PAR)
    flat=[x for g in dm for x in g]
    for k in range(14):
        b=STG+8*(k&1)
        a('s_waitcnt lgkmcnt(0)')
        fl=rd(k+1,(k+1)&1) if k<13 else []
        q=fl+[flat.pop(0) for _ in range(min(len(flat),8))]
        j=0
        for t in range(7):
            for ab in range(2):
                d=acc(t,ab); c='0' if k==0 else f'v[{d}:{d+3}]'
                a(f'v_mfma_f32_16x16x32_bf16 v[{d}:{d+3}], {wreg(t*14+k)}, v[{b+4*ab}:{b+4*ab+3}], {c}')
                if q: a(q.pop(0))
        assert not q
    assert not flat
    a(f'''s_xor_b32 s{TS}, s{S_PAR}, 1
    s_lshl_b32 s{TS+1}, s{TS}, 13
    s_mul_i32 s{TS}, s{TS}, 28672
    v_add_u32 v{T}, s{TS+1}, v{VMK}
    v_add_u32 v{T+1}, s{TS+1}, v{VMKO}
    v_add_u32 v{T+2}, s{TS}, v{VXK}
    v_add_u32 v{VB}, s{TS}, v{VXKO}''')
    def kreg(x,j):
        if j==3: return STG+4+2*x
        if x==2 and j==2: return STG
        return KEY+12*x+4*j
    for x in range(3):
        for j in range(3):
            r=kreg(x,j)
            if x==0: a(f'ds_read_b128 v[{r}:{r+3}], v{T} offset:{j*512}')
            else: a(f'ds_read_b128 v[{r}:{r+3}], v{T+2} offset:{((x-1)*3+j)*1024}')
    for x in range(3):
        r=kreg(x,3)
        if x==0: a(f'ds_read_b64 v[{r}:{r+1}], v{T+1}')
        else: a(f'ds_read_b64 v[{r}:{r+1}], v{VB} offset:{(x-1)*512}')
    for j in range(3):
        for ab in range(2):
            p=acc(2*j,ab); q=acc(2*j+1,ab)
            a(f'''v_cvt_pk_bf16_f32 v{p}, v{p}, v{p+1}
            v_cvt_pk_bf16_f32 v{p+1}, v{p+2}, v{p+3}
            v_cvt_pk_bf16_f32 v{p+2}, v{q}, v{q+1}
            v_cvt_pk_bf16_f32 v{p+3}, v{q+2}, v{q+3}''')
    for ab in range(2):
        p=acc(6,ab)
        a(f'v_cvt_pk_bf16_f32 v{p}, v{p}, v{p+1}\nv_cvt_pk_bf16_f32 v{p+1}, v{p+2}, v{p+3}')
    def sacc(x,ab): return acc(2*x+1,ab)
    a('s_waitcnt lgkmcnt(0)')
    for j in range(4):
        for x in range(3):
            for ab in range(2):
                d=sacc(x,ab); c='0' if j==0 else f'v[{d}:{d+3}]'; r=kreg(x,j)
                if j<3: a(f'v_mfma_f32_16x16x32_bf16 v[{d}:{d+3}], v[{r}:{r+3}], v[{acc(2*j,ab)}:{acc(2*j,ab)+3}], {c}')
                else: a(f'v_mfma_f32_16x16x16_bf16 v[{d}:{d+3}], v[{r}:{r+1}], v[{acc(6,ab)}:{acc(6,ab)+1}], {c}')
    a('s_nop 2')
    for x in range(3):
        for ab in range(2):
            d=sacc(x,ab)
            if x==0 and ab==0: a('s_nop 0')
            a(f'ds_write_b128 v{VSW}, v[{d}:{d+3}] offset:{(x*2+ab)*1024}')
    lsm=a.lab('j1ns'); lj=a.lab('j1j')
    a(f'''s_mul_i32 s{S_PX}, s{S_SEG}, 40960
    s_add_u32 s{S_PX}, s{S_PX}, {ws.PJ}
    s_waitcnt lgkmcnt(0)
    s_barrier
    s_cmp_ge_u32 s{S_WAVE}, 2
    s_cbranch_scc1 {lsm}''')
    def pr(w,x):
        i=w*3+x
        return KEY+4*i if i<8 else STG+4*(i-8)
    for w in range(4):
        for x in range(3):
            r=pr(w,x); a(f'ds_read_b128 v[{r}:{r+3}], v{VSR} offset:{w*6144+x*2048}')
    a('s_waitcnt lgkmcnt(6)')
    for x in range(3):
        p=pr(0,x); q=pr(1,x)
        a(f'v_pk_add_f32 v[{p}:{p+1}], v[{p}:{p+1}], v[{q}:{q+1}]\nv_pk_add_f32 v[{p+2}:{p+3}], v[{p+2}:{p+3}], v[{q+2}:{q+3}]')
    a('s_waitcnt lgkmcnt(0)')
    for x in range(3):
        p=pr(2,x); q=pr(3,x)
        a(f'v_pk_add_f32 v[{p}:{p+1}], v[{p}:{p+1}], v[{q}:{q+1}]\nv_pk_add_f32 v[{p+2}:{p+3}], v[{p+2}:{p+3}], v[{q+2}:{q+3}]')
    for x in range(3):
        p=pr(0,x); q=pr(2,x)
        a(f'v_pk_add_f32 v[{p}:{p+1}], v[{p}:{p+1}], v[{q}:{q+1}]\nv_pk_add_f32 v[{p+2}:{p+3}], v[{p+2}:{p+3}], v[{q+2}:{q+3}]')
    P=KEY; M=KEY+12; M2=KEY+13
    a(f'v_mov_b32 v{M2}, {hex(NEG)}')
    for r in range(4): a(f'v_cndmask_b32 v{P+r}, v{M2}, v{P+r}, s[{MM}:{MM+1}]')
    for io in range(2):
        for r in range(4):
            i=4*io+r; a(f'v_cndmask_b32 v{P+4+i}, v{M2}, v{P+4+i}, s[{MK+2*i}:{MK+2*i+1}]')
    a(f'v_max3_f32 v{M}, v{P}, v{P+1}, v{P+2}')
    for i in range(3,11,2): a(f'v_max3_f32 v{M}, v{M}, v{P+i}, v{P+i+1}')
    a(f'v_max_f32 v{M}, v{M}, v{P+11}')
    def xred(op):
        a(f'''v_mov_b32 v{M2}, v{M}
        s_nop 1
        v_permlane16_swap_b32 v{M}, v{M2}
        {op} v{M}, v{M}, v{M2}
        v_mov_b32 v{M2}, v{M}
        s_nop 1
        v_permlane32_swap_b32 v{M}, v{M2}
        {op} v{M}, v{M}, v{M2}''')
    xred('v_max_f32')
    for i in range(6): a(f'v_pk_add_f32 v[{P+2*i}:{P+2*i+1}], v[{P+2*i}:{P+2*i+1}], v[{M}:{M+1}] op_sel_hi:[1,0] neg_lo:[0,1] neg_hi:[0,1]')
    for i in range(12): a(f'v_exp_f32 v{P+i}, v{P+i}')
    Q=KEY+14
    a(f'''v_pk_add_f32 v[{Q}:{Q+1}], v[{P}:{P+1}], v[{P+2}:{P+3}]
    v_pk_add_f32 v[{Q+2}:{Q+3}], v[{P+4}:{P+5}], v[{P+6}:{P+7}]
    v_pk_add_f32 v[{Q+4}:{Q+5}], v[{P+8}:{P+9}], v[{P+10}:{P+11}]
    v_pk_add_f32 v[{Q}:{Q+1}], v[{Q}:{Q+1}], v[{Q+2}:{Q+3}]
    v_pk_add_f32 v[{Q}:{Q+1}], v[{Q}:{Q+1}], v[{Q+4}:{Q+5}]
    v_add_f32 v{M}, v{Q}, v{Q+1}''')
    xred('v_add_f32')
    a(f'v_rcp_f32 v{M}, v{M}\ns_nop 0')
    for i in range(6): a(f'v_pk_mul_f32 v[{P+2*i}:{P+2*i+1}], v[{P+2*i}:{P+2*i+1}], v[{M}:{M+1}] op_sel_hi:[1,0]')
    O=KEY+20
    a(f'''v_cvt_pk_bf16_f32 v{Q}, v{P}, v{P+1}
    v_cvt_pk_bf16_f32 v{Q+1}, v{P+2}, v{P+3}
    v_cvt_pk_bf16_f32 v{O}, v{P+4}, v{P+5}
    v_cvt_pk_bf16_f32 v{O+1}, v{P+8}, v{P+9}
    v_cvt_pk_bf16_f32 v{O+2}, v{P+6}, v{P+7}
    v_cvt_pk_bf16_f32 v{O+3}, v{P+10}, v{P+11}
    buffer_store_dwordx2 v[{Q}:{Q+1}], v{VPM}, s[8:11], s{S_PX} offen {stflags}
    s_nop 0
    v_permlane32_swap_b32 v{O}, v{O+1}
    v_permlane32_swap_b32 v{O+2}, v{O+3}
    buffer_store_dwordx4 v[{O}:{O+3}], v{VPX}, s[8:11], s{S_PX} offen {stflags}
    s_waitcnt vmcnt(2)
    s_branch {lj}
    {lsm}:
    s_waitcnt vmcnt(0)
    {lj}:
    s_mov_b32 s{S_SEG}, s{S_NXT}
    s_add_u32 s{S_I}, s{S_I}, 1
    s_cmp_lt_u32 s{S_I}, {nseg}
    s_cbranch_scc1 {loop}
    s_waitcnt vmcnt(0)''')

def j1_kernel(name, stflags=''):
    a=Asm(); a.l.append(head(name)); ex=name+'_exit'
    a(f'''s_cmp_ge_u32 s2, 256
    s_cbranch_scc1 {ex}
    s_load_dwordx2 s[4:5], s[0:1], {KA['ws']}
    v_lshrrev_b32 v1, 6, v0
    v_and_b32 v0, 63, v0
    s_and_b32 s20, s2, 7
    s_lshl_b32 s20, s20, 1
    s_lshr_b32 s21, s2, 3
    v_readfirstlane_b32 s17, v1
    s_and_b32 s22, s21, 1
    s_add_u32 s16, s20, s22
    s_lshr_b32 s18, s21, 1
    s_lshl_b32 s18, s18, 2
    s_waitcnt lgkmcnt(0)''')
    srd(a,8,4,0x10000000)
    j1_body(a,16,18,17,4,1,stflags)
    a(f'{ex}:\ns_endpgm')
    return a.text()+kd(name,vgpr=256,agpr=256)
if __name__=='__main__':
    t='.amdgcn_target "amdgcn-amd-amdhsa--gfx950"\n'+j1_kernel('j1_kernel')
    open('j1.s','w').write(t)
```

```python
from common import *
J2_LDS=40960
def j2_body(a, S_S, S_V, S_WAVE, res_srd, res_so, out_so, stflags=''):
    TS=24; VL=1; VR=2; VX=3; RES=8; STG=16; ACC=48; PK=64
    lidle=a.lab('j2idle'); ldone=a.lab('j2done')
    a(f'''v_lshlrev_b32 v{VL}, 4, v0
    s_mul_i32 s{TS}, s{S_S}, 40960
    s_mul_i32 s{TS+1}, s{S_WAVE}, 10240
    s_add_u32 s{TS}, s{TS}, s{TS+1}
    s_add_u32 s{TS}, s{TS}, {ws.PJ}''')
    for t in range(10):
        a(f's_add_u32 m0, s{TS+1}, {t*1024}\ns_add_u32 s{TS+2}, s{TS}, {t*1024}\nbuffer_load_dwordx4 v{VL}, s[8:11], s{TS+2} offen lds')
    a(f's_cmp_ge_u32 s{S_V}, 14\ns_cbranch_scc1 {lidle}')
    a(f'''v_and_b32 v4, 15, v0
    v_lshrrev_b32 v5, 3, v4
    v_lshlrev_b32 v5, 4, v5
    v_lshrrev_b32 v6, 2, v4
    v_and_b32 v6, 1, v6
    v_lshlrev_b32 v6, 2, v6
    v_and_b32 v7, 3, v4
    v_add3_u32 v5, v5, v6, v7
    s_lshl_b32 s{TS}, s{S_S}, 5
    v_add_u32 v5, s{TS}, v5
    v_mul_u32_u24 v5, 896, v5
    v_lshrrev_b32 v6, 4, v0
    v_and_b32 v7, 1, v6
    v_lshlrev_b32 v7, 5, v7
    v_lshrrev_b32 v6, 1, v6
    v_lshlrev_b32 v6, 4, v6
    v_add3_u32 v5, v5, v6, v7
    s_lshl_b32 s{TS}, s{S_V}, 6
    v_add_u32 v{VX}, s{TS}, v5
    v_add_u32 v{VR}, {8*896}, v{VX}''')
    a(f'''s_mul_i32 s{TS}, s{S_S}, 14
    s_add_u32 s{TS}, s{TS}, s{S_V}
    s_lshl_b32 s{TS+1}, s{TS}, 13
    s_add_u32 s{TS+1}, s{TS+1}, {ws.WI}
    s_lshl_b32 s{TS}, s{TS}, 15
    s_add_u32 s{TS}, s{TS}, {ws.DI}''')
    for f in range(8):
        a(f'buffer_load_dwordx4 a[{128+4*f}:{128+4*f+3}], v{VL}, s[8:11], s{TS+1} offen offset:{(f&3)*1024}')
        if f==3: a(f's_add_u32 s{TS+1}, s{TS+1}, 4096')
    for f in range(32):
        a(f'buffer_load_dwordx4 a[{4*f}:{4*f+3}], v{VL}, s[8:11], s{TS} offen offset:{(f&3)*1024}')
        if (f&3)==3: a(f's_add_u32 s{TS}, s{TS}, 4096')
    a(f'buffer_load_dwordx4 v[{RES}:{RES+3}], v{VX}, {res_srd}, {res_so} offen')
    a(f'buffer_load_dwordx4 v[{RES+4}:{RES+7}], v{VR}, {res_srd}, {res_so} offen')
    a('s_waitcnt vmcnt(42)\ns_barrier')
    steps=[]
    for w in range(4): steps.append((32768+w*2048, [128+4*(w*2+tau) for tau in range(2)], 42-8+ (0)))
    for w in range(4):
        for eta in range(2):
            for io in range(2):
                steps.append((w*8192+eta*4096+io*2048, [4*(w*8+tau*4+io*2+eta) for tau in range(2)], None))
    def rd(i):
        b=STG+8*(i&3); o=steps[i][0]
        return [f'ds_read_b128 v[{b}:{b+3}], v{VL} offset:{o}', f'ds_read_b128 v[{b+4}:{b+7}], v{VL} offset:{o+1024}']
    for i in range(2):
        for x in rd(i): a(x)
    for i,(o,A,_) in enumerate(steps):
        b=STG+8*(i&3)
        if i==0: a('s_waitcnt vmcnt(34)')
        if i>=4 and (i-4)%4==0:
            w=(i-4)//4; a(f's_waitcnt vmcnt({34-8*(w+1)})')
        a('s_waitcnt lgkmcnt(2)' if i<len(steps)-1 else 's_waitcnt lgkmcnt(0)')
        fl=rd(i+2) if i+2<len(steps) else []
        for tau in range(2):
            for ab in range(2):
                d=ACC+8*tau+4*ab; c='0' if i==0 else f'v[{d}:{d+3}]'
                a(f'v_mfma_f32_16x16x32_bf16 v[{d}:{d+3}], a[{A[tau]}:{A[tau]+3}], v[{b+4*ab}:{b+4*ab+3}], {c}')
                if fl: a(fl.pop(0))
    a('s_waitcnt vmcnt(0)\ns_nop 6')
    for ab in range(2):
        t0=ACC+4*ab; t1=ACC+8+4*ab; o=PK+4*ab; r=RES+4*ab; F=STG
        a(f'''v_cvt_pk_bf16_f32 v{o}, v{t0}, v{t0+1}
        v_cvt_pk_bf16_f32 v{o+1}, v{t0+2}, v{t0+3}
        v_cvt_pk_bf16_f32 v{o+2}, v{t1}, v{t1+1}
        v_cvt_pk_bf16_f32 v{o+3}, v{t1+2}, v{t1+3}
        s_nop 1
        v_permlane16_swap_b32 v{o}, v{o+2}
        v_permlane16_swap_b32 v{o+1}, v{o+3}''')
        for q in range(4):
            a(f'''v_lshlrev_b32 v{F}, 16, v{o+q}
            v_and_b32 v{F+1}, 0xffff0000, v{o+q}
            v_lshlrev_b32 v{F+2}, 16, v{r+q}
            v_and_b32 v{F+3}, 0xffff0000, v{r+q}
            v_pk_add_f32 v[{F}:{F+1}], v[{F}:{F+1}], v[{F+2}:{F+3}]
            v_cvt_pk_bf16_f32 v{o+q}, v{F}, v{F+1}''')
        a(f'buffer_store_dwordx4 v[{o}:{o+3}], v{VX if ab==0 else VR}, s[8:11], {out_so} offen {stflags}')
    a(f's_branch {ldone}\n{lidle}:\ns_waitcnt vmcnt(0)\ns_barrier\n{ldone}:\ns_waitcnt vmcnt(0)')

def j2_kernel(name, src, stflags=''):
    a=Asm(); a.l.append(head(name)); ex=name+'_exit'
    a(f'''s_cmp_ge_u32 s2, 256
    s_cbranch_scc1 {ex}
    s_load_dwordx2 s[4:5], s[0:1], {KA['ws']}
    s_load_dwordx2 s[6:7], s[0:1], {KA['x']}
    v_lshrrev_b32 v1, 6, v0
    v_and_b32 v0, 63, v0
    s_and_b32 s20, s2, 7
    s_lshr_b32 s21, s2, 5
    v_readfirstlane_b32 s17, v1
    s_lshl_b32 s21, s21, 3
    s_add_u32 s16, s21, s20
    s_lshr_b32 s21, s2, 3
    s_and_b32 s21, s21, 3
    s_lshl_b32 s21, s21, 2
    s_add_u32 s18, s21, s17
    s_mov_b32 s19, {ws.X1}
    s_waitcnt lgkmcnt(0)''')
    srd(a,8,4,0x10000000)
    if src=='x': srd(a,12,6,1835008); rs,so='s[12:15]','0'
    else: a(f's_mov_b32 s22, {src}'); rs,so='s[8:11]','s22'
    j2_body(a,16,18,17,rs,so,'s19',stflags)
    a(f'{ex}:\ns_endpgm')
    return a.text()+kd(name,vgpr=72,agpr=160)
if __name__=='__main__':
    t='.amdgcn_target "amdgcn-amd-amdhsa--gfx950"\n'+j2_kernel('j2_kernel','x')
    open('j2.s','w').write(t)
```

```python
import numpy as np
S=2048; DM=448; H=16; M=8; SEG=32; NSEG=64
def f2bf(x):
    x=np.ascontiguousarray(x,np.float32); u=x.view(np.uint32)
    r=((u+0x7FFF+((u>>16)&1))>>16).astype(np.uint16)
    return r
def bf2f(u):
    return (np.ascontiguousarray(u,np.uint16).astype(np.uint32)<<16).view(np.float32)
def rb(x): return bf2f(f2bf(x)).reshape(np.shape(x))

L=np.arange(64); N16=L&15; G=L>>4; U=np.arange(8)
def dperm():
    eta=np.arange(2)[:,None,None]; gB=G[None,:,None]; u=U[None,None,:]
    return 16*(2*eta+(gB>>1))+8*((u>>1)&1)+4*(gB&1)+2*((u>>2)&1)+(u&1)
DP=dperm()

def memx_image(mem):
    return np.ascontiguousarray(mem.reshape(8,56,8).transpose(1,0,2))
def memx_unimage(img):
    return np.ascontiguousarray(img.reshape(56,8,8).transpose(1,0,2)).reshape(8,448)

def e_of_tile(w,t):
    n=np.arange(16)
    if t<6: return 112*w+32*(t>>1)+8*(n>>2)+4*(t&1)+(n&3)
    return 112*w+96+n
def ai_image(A):
    out=np.zeros((16,4,7,7,2,64,8),np.uint16)
    for w in range(4):
        for t in range(7):
            e=e_of_tile(w,t)[N16][None,:,None]
            for k in range(7):
                d=64*k+DP
                out[:,w,t,k]=A[:,d,np.broadcast_to(e,d.shape)]
    return out
def ci_image(C):
    out=np.zeros((14,4,4,2,7,2,64,8),np.uint16)
    for v in range(14):
        for tau in range(2):
            c=(32*v+16*tau+N16)[None,:,None]
            for k in range(7):
                d=64*k+DP
                x=C[:,d,np.broadcast_to(c,d.shape)]
                out[v,:,:,tau,k]=x.reshape(4,4,2,64,8)
    return out
def key_tok(iota):
    m=np.arange(16); gd=m>>2; r=m&3; phi=gd>>1; half=gd&1
    return 16*iota+2*phi+4*half+np.array([0,1,8,9])[r]
def xk_image(xn):
    out=np.zeros((64,4,3584),np.uint16)
    for w in range(4):
        for io in range(2):
            tok=key_tok(io)[N16]
            for j in range(3):
                e=112*w+32*j+8*G[:,None]+U[None,:]
                for s in range(64):
                    out[s,w,(io*3+j)*512:(io*3+j+1)*512]=xn[32*s+tok[:,None],e].reshape(-1)
            e=112*w+96+4*G[:,None]+np.arange(4)[None,:]
            for s in range(64):
                out[s,w,3072+io*256:3072+(io+1)*256]=xn[32*s+tok[:,None],e].reshape(-1)
    return out
def di_index():
    io=np.arange(2)[:,None,None,None]; eta=np.arange(2)[None,:,None,None]
    gB=G[None,None,:,None]; u=U[None,None,None,:]
    tok=16*io+8*(u>>2)+4*(gB&1)+(u&3)+0*eta
    hd=2*eta+(gB>>1)+0*io+0*u
    return tok,hd
def di_image(D):
    out=np.zeros((64,14,4,2,2,2,64,8),np.uint16)
    tok,hd=di_index()
    n=N16[None,None,:,None]
    for v in range(14):
        for w in range(4):
            for tau in range(2):
                c=np.broadcast_to(32*v+16*tau+n,tok.shape)
                for s in range(64):
                    out[s,v,w,tau]=D[4*w+hd,32*s+tok,c]
    return out
def wi_index():
    g=G[:,None]; u=U[None,:]
    hd=2*(u>>2)+(g>>1); i2=4*(g&1)+(u&3)
    return hd,i2
def wi_image(Wall):
    ns=Wall.shape[0]
    out=np.zeros((ns,14,4,2,64,8),np.uint16)
    hd,i2=wi_index()
    for v in range(14):
        for w in range(4):
            for tau in range(2):
                c=np.broadcast_to((32*v+16*tau+N16)[:,None],hd.shape)
                out[:,v,w,tau]=Wall[:,4*w+hd,i2,c]
    return out
def xt_tok(ab):
    m=np.arange(16)
    return 16*(m>>3)+4*((m>>2)&1)+(m&3)+8*ab
def xt_image(xn):
    out=np.zeros((64,2,7,2,64,8),np.uint16)
    for ab in range(2):
        tok=xt_tok(ab)[N16][None,:,None]
        for k in range(7):
            d=64*k+DP
            for s in range(64):
                out[s,ab,k]=xn[32*s+np.broadcast_to(tok,d.shape),d]
    return out

def fw_table():
    j=np.arange(480)[:,None]; d=np.arange(448)[None,:]
    f=np.where(j<225,j,j-225); ang=2*np.pi*((f*d)%448)/448.0
    t=np.where(j<225,np.cos(ang),-np.sin(ang)); t=np.where(j<450,t,0.0)
    return t
def fw_image():
    t=f2bf(fw_table().astype(np.float32)).reshape(480,448)
    out=np.zeros((15,28,64,8),np.uint16); n=(L&31)[:,None]; hi=(L>>5)[:,None]
    for tl in range(15):
        for ks in range(28): out[tl,ks]=t[32*tl+n,16*ks+8*hi+U[None,:]]
    return out
def iv_table():
    j=np.arange(464)[:,None]; d=np.arange(448)[None,:]
    f=np.where(j<225,j,j-225); ang=2*np.pi*((f*d)%448)/448.0
    wg=np.where((f==0)|(f==224),1.0,2.0)/448.0
    t=np.where(j<225,np.cos(ang),-np.sin(ang))*wg; t=np.where(j<450,t,0.0)
    return t
def iv_image():
    t=f2bf(iv_table().astype(np.float32)).reshape(464,448)
    out=np.zeros((14,29,64,8),np.uint16); m=(L&31)[:,None]; hi=(L>>5)[:,None]
    for dt in range(14):
        for ks in range(29): out[dt,ks]=t[16*ks+8*hi+U[None,:],32*dt+m]
    return out
def wt_image(wr,wi):
    out=np.zeros((225,4,2,64,4),np.uint32); r=np.arange(4)[None,:]
    for w in range(4):
        for t2 in range(2):
            k=(16*w+N16[:,None])+64*(16*t2+4*G[:,None]+r)
            out[:,w,t2]=(wr[k].astype(np.uint32)|(wi[k].astype(np.uint32)<<16)).transpose(2,0,1)
    return out
def q_tok(ab):
    return xt_tok(ab)
def pj_image(P):
    ns=P.shape[0]
    out=np.zeros((ns,20480),np.uint16)
    px=out[:,:16384].reshape(ns,4,2,2,2,64,8); pm=out[:,16384:].reshape(ns,4,2,64,8)
    g=G[:,None]; u=U[None,:]
    for w in range(4):
        for ab in range(2):
            q=q_tok(ab)[N16][:,None]+0*u
            for eta in range(2):
                for io in range(2):
                    key=16*io+8*(u>>2)+4*(g&1)+(u&3); hd=4*w+2*eta+(g>>1)+0*u
                    px[:,w,eta,io,ab]=P[:,hd,q,8+key]
            hd=4*w+2*(u>>2)+(g>>1); key=4*(g&1)+(u&3)
            pm[:,w,ab]=P[:,hd,q,key]
    return out

class WS: pass
ws=WS()
_o=0
def _al(name,n,al=4096):
    global _o
    _o=(_o+al-1)//al*al
    setattr(ws,name,_o); setattr(ws,name+'_N',n); _o+=n
_al('AI',16*4*49*2048)
_al('CI',14*4*56*2048)
_al('XT',64*28672)
_al('XK',64*28672)
_al('DI',64*14*32768)
_al('MR',4*7168)
_al('PR',4*10240)
_al('MA',64*7168)
_al('WI',64*14*8192)
_al('PROF',1<<20)
_al('X1',2048*896)
_al('X2',2048*896)
_al('FT',480*4096)
_al('GT',464*4096)
_al('FW',15*28*1024)
_al('IV',14*29*1024)
_al('WT',225*8*1024)
_al('PJ',64*40960)
_al('FLG',65536)
ws.DF=ws.FLG; ws.F=ws.FLG+16384; ws.PF=ws.FLG+24576; ws.H=ws.FLG+32768; ws.WF=ws.H+4096
_al('DUM',131072)
ws.END=_o
if __name__=='__main__':
    for k,v in vars(ws).items(): print(k,hex(v) if isinstance(v,int) else v)
```

```python
from common import *
import struct
def fbits(x): return struct.unpack('<I',struct.pack('<f',x))[0]
def load_ptr_srd(a, karg, s, nbytes, tmp=4):
    a(f's_load_dwordx2 s[{tmp}:{tmp+1}], s[0:1], {KA[karg]}')
    return lambda: srd(a,s,tmp,nbytes)

def reduce32(a, s, t):
    a('s_nop 1')
    for r in (8,4,2,1):
        a(f'v_add_f32_dpp v{s}, v{s}, v{s} row_ror:{r} row_mask:0xf bank_mask:0xf')
        a('s_nop 1')
    a(f'v_mov_b32 v{t}, v{s}\ns_nop 1\nv_permlane16_swap_b32 v{s}, v{t}\nv_add_f32 v{s}, v{s}, v{t}')

def ln_core(a, X, F, T, s_mask, s_act, packed=True):
    if packed:
        for i in range(8):
            a(f'v_lshlrev_b32 v{F+2*i}, 16, v{X+i}\nv_and_b32 v{F+2*i+1}, s{s_mask}, v{X+i}')
    a(f'''v_pk_add_f32 v[{T}:{T+1}], v[{F}:{F+1}], v[{F+2}:{F+3}]
    v_pk_add_f32 v[{T+2}:{T+3}], v[{F+4}:{F+5}], v[{F+6}:{F+7}]
    v_pk_add_f32 v[{T+4}:{T+5}], v[{F+8}:{F+9}], v[{F+10}:{F+11}]
    v_pk_add_f32 v[{T+6}:{T+7}], v[{F+12}:{F+13}], v[{F+14}:{F+15}]
    v_pk_add_f32 v[{T}:{T+1}], v[{T}:{T+1}], v[{T+2}:{T+3}]
    v_pk_add_f32 v[{T+4}:{T+5}], v[{T+4}:{T+5}], v[{T+6}:{T+7}]
    v_pk_add_f32 v[{T}:{T+1}], v[{T}:{T+1}], v[{T+4}:{T+5}]
    v_add_f32 v{T}, v{T}, v{T+1}''')
    reduce32(a,T,T+1)
    a(f'''v_mul_f32 v{T}, {hex(fbits(1/448.0))}, v{T}
    v_cndmask_b32 v{T+2}, 0, v{T}, s[{s_act}:{s_act+1}]''')
    for i in range(8):
        t=X+2*(i&3) if X%2==0 else None
        acc=T+4+2*(i&1)
        a(f'v_pk_add_f32 v[{t}:{t+1}], v[{F+2*i}:{F+2*i+1}], v[{T+2}:{T+3}] op_sel_hi:[1,0] neg_lo:[0,1] neg_hi:[0,1]')
        if i<2: a(f'v_pk_mul_f32 v[{acc}:{acc+1}], v[{t}:{t+1}], v[{t}:{t+1}]')
        else: a(f'v_pk_fma_f32 v[{acc}:{acc+1}], v[{t}:{t+1}], v[{t}:{t+1}], v[{acc}:{acc+1}]')
    a(f'''v_pk_add_f32 v[{T+4}:{T+5}], v[{T+4}:{T+5}], v[{T+6}:{T+7}]
    v_add_f32 v{T+4}, v{T+4}, v{T+5}''')
    reduce32(a,T+4,T+5)
    a(f'''v_mul_f32 v{T+4}, {hex(fbits(1/448.0))}, v{T+4}
    v_cvt_pk_bf16_f32 v{T}, v{T}, v{T}
    v_cvt_pk_bf16_f32 v{T+4}, v{T+4}, v{T+4}
    v_and_b32 v{T}, s{s_mask}, v{T}
    v_and_b32 v{T+4}, s{s_mask}, v{T+4}
    v_add_f32 v{T+4}, {hex(fbits(1e-5))}, v{T+4}
    v_cvt_pk_bf16_f32 v{T+4}, v{T+4}, v{T+4}
    v_and_b32 v{T+4}, s{s_mask}, v{T+4}
    v_sqrt_f32 v{T+4}, v{T+4}
    s_nop 0
    v_cvt_pk_bf16_f32 v{T+4}, v{T+4}, v{T+4}
    v_and_b32 v{T+4}, s{s_mask}, v{T+4}
    v_rcp_f32 v{T+4}, v{T+4}
    s_nop 0''')
    for i in range(8):
        f=F+2*i
        a(f'''v_pk_add_f32 v[{f}:{f+1}], v[{f}:{f+1}], v[{T}:{T+1}] op_sel_hi:[1,0] neg_lo:[0,1] neg_hi:[0,1]
        v_cvt_pk_bf16_f32 v{X+i}, v{f}, v{f+1}''')
    for i in range(8):
        f=F+2*i
        a(f'''v_lshlrev_b32 v{f}, 16, v{X+i}
        v_and_b32 v{f+1}, s{s_mask}, v{X+i}
        v_pk_mul_f32 v[{f}:{f+1}], v[{f}:{f+1}], v[{T+4}:{T+5}] op_sel_hi:[1,0]''')
    for i in range(8):
        f=F+2*i
        a(f'v_cvt_pk_bf16_f32 v{X+i}, v{f}, v{f+1}')

def ln_multi(a, insts, s_mask, s_act):
    ls=[]
    for X,F,T in insts:
        b=Asm(); ln_core(b,X,F,T,s_mask,s_act); ls.append([x for x in b.l if not (len(insts)>=3 and x.startswith('s_nop'))])
    n=max(len(l) for l in ls)
    for i in range(n):
        for l in ls:
            if i<len(l): a(l[i])

RS=912
def emit_images(a, LR, s_wave, s_seg, s_iota, tv, ts, srd_ws=8):
    V=tv; D=tv+8
    a(f'''v_and_b32 v{V}, 1, v0
    v_lshrrev_b32 v{V+1}, 1, v0
    v_and_b32 v{V+1}, 1, v{V+1}
    v_lshlrev_b32 v{V+1}, 3, v{V+1}
    v_add_u32 v{V}, v{V}, v{V+1}
    v_lshrrev_b32 v{V+1}, 2, v0
    v_and_b32 v{V+1}, 1, v{V+1}
    v_lshlrev_b32 v{V+1}, 2, v{V+1}
    v_add_u32 v{V}, v{V}, v{V+1}
    v_lshrrev_b32 v{V+1}, 3, v0
    v_and_b32 v{V+1}, 1, v{V+1}
    v_lshlrev_b32 v{V+1}, 1, v{V+1}
    v_add_u32 v{V}, v{V}, v{V+1}
    v_mul_u32_u24 v{V}, {RS}, v{V}
    s_mul_i32 s{ts}, s{s_wave}, 224
    s_add_u32 s{ts}, s{ts}, {LR}
    v_lshrrev_b32 v{V+1}, 4, v0
    v_lshlrev_b32 v{V+2}, 4, v{V+1}
    v_add3_u32 v{V+2}, v{V}, v{V+2}, s{ts}
    v_lshlrev_b32 v{V+3}, 3, v{V+1}
    v_add3_u32 v{V+3}, v{V}, v{V+3}, s{ts}''')
    for j in range(3): a(f'ds_read_b128 v[{D+4*j}:{D+4*j+3}], v{V+2} offset:{64*j}')
    a(f'ds_read_b64 v[{D+12}:{D+13}], v{V+3} offset:192')
    a(f'''s_mul_i32 s{ts}, s{s_seg}, 28672
    s_mul_i32 s{ts+1}, s{s_wave}, 7168
    s_add_u32 s{ts}, s{ts}, s{ts+1}
    s_add_u32 s{ts}, s{ts}, {ws.XK}
    s_mul_i32 s{ts+1}, s{s_iota}, 3072
    s_add_u32 s{ts+1}, s{ts+1}, s{ts}
    s_lshl_b32 s{ts+2}, s{s_iota}, 9
    s_add_u32 s{ts+2}, s{ts+2}, s{ts}
    s_add_u32 s{ts+2}, s{ts+2}, 6144
    v_lshlrev_b32 v{V+4}, 4, v0
    v_lshlrev_b32 v{V+5}, 3, v0''')
    for j in range(3):
        a(f's_waitcnt lgkmcnt({3-j})\nbuffer_store_dwordx4 v[{D+4*j}:{D+4*j+3}], v{V+4}, s[{srd_ws}:{srd_ws+3}], s{ts+1} offen offset:{1024*j}')
    a(f's_waitcnt lgkmcnt(0)\nbuffer_store_dwordx2 v[{D+12}:{D+13}], v{V+5}, s[{srd_ws}:{srd_ws+3}], s{ts+2} offen')
    a(f'''v_and_b32 v{V}, 7, v0
    v_lshrrev_b32 v{V+1}, 2, v{V}
    v_lshlrev_b32 v{V+1}, 2, v{V+1}
    v_and_b32 v{V+2}, 3, v0
    v_add_u32 v{V+1}, v{V+1}, v{V+2}
    v_mul_u32_u24 v{V+1}, {RS}, v{V+1}
    v_lshrrev_b32 v{V+2}, 5, v0
    v_lshlrev_b32 v{V+3}, 6, v{V+2}
    v_add_u32 v{V+1}, v{V+1}, v{V+3}
    v_lshrrev_b32 v{V+3}, 4, v0
    v_and_b32 v{V+3}, 1, v{V+3}
    v_lshlrev_b32 v{V+3}, 5, v{V+3}
    v_add_u32 v{V+1}, v{V+1}, v{V+3}
    v_lshrrev_b32 v{V+3}, 3, v0
    v_and_b32 v{V+3}, 1, v{V+3}
    v_lshlrev_b32 v{V+3}, 3, v{V+3}
    v_add3_u32 v{V+1}, v{V+1}, v{V+3}, {LR}''' if LR<=64 else f'''v_and_b32 v{V}, 7, v0
    v_lshrrev_b32 v{V+1}, 2, v{V}
    v_lshlrev_b32 v{V+1}, 2, v{V+1}
    v_and_b32 v{V+2}, 3, v0
    v_add_u32 v{V+1}, v{V+1}, v{V+2}
    v_mul_u32_u24 v{V+1}, {RS}, v{V+1}
    v_lshrrev_b32 v{V+2}, 5, v0
    v_lshlrev_b32 v{V+3}, 6, v{V+2}
    v_add_u32 v{V+1}, v{V+1}, v{V+3}
    v_lshrrev_b32 v{V+3}, 4, v0
    v_and_b32 v{V+3}, 1, v{V+3}
    v_lshlrev_b32 v{V+3}, 5, v{V+3}
    v_add_u32 v{V+1}, v{V+1}, v{V+3}
    v_lshrrev_b32 v{V+3}, 3, v0
    v_and_b32 v{V+3}, 1, v{V+3}
    v_lshlrev_b32 v{V+3}, 3, v{V+3}
    v_add_u32 v{V+1}, v{V+1}, v{V+3}
    v_add_u32 v{V+1}, {LR}, v{V+1}''')
    a(f'''v_lshlrev_b32 v{V+2}, 10, v{V+2}
    v_lshrrev_b32 v{V+3}, 3, v0
    v_and_b32 v{V+3}, 3, v{V+3}
    v_lshlrev_b32 v{V+3}, 8, v{V+3}
    v_lshlrev_b32 v{V}, 4, v{V}
    v_add3_u32 v{V+2}, v{V+2}, v{V+3}, v{V}
    s_lshl_b32 s{ts+1}, s{s_iota}, 7
    v_add_u32 v{V+2}, s{ts+1}, v{V+2}
    s_mul_i32 s{ts}, s{s_seg}, 28672
    s_add_u32 s{ts}, s{ts}, {ws.XT}''')
    for n in range(4):
        lskip=a.lab('xt')
        a(f'''s_add_u32 s{ts+1}, s{s_wave}, {4*n}''')
        if n==3: a(f's_cmp_ge_u32 s{ts+1}, 14\ns_cbranch_scc1 {lskip}')
        a(f'''s_cmp_ge_u32 s{ts+1}, 7
        s_cselect_b32 s{ts+2}, {8*RS-7*128}, 0
        s_lshl_b32 s{ts+3}, s{ts+1}, 7
        s_add_u32 s{ts+2}, s{ts+2}, s{ts+3}
        v_add_u32 v{V+3}, s{ts+2}, v{V+1}
        s_lshl_b32 s{ts+1}, s{ts+1}, 11
        s_add_u32 s{ts+1}, s{ts+1}, s{ts}
        ds_read2_b32 v[{D+16+0}:{D+16+1}], v{V+3} offset0:0 offset1:4
        ds_read2_b32 v[{D+16+2}:{D+16+3}], v{V+3} offset0:1 offset1:5
        s_waitcnt lgkmcnt(0)
        buffer_store_dwordx4 v[{D+16}:{D+19}], v{V+2}, s[{srd_ws}:{srd_ws+3}], s{ts+1} offen
        s_nop 1
        {lskip}:''')

LN_LDS=16*RS
def ln_kernel(name, src):
    a=Asm(); a.l.append(head(name)); ex=name+'_exit'
    S_W=17; S_SEG=18; S_IO=19; S_MASK=20; S_ACT=22; TS=24
    a(f'''s_cmp_ge_u32 s2, 128
    s_cbranch_scc1 {ex}
    s_load_dwordx2 s[4:5], s[0:1], {KA['ws']}
    s_load_dwordx2 s[6:7], s[0:1], {KA['x']}
    v_lshrrev_b32 v1, 6, v0
    v_and_b32 v0, 63, v0
    s_lshr_b32 s{S_SEG}, s2, 1
    s_and_b32 s{S_IO}, s2, 1
    v_readfirstlane_b32 s{S_W}, v1
    s_mov_b32 s{S_MASK}, 0xffff0000
    v_and_b32 v2, 31, v0
    v_cmp_gt_u32 s[{S_ACT}:{S_ACT+1}], 28, v2
    s_waitcnt lgkmcnt(0)''')
    srd(a,8,4,0x10000000)
    if src=='x': srd(a,12,6,1835008); so='0'
    else:
        srd(a,12,4,0x10000000); so=f's{TS+3}'; a(f's_mov_b32 s{TS+3}, {src}')
    a(f'''s_lshl_b32 s{TS}, s2, 4
    s_lshl_b32 s{TS+1}, s{S_W}, 2
    s_add_u32 s{TS}, s{TS}, s{TS+1}
    v_lshrrev_b32 v3, 5, v0
    v_add_u32 v4, s{TS}, v3
    v_mul_u32_u24 v4, 896, v4
    v_lshlrev_b32 v5, 5, v2
    v_add_u32 v4, v4, v5
    v_mov_b32 v6, 0x10000000
    v_cndmask_b32 v4, v6, v4, s[{S_ACT}:{S_ACT+1}]
    v_add_u32 v7, s{TS+1}, v3
    v_mul_u32_u24 v7, {RS}, v7
    v_add_u32 v7, v7, v5''')
    for it in range(2):
        a(f'buffer_load_dwordx4 v[{8+8*it}:{11+8*it}], v4, s[12:15], {so} offen offset:{it*1792}')
        a(f'buffer_load_dwordx4 v[{12+8*it}:{15+8*it}], v4, s[12:15], {so} offen offset:{it*1792+16}')
    lp=a.lab('np')
    a(f'''s_cmp_ge_u32 s2, 17
    s_cbranch_scc1 {lp}
    s_lshl_b32 s{TS}, s2, 12
    s_lshl_b32 s{TS+1}, s{S_W}, 10
    s_add_u32 s{TS}, s{TS}, s{TS+1}
    s_add_u32 s{TS}, s{TS}, {ws.MR}
    v_lshlrev_b32 v5, 4, v0
    v_mov_b32 v60, -1
    v_mov_b32 v61, -1
    v_mov_b32 v62, -1
    v_mov_b32 v63, -1
    buffer_store_dwordx4 v[60:63], v5, s[8:11], s{TS} offen
    {lp}:''')
    for it in range(2):
        a(f's_waitcnt vmcnt({2 if it==0 else 0})') if False else None
    a('s_waitcnt vmcnt(0)')
    for it in range(2):
        ln_core(a, 8+8*it, 24, 40, S_MASK, S_ACT)
    a(f's_mov_b64 s[{TS}:{TS+1}], exec\ns_mov_b64 exec, s[{S_ACT}:{S_ACT+1}]')
    for it in range(2):
        a(f'ds_write_b128 v7, v[{8+8*it}:{11+8*it}] offset:{it*2*RS}')
        a(f'ds_write_b128 v7, v[{12+8*it}:{15+8*it}] offset:{it*2*RS+16}')
    a(f's_mov_b64 exec, s[{TS}:{TS+1}]\ns_waitcnt lgkmcnt(0)\ns_barrier')
    emit_images(a,0,S_W,S_SEG,S_IO,8,TS)
    a(f's_waitcnt vmcnt(0)\n{ex}:\ns_endpgm')
    return a.text()+kd(name,vgpr=64)
if __name__=='__main__':
    t='.amdgcn_target "amdgcn-amd-amdhsa--gfx950"\n'+ln_kernel('ln_kernel','x')
    open('ln.s','w').write(t)
```

```python
from common import *
from ln import fbits
MISC_LDS=65536
N_WT=32; N_TB=104
MISC_WG=N_WT+N_TB+1
def misc_body(a, s_id, ex, S_W=17, TS=24):
    ltb=a.lab('mtb'); lma=a.lab('mma')
    a(f's_cmp_ge_u32 s{s_id}, {N_WT}\ns_cbranch_scc1 {ltb}')
    a(f'''s_load_dwordx4 s[36:39], s[0:1], {KA['wr']}
    s_lshr_b32 s{TS}, s{s_id}, 3
    s_lshl_b32 s{TS}, s{TS}, 4
    s_and_b32 s{TS+1}, s{s_id}, 7
    s_lshl_b32 s{TS+1}, s{TS+1}, 2
    s_add_u32 s{TS+1}, s{TS+1}, s{S_W}
    s_lshl_b32 s{TS+1}, s{TS+1}, 6
    s_add_u32 s{TS}, s{TS}, s{TS+1}
    s_mul_i32 s{TS}, s{TS}, 450
    v_lshlrev_b32 v2, 4, v0
    s_waitcnt lgkmcnt(0)''')
    srd(a,12,36,921600); srd(a,40,38,921600)
    for arr in range(2):
        sr_='s[12:15]' if arr==0 else 's[40:43]'
        for t in range(8):
            a(f'''s_lshl_b32 s{TS+1}, s{S_W}, 13
            s_add_u32 m0, s{TS+1}, {arr*32768+t*1024}
            s_add_u32 s{TS+2}, s{TS}, {t*1024}
            buffer_load_dwordx4 v2, {sr_}, s{TS+2} offen lds''')
    a(f'''s_lshl_b32 s{TS+1}, s{S_W}, 2
    v_and_b32 v3, 15, v0
    v_lshrrev_b32 v4, 4, v0
    v_add_u32 v4, s{TS+1}, v4
    v_mul_u32_u24 v5, 450, v3
    v_lshlrev_b32 v6, 1, v4
    v_add_u32 v5, v5, v6
    v_lshlrev_b32 v6, 13, v4
    v_lshlrev_b32 v7, 4, v3
    v_add_u32 v6, v6, v7
    s_lshr_b32 s{TS}, s{s_id}, 2
    s_lshl_b32 s{TS}, s{TS}, 10
    s_and_b32 s{TS+1}, s{s_id}, 3
    s_lshl_b32 s{TS+1}, s{TS+1}, 8
    s_add_u32 s{TS}, s{TS}, s{TS+1}
    s_add_u32 s{TS}, s{TS}, {ws.WT}
    s_waitcnt vmcnt(0)
    s_barrier''')
    for it in range(15):
        b=8+4*(it&3)
        if it==14: a('v_cmp_gt_u32 vcc, 1, v4\ns_and_saveexec_b64 s[44:45], vcc')
        for r in range(4):
            a(f'ds_read_u16 v{b+r}, v5 offset:{r*8192+it*32}')
        for r in range(4):
            a(f'ds_read_u16 v{28+r}, v5 offset:{32768+r*8192+it*32}')
        a('s_waitcnt lgkmcnt(0)')
        for r in range(4): a(f'v_lshl_or_b32 v{b+r}, v{28+r}, 16, v{b+r}')
        a(f'buffer_store_dwordx4 v[{b}:{b+3}], v6, s[8:11], s{TS} offen')
        a(f's_add_u32 s{TS}, s{TS}, {16*8192}')
        if (it&3)==3: a('s_waitcnt vmcnt(0)')
    a(f's_mov_b64 exec, -1\ns_branch {ex}\n{ltb}:')
    a(f's_cmp_ge_u32 s{s_id}, {N_WT+N_TB}\ns_cbranch_scc1 {lma}')
    a(f'''s_sub_u32 s{TS}, s{s_id}, {N_WT}
    s_lshl_b32 s{TS}, s{TS}, 3
    s_lshl_b32 s{TS+1}, s{S_W}, 1
    s_add_u32 s{TS}, s{TS}, s{TS+1}
    v_and_b32 v2, 31, v0
    v_lshrrev_b32 v3, 5, v0
    v_lshlrev_b32 v3, 3, v3
    v_lshlrev_b32 v20, 4, v0''')
    for it in range(2):
        liv=a.lab('iv'); lgo=a.lab('go'); lsk=a.lab('sk')
        a(f's_cmp_ge_u32 s{TS}, 826\ns_cbranch_scc1 {lsk}\ns_cmp_ge_u32 s{TS}, 420\ns_cbranch_scc1 {liv}')
        div_const(a,TS+1,TS,28,420)
        a(f'''s_mul_i32 s{TS+2}, s{TS+1}, 28
        s_sub_u32 s{TS+2}, s{TS}, s{TS+2}
        s_lshl_b32 s{TS+1}, s{TS+1}, 5
        s_lshl_b32 s{TS+2}, s{TS+2}, 4
        v_add_u32 v4, s{TS+1}, v2
        v_add_u32 v5, s{TS+2}, v3
        s_mov_b32 s{TS+3}, 0
        s_lshl_b32 s{TS+4}, s{TS}, 10
        s_add_u32 s{TS+4}, s{TS+4}, {ws.FW}
        s_branch {lgo}
        {liv}:
        s_sub_u32 s{TS+5}, s{TS}, 420''')
        div_const(a,TS+1,TS+5,29,406)
        a(f'''s_mul_i32 s{TS+2}, s{TS+1}, 29
        s_sub_u32 s{TS+2}, s{TS+5}, s{TS+2}
        s_lshl_b32 s{TS+1}, s{TS+1}, 5
        s_lshl_b32 s{TS+2}, s{TS+2}, 4
        v_add_u32 v4, s{TS+2}, v3
        v_add_u32 v5, s{TS+1}, v2
        s_mov_b32 s{TS+3}, 1
        s_lshl_b32 s{TS+4}, s{TS+5}, 10
        s_add_u32 s{TS+4}, s{TS+4}, {ws.IV}
        {lgo}:''')
        a(f'''s_xor_b32 s{TS+5}, s{TS+3}, 1
        s_mov_b32 s{TS+6}, {hex(fbits(1/448.0))}
        s_mov_b32 s{TS+7}, {hex(fbits(2/448.0))}''')
        for u in range(8):
            a(f'''s_mul_i32 s{TS+8}, s{TS+3}, {u}
            s_mul_i32 s{TS+9}, s{TS+5}, {u}
            v_add_u32 v6, s{TS+8}, v4
            v_add_u32 v7, s{TS+9}, v5
            v_subrev_u32 v8, 225, v6
            v_cmp_gt_u32 vcc, 225, v6
            v_mov_b32 v10, 0.25
            s_nop 0
            v_cndmask_b32 v8, v8, v6, vcc
            v_cndmask_b32 v10, v10, 0, vcc
            v_mul_u32_u24 v9, v8, v7
            v_cvt_f32_u32 v9, v9
            v_mul_f32 v11, s{TS+6}, v9
            v_floor_f32 v11, v11
            v_mul_f32 v11, 0xc3e00000, v11
            v_add_f32 v9, v9, v11
            v_fma_f32 v9, v9, s{TS+6}, v10
            v_cos_f32 v9, v9
            v_mov_b32 v11, 1.0
            s_cmp_eq_u32 s{TS+3}, 0
            s_cbranch_scc1 .Lm{it}_{u}_{a.n}
            v_mov_b32 v11, s{TS+7}
            v_mov_b32 v12, s{TS+6}
            v_cmp_eq_u32 vcc, 0, v8
            s_nop 1
            v_cndmask_b32 v11, v11, v12, vcc
            v_mov_b32 v13, 224
            v_cmp_eq_u32 vcc, v13, v8
            s_nop 1
            v_cndmask_b32 v11, v11, v12, vcc
            .Lm{it}_{u}_{a.n}:
            v_mov_b32 v13, 450
            v_cmp_gt_u32 vcc, v13, v6
            s_nop 1
            v_cndmask_b32 v11, 0, v11, vcc
            v_mul_f32 v{22+u}, v9, v11''')
        for q in range(4): a(f'v_cvt_pk_bf16_f32 v{32+q}, v{22+2*q}, v{23+2*q}')
        a(f'buffer_store_dwordx4 v[32:35], v20, s[8:11], s{TS+4} offen\ns_waitcnt vmcnt(0)\n{lsk}:\ns_add_u32 s{TS}, s{TS}, 1')
    a(f's_branch {ex}\n{lma}:')
    a(f'''s_load_dwordx2 s[36:37], s[0:1], {KA['mem0']}
    s_lshl_b32 s{TS}, s{S_W}, 6
    v_add_u32 v2, s{TS}, v0
    v_mov_b32 v8, 0
    v_mov_b32 v9, 0
    v_mov_b32 v10, 0
    v_mov_b32 v11, 0
    v_lshlrev_b32 v3, 4, v2
    s_waitcnt lgkmcnt(0)''')
    srd(a,12,36,7168)
    for k in range(14):
        a(f's_mov_b32 s{TS+1}, {ws.GT+(450+k)*4096}\nbuffer_store_dwordx4 v[8:11], v3, s[8:11], s{TS+1} offen')
    for it in range(2):
        a(f'''v_add_u32 v4, {256*it}, v2
        v_and_b32 v5, 7, v4
        v_mul_u32_u24 v5, 896, v5
        v_lshrrev_b32 v6, 3, v4
        v_lshlrev_b32 v6, 4, v6
        v_add_u32 v5, v5, v6
        v_lshlrev_b32 v6, 4, v4
        v_mov_b32 v7, 448
        v_cmp_gt_u32 vcc, v7, v4
        v_mov_b32 v7, 0x10000000
        s_nop 0
        v_cndmask_b32 v5, v7, v5, vcc
        v_cndmask_b32 v6, v7, v6, vcc
        buffer_load_dwordx4 v[12:15], v5, s[12:15], 0 offen
        s_mov_b32 s{TS+1}, {ws.MA}
        s_waitcnt vmcnt(0)
        buffer_store_dwordx4 v[12:15], v6, s[8:11], s{TS+1} offen
        s_waitcnt vmcnt(0)''')
    a(f's_branch {ex}')

def misc_kernel(name):
    a=Asm(); a.l.append(head(name)); ex=name+'_exit'; fin=name+'_fin'
    a(f'''s_cmp_ge_u32 s2, {MISC_WG}
    s_cbranch_scc1 {ex}
    s_load_dwordx2 s[4:5], s[0:1], {KA['ws']}
    v_lshrrev_b32 v1, 6, v0
    v_and_b32 v0, 63, v0
    s_mov_b32 s16, s2
    v_readfirstlane_b32 s17, v1
    s_waitcnt lgkmcnt(0)''')
    srd(a,8,4,0x10000000)
    misc_body(a,16,fin)
    a(f'{fin}:\ns_waitcnt vmcnt(0)\n{ex}:\ns_endpgm')
    return a.text()+kd(name,vgpr=64)
if __name__=='__main__':
    t='.amdgcn_target "amdgcn-amd-amdhsa--gfx950"\n'+misc_kernel('misc_kernel')
    open('misc.s','w').write(t)
```

```python
from asm import *
from lay import ws
NROLE=30
S_WS=8; S_DBG=12
S_ROLE=16; S_WAVE=17; S_STEP=18; S_LIM=19; S_MODE=20
S_T0=21; S_T1=22; S_T2=23; S_T3=24; S_T4=25; S_T5=26; S_T6=27
S_CNT=28
POLL_LIM=20000

def prologue(a, nwg, exitlab):
    a(f'''s_cmp_ge_u32 s2, {nwg}
    s_cbranch_scc1 {exitlab}
    s_load_dwordx2 s[4:5], s[0:1], 96
    s_load_dwordx2 s[6:7], s[0:1], 88
    v_lshrrev_b32 v1, 6, v0
    v_and_b32 v0, 63, v0
    s_waitcnt lgkmcnt(0)
    v_readfirstlane_b32 s{S_WAVE}, v1
    s_mov_b32 s8, s4
    s_mov_b32 s9, s5
    s_mov_b32 s10, 0x10000000
    s_mov_b32 s11, 0x00020000
    s_mov_b32 s12, s6
    s_mov_b32 s13, s7
    s_mov_b32 s14, 256
    s_mov_b32 s15, 0x00020000''')

def election(a, lds_role, nrole=NROLE):
    L=a.lab
    l_w, l_nocas, l_poll, l_got, l_glob, l_fin, l_none, l_wr = [L('el') for _ in range(8)]
    a(f'''s_cmp_lg_u32 s{S_WAVE}, 0
    s_cbranch_scc1 {l_w}
    s_getreg_b32 s{S_T0}, hwreg(HW_REG_XCC_ID,0,4)
    s_mov_b64 exec, 1
    s_lshl_b32 s{S_T1}, s{S_T0}, 2
    v_mov_b32 v2, s{S_T1}
    v_mov_b32 v3, 1
    v_mov_b32 v6, 64
    buffer_atomic_add v3, v2, s[12:15], 0 offen sc0 sc1
    s_add_u32 s{S_T0}, s{S_T0}, 1
    s_waitcnt vmcnt(0)
    v_readfirstlane_b32 s{S_T2}, v3
    s_nop 3
    s_cmp_lg_u32 s{S_T2}, {nrole-1}
    s_cbranch_scc1 {l_nocas}
    v_mov_b32 v4, s{S_T0}
    v_mov_b32 v5, 0
    buffer_atomic_cmpswap v[4:5], v6, s[12:15], 0 offen sc0 sc1
    s_waitcnt vmcnt(0)
    {l_nocas}:
    s_mov_b32 s{S_CNT}, 200
    {l_poll}:
    buffer_load_dword v4, v6, s[12:15], 0 offen sc0 sc1
    s_waitcnt vmcnt(0)
    v_readfirstlane_b32 s{S_T3}, v4
    s_nop 3
    s_cmp_lg_u32 s{S_T3}, 0
    s_cbranch_scc1 {l_got}
    s_sub_u32 s{S_CNT}, s{S_CNT}, 1
    s_cbranch_scc0 {l_poll}
    v_mov_b32 v4, 100
    v_mov_b32 v5, 0
    buffer_atomic_cmpswap v[4:5], v6, s[12:15], 0 offen sc0 sc1
    s_waitcnt vmcnt(0)
    v_readfirstlane_b32 s{S_T3}, v4
    s_nop 3
    s_cmp_lg_u32 s{S_T3}, 0
    s_cbranch_scc1 {l_got}
    s_mov_b32 s{S_T3}, 100
    {l_got}:
    s_cmp_eq_u32 s{S_T3}, 100
    s_cbranch_scc1 {l_glob}
    s_cmp_lg_u32 s{S_T3}, s{S_T0}
    s_cbranch_scc1 {l_none}
    s_mov_b32 s{S_T4}, s{S_T2}
    s_branch {l_fin}
    {l_glob}:
    v_mov_b32 v3, 1
    v_mov_b32 v6, 68
    buffer_atomic_add v3, v6, s[12:15], 0 offen sc0 sc1
    s_waitcnt vmcnt(0)
    v_readfirstlane_b32 s{S_T4}, v3
    s_nop 3
    s_min_u32 s{S_T4}, s{S_T4}, 255
    s_or_b32 s{S_T4}, s{S_T4}, 0x100
    s_branch {l_fin}
    {l_none}:
    s_mov_b32 s{S_T4}, 255
    {l_fin}:
    v_mov_b32 v2, {lds_role}
    v_mov_b32 v3, s{S_T4}
    ds_write_b32 v2, v3
    s_waitcnt lgkmcnt(0)
    s_mov_b64 exec, -1
    {l_w}:
    s_barrier
    v_mov_b32 v2, {lds_role}
    ds_read_b32 v3, v2
    s_waitcnt lgkmcnt(0)
    v_readfirstlane_b32 s{S_T4}, v3
    s_nop 3
    s_and_b32 s{S_ROLE}, s{S_T4}, 0xff
    s_lshr_b32 s{S_MODE}, s{S_T4}, 8''')

def load_frags(a, nfr, dst, voff, soff, flags='nt'):
    for f in range(nfr):
        k,b=dst(f)
        for eta in range(2):
            r=(ar if k=='a' else vr)(b+4*eta,4)
            off=((2*f+eta)&3)*1024
            a(f'buffer_load_dwordx4 {r}, v{voff}, s[8:11], s{soff} offen offset:{off} {flags}' if off else f'buffer_load_dwordx4 {r}, v{voff}, s[8:11], s{soff} offen {flags}')
            if ((2*f+eta)&3)==3: a(f's_add_u32 s{soff}, s{soff}, 4096')

def stamp(a, prof, idx):
    if prof: a(f's_memtime s[{40+2*idx}:{41+2*idx}]')
def stamp_flush(a, prof, n, vtmp):
    if not prof: return
    a(f'''s_waitcnt lgkmcnt(0)
    s_lshl_b32 s{S_T0}, s{S_ROLE}, 2
    s_add_u32 s{S_T0}, s{S_T0}, s{S_WAVE}
    s_lshl_b32 s{S_T0}, s{S_T0}, 6
    s_add_u32 s{S_T0}, s{S_T0}, s{S_STEP}
    s_lshl_b32 s{S_T0}, s{S_T0}, 6
    s_add_u32 s{S_T0}, s{S_T0}, {ws.PROF}
    s_mov_b64 s[36:37], exec
    s_mov_b64 exec, 1''')
    for i in range(n):
        a(f'v_mov_b32 v{vtmp}, s{40+2*i}\nv_mov_b32 v{vtmp+1}, {4*i}\nbuffer_store_dword v{vtmp}, v{vtmp+1}, s[8:11], s{S_T0} offen\ns_nop 0')
    a('s_mov_b64 exec, s[36:37]')

def poll_tail(a, lab_retry, lab_ok, vchk):
    a(f'''v_cmp_eq_u32 vcc, -1, v{vchk}
    s_cbranch_vccz {lab_ok}
    s_sub_u32 s{S_CNT}, s{S_CNT}, 1
    s_cbranch_scc0 {lab_retry}
    s_mov_b32 s{S_LIM}, 0
    {lab_ok}:''')

def store2(a, txt):
    l1=a.lab('st'); l2=a.lab('st')
    a(f's_cmp_lg_u32 s{S_MODE}, 0\ns_cbranch_scc1 {l1}')
    for t in txt: a(t)
    a(f's_branch {l2}\n{l1}:')
    for t in txt: a(t+' sc1')
    a(f'{l2}:')

LS_MX=0; LS_XK=8192; LS_T2=36864; LS_SB=51200; LS_SD=59392; LS_ROLE=77824
def score_role(a, prof, nsteps=63, clk=False):
    IDX=1; A0=4
    ACC=[32,36,40]; PK=44
    TF=48
    KD=62
    SC2=86
    VL16=90; VMXW=91; VMK=92; VMKO=93; VXK=94; VXKO=95; VT2W=96; VT2R=97; VSW=98; VSWM=99; VSR=100; VPST=101; VPOLL=102; VDMA=103
    NEG=104
    PL=62
    WV=120
    def wdst(f): return ('a',8*f) if f<32 else ('v',WV+8*(f-32))
    def wreg(f):
        k,b=wdst(f); return (ar if k=='a' else vr)(b,8)
    S_PO=29; S_PO2=30; S_PS=31; S_PP=32; S_XO=33
    L=a.lab
    a(f'''v_lshlrev_b32 v{VL16}, 4, v0
    s_mul_i32 s{S_T0}, s{S_ROLE}, {4*49*2048}
    s_mul_i32 s{S_T1}, s{S_WAVE}, {49*2048}
    s_add_u32 s{S_T0}, s{S_T0}, s{S_T1}
    s_add_u32 s{S_T0}, s{S_T0}, {ws.AI}''')
    load_frags(a,49,wdst,VL16,S_T0)
    a(f'''v_and_b32 v2, 8, v0
    v_mov_b32 v{IDX}, 0x44444444
    v_mov_b32 v3, 0xeeeeeeee
    v_cmp_ne_u32 vcc, 0, v2
    v_mov_b32 v{NEG}, -1
    v_mov_b32 v{NEG+1}, -1
    v_cndmask_b32 v{IDX}, v{IDX}, v3, vcc
    s_lshl_b32 s{S_T1}, s{S_WAVE}, 10
    v_add_u32 v{VMXW}, s{S_T1}, v{VL16}
    v_mov_b32 v{VPOLL}, v{VMXW}''')
    a(f'''s_movk_i32 s{S_T2}, 4096
    s_cmp_eq_u32 s{S_WAVE}, 3
    s_cselect_b32 s{S_T2}, 0x10000000, s{S_T2}
    v_add_u32 v{VDMA}, s{S_T2}, v{VPOLL}''')
    VPOLL2=106
    a(f'v_mov_b32 v{VPOLL2}, v{VDMA}')
    a(f'''v_lshrrev_b32 v2, 4, v0
    v_and_b32 v3, 7, v0
    v_lshlrev_b32 v3, 4, v3
    s_mul_i32 s{S_T1}, s{S_WAVE}, {14*128}
    v_lshlrev_b32 v4, 7, v2
    v_add3_u32 v{VMK}, v4, v3, s{S_T1}
    v_lshrrev_b32 v4, 1, v2
    v_lshlrev_b32 v4, 7, v4
    v_and_b32 v5, 1, v2
    v_lshlrev_b32 v5, 3, v5
    s_add_u32 s{S_T1}, s{S_T1}, {12*128}
    v_add3_u32 v{VMKO}, v4, v3, s{S_T1}
    v_add_u32 v{VMKO}, v{VMKO}, v5
    s_mul_i32 s{S_T1}, s{S_WAVE}, 7168
    s_add_u32 s{S_T1}, s{S_T1}, {LS_XK}
    v_add_u32 v{VXK}, s{S_T1}, v{VL16}
    v_lshlrev_b32 v4, 3, v0
    s_add_u32 s{S_T1}, s{S_T1}, 6144
    v_add_u32 v{VXKO}, s{S_T1}, v4''')
    a(f'''s_mul_i32 s{S_T1}, s{S_WAVE}, 3584
    s_add_u32 s{S_T1}, s{S_T1}, {LS_T2}
    v_and_b32 v3, 15, v0
    v_lshrrev_b32 v4, 2, v3
    v_xor_b32 v4, v4, v2
    v_lshlrev_b32 v4, 3, v4
    v_lshlrev_b32 v5, 5, v3
    v_add3_u32 v{VT2W}, v4, v5, s{S_T1}
    v_and_b32 v4, 3, v0
    v_xor_b32 v4, v4, v2
    v_lshlrev_b32 v4, 3, v4
    v_lshrrev_b32 v5, 2, v0
    v_lshlrev_b32 v5, 5, v5
    v_add3_u32 v{VT2R}, v4, v5, s{S_T1}''')
    a(f'''s_lshl_b32 s{S_T1}, s{S_WAVE}, 11
    s_add_u32 s{S_T1}, s{S_T1}, {LS_SB}
    v_and_b32 v4, 7, v0
    v_lshrrev_b32 v5, 3, v3
    v_lshlrev_b32 v6, 2, v5
    v_add_u32 v6, v6, v2
    v_lshrrev_b32 v7, 1, v6
    v_add_u32 v7, v7, v4
    v_and_b32 v7, 7, v7
    v_lshlrev_b32 v7, 4, v7
    v_lshlrev_b32 v6, 7, v6
    v_add3_u32 v{VSW}, v6, v7, s{S_T1}''')
    a(f'''v_add_u32 v6, 8, v2
    v_lshrrev_b32 v7, 1, v6
    v_add_u32 v7, v7, v4
    v_and_b32 v7, 7, v7
    v_lshlrev_b32 v7, 4, v7
    v_lshlrev_b32 v6, 7, v6
    v_add3_u32 v{VSWM}, v6, v7, s{S_T1}
    v_lshrrev_b32 v6, 1, v2
    v_or_b32 v6, v6, v5
    v_add_u32 v7, {LS_SD}, v{VL16}
    v_cmp_ne_u32 vcc, 0, v6
    s_nop 1
    v_cndmask_b32 v{VSWM}, v{VSWM}, v7, vcc''')
    a(f'''s_lshl_b32 s{S_T1}, s{S_WAVE}, 2
    v_add_u32 v4, s{S_T1}, v2
    v_and_b32 v4, 7, v4
    v_lshrrev_b32 v5, 1, v3
    v_add_u32 v5, v5, v4
    v_and_b32 v5, 7, v5
    v_lshlrev_b32 v5, 4, v5
    v_lshlrev_b32 v6, 7, v3
    v_add_u32 v6, {LS_SB}, v6
    v_add_u32 v{VSR}, v6, v5''')
    a(f'''s_lshr_b32 s{S_T1}, s{S_ROLE}, 2
    s_lshl_b32 s{S_T2}, s{S_T1}, 11
    s_and_b32 s{S_T3}, s{S_ROLE}, 3
    s_lshl_b32 s{S_T3}, s{S_T3}, 8
    s_add_u32 s{S_T2}, s{S_T2}, s{S_T3}
    v_lshrrev_b32 v5, 2, v3
    v_lshlrev_b32 v5, 10, v5
    v_lshrrev_b32 v6, 1, v3
    v_and_b32 v6, 1, v6
    v_lshlrev_b32 v6, 7, v6
    v_lshlrev_b32 v7, 4, v4
    v_add3_u32 v5, v5, v6, v7
    v_and_b32 v6, 1, v3
    v_lshlrev_b32 v8, 3, v6
    v_add3_u32 v5, v5, v8, s{S_T2}
    s_lshl_b32 s{S_T2}, s{S_T1}, 9
    s_and_b32 s{S_T3}, s{S_ROLE}, 1
    s_lshl_b32 s{S_T3}, s{S_T3}, 8
    s_add_u32 s{S_T2}, s{S_T2}, s{S_T3}
    s_lshr_b32 s{S_T3}, s{S_ROLE}, 1
    s_and_b32 s{S_T3}, s{S_T3}, 1
    s_lshl_b32 s{S_T3}, s{S_T3}, 3
    s_add_u32 s{S_T2}, s{S_T2}, s{S_T3}
    s_add_u32 s{S_T2}, s{S_T2}, 8192
    v_lshlrev_b32 v8, 7, v6
    v_add3_u32 v8, v8, v7, s{S_T2}
    v_cmp_gt_u32 vcc, 8, v3
    s_nop 1
    v_cndmask_b32 v5, v8, v5, vcc
    v_mov_b32 v8, 0x10000000
    v_cmp_gt_u32 vcc, 10, v3
    s_nop 1
    v_cndmask_b32 v{VPST}, v8, v5, vcc''')
    a(f'''s_lshl_b32 s{S_T1}, s{S_WAVE}, 11
    s_add_u32 s{S_T1}, s{S_T1}, {LS_SB}
    v_lshlrev_b32 v2, 5, v0
    v_add_u32 v2, s{S_T1}, v2
    v_mov_b32 v4, 0xf149f2ca
    v_mov_b32 v5, v4
    v_mov_b32 v6, v4
    v_mov_b32 v7, v4
    ds_write_b128 v2, v[4:7]
    ds_write_b128 v2, v[4:7] offset:16''')
    def xk_dma(nxt):
        for k in range(14):
            a(f's_add_u32 m0, s{S_T5}, {k*1024}' if k else f's_mov_b32 m0, s{S_T5}')
            off=(k&3)*1024
            a(f's_add_u32 s{S_T6}, s{S_XO}, {k*1024}')
            a(f'buffer_load_dwordx4 v{VL16}, s[8:11], s{S_T6} offen lds')
    lx=L('xk')
    a(f'''s_sub_u32 s{S_T1}, s{S_WAVE}, 2
    s_mul_i32 s{S_T1}, s{S_T1}, 14336
    s_add_u32 s{S_XO}, s{S_T1}, {ws.XK}
    s_add_u32 s{S_T5}, s{S_T1}, {LS_XK}
    s_cmp_lt_u32 s{S_WAVE}, 2
    s_cbranch_scc1 {lx}''')
    xk_dma(0)
    a(f'''{lx}:
    s_mov_b32 s{S_STEP}, 0
    s_mov_b32 s{S_LIM}, {POLL_LIM}
    s_mov_b32 s{S_PO}, {ws.MA}''')
    loop=L('sloop'); pr=L('spoll'); pok=L('spok')
    if clk: a('s_waitcnt vmcnt(0)\ns_memtime s[60:61]\ns_memrealtime s[62:63]\ns_waitcnt lgkmcnt(0)')
    a(f'{loop}:')
    stamp(a,prof,0)
    a(f'''s_mov_b32 s{S_CNT}, s{S_LIM}
    {pr}:
    buffer_load_dwordx4 v[{PL}:{PL+3}], v{VPOLL}, s[8:11], s{S_PO} offen sc1
    buffer_load_dwordx4 v[{PL+4}:{PL+7}], v{VPOLL2}, s[8:11], s{S_PO} offen sc1
    s_waitcnt vmcnt(1)
    ds_write_b128 v{VMXW}, v[{PL}:{PL+3}]
    v_max3_u32 v2, v{PL}, v{PL+1}, v{PL+2}
    v_max_u32 v2, v2, v{PL+3}
    s_waitcnt vmcnt(0)
    ds_write_b128 v{VMXW}, v[{PL+4}:{PL+7}] offset:4096
    v_max3_u32 v2, v2, v{PL+4}, v{PL+5}
    v_max3_u32 v2, v2, v{PL+6}, v{PL+7}''')
    poll_tail(a,pr,pok,2)
    stamp(a,prof,1)
    a('s_waitcnt lgkmcnt(0)\ns_barrier')
    for k in range(7): a(f'ds_read_b128 v[{A0+4*k}:{A0+4*k+3}], v{VL16} offset:{k*1024}')
    for r in range(8): a(f'v_mov_b32 v{ACC[0]+r}, 0')
    stamp(a,prof,2)
    a(f'''s_add_u32 s{S_T0}, s{S_STEP}, 1
    s_and_b32 s{S_T0}, s{S_T0}, 3
    s_mul_i32 s{S_T0}, s{S_T0}, 7168
    s_add_u32 s{S_PO}, s{S_T0}, {ws.MR}
    s_and_b32 s{S_T0}, s{S_STEP}, 3
    s_mul_i32 s{S_T0}, s{S_T0}, 10240
    s_add_u32 s{S_PS}, s{S_T0}, {ws.PR}
    s_add_u32 s{S_T0}, s{S_STEP}, 2
    s_and_b32 s{S_T0}, s{S_T0}, 3
    s_mul_i32 s{S_T0}, s{S_T0}, 10240
    s_add_u32 s{S_PP}, s{S_T0}, {ws.PR}''')
    def keyreg(j,x):
        if j<2: return KD+12*j+4*x
        if j==2: return A0+4*x
        return A0+12+2*x
    def keyread(j,x):
        r=keyreg(j,x)
        if j<3:
            if x==0: return f'ds_read_b128 v[{r}:{r+3}], v{VMK} offset:{j*512}'
            return f'ds_read_b128 v[{r}:{r+3}], v{VXK} offset:{((x-1)*3+j)*1024}'
        if x==0: return f'ds_read_b64 v[{r}:{r+1}], v{VMKO}'
        return f'ds_read_b64 v[{r}:{r+1}], v{VXKO} offset:{(x-1)*512}'
    def tfreg(t): return TF+2*t
    def post(t):
        ac=ACC[t%3]; pk=PK+2*(t&1)
        return ([f'v_cvt_pk_bf16_f32 v{pk}, v{ac}, v{ac+1}', f'v_cvt_pk_bf16_f32 v{pk+1}, v{ac+2}, v{ac+3}'],
                f'ds_write_b64 v{VT2W}, v[{pk}:{pk+1}] offset:{t*512}',
                f'ds_read_b64_tr_b16 v[{tfreg(t)}:{tfreg(t)+1}], v{VT2R} offset:{t*512}')
    kq=[keyread(j,x) for j in range(2) for x in range(3)]
    for t in range(7):
        ac=ACC[t%3]
        for k in range(7):
            if t==0: a(f's_waitcnt lgkmcnt({6-k})')
            a(f'v_smfmac_f32_16x16x64_bf16 v[{ac}:{ac+3}], v[{A0+4*k}:{A0+4*k+3}], {wreg(t*7+k)}, v{IDX}')
            fl=[]
            if t>=1:
                cv,wr,rd=post(t-1)
                if k==3: fl=cv
                if k==4: fl=[wr,rd]
            if 1<=t<6 or t==0:
                nx=ACC[(t+1)%3]
                if t>=1:
                    if k==0: fl=[f'v_mov_b32 v{nx}, 0',f'v_mov_b32 v{nx+1}, 0']
                    if k==1: fl=[f'v_mov_b32 v{nx+2}, 0',f'v_mov_b32 v{nx+3}, 0']
            if t in (2,3,4) and k in (5,6) and kq: fl=[kq.pop(0)]
            for x in fl: a(x)
    assert not kq
    stamp(a,prof,3)
    SA=[SC2,ACC[1],ACC[2]]
    cv,wr,rd=post(6)
    def smf(j,x):
        c='0' if j==0 else f'v[{SA[x]}:{SA[x]+3}]'
        if j<3: return f'v_mfma_f32_16x16x32_bf16 v[{SA[x]}:{SA[x]+3}], v[{keyreg(j,x)}:{keyreg(j,x)+3}], v[{TF+4*j}:{TF+4*j+3}], {c}'
        return f'v_mfma_f32_16x16x16_bf16 v[{SA[x]}:{SA[x]+3}], v[{keyreg(j,x)}:{keyreg(j,x)+1}], v[{tfreg(6)}:{tfreg(6)+1}], {c}'
    a(keyread(2,0)); a(keyread(2,1))
    a('s_waitcnt lgkmcnt(2)')
    a(smf(0,0)); a(keyread(2,2)); a(keyread(3,0))
    a(smf(0,1)); a(keyread(3,1)); a(keyread(3,2))
    a(smf(0,2)); a('s_nop 0')
    a(smf(1,0)); a(cv[0]); a(cv[1])
    a(smf(1,1)); a(wr); a(rd)
    a(smf(1,2))
    a('s_waitcnt lgkmcnt(5)')
    a(smf(2,0)); a(smf(2,1)); a(smf(2,2))
    a('s_waitcnt lgkmcnt(0)')
    a(smf(3,0)); a(smf(3,1)); a(smf(3,2))
    a('s_nop 5')
    for r in range(4): a(f'v_add_f32_dpp v{4+r}, v{SA[0]+r}, v{SA[0]+r} row_ror:8 row_mask:0xf bank_mask:0xf')
    a(f'ds_write_b128 v{VSWM}, v[4:7]')
    for r in range(4): a(f'v_add_f32_dpp v{8+r}, v{SA[1]+r}, v{SA[1]+r} row_ror:8 row_mask:0xf bank_mask:0x3')
    for r in range(4): a(f'v_add_f32_dpp v{8+r}, v{SA[2]+r}, v{SA[2]+r} row_ror:8 row_mask:0xf bank_mask:0xc')
    a(f'ds_write_b128 v{VSW}, v[8:11]')
    stamp(a,prof,4)
    a('s_waitcnt lgkmcnt(0)\ns_barrier')
    lx=L('xk'); lnext=L('snext')
    a(f's_cmp_ge_u32 s{S_WAVE}, 2\ns_cbranch_scc1 {lx}')
    for w in range(4): a(f'ds_read_b128 v[{4+4*w}:{7+4*w}], v{VSR} offset:{w*2048}')
    a('''s_waitcnt lgkmcnt(2)
    v_pk_add_f32 v[4:5], v[4:5], v[8:9]
    v_pk_add_f32 v[6:7], v[6:7], v[10:11]
    s_waitcnt lgkmcnt(0)
    v_pk_add_f32 v[12:13], v[12:13], v[16:17]
    v_pk_add_f32 v[14:15], v[14:15], v[18:19]
    v_pk_add_f32 v[4:5], v[4:5], v[12:13]
    v_pk_add_f32 v[6:7], v[6:7], v[14:15]
    v_max3_f32 v8, v4, v5, v6
    v_max_f32 v8, v8, v7
    s_nop 1
    v_max_f32_dpp v9, v8, v8 row_ror:4 row_mask:0xf bank_mask:0xf
    v_max_f32_dpp v9, v8, v9 row_ror:8 row_mask:0xf bank_mask:0xf
    v_max_f32_dpp v9, v8, v9 row_ror:12 row_mask:0xf bank_mask:0xf
    s_nop 1
    v_max_f32_dpp v10, v9, v9 row_ror:1 row_mask:0xf bank_mask:0xf
    v_max_f32_dpp v10, v9, v10 row_ror:2 row_mask:0xf bank_mask:0xf
    v_max_f32_dpp v10, v9, v10 row_ror:3 row_mask:0xf bank_mask:0xf
    v_pk_add_f32 v[4:5], v[4:5], v[10:11] op_sel_hi:[1,0] neg_lo:[0,1] neg_hi:[0,1]
    v_pk_add_f32 v[6:7], v[6:7], v[10:11] op_sel_hi:[1,0] neg_lo:[0,1] neg_hi:[0,1]
    v_exp_f32 v4, v4
    v_exp_f32 v5, v5
    v_exp_f32 v6, v6
    v_exp_f32 v7, v7
    v_add_f32 v8, v4, v5
    v_add_f32 v9, v6, v7
    v_add_f32 v8, v8, v9
    s_nop 1
    v_add_f32_dpp v9, v8, v8 row_ror:4 row_mask:0xf bank_mask:0xf
    v_add_f32_dpp v9, v8, v9 row_ror:8 row_mask:0xf bank_mask:0xf
    v_add_f32_dpp v9, v8, v9 row_ror:12 row_mask:0xf bank_mask:0xf
    s_nop 1
    v_add_f32_dpp v10, v9, v9 row_ror:1 row_mask:0xf bank_mask:0xf
    v_add_f32_dpp v10, v9, v10 row_ror:2 row_mask:0xf bank_mask:0xf
    v_add_f32_dpp v10, v9, v10 row_ror:3 row_mask:0xf bank_mask:0xf
    v_rcp_f32 v10, v10
    s_nop 0
    v_pk_mul_f32 v[4:5], v[4:5], v[10:11] op_sel_hi:[1,0]
    v_pk_mul_f32 v[6:7], v[6:7], v[10:11] op_sel_hi:[1,0]
    v_cvt_pk_bf16_f32 v4, v4, v5
    v_cvt_pk_bf16_f32 v5, v6, v7''')
    store2(a,[f'buffer_store_dwordx2 v[4:5], v{VPST}, s[8:11], s{S_PS} offen',
              f'buffer_store_dwordx2 v[{NEG}:{NEG+1}], v{VPST}, s[8:11], s{S_PP} offen'])
    stamp(a,prof,5)
    a(f's_branch {lnext}\n{lx}:')
    a(f's_add_u32 s{S_XO}, s{S_XO}, 28672')
    xk_dma(1)
    stamp(a,prof,5)
    a(f'{lnext}:')
    stamp_flush(a,prof,6,2)
    a(f'''s_add_u32 s{S_STEP}, s{S_STEP}, 1
    s_cmp_lt_u32 s{S_STEP}, {nsteps}
    s_cbranch_scc1 {loop}''')
    if clk:
        a(f'''s_memtime s[64:65]
        s_memrealtime s[66:67]
        s_waitcnt lgkmcnt(0)
        s_sub_u32 s64, s64, s60
        s_sub_u32 s66, s66, s62
        s_lshl_b32 s{S_T0}, s{S_ROLE}, 2
        s_add_u32 s{S_T0}, s{S_T0}, s{S_WAVE}
        s_lshl_b32 s{S_T0}, s{S_T0}, 3
        s_add_u32 s{S_T0}, s{S_T0}, {ws.PROF+0xF0000}
        v_mov_b32 v2, s64
        v_mov_b32 v3, s66
        v_mov_b32 v4, 0
        s_nop 4
        buffer_store_dwordx2 v[2:3], v4, s[8:11], s{S_T0} offen''')
    a('''s_waitcnt vmcnt(0)
    s_endpgm''')

LV_MX=0; LV_W=8192; LV_R=73728
def value_role(a, prof, nsteps=63):
    IDX=1; A0=4
    DF=32
    WB=64
    ACC=[72,76,80,84]; XA=88
    ST=92
    VL16=108; VMXW=109; VPOLL=110; VPOLL2=111; VWL=112; VPX=113; VPM=114; VRW=115; VRR=116; VMS=117
    NEG=118
    WV=128
    def wdst(f): return ('a',8*f) if f<32 else ('v',WV+8*(f-32))
    def wreg(f):
        k,b=wdst(f); return (ar if k=='a' else vr)(b,8)
    S_V=29; S_PO=30; S_PS=31; S_MS=32; S_MP=33; S_MA=34; S_DO=35; S_WO=38
    L=a.lab
    a(f'''s_sub_u32 s{S_V}, s{S_ROLE}, 16
    v_lshlrev_b32 v{VL16}, 4, v0
    s_lshl_b32 s{S_T0}, s{S_V}, 2
    s_add_u32 s{S_T0}, s{S_T0}, s{S_WAVE}
    s_mul_i32 s{S_T0}, s{S_T0}, {56*2048}
    s_add_u32 s{S_T0}, s{S_T0}, {ws.CI}''')
    load_frags(a,48,wdst,VL16,S_T0)
    a(f'''s_lshl_b32 s{S_T1}, s{S_WAVE}, 14
    s_add_u32 s{S_T1}, s{S_T1}, {LV_W}''')
    for k in range(16):
        a(f's_add_u32 m0, s{S_T1}, {k*1024}\ns_add_u32 s{S_T2}, s{S_T0}, {k*1024}\nbuffer_load_dwordx4 v{VL16}, s[8:11], s{S_T2} offen lds')
    a(f'''v_add_u32 v{VWL}, s{S_T1}, v{VL16}
    v_and_b32 v2, 8, v0
    v_mov_b32 v{IDX}, 0x44444444
    v_mov_b32 v3, 0xeeeeeeee
    v_cmp_ne_u32 vcc, 0, v2
    v_mov_b32 v{NEG}, -1
    v_mov_b32 v{NEG+1}, -1
    v_cndmask_b32 v{IDX}, v{IDX}, v3, vcc
    s_lshl_b32 s{S_T1}, s{S_WAVE}, 10
    v_add_u32 v{VMXW}, s{S_T1}, v{VL16}
    v_mov_b32 v{VPOLL}, v{VMXW}
    s_movk_i32 s{S_T2}, 4096
    s_cmp_eq_u32 s{S_WAVE}, 3
    s_cselect_b32 s{S_T2}, 0x10000000, s{S_T2}
    v_add_u32 v{VPOLL2}, s{S_T2}, v{VPOLL}''')
    a(f'''s_lshl_b32 s{S_T1}, s{S_WAVE}, 11
    v_add_u32 v{VPX}, s{S_T1}, v{VL16}
    s_lshl_b32 s{S_T1}, s{S_WAVE}, 9
    s_add_u32 s{S_T1}, s{S_T1}, 8192
    v_lshrrev_b32 v2, 4, v0
    v_and_b32 v3, 15, v0
    v_lshlrev_b32 v4, 7, v2
    v_lshlrev_b32 v5, 4, v3
    v_add3_u32 v4, v4, v5, s{S_T1}
    v_mov_b32 v5, 0x10000000
    v_cmp_gt_u32 vcc, 8, v3
    s_nop 1
    v_cndmask_b32 v{VPM}, v5, v4, vcc''')
    a(f'''s_lshl_b32 s{S_T1}, s{S_WAVE}, 10
    s_add_u32 s{S_T1}, s{S_T1}, {LV_R}
    v_lshlrev_b32 v4, 2, v0
    v_add_u32 v{VRW}, s{S_T1}, v4
    v_add_u32 v{VRR}, {LV_R}, v{VL16}''')
    a(f'''v_lshrrev_b32 v2, 4, v0
    v_lshrrev_b32 v3, 2, v0
    v_and_b32 v3, 1, v3
    v_lshlrev_b32 v3, 2, v3
    v_add_u32 v2, v2, v3
    v_lshlrev_b32 v2, 4, v2
    v_lshrrev_b32 v3, 3, v0
    v_and_b32 v3, 1, v3
    v_lshlrev_b32 v3, 1, v3
    v_lshrrev_b32 v4, 1, v0
    v_and_b32 v4, 1, v4
    v_add_u32 v3, v3, v4
    v_lshlrev_b32 v3, 7, v3
    v_and_b32 v4, 1, v0
    v_lshlrev_b32 v4, 3, v4
    v_add3_u32 v2, v2, v3, v4
    s_lshl_b32 s{S_T1}, s{S_V}, 9
    v_add_u32 v{VMS}, s{S_T1}, v2''')
    a(f'''s_lshl_b32 s{S_T1}, s{S_V}, 15
    s_lshl_b32 s{S_T2}, s{S_WAVE}, 13
    s_add_u32 s{S_DO}, s{S_T1}, s{S_T2}
    s_add_u32 s{S_DO}, s{S_DO}, {ws.DI}
    s_lshl_b32 s{S_T1}, s{S_V}, 13
    s_lshl_b32 s{S_T2}, s{S_WAVE}, 11
    s_add_u32 s{S_WO}, s{S_T1}, s{S_T2}
    s_add_u32 s{S_WO}, s{S_WO}, {ws.WI}
    s_mov_b32 s{S_STEP}, 0
    s_mov_b32 s{S_LIM}, {POLL_LIM}
    s_mov_b32 s{S_PO}, {ws.MA}
    s_mov_b32 s{S_MA}, {ws.MA+7168}''')
    loop=L('vloop'); pr=L('vpoll'); pok=L('vpok'); PL=DF
    a(f'{loop}:')
    stamp(a,prof,0)
    a(f'''s_mov_b32 s{S_CNT}, s{S_LIM}
    {pr}:
    buffer_load_dwordx4 v[{PL}:{PL+3}], v{VPOLL}, s[8:11], s{S_PO} offen sc1
    buffer_load_dwordx4 v[{PL+4}:{PL+7}], v{VPOLL2}, s[8:11], s{S_PO} offen sc1
    s_waitcnt vmcnt(1)
    ds_write_b128 v{VMXW}, v[{PL}:{PL+3}]
    v_max3_u32 v2, v{PL}, v{PL+1}, v{PL+2}
    v_max_u32 v2, v2, v{PL+3}
    s_waitcnt vmcnt(0)
    ds_write_b128 v{VMXW}, v[{PL+4}:{PL+7}] offset:4096
    v_max3_u32 v2, v2, v{PL+4}, v{PL+5}
    v_max3_u32 v2, v2, v{PL+6}, v{PL+7}''')
    poll_tail(a,pr,pok,2)
    stamp(a,prof,1)
    a('s_waitcnt lgkmcnt(0)\ns_barrier')
    for k in range(7): a(f'ds_read_b128 v[{A0+4*k}:{A0+4*k+3}], v{VL16} offset:{k*1024}')
    def sread(f,buf):
        b=ST+8*buf; o=(f-48)*2048
        return [f'ds_read_b128 v[{b}:{b+3}], v{VWL} offset:{o}', f'ds_read_b128 v[{b+4}:{b+7}], v{VWL} offset:{o+1024}']
    for r in range(4): a(f'v_mov_b32 v{ACC[0]+r}, 0')
    for r in range(4): a(f'v_mov_b32 v{XA+r}, 0')
    for q in range(8):
        off=(q&3)*1024
        if q==4: a(f's_add_u32 s{S_T0}, s{S_DO}, 4096')
        so=S_DO if q<4 else S_T0
        a(f'buffer_load_dwordx4 v[{DF+4*q}:{DF+4*q+3}], v{VL16}, s[8:11], s{so} offen offset:{off}')
    a(f'''s_add_u32 s{S_DO}, s{S_DO}, {14*32768}
    s_add_u32 s{S_T0}, s{S_STEP}, 1
    s_and_b32 s{S_T0}, s{S_T0}, 3
    s_mul_i32 s{S_T0}, s{S_T0}, 7168
    s_add_u32 s{S_MS}, s{S_T0}, {ws.MR}
    s_add_u32 s{S_T0}, s{S_STEP}, 3
    s_and_b32 s{S_T0}, s{S_T0}, 3
    s_mul_i32 s{S_T0}, s{S_T0}, 7168
    s_add_u32 s{S_MP}, s{S_T0}, {ws.MR}
    s_and_b32 s{S_T0}, s{S_STEP}, 3
    s_mul_i32 s{S_T0}, s{S_T0}, 10240
    s_add_u32 s{S_PS}, s{S_T0}, {ws.PR}
    s_mov_b32 s{S_PO}, s{S_MS}''')
    stamp(a,prof,2)
    chains=[(0,0),(0,1),(0,2),(0,3),(1,0),(1,1),(1,2)]
    def fidx(tau,hh,k): return hh*14+tau*7+k
    def psum(tau,half,ra,rb):
        o=[]
        for r in range(4): o.append(f'v_permlane32_swap_b32 v{ra+r}, v{rb+r}')
        for r in range(4): o.append(f'v_add_f32 v{ra+r}, v{ra+r}, v{rb+r}')
        d=WB+4*tau+2*half
        o.append(f'v_cvt_pk_bf16_f32 v{d}, v{ra}, v{ra+1}'); o.append(f'v_cvt_pk_bf16_f32 v{d+1}, v{ra+2}, v{ra+3}')
        return o
    pend=[]
    lg=7
    for c,(tau,hh) in enumerate(chains):
        ac=ACC[c%4]
        for k in range(7):
            f=fidx(tau,hh,k)
            if c==0: a(f's_waitcnt lgkmcnt({6-k})')
            if f>=48:
                assert f==48
                a('s_waitcnt lgkmcnt(0)')
                b=vr(ST+8,8)
            else: b=wreg(f)
            a(f'v_smfmac_f32_16x16x64_bf16 v[{ac}:{ac+3}], v[{A0+4*k}:{A0+4*k+3}], {b}, v{IDX}')
            fl=[]
            if k==0: fl+=sread(49+c,0)
            if c==3 and k==1: fl+=sread(48,1)
            if c<6 and k in (2,3):
                nx=ACC[(c+1)%4]; fl+=[f'v_mov_b32 v{nx+2*(k-2)}, 0',f'v_mov_b32 v{nx+2*(k-2)+1}, 0']
            if k>=3 and pend:
                fl+=pend[:2]; pend=pend[2:]
            for x in fl: a(x)
        a('s_waitcnt lgkmcnt(0)')
        a(f'v_smfmac_f32_16x16x64_bf16 v[{XA}:{XA+3}], v[{A0+4*c}:{A0+4*c+3}], {vr(ST,8)}, v{IDX}')
        for x in pend[:2]: a(x)
        pend=pend[2:]
        if c in (1,3,5):
            assert not pend
            pend=psum(0 if c<4 else 1, 0 if c in (1,5) else 1, ACC[(c-1)%4], ACC[c%4])
    for x in pend: a(x)
    a('s_nop 7')
    for x in psum(1,1,ACC[6%4],XA): a(x)
    a(f'buffer_store_dwordx4 v[{WB}:{WB+3}], v{VL16}, s[8:11], s{S_WO} offen')
    a(f'buffer_store_dwordx4 v[{WB+4}:{WB+7}], v{VL16}, s[8:11], s{S_WO} offen offset:1024')
    a(f's_add_u32 s{S_WO}, s{S_WO}, {14*8192}')
    stamp(a,prof,3)
    fin=L('vfin')
    a(f's_cmp_ge_u32 s{S_STEP}, {nsteps}\ns_cbranch_scc1 {fin}')
    pr=L('ppoll'); pok=L('ppok')
    O0=ACC[0]; O1=ACC[1]
    a(f'''s_mov_b32 s{S_CNT}, s{S_LIM}
    {pr}:
    buffer_load_dwordx4 v[12:15], v{VPM}, s[8:11], s{S_PS} offen sc1
    buffer_load_dwordx4 v[4:7], v{VPX}, s[8:11], s{S_PS} offen sc1
    buffer_load_dwordx4 v[8:11], v{VPX}, s[8:11], s{S_PS} offen offset:1024 sc1
    s_waitcnt vmcnt(2)
    v_mfma_f32_16x16x32_bf16 v[{O0}:{O0+3}], v[12:15], v[{WB}:{WB+3}], 0
    v_max3_u32 v2, v12, v13, v14
    v_mfma_f32_16x16x32_bf16 v[{O1}:{O1+3}], v[12:15], v[{WB+4}:{WB+7}], 0
    s_waitcnt vmcnt(1)
    v_smfmac_f32_16x16x64_bf16 v[{O0}:{O0+3}], v[4:7], v[{DF}:{DF+7}], v{IDX}
    v_max3_u32 v2, v2, v15, v4
    v_max3_u32 v2, v2, v5, v6
    v_smfmac_f32_16x16x64_bf16 v[{O1}:{O1+3}], v[4:7], v[{DF+16}:{DF+23}], v{IDX}
    s_waitcnt vmcnt(0)
    v_smfmac_f32_16x16x64_bf16 v[{O0}:{O0+3}], v[8:11], v[{DF+8}:{DF+15}], v{IDX}
    v_max3_u32 v2, v2, v7, v8
    v_max3_u32 v2, v2, v9, v10
    v_smfmac_f32_16x16x64_bf16 v[{O1}:{O1+3}], v[8:11], v[{DF+24}:{DF+31}], v{IDX}
    v_max_u32 v2, v2, v11''')
    poll_tail(a,pr,pok,2)
    stamp(a,prof,4)
    a('s_nop 4')
    for r in range(4): a(f'v_permlane32_swap_b32 v{O0+r}, v{O1+r}')
    for r in range(4): a(f'v_add_f32 v{O0+r}, v{O0+r}, v{O1+r}')
    a(f'''ds_write2st64_b32 v{VRW}, v{O0}, v{O0+1} offset0:0 offset1:1
    ds_write2st64_b32 v{VRW}, v{O0+2}, v{O0+3} offset0:2 offset1:3
    s_waitcnt lgkmcnt(0)
    s_barrier''')
    nxt=L('vnext')
    a(f's_cmp_lg_u32 s{S_WAVE}, 0\ns_cbranch_scc1 {nxt}')
    for w in range(4): a(f'ds_read_b128 v[{4+4*w}:{7+4*w}], v{VRR} offset:{w*1024}')
    a('''s_waitcnt lgkmcnt(2)
    v_pk_add_f32 v[4:5], v[4:5], v[8:9]
    v_pk_add_f32 v[6:7], v[6:7], v[10:11]
    s_waitcnt lgkmcnt(0)
    v_pk_add_f32 v[12:13], v[12:13], v[16:17]
    v_pk_add_f32 v[14:15], v[14:15], v[18:19]
    v_pk_add_f32 v[4:5], v[4:5], v[12:13]
    v_pk_add_f32 v[6:7], v[6:7], v[14:15]
    v_cvt_pk_bf16_f32 v4, v4, v5
    v_cvt_pk_bf16_f32 v5, v6, v7''')
    store2(a,[f'buffer_store_dwordx2 v[4:5], v{VMS}, s[8:11], s{S_MS} offen',
              f'buffer_store_dwordx2 v[{NEG}:{NEG+1}], v{VMS}, s[8:11], s{S_MP} offen',
              f'buffer_store_dwordx2 v[4:5], v{VMS}, s[8:11], s{S_MA} offen'])
    a(f'{nxt}:')
    stamp(a,prof,5)
    a(f's_add_u32 s{S_MA}, s{S_MA}, 7168')
    stamp_flush(a,prof,6,2)
    a(f'''s_add_u32 s{S_STEP}, s{S_STEP}, 1
    s_branch {loop}
    {fin}:
    s_waitcnt vmcnt(0)
    s_endpgm''')

def rec_kernel(name, prof=False, nsteps=63, clk=False):
    a=Asm(); a.l.append(head(name))
    ex=name+'_exit'; lv=name+'_val'
    prologue(a,256,ex)
    election(a,LS_ROLE)
    a(f'''s_cmp_ge_u32 s{S_ROLE}, {NROLE}
    s_cbranch_scc1 {ex}
    s_cmp_ge_u32 s{S_ROLE}, 16
    s_cbranch_scc1 {lv}''')
    score_role(a,prof,nsteps,clk)
    a(f'{lv}:')
    value_role(a,prof,nsteps)
    a(f'{ex}:\ns_endpgm')
    return a.text()+kd(name,vgpr=256,agpr=256)
REC_LDS=78080
if __name__=='__main__':
    n='rec_kernel'
    t=f'; @launch kernel={n} grid=(256,1,1) block=(256,1,1) lds={REC_LDS}\n.amdgcn_target "amdgcn-amd-amdhsa--gfx950"\n'+rec_kernel(n,prof=True)
    open('rec_test.s','w').write(t)
    print(len(t))
SNAMES=['poll','B1+rd','tgemm','scores','softmax/dma']
VNAMES=['poll','B1+rd','wgemm','Ppoll+pz','reduce']
```

```python
import sys, os
sys.path.insert(0,os.path.dirname(os.path.abspath(__file__)))
import fold, misc, ln, dk, rec, j1, j2, b1, fft, b3, hz
from lay import ws
NAME='interleave_layers__memory_aug_recurrent_mem_tr__spectral_gfnet__prompt'
STUB=f'cdna_kernels/{NAME}.s.ref'
def kernels_v1():
    WT='sc1'
    K={}
    K['fold_kernel']=(fold.fold_kernel('fold_kernel'),224,fold.FOLD_LDS)
    K['misc_kernel']=(misc.misc_kernel('misc_kernel'),misc.MISC_WG,misc.MISC_LDS)
    K['ln0_kernel']=(ln.ln_kernel('ln0_kernel','x'),128,ln.LN_LDS)
    K['ln1_kernel']=(ln.ln_kernel('ln1_kernel',ws.X2),128,ln.LN_LDS)
    K['d_kernel']=(dk.d_kernel('d_kernel',stflags=WT),224,dk.D_LDS)
    K['rec_kernel']=(rec.rec_kernel('rec_kernel'),256,rec.REC_LDS)
    K['j1_kernel']=(j1.j1_kernel('j1_kernel'),256,j1.J1_LDS)
    K['j2a_kernel']=(j2.j2_kernel('j2a_kernel','x'),256,j2.J2_LDS)
    K['j2b_kernel']=(j2.j2_kernel('j2b_kernel',ws.X2),256,j2.J2_LDS)
    K['b1_kernel']=(b1.b1_kernel('b1_kernel'),256,b1.B1_LDS)
    K['fft_kernel']=(fft.fft_kernel('fft_kernel'),225,fft.FFT_LDS)
    K['b3a_kernel']=(b3.b3_kernel('b3a_kernel',ws.X2),256,b3.B3_LDS)
    K['b3b_kernel']=(b3.b3_kernel('b3b_kernel','out'),256,b3.B3_LDS)
    order=['fold_kernel','misc_kernel','ln0_kernel','d_kernel','rec_kernel','j1_kernel','j2a_kernel','b1_kernel','fft_kernel','b3a_kernel',
           'ln1_kernel','d_kernel','rec_kernel','j1_kernel','j2b_kernel','b1_kernel','fft_kernel','b3b_kernel']
    return K,order
def assemble_text(K,order):
    hdr=[l for l in open(STUB).read().split('\n') if l.startswith(';') and 'offset' in l or l.startswith('; Kernarg')]
    t='\n'.join(hdr)+'\n'
    for n in order: t+=f'; @launch kernel={n} grid=({K[n][1]},1,1) block=(256,1,1) lds={K[n][2]}\n'
    t+='.amdgcn_target "amdgcn-amd-amdhsa--gfx950"\n'
    body=''.join(K[n][0] for n in dict.fromkeys(order))
    return t+body, body
if __name__=='__main__':
    K,order=kernels_v1()
    t,body=assemble_text(K,order)
    hz.check(body)
    out=sys.argv[1] if len(sys.argv)>1 else f'cdna_kernels/{NAME}.s'
    open(out,'w').write(t); print(out,len(t))
```

```python
from common import *
D_LDS=3*28672
def d_body(a, S_V, S_W4, S_Q, S_WAVE, nseg=16, stride=4, stflags='', nostore=False, flags=False):
    TS=24; S_CI=32; S_XT=33; S_DO=34; S_BUF=35; S_NB=36; S_I=37; S_DL=38; S_DO2=39; S_FL=40
    VL=1; VA=2; VST=3; VN=4; VFL=80; VONE=81
    ST=8
    ACC=[40,56]
    PK=72
    a(f'''v_lshlrev_b32 v{VL}, 4, v0
    s_lshl_b32 s{TS}, s{S_V}, 2
    s_add_u32 s{TS}, s{TS}, s{S_W4}
    s_lshl_b32 s{TS+1}, s{TS}, 2
    s_add_u32 s{TS+1}, s{TS+1}, s{S_WAVE}
    s_mul_i32 s{S_CI}, s{TS+1}, 28672
    s_add_u32 s{S_CI}, s{S_CI}, {ws.CI}
    s_mul_i32 s{S_XT}, s{S_Q}, 28672
    s_mul_i32 s{TS+2}, s{S_WAVE}, 7168
    s_add_u32 s{S_XT}, s{S_XT}, s{TS+2}
    s_add_u32 s{S_XT}, s{S_XT}, {ws.XT}
    s_mov_b32 s{S_DL}, s{TS+2}''')
    def dma(buf_s, extra=0):
        o=[]
        for t in range(7):
            o.append([f's_add_u32 m0, s{buf_s}, {t*1024}', f's_add_u32 s{TS+3}, s{S_XT}, {t*1024}', f'buffer_load_dwordx4 v{VL}, s[8:11], s{TS+3} offen lds'])
        return o
    a(f's_mov_b32 s{S_NB}, s{S_DL}')
    for g in dma(S_NB):
        for x in g: a(x)
    a(f's_add_u32 s{S_XT}, s{S_XT}, {stride*28672}\ns_add_u32 s{S_NB}, s{S_DL}, 28672')
    for f in range(28):
        a(f'buffer_load_dwordx4 a[{4*f}:{4*f+3}], v{VL}, s[8:11], s{S_CI} offen offset:{(f&3)*1024}')
        if (f&3)==3: a(f's_add_u32 s{S_CI}, s{S_CI}, 4096')
    for g in dma(S_NB):
        for x in g: a(x)
    a(f's_add_u32 s{S_XT}, s{S_XT}, {stride*28672}\ns_add_u32 s{S_NB}, s{S_DL}, {2*28672}')
    a(f'''v_lshrrev_b32 v5, 5, v0
    v_lshlrev_b32 v5, 11, v5
    v_and_b32 v6, 15, v0
    v_lshlrev_b32 v6, 4, v6
    v_lshrrev_b32 v7, 4, v0
    v_and_b32 v7, 1, v7
    v_lshlrev_b32 v7, 8, v7
    v_add3_u32 v5, v5, v6, v7
    s_lshr_b32 s{TS+1}, s{S_WAVE}, 1
    s_lshl_b32 s{TS+1}, s{TS+1}, 10
    s_and_b32 s{TS+2}, s{S_WAVE}, 1
    s_lshl_b32 s{TS+2}, s{TS+2}, 9
    s_add_u32 s{TS+1}, s{TS+1}, s{TS+2}
    v_add_u32 v{VST}, s{TS+1}, v5
    s_mul_i32 s{S_DO}, s{S_Q}, {14*32768}
    s_lshl_b32 s{TS}, s{TS}, 13
    s_add_u32 s{S_DO}, s{S_DO}, s{TS}
    s_add_u32 s{S_DO}, s{S_DO}, {ws.DI}
    v_mov_b32 v{VA}, v{VL}
    s_mul_i32 s{S_FL}, s{S_Q}, {14*16}
    s_lshl_b32 s{TS+1}, s{S_V}, 4
    s_add_u32 s{S_FL}, s{S_FL}, s{TS+1}
    s_lshl_b32 s{TS+1}, s{S_W4}, 2
    s_add_u32 s{S_FL}, s{S_FL}, s{TS+1}
    s_add_u32 s{S_FL}, s{S_FL}, {ws.DF}
    s_lshl_b32 s{TS+1}, s{S_WAVE}, 6
    v_add_u32 v6, s{TS+1}, v0
    v_mov_b32 v7, 0x10000000
    v_cmp_eq_u32 vcc, 0, v6
    v_mov_b32 v{VONE}, 1
    s_nop 0
    v_cndmask_b32 v{VFL}, v7, 0, vcc
    {'v_mov_b32 v3, 0x10000000' if nostore else ''}
    v_add_u32 v{VN}, 28672, v{VL}
    s_mov_b32 s{S_BUF}, 28672
    s_mov_b32 s{S_I}, 0
    s_waitcnt vmcnt(35)
    s_barrier''')
    def rd(k, vreg, stage):
        b=ST+8*stage
        return [f'ds_read_b128 v[{b}:{b+3}], v{vreg} offset:{k*1024}', f'ds_read_b128 v[{b+4}:{b+7}], v{vreg} offset:{14336+k*1024}']
    for k in range(2):
        for x in rd(k,VA,k): a(x)
    a('s_waitcnt vmcnt(0)')
    loop=a.lab('dloop');
    a(f'{loop}:')
    for par in range(2):
        acc=ACC[par]; pacc=ACC[par^1]
        epi=[]
        for tau in range(2):
            for ab in range(2):
                q=pacc+8*tau+4*ab; o=PK+4*tau+2*ab
                epi.append(f'v_cvt_pk_bf16_f32 v{o}, v{q}, v{q+1}'); epi.append(f'v_cvt_pk_bf16_f32 v{o+1}, v{q+2}, v{q+3}')
        lns=a.lab('dns')
        st=[f'buffer_store_dwordx4 v[{PK}:{PK+3}], v{VST}, s[8:11], s{S_DO} offen {stflags}',
            f's_add_u32 s{S_DO2}, s{S_DO}, 4096',
            f'buffer_store_dwordx4 v[{PK+4}:{PK+7}], v{VST}, s[8:11], s{S_DO2} offen {stflags}',
            f's_add_u32 s{S_DO}, s{S_DO}, {stride*14*32768}']
        dm=None
        for k in range(14):
            stage=(14*par+k)&3; b=ST+8*stage
            a('s_waitcnt lgkmcnt(2)')
            fl=[]
            k2=k+2
            fl+= rd(k2,VA,(stage+2)&3) if k2<14 else rd(k2-14,VN,(stage+2)&3)
            if k in (1,2): fl+=epi[4*(k-1):4*k]
            mf=[]
            for tau in range(2):
                for ab in range(2):
                    d=acc+8*tau+4*ab; f=tau*14+k
                    c='0' if k==0 else f'v[{d}:{d+3}]'
                    mf.append(f'v_mfma_f32_16x16x32_bf16 v[{d}:{d+3}], v[{b+4*ab}:{b+4*ab+3}], a[{4*f}:{4*f+3}], {c}')
            if k==3:
                a(mf[0]);
                for x in fl[:2]: a(x)
                if par==0: a(f's_cmp_eq_u32 s{S_I}, 0\ns_cbranch_scc1 {lns}')
                for x in st: a(x)
                if par==0: a(f'{lns}:')
                for m in mf[1:]: a(m)
                continue
            if k==7:
                a(mf[0])
                for x in fl[:2]: a(x)
                a('s_waitcnt vmcnt(2)\ns_barrier')
                if flags:
                    lf=a.lab('dfl')
                    a(f's_cmp_eq_u32 s{S_I}, 0\ns_cbranch_scc1 {lf}\nbuffer_store_dword v{VONE}, v{VFL}, s[8:11], s{S_FL} offen sc1\ns_add_u32 s{S_FL}, s{S_FL}, {stride*14*16}\n{lf}:')
                for m in mf[1:]: a(m)
                dm=dma(S_NB)
                ld=a.lab('dnd')
                a(f's_add_u32 s{TS}, s{S_I}, {2+par}\ns_cmp_ge_u32 s{TS}, {nseg}\ns_cselect_b32 s{TS+4}, 0x10000000, 0')
                a(f'v_add_u32 v5, s{TS+4}, v{VL}')
                continue
            if dm is not None and k>=8:
                g=dm.pop(0); g=[g[0],g[1],g[2].replace(f'v{VL},','v5,')]
                fl+=g
                if k==13:
                    g=dm.pop(0); fl+=[g[0],g[1],g[2].replace(f'v{VL},','v5,')]
            q=list(fl)
            for j,m in enumerate(mf):
                a(m)
                n=(len(q)+(3-j))//(4-j) if j<3 else len(q)
                for _ in range(n): a(q.pop(0))
            if k==13:
                a(f'''s_add_u32 s{S_XT}, s{S_XT}, {stride*28672}
                v_mov_b32 v{VA}, v{VN}
                s_add_u32 s{S_BUF}, s{S_BUF}, 28672
                s_cmp_ge_u32 s{S_BUF}, {3*28672}
                s_cselect_b32 s{S_BUF}, 0, s{S_BUF}
                v_add_u32 v{VN}, s{S_BUF}, v{VL}
                s_add_u32 s{TS}, s{S_BUF}, 28672
                s_cmp_ge_u32 s{TS}, {3*28672}
                s_cselect_b32 s{TS}, 0, s{TS}
                s_add_u32 s{S_NB}, s{TS}, s{S_DL}''')
        assert not dm
    a(f's_add_u32 s{S_I}, s{S_I}, 2\ns_cmp_lt_u32 s{S_I}, {nseg}\ns_cbranch_scc1 {loop}')
    a('s_nop 7')
    pacc=ACC[1]
    for tau in range(2):
        for ab in range(2):
            q=pacc+8*tau+4*ab; o=PK+4*tau+2*ab
            a(f'v_cvt_pk_bf16_f32 v{o}, v{q}, v{q+1}\nv_cvt_pk_bf16_f32 v{o+1}, v{q+2}, v{q+3}')
    a(f'''buffer_store_dwordx4 v[{PK}:{PK+3}], v{VST}, s[8:11], s{S_DO} offen {stflags}
    s_add_u32 s{S_DO2}, s{S_DO}, 4096
    buffer_store_dwordx4 v[{PK+4}:{PK+7}], v{VST}, s[8:11], s{S_DO2} offen {stflags}
    s_waitcnt vmcnt(0) lgkmcnt(0)''')
    if flags:
        a(f'''s_barrier
        buffer_store_dword v{VONE}, v{VFL}, s[8:11], s{S_FL} offen sc1
        s_add_u32 s{S_FL}, s{S_FL}, {stride*14*16}
        buffer_store_dword v{VONE}, v{VFL}, s[8:11], s{S_FL} offen sc1''')

def d_kernel(name,stflags='',nostore=False):
    a=Asm(); a.l.append(head(name)); ex=name+'_exit'
    a(f'''s_cmp_ge_u32 s2, 224
    s_cbranch_scc1 {ex}
    s_load_dwordx2 s[4:5], s[0:1], {KA['ws']}
    v_lshrrev_b32 v1, 6, v0
    v_and_b32 v0, 63, v0
    s_and_b32 s20, s2, 7
    s_lshr_b32 s21, s2, 3
    v_readfirstlane_b32 s17, v1
    s_and_b32 s18, s21, 3
    s_lshr_b32 s21, s21, 2
    s_lshl_b32 s21, s21, 3
    s_add_u32 s21, s21, s20
    s_lshr_b32 s16, s21, 2
    s_and_b32 s19, s21, 3
    s_waitcnt lgkmcnt(0)''')
    srd(a,8,4,0x10000000)
    d_body(a,16,19,18,17,stflags=stflags,nostore=nostore)
    a(f'{ex}:\ns_endpgm')
    return a.text()+kd(name,vgpr=84,agpr=112)
if __name__=='__main__':
    t='.amdgcn_target "amdgcn-amd-amdhsa--gfx950"\n'+d_kernel('d_kernel')
    open('d.s','w').write(t)
```

```python
from common import *
LXT=0; LXK=57344; LMA=114688; LS=131072
J1_LDS=LS+24576
NEG=0xf149f2ca
def j1_body(a, S_H, S_S0, S_WAVE, nseg, sstride, stflags='', om=False, S_N=None):
    TS=24; S_AI=32; S_SEG=33; S_I=34; S_PX=35; S_PM=36; S_NXT=37; S_PAR=38; S_LIM=39
    MK=40
    MM=56
    VL=1; VB=2; VMK=3; VMKO=4; VXK=5; VXKO=6; VSW=7; VSR=8; VPX=9; VPM=10; T=11
    STG=16
    ACC=32
    KEY=88
    WV=120
    def acc(t,ab): return ACC+8*t+4*ab
    def wreg(f): return ar(4*f,4) if f<64 else vr(WV+4*(f-64),4)
    a(f'''v_lshlrev_b32 v{VL}, 4, v0
    s_lshl_b32 s{TS}, s{S_H}, 2
    s_add_u32 s{TS}, s{TS}, s{S_WAVE}
    s_mul_i32 s{S_AI}, s{TS}, {98*1024}
    s_add_u32 s{S_AI}, s{S_AI}, {ws.AI}
    s_mov_b32 s{S_SEG}, s{S_S0}''')
    def dma_list(par_sreg):
        o=[]
        pre=[f's_mul_i32 s{TS}, s{S_NXT}, 28672',
             f's_mul_i32 s{TS+1}, s{S_WAVE}, 7168',
             f's_add_u32 s{TS}, s{TS}, s{TS+1}',
             f's_mul_i32 s{TS+2}, s{par_sreg}, 28672',
             f's_add_u32 s{TS+2}, s{TS+2}, s{TS+1}',
             f's_mul_i32 s{TS+3}, s{S_NXT}, 7168',
             f's_lshl_b32 s{TS+5}, s{S_WAVE}, 10',
             f's_add_u32 s{TS+3}, s{TS+3}, s{TS+5}',
             f's_lshl_b32 s{TS+4}, s{par_sreg}, 13',
             f's_add_u32 s{TS+4}, s{TS+4}, s{TS+5}']
        o.append(pre)
        for t in range(7):
            o.append([f's_add_u32 m0, s{TS+2}, {LXT+t*1024}', f's_add_u32 s{TS+6}, s{TS}, {ws.XT+t*1024}', f'buffer_load_dwordx4 v{T+4}, s[8:11], s{TS+6} offen lds'])
        for t in range(7):
            o.append([f's_add_u32 m0, s{TS+2}, {LXK+t*1024}', f's_add_u32 s{TS+6}, s{TS}, {ws.XK+t*1024}', f'buffer_load_dwordx4 v{T+4}, s[8:11], s{TS+6} offen lds'])
        if om: return o
        o.append([f's_add_u32 m0, s{TS+4}, {LMA}', f's_add_u32 s{TS+6}, s{TS+3}, {ws.MA}', f'buffer_load_dwordx4 v{T+4}, s[8:11], s{TS+6} offen lds'])
        o.append([f's_add_u32 m0, s{TS+4}, {LMA+4096}', f's_add_u32 s{TS+6}, s{TS+3}, {ws.MA+4096}', f'buffer_load_dwordx4 v{T+3}, s[8:11], s{TS+6} offen lds'])
        return o
    a(f'''s_mov_b32 s{S_NXT}, s{S_SEG}
    s_mov_b32 s{S_PAR}, 0
    v_mov_b32 v{T+4}, v{VL}
    s_cmp_eq_u32 s{S_WAVE}, 3
    s_cselect_b32 s{TS}, 0x10000000, 0
    v_add_u32 v{T+3}, s{TS}, v{VL}''')
    for g in dma_list(S_PAR):
        for x in g: a(x)
    for f in range(98):
        a(f'buffer_load_dwordx4 {wreg(f)}, v{VL}, s[8:11], s{S_AI} offen offset:{(f&3)*1024}')
        if (f&3)==3: a(f's_add_u32 s{S_AI}, s{S_AI}, 4096')
        if f==40: a('s_waitcnt vmcnt(20)')
        if f==80: a('s_waitcnt vmcnt(20)')
    a(f'''v_and_b32 v{T}, 15, v0
    v_lshrrev_b32 v{T+1}, 4, v0
    v_and_b32 v{T+2}, 7, v0
    v_lshlrev_b32 v{T+2}, 4, v{T+2}
    s_mul_i32 s{TS}, s{S_WAVE}, {14*128}
    s_add_u32 s{TS}, s{TS}, {0 if om else LMA}
    v_lshlrev_b32 v{VMK}, 7, v{T+1}
    v_add3_u32 v{VMK}, v{VMK}, v{T+2}, s{TS}
    v_lshrrev_b32 v{VMKO}, 1, v{T+1}
    v_lshlrev_b32 v{VMKO}, 7, v{VMKO}
    v_and_b32 v{VB}, 1, v{T+1}
    v_lshlrev_b32 v{VB}, 3, v{VB}
    s_add_u32 s{TS}, s{TS}, {12*128}
    v_add3_u32 v{VMKO}, v{VMKO}, v{T+2}, s{TS}
    v_add_u32 v{VMKO}, v{VMKO}, v{VB}
    s_mul_i32 s{TS}, s{S_WAVE}, 7168
    s_add_u32 s{TS}, s{TS}, {LXK}
    v_add_u32 v{VXK}, s{TS}, v{VL}
    s_add_u32 s{TS}, s{TS}, 6144
    v_lshlrev_b32 v{VXKO}, 3, v0
    v_add_u32 v{VXKO}, s{TS}, v{VXKO}
    s_mul_i32 s{TS}, s{S_WAVE}, 6144
    s_add_u32 s{TS}, s{TS}, {LS}
    v_add_u32 v{VSW}, s{TS}, v{VL}
    s_and_b32 s{TS+1}, s{S_WAVE}, 1
    s_lshl_b32 s{TS}, s{TS+1}, 10
    s_add_u32 s{TS}, s{TS}, {LS}
    v_add_u32 v{VSR}, s{TS}, v{VL}''')
    a(f'''v_lshrrev_b32 v{KEY}, 3, v{T}
    v_lshlrev_b32 v{KEY}, 4, v{KEY}
    v_lshrrev_b32 v{KEY+1}, 2, v{T}
    v_and_b32 v{KEY+1}, 1, v{KEY+1}
    v_lshlrev_b32 v{KEY+1}, 2, v{KEY+1}
    v_and_b32 v{KEY+2}, 3, v{T}
    v_add3_u32 v{KEY}, v{KEY}, v{KEY+1}, v{KEY+2}
    s_lshl_b32 s{TS}, s{TS+1}, 3
    v_add_u32 v{KEY}, s{TS}, v{KEY}
    v_lshrrev_b32 v{KEY+1}, 1, v{T+1}
    v_lshlrev_b32 v{KEY+1}, 1, v{KEY+1}
    v_and_b32 v{KEY+2}, 1, v{T+1}
    v_lshlrev_b32 v{KEY+2}, 2, v{KEY+2}
    v_add_u32 v{KEY+1}, v{KEY+1}, v{KEY+2}''')
    for io in range(2):
        for r in range(4):
            a(f'v_add_u32 v{KEY+2}, {16*io+[0,1,8,9][r]}, v{KEY+1}\nv_cmp_le_u32 s[{MK+2*(4*io+r)}:{MK+2*(4*io+r)+1}], v{KEY+2}, v{KEY}')
    a(f'v_cmp_gt_u32 s[{MM}:{MM+1}], 2, v{T+1}')
    a(f'''s_lshr_b32 s{TS}, s{S_H}, 2
    s_lshr_b32 s{TS+2}, s{S_H}, 1
    s_and_b32 s{TS+2}, s{TS+2}, 1
    s_and_b32 s{TS+3}, s{S_H}, 1
    s_lshl_b32 s{TS+4}, s{TS}, 13
    s_lshl_b32 s{TS+5}, s{TS+2}, 12
    s_add_u32 s{TS+4}, s{TS+4}, s{TS+5}
    s_lshl_b32 s{TS+5}, s{TS+1}, 10
    s_add_u32 s{TS+4}, s{TS+4}, s{TS+5}
    s_lshl_b32 s{TS+5}, s{TS+3}, 9
    s_add_u32 s{TS+4}, s{TS+4}, s{TS+5}
    v_lshrrev_b32 v{KEY}, 5, v0
    v_lshlrev_b32 v{KEY}, 11, v{KEY}
    v_and_b32 v{KEY+1}, 31, v0
    v_lshlrev_b32 v{KEY+1}, 4, v{KEY+1}
    v_add3_u32 v{VPX}, v{KEY}, v{KEY+1}, s{TS+4}
    s_lshl_b32 s{TS+4}, s{TS}, 11
    s_lshl_b32 s{TS+6}, s{TS+1}, 10
    s_add_u32 s{TS+4}, s{TS+4}, s{TS+6}
    s_add_u32 s{TS+4}, s{TS+4}, s{TS+5}
    s_lshl_b32 s{TS+6}, s{TS+2}, 3
    s_add_u32 s{TS+4}, s{TS+4}, s{TS+6}
    s_add_u32 s{TS+4}, s{TS+4}, 32768
    v_add_u32 v{KEY+1}, s{TS+4}, v{KEY+1}
    v_mov_b32 v{KEY}, 0x10000000
    v_cndmask_b32 v{VPM}, v{KEY}, v{KEY+1}, s[{MM}:{MM+1}]''')
    a(f's_mov_b32 s{S_I}, 0\ns_mov_b32 s{S_LIM}, 4000\ns_waitcnt vmcnt(0)')
    NS=f's{S_N}' if om else str(nseg)
    loop=a.lab('j1loop')
    a(f'{loop}:\ns_barrier')
    a(f'''s_mul_i32 s{TS}, s{S_PAR}, 28672
    v_add_u32 v{VB}, s{TS}, v{VL}
    s_xor_b32 s{S_PAR}, s{S_PAR}, 1
    s_add_u32 s{S_NXT}, s{S_SEG}, {sstride}
    s_add_u32 s{TS}, s{S_I}, 1
    s_cmp_ge_u32 s{TS}, {NS}
    s_cselect_b32 s{TS}, 0x10000000, 0
    v_add_u32 v{T+4}, s{TS}, v{VL}
    s_cmp_eq_u32 s{S_WAVE}, 3
    s_cselect_b32 s{TS}, 0x10000000, s{TS}
    v_add_u32 v{T+3}, s{TS}, v{VL}''')
    def rd(k,stage):
        b=STG+8*stage
        return [f'ds_read_b128 v[{b}:{b+3}], v{VB} offset:{LXT+k*1024}', f'ds_read_b128 v[{b+4}:{b+7}], v{VB} offset:{LXT+14336+k*1024}']
    for x in rd(0,0): a(x)
    dm=dma_list(S_PAR)
    flat=[x for g in dm for x in g]
    for k in range(14):
        b=STG+8*(k&1)
        a('s_waitcnt lgkmcnt(0)')
        fl=rd(k+1,(k+1)&1) if k<13 else []
        q=fl+[flat.pop(0) for _ in range(min(len(flat),8))]
        j=0
        for t in range(7):
            for ab in range(2):
                d=acc(t,ab); c='0' if k==0 else f'v[{d}:{d+3}]'
                a(f'v_mfma_f32_16x16x32_bf16 v[{d}:{d+3}], {wreg(t*14+k)}, v[{b+4*ab}:{b+4*ab+3}], {c}')
                if q: a(q.pop(0))
        assert not q
    assert not flat
    a(f'''s_xor_b32 s{TS}, s{S_PAR}, 1
    s_lshl_b32 s{TS+1}, s{TS}, 13
    s_mul_i32 s{TS}, s{TS}, 28672
    v_add_u32 v{T}, s{TS+1}, v{VMK}
    v_add_u32 v{T+1}, s{TS+1}, v{VMKO}
    v_add_u32 v{T+2}, s{TS}, v{VXK}
    v_add_u32 v{VB}, s{TS}, v{VXKO}''')
    def kreg(x,j):
        if j==3: return STG+4+2*x
        if x==2 and j==2: return STG
        return KEY+12*x+4*j
    for x in range(3):
        for j in range(3):
            r=kreg(x,j)
            if x==0:
                if not om: a(f'ds_read_b128 v[{r}:{r+3}], v{T} offset:{j*512}')
            else: a(f'ds_read_b128 v[{r}:{r+3}], v{T+2} offset:{((x-1)*3+j)*1024}')
    for x in range(3):
        r=kreg(x,3)
        if x==0:
            if not om: a(f'ds_read_b64 v[{r}:{r+1}], v{T+1}')
        else: a(f'ds_read_b64 v[{r}:{r+1}], v{VB} offset:{(x-1)*512}')
    for j in range(3):
        for ab in range(2):
            p=acc(2*j,ab); q=acc(2*j+1,ab)
            a(f'''v_cvt_pk_bf16_f32 v{p}, v{p}, v{p+1}
            v_cvt_pk_bf16_f32 v{p+1}, v{p+2}, v{p+3}
            v_cvt_pk_bf16_f32 v{p+2}, v{q}, v{q+1}
            v_cvt_pk_bf16_f32 v{p+3}, v{q+2}, v{q+3}''')
    for ab in range(2):
        p=acc(6,ab)
        a(f'v_cvt_pk_bf16_f32 v{p}, v{p}, v{p+1}\nv_cvt_pk_bf16_f32 v{p+1}, v{p+2}, v{p+3}')
    def sacc(x,ab): return acc(2*x+1,ab)
    a('s_waitcnt lgkmcnt(0)')
    def smf(xs):
        for j in range(4):
            for x in xs:
                for ab in range(2):
                    d=sacc(x,ab); c='0' if j==0 else f'v[{d}:{d+3}]'; r=kreg(x,j)
                    if j<3: a(f'v_mfma_f32_16x16x32_bf16 v[{d}:{d+3}], v[{r}:{r+3}], v[{acc(2*j,ab)}:{acc(2*j,ab)+3}], {c}')
                    else: a(f'v_mfma_f32_16x16x16_bf16 v[{d}:{d+3}], v[{r}:{r+1}], v[{acc(6,ab)}:{acc(6,ab)+1}], {c}')
    if not om: smf([0,1,2])
    else:
        smf([1,2])
        lr=a.lab('j1p'); lo=a.lab('j1o')
        a(f'''s_lshl_b32 s{TS}, s{S_SEG}, 6
        s_add_u32 s{TS}, s{TS}, {ws.F}
        s_mul_i32 s{TS+1}, s{S_SEG}, 7168
        s_add_u32 s{TS+1}, s{TS+1}, {ws.MA}
        v_lshlrev_b32 v{T}, 2, v0
        s_mov_b32 s{TS+2}, s{S_LIM}
        {lr}:
        buffer_load_dword v{T+1}, v{T}, s[8:11], s{TS} offen sc1
        s_waitcnt vmcnt(0)
        v_cmp_eq_u32 vcc, 1, v{T+1}
        s_nop 1
        s_and_b32 s{TS+3}, vcc_lo, 0x3fff
        s_cmp_eq_u32 s{TS+3}, 0x3fff
        s_cbranch_scc1 {lo}
        s_sleep 2
        s_sub_u32 s{TS+2}, s{TS+2}, 1
        s_cbranch_scc0 {lr}
        s_mov_b32 s{S_LIM}, 0
        {lo}:''')
        for j in range(3):
            r=kreg(0,j); a(f'buffer_load_dwordx4 v[{r}:{r+3}], v{VMK}, s[8:11], s{TS+1} offen offset:{j*512} sc1')
        r=kreg(0,3); a(f'buffer_load_dwordx2 v[{r}:{r+1}], v{VMKO}, s[8:11], s{TS+1} offen sc1')
        a('s_waitcnt vmcnt(0)')
        smf([0])
        a('s_nop 4')
    a('s_nop 2')
    for x in range(3):
        for ab in range(2):
            d=sacc(x,ab)
            if x==0 and ab==0: a('s_nop 0')
            a(f'ds_write_b128 v{VSW}, v[{d}:{d+3}] offset:{(x*2+ab)*1024}')
    lsm=a.lab('j1ns'); lj=a.lab('j1j')
    a(f'''s_mul_i32 s{S_PX}, s{S_SEG}, 40960
    s_add_u32 s{S_PX}, s{S_PX}, {ws.PJ}
    s_waitcnt lgkmcnt(0)
    s_barrier
    s_cmp_ge_u32 s{S_WAVE}, 2
    s_cbranch_scc1 {lsm}''')
    def pr(w,x):
        i=w*3+x
        return KEY+4*i if i<8 else STG+4*(i-8)
    for w in range(4):
        for x in range(3):
            r=pr(w,x); a(f'ds_read_b128 v[{r}:{r+3}], v{VSR} offset:{w*6144+x*2048}')
    a('s_waitcnt lgkmcnt(6)')
    for x in range(3):
        p=pr(0,x); q=pr(1,x)
        a(f'v_pk_add_f32 v[{p}:{p+1}], v[{p}:{p+1}], v[{q}:{q+1}]\nv_pk_add_f32 v[{p+2}:{p+3}], v[{p+2}:{p+3}], v[{q+2}:{q+3}]')
    a('s_waitcnt lgkmcnt(0)')
    for x in range(3):
        p=pr(2,x); q=pr(3,x)
        a(f'v_pk_add_f32 v[{p}:{p+1}], v[{p}:{p+1}], v[{q}:{q+1}]\nv_pk_add_f32 v[{p+2}:{p+3}], v[{p+2}:{p+3}], v[{q+2}:{q+3}]')
    for x in range(3):
        p=pr(0,x); q=pr(2,x)
        a(f'v_pk_add_f32 v[{p}:{p+1}], v[{p}:{p+1}], v[{q}:{q+1}]\nv_pk_add_f32 v[{p+2}:{p+3}], v[{p+2}:{p+3}], v[{q+2}:{q+3}]')
    P=KEY; M=KEY+12; M2=KEY+13
    a(f'v_mov_b32 v{M2}, {hex(NEG)}')
    for r in range(4): a(f'v_cndmask_b32 v{P+r}, v{M2}, v{P+r}, s[{MM}:{MM+1}]')
    for io in range(2):
        for r in range(4):
            i=4*io+r; a(f'v_cndmask_b32 v{P+4+i}, v{M2}, v{P+4+i}, s[{MK+2*i}:{MK+2*i+1}]')
    a(f'v_max3_f32 v{M}, v{P}, v{P+1}, v{P+2}')
    for i in range(3,11,2): a(f'v_max3_f32 v{M}, v{M}, v{P+i}, v{P+i+1}')
    a(f'v_max_f32 v{M}, v{M}, v{P+11}')
    def xred(op):
        a(f'''v_mov_b32 v{M2}, v{M}
        s_nop 1
        v_permlane16_swap_b32 v{M}, v{M2}
        {op} v{M}, v{M}, v{M2}
        v_mov_b32 v{M2}, v{M}
        s_nop 1
        v_permlane32_swap_b32 v{M}, v{M2}
        {op} v{M}, v{M}, v{M2}''')
    xred('v_max_f32')
    for i in range(6): a(f'v_pk_add_f32 v[{P+2*i}:{P+2*i+1}], v[{P+2*i}:{P+2*i+1}], v[{M}:{M+1}] op_sel_hi:[1,0] neg_lo:[0,1] neg_hi:[0,1]')
    for i in range(12): a(f'v_exp_f32 v{P+i}, v{P+i}')
    Q=KEY+14
    a(f'''v_pk_add_f32 v[{Q}:{Q+1}], v[{P}:{P+1}], v[{P+2}:{P+3}]
    v_pk_add_f32 v[{Q+2}:{Q+3}], v[{P+4}:{P+5}], v[{P+6}:{P+7}]
    v_pk_add_f32 v[{Q+4}:{Q+5}], v[{P+8}:{P+9}], v[{P+10}:{P+11}]
    v_pk_add_f32 v[{Q}:{Q+1}], v[{Q}:{Q+1}], v[{Q+2}:{Q+3}]
    v_pk_add_f32 v[{Q}:{Q+1}], v[{Q}:{Q+1}], v[{Q+4}:{Q+5}]
    v_add_f32 v{M}, v{Q}, v{Q+1}''')
    xred('v_add_f32')
    a(f'v_rcp_f32 v{M}, v{M}\ns_nop 0')
    for i in range(6): a(f'v_pk_mul_f32 v[{P+2*i}:{P+2*i+1}], v[{P+2*i}:{P+2*i+1}], v[{M}:{M+1}] op_sel_hi:[1,0]')
    O=KEY+20
    PFL='s_waitcnt vmcnt(2)'
    if om:
        PFL=f'''s_lshl_b32 s{TS}, s{S_SEG}, 7
        s_lshl_b32 s{TS+1}, s{S_H}, 3
        s_add_u32 s{TS}, s{TS}, s{TS+1}
        s_lshl_b32 s{TS+1}, s{S_WAVE}, 2
        s_add_u32 s{TS}, s{TS}, s{TS+1}
        s_add_u32 s{TS}, s{TS}, {ws.PF}
        v_mov_b32 v{M}, 0x10000000
        v_cmp_eq_u32 vcc, 0, v0
        v_mov_b32 v{M2}, 1
        s_nop 0
        v_cndmask_b32 v{M}, v{M}, 0, vcc
        s_waitcnt vmcnt(0)
        buffer_store_dword v{M2}, v{M}, s[8:11], s{TS} offen sc1'''
    a(f'''v_cvt_pk_bf16_f32 v{Q}, v{P}, v{P+1}
    v_cvt_pk_bf16_f32 v{Q+1}, v{P+2}, v{P+3}
    v_cvt_pk_bf16_f32 v{O}, v{P+4}, v{P+5}
    v_cvt_pk_bf16_f32 v{O+1}, v{P+8}, v{P+9}
    v_cvt_pk_bf16_f32 v{O+2}, v{P+6}, v{P+7}
    v_cvt_pk_bf16_f32 v{O+3}, v{P+10}, v{P+11}
    buffer_store_dwordx2 v[{Q}:{Q+1}], v{VPM}, s[8:11], s{S_PX} offen {stflags}
    s_nop 0
    v_permlane32_swap_b32 v{O}, v{O+1}
    v_permlane32_swap_b32 v{O+2}, v{O+3}
    buffer_store_dwordx4 v[{O}:{O+3}], v{VPX}, s[8:11], s{S_PX} offen {stflags}
    {PFL}
    s_branch {lj}
    {lsm}:
    s_waitcnt vmcnt(0)
    {lj}:
    s_mov_b32 s{S_SEG}, s{S_NXT}
    s_add_u32 s{S_I}, s{S_I}, 1
    s_cmp_lt_u32 s{S_I}, {NS}
    s_cbranch_scc1 {loop}
    s_waitcnt vmcnt(0)''')

def j1_kernel(name, stflags=''):
    a=Asm(); a.l.append(head(name)); ex=name+'_exit'
    a(f'''s_cmp_ge_u32 s2, 256
    s_cbranch_scc1 {ex}
    s_load_dwordx2 s[4:5], s[0:1], {KA['ws']}
    v_lshrrev_b32 v1, 6, v0
    v_and_b32 v0, 63, v0
    s_and_b32 s20, s2, 7
    s_lshl_b32 s20, s20, 1
    s_lshr_b32 s21, s2, 3
    v_readfirstlane_b32 s17, v1
    s_and_b32 s22, s21, 1
    s_add_u32 s16, s20, s22
    s_lshr_b32 s18, s21, 1
    s_lshl_b32 s18, s18, 2
    s_waitcnt lgkmcnt(0)''')
    srd(a,8,4,0x10000000)
    j1_body(a,16,18,17,4,1,stflags)
    a(f'{ex}:\ns_endpgm')
    return a.text()+kd(name,vgpr=256,agpr=256)
if __name__=='__main__':
    t='.amdgcn_target "amdgcn-amd-amdhsa--gfx950"\n'+j1_kernel('j1_kernel')
    open('j1.s','w').write(t)
```

```python
from common import *
J2_LDS=40960
def j2_body(a, S_S, S_V, S_WAVE, res_srd, res_so, out_so, stflags=''):
    TS=24; VL=1; VR=2; VX=3; RES=8; STG=16; ACC=48; PK=64
    lidle=a.lab('j2idle'); ldone=a.lab('j2done')
    a(f'''v_lshlrev_b32 v{VL}, 4, v0
    s_mul_i32 s{TS}, s{S_S}, 40960
    s_mul_i32 s{TS+1}, s{S_WAVE}, 10240
    s_add_u32 s{TS}, s{TS}, s{TS+1}
    s_add_u32 s{TS}, s{TS}, {ws.PJ}''')
    for t in range(10):
        a(f's_add_u32 m0, s{TS+1}, {t*1024}\ns_add_u32 s{TS+2}, s{TS}, {t*1024}\nbuffer_load_dwordx4 v{VL}, s[8:11], s{TS+2} offen lds')
    a(f's_cmp_ge_u32 s{S_V}, 14\ns_cbranch_scc1 {lidle}')
    a(f'''v_and_b32 v4, 15, v0
    v_lshrrev_b32 v5, 3, v4
    v_lshlrev_b32 v5, 4, v5
    v_lshrrev_b32 v6, 2, v4
    v_and_b32 v6, 1, v6
    v_lshlrev_b32 v6, 2, v6
    v_and_b32 v7, 3, v4
    v_add3_u32 v5, v5, v6, v7
    s_lshl_b32 s{TS}, s{S_S}, 5
    v_add_u32 v5, s{TS}, v5
    v_mul_u32_u24 v5, 896, v5
    v_lshrrev_b32 v6, 4, v0
    v_and_b32 v7, 1, v6
    v_lshlrev_b32 v7, 5, v7
    v_lshrrev_b32 v6, 1, v6
    v_lshlrev_b32 v6, 4, v6
    v_add3_u32 v5, v5, v6, v7
    s_lshl_b32 s{TS}, s{S_V}, 6
    v_add_u32 v{VX}, s{TS}, v5
    v_add_u32 v{VR}, {8*896}, v{VX}''')
    a(f'''s_mul_i32 s{TS}, s{S_S}, 14
    s_add_u32 s{TS}, s{TS}, s{S_V}
    s_lshl_b32 s{TS+1}, s{TS}, 13
    s_add_u32 s{TS+1}, s{TS+1}, {ws.WI}
    s_lshl_b32 s{TS}, s{TS}, 15
    s_add_u32 s{TS}, s{TS}, {ws.DI}''')
    for f in range(8):
        a(f'buffer_load_dwordx4 a[{128+4*f}:{128+4*f+3}], v{VL}, s[8:11], s{TS+1} offen offset:{(f&3)*1024}')
        if f==3: a(f's_add_u32 s{TS+1}, s{TS+1}, 4096')
    for f in range(32):
        a(f'buffer_load_dwordx4 a[{4*f}:{4*f+3}], v{VL}, s[8:11], s{TS} offen offset:{(f&3)*1024}')
        if (f&3)==3: a(f's_add_u32 s{TS}, s{TS}, 4096')
    a(f'buffer_load_dwordx4 v[{RES}:{RES+3}], v{VX}, {res_srd}, {res_so} offen')
    a(f'buffer_load_dwordx4 v[{RES+4}:{RES+7}], v{VR}, {res_srd}, {res_so} offen')
    a('s_waitcnt vmcnt(42)\ns_barrier')
    steps=[]
    for w in range(4): steps.append((32768+w*2048, [128+4*(w*2+tau) for tau in range(2)], 42-8+ (0)))
    for w in range(4):
        for eta in range(2):
            for io in range(2):
                steps.append((w*8192+eta*4096+io*2048, [4*(w*8+tau*4+io*2+eta) for tau in range(2)], None))
    def rd(i):
        b=STG+8*(i&3); o=steps[i][0]
        return [f'ds_read_b128 v[{b}:{b+3}], v{VL} offset:{o}', f'ds_read_b128 v[{b+4}:{b+7}], v{VL} offset:{o+1024}']
    for i in range(2):
        for x in rd(i): a(x)
    for i,(o,A,_) in enumerate(steps):
        b=STG+8*(i&3)
        if i==0: a('s_waitcnt vmcnt(34)')
        if i>=4 and (i-4)%4==0:
            w=(i-4)//4; a(f's_waitcnt vmcnt({34-8*(w+1)})')
        a('s_waitcnt lgkmcnt(2)' if i<len(steps)-1 else 's_waitcnt lgkmcnt(0)')
        fl=rd(i+2) if i+2<len(steps) else []
        for tau in range(2):
            for ab in range(2):
                d=ACC+8*tau+4*ab; c='0' if i==0 else f'v[{d}:{d+3}]'
                a(f'v_mfma_f32_16x16x32_bf16 v[{d}:{d+3}], a[{A[tau]}:{A[tau]+3}], v[{b+4*ab}:{b+4*ab+3}], {c}')
                if fl: a(fl.pop(0))
    a('s_waitcnt vmcnt(0)\ns_nop 6')
    for ab in range(2):
        t0=ACC+4*ab; t1=ACC+8+4*ab; o=PK+4*ab; r=RES+4*ab; F=STG
        a(f'''v_cvt_pk_bf16_f32 v{o}, v{t0}, v{t0+1}
        v_cvt_pk_bf16_f32 v{o+1}, v{t0+2}, v{t0+3}
        v_cvt_pk_bf16_f32 v{o+2}, v{t1}, v{t1+1}
        v_cvt_pk_bf16_f32 v{o+3}, v{t1+2}, v{t1+3}
        s_nop 1
        v_permlane16_swap_b32 v{o}, v{o+2}
        v_permlane16_swap_b32 v{o+1}, v{o+3}''')
        for q in range(4):
            a(f'''v_lshlrev_b32 v{F}, 16, v{o+q}
            v_and_b32 v{F+1}, 0xffff0000, v{o+q}
            v_lshlrev_b32 v{F+2}, 16, v{r+q}
            v_and_b32 v{F+3}, 0xffff0000, v{r+q}
            v_pk_add_f32 v[{F}:{F+1}], v[{F}:{F+1}], v[{F+2}:{F+3}]
            v_cvt_pk_bf16_f32 v{o+q}, v{F}, v{F+1}''')
        a(f'buffer_store_dwordx4 v[{o}:{o+3}], v{VX if ab==0 else VR}, s[8:11], {out_so} offen {stflags}')
    a(f's_branch {ldone}\n{lidle}:\ns_waitcnt vmcnt(0)\ns_barrier\n{ldone}:\ns_waitcnt vmcnt(0)')

def j2_om(a, S_ID, S_WAVE, res_srd, res_so, out_so, NW, S_LIM=39):
    TS=24; S_T=32; S_S=33; S_V=34; VL=1; VR=2; VX=3; RES=8; STG=16; ACC=48; PK=64; PJ=72
    loop=a.lab('j2loop'); lidle=a.lab('j2idle'); lnext=a.lab('j2next'); ldone=a.lab('j2done')
    def poll(addr_s, vaddr, nl, val_mask, tag):
        lr=a.lab('j2p'); lo=a.lab('j2o')
        a(f'''s_mov_b32 s{TS+6}, s{S_LIM}
        {lr}:
        buffer_load_dword v5, v{vaddr}, s[8:11], s{addr_s} offen sc1
        s_waitcnt vmcnt(0)
        v_cmp_eq_u32 vcc, 1, v5
        s_nop 1
        s_and_b32 s{TS+7}, vcc_lo, {val_mask}
        s_cmp_eq_u32 s{TS+7}, {val_mask}
        s_cbranch_scc1 {lo}
        s_sleep 2
        s_sub_u32 s{TS+6}, s{TS+6}, 1
        s_cbranch_scc0 {lr}
        s_mov_b32 s{S_LIM}, 0
        {lo}:''')
    a(f'''s_mov_b32 s{S_T}, s{S_ID}
    s_mov_b32 s{S_LIM}, 4000
    v_lshlrev_b32 v{VL}, 4, v0
    v_lshlrev_b32 v4, 2, v0
    {loop}:
    s_lshr_b32 s{S_S}, s{S_T}, 2
    s_and_b32 s{S_V}, s{S_T}, 3
    s_lshl_b32 s{S_V}, s{S_V}, 2
    s_add_u32 s{S_V}, s{S_V}, s{S_WAVE}
    s_cmp_ge_u32 s{S_V}, 14
    s_cbranch_scc1 {lidle}''')
    a(f'''s_mul_i32 s{TS}, s{S_S}, 14
    s_add_u32 s{TS}, s{TS}, s{S_V}
    s_lshl_b32 s{TS+1}, s{TS}, 4
    s_add_u32 s{TS+1}, s{TS+1}, {ws.DF}''')
    poll(TS+1,4,4,'0xf','d')
    a(f'''s_lshl_b32 s{TS+1}, s{TS}, 13
    s_add_u32 s{TS+1}, s{TS+1}, {ws.WI}
    s_lshl_b32 s{TS}, s{TS}, 15
    s_add_u32 s{TS}, s{TS}, {ws.DI}''')
    for f in range(32):
        a(f'buffer_load_dwordx4 a[{4*f}:{4*f+3}], v{VL}, s[8:11], s{TS} offen offset:{(f&3)*1024} sc1')
        if (f&3)==3: a(f's_add_u32 s{TS}, s{TS}, 4096')
    a(f'''v_and_b32 v6, 15, v0
    v_lshrrev_b32 v5, 3, v6
    v_lshlrev_b32 v5, 4, v5
    v_lshrrev_b32 v7, 2, v6
    v_and_b32 v7, 1, v7
    v_lshlrev_b32 v7, 2, v7
    v_and_b32 v6, 3, v6
    v_add3_u32 v5, v5, v7, v6
    s_lshl_b32 s{TS}, s{S_S}, 5
    v_add_u32 v5, s{TS}, v5
    v_mul_u32_u24 v5, 896, v5
    v_lshrrev_b32 v6, 4, v0
    v_and_b32 v7, 1, v6
    v_lshlrev_b32 v7, 5, v7
    v_lshrrev_b32 v6, 1, v6
    v_lshlrev_b32 v6, 4, v6
    v_add3_u32 v5, v5, v6, v7
    s_lshl_b32 s{TS}, s{S_V}, 6
    v_add_u32 v{VX}, s{TS}, v5
    v_add_u32 v{VR}, {8*896}, v{VX}
    buffer_load_dwordx4 v[{RES}:{RES+3}], v{VX}, {res_srd}, {res_so} offen
    buffer_load_dwordx4 v[{RES+4}:{RES+7}], v{VR}, {res_srd}, {res_so} offen
    {lidle}:''')
    a(f'''s_add_u32 s{TS+2}, s{S_S}, 1
    s_lshl_b32 s{TS+2}, s{TS+2}, 6
    s_add_u32 s{TS+2}, s{TS+2}, {ws.F}
    s_lshl_b32 s{TS+3}, s{S_S}, 7
    s_add_u32 s{TS+3}, s{TS+3}, {ws.PF}''')
    poll(TS+3,4,32,'0xffffffff','p')
    a(f'''s_mul_i32 s{TS}, s{S_S}, 40960
    s_mul_i32 s{TS+4}, s{S_WAVE}, 10240
    s_add_u32 s{TS}, s{TS}, s{TS+4}
    s_add_u32 s{TS}, s{TS}, {ws.PJ}
    v_add_u32 v6, s{TS+4}, v{VL}''')
    for t in range(10):
        a(f'buffer_load_dwordx4 v[{PJ+4*t}:{PJ+4*t+3}], v{VL}, s[8:11], s{TS} offen offset:{(t&3)*1024} sc1')
        if (t&3)==3: a(f's_add_u32 s{TS}, s{TS}, 4096')
    a('s_barrier')
    for t in range(10):
        a(f's_waitcnt vmcnt({9-t})\nds_write_b128 v6, v[{PJ+4*t}:{PJ+4*t+3}] offset:{t*1024}')
    lw=a.lab('j2w')
    a(f's_cmp_ge_u32 s{S_V}, 14\ns_cbranch_scc1 {lw}')
    poll(TS+2,4,14,'0x3fff','f')
    for f in range(8):
        a(f'buffer_load_dwordx4 a[{128+4*f}:{128+4*f+3}], v{VL}, s[8:11], s{TS+1} offen offset:{(f&3)*1024} sc1')
        if f==3: a(f's_add_u32 s{TS+1}, s{TS+1}, 4096')
    a(f'{lw}:\ns_waitcnt lgkmcnt(0)\ns_barrier\ns_cmp_ge_u32 s{S_V}, 14\ns_cbranch_scc1 {lnext}')
    steps=[]
    for w in range(4):
        for eta in range(2):
            for io in range(2):
                steps.append((w*8192+eta*4096+io*2048, [4*(w*8+tau*4+io*2+eta) for tau in range(2)]))
    for w in range(4): steps.append((32768+w*2048, [128+4*(w*2+tau) for tau in range(2)]))
    def rd(i):
        b=STG+8*(i&3); o=steps[i][0]
        return [f'ds_read_b128 v[{b}:{b+3}], v{VL} offset:{o}', f'ds_read_b128 v[{b+4}:{b+7}], v{VL} offset:{o+1024}']
    for i in range(2):
        for x in rd(i): a(x)
    for i,(o,A) in enumerate(steps):
        b=STG+8*(i&3)
        if i==16: a('s_waitcnt vmcnt(0)')
        a('s_waitcnt lgkmcnt(2)' if i<len(steps)-1 else 's_waitcnt lgkmcnt(0)')
        fl=rd(i+2) if i+2<len(steps) else []
        for tau in range(2):
            for ab in range(2):
                d=ACC+8*tau+4*ab; c='0' if i==0 else f'v[{d}:{d+3}]'
                a(f'v_mfma_f32_16x16x32_bf16 v[{d}:{d+3}], a[{A[tau]}:{A[tau]+3}], v[{b+4*ab}:{b+4*ab+3}], {c}')
                if fl: a(fl.pop(0))
    a('s_nop 7')
    for ab in range(2):
        t0=ACC+4*ab; t1=ACC+8+4*ab; o=PK+4*ab; r=RES+4*ab; F=STG
        a(f'''v_cvt_pk_bf16_f32 v{o}, v{t0}, v{t0+1}
        v_cvt_pk_bf16_f32 v{o+1}, v{t0+2}, v{t0+3}
        v_cvt_pk_bf16_f32 v{o+2}, v{t1}, v{t1+1}
        v_cvt_pk_bf16_f32 v{o+3}, v{t1+2}, v{t1+3}
        s_nop 1
        v_permlane16_swap_b32 v{o}, v{o+2}
        v_permlane16_swap_b32 v{o+1}, v{o+3}''')
        for q in range(4):
            a(f'''v_lshlrev_b32 v{F}, 16, v{o+q}
            v_and_b32 v{F+1}, 0xffff0000, v{o+q}
            v_lshlrev_b32 v{F+2}, 16, v{r+q}
            v_and_b32 v{F+3}, 0xffff0000, v{r+q}
            v_pk_add_f32 v[{F}:{F+1}], v[{F}:{F+1}], v[{F+2}:{F+3}]
            v_cvt_pk_bf16_f32 v{o+q}, v{F}, v{F+1}''')
        a(f'buffer_store_dwordx4 v[{o}:{o+3}], v{VX if ab==0 else VR}, s[8:11], {out_so} offen')
    a(f'''{lnext}:
    s_add_u32 s{S_T}, s{S_T}, {NW}
    s_cmp_lt_u32 s{S_T}, 256
    s_cbranch_scc1 {loop}
    s_waitcnt vmcnt(0)''')

def j2_kernel(name, src, stflags=''):
    a=Asm(); a.l.append(head(name)); ex=name+'_exit'
    a(f'''s_cmp_ge_u32 s2, 256
    s_cbranch_scc1 {ex}
    s_load_dwordx2 s[4:5], s[0:1], {KA['ws']}
    s_load_dwordx2 s[6:7], s[0:1], {KA['x']}
    v_lshrrev_b32 v1, 6, v0
    v_and_b32 v0, 63, v0
    s_and_b32 s20, s2, 7
    s_lshr_b32 s21, s2, 5
    v_readfirstlane_b32 s17, v1
    s_lshl_b32 s21, s21, 3
    s_add_u32 s16, s21, s20
    s_lshr_b32 s21, s2, 3
    s_and_b32 s21, s21, 3
    s_lshl_b32 s21, s21, 2
    s_add_u32 s18, s21, s17
    s_mov_b32 s19, {ws.X1}
    s_waitcnt lgkmcnt(0)''')
    srd(a,8,4,0x10000000)
    if src=='x': srd(a,12,6,1835008); rs,so='s[12:15]','0'
    else: a(f's_mov_b32 s22, {src}'); rs,so='s[8:11]','s22'
    j2_body(a,16,18,17,rs,so,'s19',stflags)
    a(f'{ex}:\ns_endpgm')
    return a.text()+kd(name,vgpr=72,agpr=160)
if __name__=='__main__':
    t='.amdgcn_target "amdgcn-amd-amdhsa--gfx950"\n'+j2_kernel('j2_kernel','x')
    open('j2.s','w').write(t)
```

```python
from common import *
import struct
def fbits(x): return struct.unpack('<I',struct.pack('<f',x))[0]
def load_ptr_srd(a, karg, s, nbytes, tmp=4):
    a(f's_load_dwordx2 s[{tmp}:{tmp+1}], s[0:1], {KA[karg]}')
    return lambda: srd(a,s,tmp,nbytes)

def reduce32(a, s, t):
    a('s_nop 1')
    for r in (8,4,2,1):
        a(f'v_add_f32_dpp v{s}, v{s}, v{s} row_ror:{r} row_mask:0xf bank_mask:0xf')
        a('s_nop 1')
    a(f'v_mov_b32 v{t}, v{s}\ns_nop 1\nv_permlane16_swap_b32 v{s}, v{t}\nv_add_f32 v{s}, v{s}, v{t}')

def ln_core(a, X, F, T, s_mask, s_act, packed=True):
    if packed:
        for i in range(8):
            a(f'v_lshlrev_b32 v{F+2*i}, 16, v{X+i}\nv_and_b32 v{F+2*i+1}, s{s_mask}, v{X+i}')
    a(f'''v_pk_add_f32 v[{T}:{T+1}], v[{F}:{F+1}], v[{F+2}:{F+3}]
    v_pk_add_f32 v[{T+2}:{T+3}], v[{F+4}:{F+5}], v[{F+6}:{F+7}]
    v_pk_add_f32 v[{T+4}:{T+5}], v[{F+8}:{F+9}], v[{F+10}:{F+11}]
    v_pk_add_f32 v[{T+6}:{T+7}], v[{F+12}:{F+13}], v[{F+14}:{F+15}]
    v_pk_add_f32 v[{T}:{T+1}], v[{T}:{T+1}], v[{T+2}:{T+3}]
    v_pk_add_f32 v[{T+4}:{T+5}], v[{T+4}:{T+5}], v[{T+6}:{T+7}]
    v_pk_add_f32 v[{T}:{T+1}], v[{T}:{T+1}], v[{T+4}:{T+5}]
    v_add_f32 v{T}, v{T}, v{T+1}''')
    reduce32(a,T,T+1)
    a(f'''v_mul_f32 v{T}, {hex(fbits(1/448.0))}, v{T}
    v_cndmask_b32 v{T+2}, 0, v{T}, s[{s_act}:{s_act+1}]''')
    for i in range(8):
        t=X+2*(i&3) if X%2==0 else None
        acc=T+4+2*(i&1)
        a(f'v_pk_add_f32 v[{t}:{t+1}], v[{F+2*i}:{F+2*i+1}], v[{T+2}:{T+3}] op_sel_hi:[1,0] neg_lo:[0,1] neg_hi:[0,1]')
        if i<2: a(f'v_pk_mul_f32 v[{acc}:{acc+1}], v[{t}:{t+1}], v[{t}:{t+1}]')
        else: a(f'v_pk_fma_f32 v[{acc}:{acc+1}], v[{t}:{t+1}], v[{t}:{t+1}], v[{acc}:{acc+1}]')
    a(f'''v_pk_add_f32 v[{T+4}:{T+5}], v[{T+4}:{T+5}], v[{T+6}:{T+7}]
    v_add_f32 v{T+4}, v{T+4}, v{T+5}''')
    reduce32(a,T+4,T+5)
    a(f'''v_mul_f32 v{T+4}, {hex(fbits(1/448.0))}, v{T+4}
    v_cvt_pk_bf16_f32 v{T}, v{T}, v{T}
    v_cvt_pk_bf16_f32 v{T+4}, v{T+4}, v{T+4}
    v_and_b32 v{T}, s{s_mask}, v{T}
    v_and_b32 v{T+4}, s{s_mask}, v{T+4}
    v_add_f32 v{T+4}, {hex(fbits(1e-5))}, v{T+4}
    v_cvt_pk_bf16_f32 v{T+4}, v{T+4}, v{T+4}
    v_and_b32 v{T+4}, s{s_mask}, v{T+4}
    v_sqrt_f32 v{T+4}, v{T+4}
    s_nop 0
    v_cvt_pk_bf16_f32 v{T+4}, v{T+4}, v{T+4}
    v_and_b32 v{T+4}, s{s_mask}, v{T+4}
    v_rcp_f32 v{T+4}, v{T+4}
    s_nop 0''')
    for i in range(8):
        f=F+2*i
        a(f'''v_pk_add_f32 v[{f}:{f+1}], v[{f}:{f+1}], v[{T}:{T+1}] op_sel_hi:[1,0] neg_lo:[0,1] neg_hi:[0,1]
        v_cvt_pk_bf16_f32 v{X+i}, v{f}, v{f+1}''')
    for i in range(8):
        f=F+2*i
        a(f'''v_lshlrev_b32 v{f}, 16, v{X+i}
        v_and_b32 v{f+1}, s{s_mask}, v{X+i}
        v_pk_mul_f32 v[{f}:{f+1}], v[{f}:{f+1}], v[{T+4}:{T+5}] op_sel_hi:[1,0]''')
    for i in range(8):
        f=F+2*i
        a(f'v_cvt_pk_bf16_f32 v{X+i}, v{f}, v{f+1}')

def ln_multi(a, insts, s_mask, s_act):
    ls=[]
    for X,F,T in insts:
        b=Asm(); ln_core(b,X,F,T,s_mask,s_act); ls.append([x for x in b.l if not (len(insts)>=3 and x.startswith('s_nop'))])
    n=max(len(l) for l in ls)
    for i in range(n):
        for l in ls:
            if i<len(l): a(l[i])

RS=912
def emit_images(a, LR, s_wave, s_seg, s_iota, tv, ts, srd_ws=8):
    V=tv; D=tv+8
    a(f'''v_and_b32 v{V}, 1, v0
    v_lshrrev_b32 v{V+1}, 1, v0
    v_and_b32 v{V+1}, 1, v{V+1}
    v_lshlrev_b32 v{V+1}, 3, v{V+1}
    v_add_u32 v{V}, v{V}, v{V+1}
    v_lshrrev_b32 v{V+1}, 2, v0
    v_and_b32 v{V+1}, 1, v{V+1}
    v_lshlrev_b32 v{V+1}, 2, v{V+1}
    v_add_u32 v{V}, v{V}, v{V+1}
    v_lshrrev_b32 v{V+1}, 3, v0
    v_and_b32 v{V+1}, 1, v{V+1}
    v_lshlrev_b32 v{V+1}, 1, v{V+1}
    v_add_u32 v{V}, v{V}, v{V+1}
    v_mul_u32_u24 v{V}, {RS}, v{V}
    s_mul_i32 s{ts}, s{s_wave}, 224
    s_add_u32 s{ts}, s{ts}, {LR}
    v_lshrrev_b32 v{V+1}, 4, v0
    v_lshlrev_b32 v{V+2}, 4, v{V+1}
    v_add3_u32 v{V+2}, v{V}, v{V+2}, s{ts}
    v_lshlrev_b32 v{V+3}, 3, v{V+1}
    v_add3_u32 v{V+3}, v{V}, v{V+3}, s{ts}''')
    for j in range(3): a(f'ds_read_b128 v[{D+4*j}:{D+4*j+3}], v{V+2} offset:{64*j}')
    a(f'ds_read_b64 v[{D+12}:{D+13}], v{V+3} offset:192')
    a(f'''s_mul_i32 s{ts}, s{s_seg}, 28672
    s_mul_i32 s{ts+1}, s{s_wave}, 7168
    s_add_u32 s{ts}, s{ts}, s{ts+1}
    s_add_u32 s{ts}, s{ts}, {ws.XK}
    s_mul_i32 s{ts+1}, s{s_iota}, 3072
    s_add_u32 s{ts+1}, s{ts+1}, s{ts}
    s_lshl_b32 s{ts+2}, s{s_iota}, 9
    s_add_u32 s{ts+2}, s{ts+2}, s{ts}
    s_add_u32 s{ts+2}, s{ts+2}, 6144
    v_lshlrev_b32 v{V+4}, 4, v0
    v_lshlrev_b32 v{V+5}, 3, v0''')
    for j in range(3):
        a(f's_waitcnt lgkmcnt({3-j})\nbuffer_store_dwordx4 v[{D+4*j}:{D+4*j+3}], v{V+4}, s[{srd_ws}:{srd_ws+3}], s{ts+1} offen offset:{1024*j}')
    a(f's_waitcnt lgkmcnt(0)\nbuffer_store_dwordx2 v[{D+12}:{D+13}], v{V+5}, s[{srd_ws}:{srd_ws+3}], s{ts+2} offen')
    a(f'''v_and_b32 v{V}, 7, v0
    v_lshrrev_b32 v{V+1}, 2, v{V}
    v_lshlrev_b32 v{V+1}, 2, v{V+1}
    v_and_b32 v{V+2}, 3, v0
    v_add_u32 v{V+1}, v{V+1}, v{V+2}
    v_mul_u32_u24 v{V+1}, {RS}, v{V+1}
    v_lshrrev_b32 v{V+2}, 5, v0
    v_lshlrev_b32 v{V+3}, 6, v{V+2}
    v_add_u32 v{V+1}, v{V+1}, v{V+3}
    v_lshrrev_b32 v{V+3}, 4, v0
    v_and_b32 v{V+3}, 1, v{V+3}
    v_lshlrev_b32 v{V+3}, 5, v{V+3}
    v_add_u32 v{V+1}, v{V+1}, v{V+3}
    v_lshrrev_b32 v{V+3}, 3, v0
    v_and_b32 v{V+3}, 1, v{V+3}
    v_lshlrev_b32 v{V+3}, 3, v{V+3}
    v_add3_u32 v{V+1}, v{V+1}, v{V+3}, {LR}''' if LR<=64 else f'''v_and_b32 v{V}, 7, v0
    v_lshrrev_b32 v{V+1}, 2, v{V}
    v_lshlrev_b32 v{V+1}, 2, v{V+1}
    v_and_b32 v{V+2}, 3, v0
    v_add_u32 v{V+1}, v{V+1}, v{V+2}
    v_mul_u32_u24 v{V+1}, {RS}, v{V+1}
    v_lshrrev_b32 v{V+2}, 5, v0
    v_lshlrev_b32 v{V+3}, 6, v{V+2}
    v_add_u32 v{V+1}, v{V+1}, v{V+3}
    v_lshrrev_b32 v{V+3}, 4, v0
    v_and_b32 v{V+3}, 1, v{V+3}
    v_lshlrev_b32 v{V+3}, 5, v{V+3}
    v_add_u32 v{V+1}, v{V+1}, v{V+3}
    v_lshrrev_b32 v{V+3}, 3, v0
    v_and_b32 v{V+3}, 1, v{V+3}
    v_lshlrev_b32 v{V+3}, 3, v{V+3}
    v_add_u32 v{V+1}, v{V+1}, v{V+3}
    v_add_u32 v{V+1}, {LR}, v{V+1}''')
    a(f'''v_lshlrev_b32 v{V+2}, 10, v{V+2}
    v_lshrrev_b32 v{V+3}, 3, v0
    v_and_b32 v{V+3}, 3, v{V+3}
    v_lshlrev_b32 v{V+3}, 8, v{V+3}
    v_lshlrev_b32 v{V}, 4, v{V}
    v_add3_u32 v{V+2}, v{V+2}, v{V+3}, v{V}
    s_lshl_b32 s{ts+1}, s{s_iota}, 7
    v_add_u32 v{V+2}, s{ts+1}, v{V+2}
    s_mul_i32 s{ts}, s{s_seg}, 28672
    s_add_u32 s{ts}, s{ts}, {ws.XT}''')
    for n in range(4):
        lskip=a.lab('xt')
        a(f'''s_add_u32 s{ts+1}, s{s_wave}, {4*n}''')
        if n==3: a(f's_cmp_ge_u32 s{ts+1}, 14\ns_cbranch_scc1 {lskip}')
        a(f'''s_cmp_ge_u32 s{ts+1}, 7
        s_cselect_b32 s{ts+2}, {8*RS-7*128}, 0
        s_lshl_b32 s{ts+3}, s{ts+1}, 7
        s_add_u32 s{ts+2}, s{ts+2}, s{ts+3}
        v_add_u32 v{V+3}, s{ts+2}, v{V+1}
        s_lshl_b32 s{ts+1}, s{ts+1}, 11
        s_add_u32 s{ts+1}, s{ts+1}, s{ts}
        ds_read2_b32 v[{D+16+0}:{D+16+1}], v{V+3} offset0:0 offset1:4
        ds_read2_b32 v[{D+16+2}:{D+16+3}], v{V+3} offset0:1 offset1:5
        s_waitcnt lgkmcnt(0)
        buffer_store_dwordx4 v[{D+16}:{D+19}], v{V+2}, s[{srd_ws}:{srd_ws+3}], s{ts+1} offen
        s_nop 1
        {lskip}:''')

LN_LDS=16*RS
def ln_kernel(name, src):
    a=Asm(); a.l.append(head(name)); ex=name+'_exit'
    S_W=17; S_SEG=18; S_IO=19; S_MASK=20; S_ACT=22; TS=24
    a(f'''s_cmp_ge_u32 s2, 128
    s_cbranch_scc1 {ex}
    s_load_dwordx2 s[4:5], s[0:1], {KA['ws']}
    s_load_dwordx2 s[6:7], s[0:1], {KA['x']}
    v_lshrrev_b32 v1, 6, v0
    v_and_b32 v0, 63, v0
    s_lshr_b32 s{S_SEG}, s2, 1
    s_and_b32 s{S_IO}, s2, 1
    v_readfirstlane_b32 s{S_W}, v1
    s_mov_b32 s{S_MASK}, 0xffff0000
    v_and_b32 v2, 31, v0
    v_cmp_gt_u32 s[{S_ACT}:{S_ACT+1}], 28, v2
    s_waitcnt lgkmcnt(0)''')
    srd(a,8,4,0x10000000)
    if src=='x': srd(a,12,6,1835008); so='0'
    else:
        srd(a,12,4,0x10000000); so=f's{TS+3}'; a(f's_mov_b32 s{TS+3}, {src}')
    a(f'''s_lshl_b32 s{TS}, s2, 4
    s_lshl_b32 s{TS+1}, s{S_W}, 2
    s_add_u32 s{TS}, s{TS}, s{TS+1}
    v_lshrrev_b32 v3, 5, v0
    v_add_u32 v4, s{TS}, v3
    v_mul_u32_u24 v4, 896, v4
    v_lshlrev_b32 v5, 5, v2
    v_add_u32 v4, v4, v5
    v_mov_b32 v6, 0x10000000
    v_cndmask_b32 v4, v6, v4, s[{S_ACT}:{S_ACT+1}]
    v_add_u32 v7, s{TS+1}, v3
    v_mul_u32_u24 v7, {RS}, v7
    v_add_u32 v7, v7, v5''')
    for it in range(2):
        a(f'buffer_load_dwordx4 v[{8+8*it}:{11+8*it}], v4, s[12:15], {so} offen offset:{it*1792}')
        a(f'buffer_load_dwordx4 v[{12+8*it}:{15+8*it}], v4, s[12:15], {so} offen offset:{it*1792+16}')
    lp=a.lab('np')
    a(f'''s_cmp_ge_u32 s2, 17
    s_cbranch_scc1 {lp}
    s_lshl_b32 s{TS}, s2, 12
    s_lshl_b32 s{TS+1}, s{S_W}, 10
    s_add_u32 s{TS}, s{TS}, s{TS+1}
    s_add_u32 s{TS}, s{TS}, {ws.MR}
    v_lshlrev_b32 v5, 4, v0
    v_mov_b32 v60, -1
    v_mov_b32 v61, -1
    v_mov_b32 v62, -1
    v_mov_b32 v63, -1
    buffer_store_dwordx4 v[60:63], v5, s[8:11], s{TS} offen
    {lp}:''')
    lz=a.lab('nz')
    a(f'''s_sub_u32 s{TS}, s2, 17
    s_cmp_ge_u32 s{TS}, 16
    s_cbranch_scc1 {lz}
    s_lshl_b32 s{TS}, s{TS}, 12
    s_lshl_b32 s{TS+1}, s{S_W}, 10
    s_add_u32 s{TS}, s{TS}, s{TS+1}
    s_add_u32 s{TS}, s{TS}, {ws.FLG}
    v_lshlrev_b32 v5, 4, v0
    v_mov_b32 v60, 0
    v_mov_b32 v61, 0
    v_mov_b32 v62, 0
    v_mov_b32 v63, 0
    buffer_store_dwordx4 v[60:63], v5, s[8:11], s{TS} offen
    {lz}:''')
    for it in range(2):
        a(f's_waitcnt vmcnt({2 if it==0 else 0})') if False else None
    a('s_waitcnt vmcnt(0)')
    for it in range(2):
        ln_core(a, 8+8*it, 24, 40, S_MASK, S_ACT)
    a(f's_mov_b64 s[{TS}:{TS+1}], exec\ns_mov_b64 exec, s[{S_ACT}:{S_ACT+1}]')
    for it in range(2):
        a(f'ds_write_b128 v7, v[{8+8*it}:{11+8*it}] offset:{it*2*RS}')
        a(f'ds_write_b128 v7, v[{12+8*it}:{15+8*it}] offset:{it*2*RS+16}')
    a(f's_mov_b64 exec, s[{TS}:{TS+1}]\ns_waitcnt lgkmcnt(0)\ns_barrier')
    emit_images(a,0,S_W,S_SEG,S_IO,8,TS)
    a(f's_waitcnt vmcnt(0)\n{ex}:\ns_endpgm')
    return a.text()+kd(name,vgpr=64)
if __name__=='__main__':
    t='.amdgcn_target "amdgcn-amd-amdhsa--gfx950"\n'+ln_kernel('ln_kernel','x')
    open('ln.s','w').write(t)
```

```python
from common import *
import rec, dk, j1, j2
from rec import S_ROLE,S_WAVE,S_MODE,S_T0,S_T1,S_T2,S_T3,S_T4,S_T5,S_T6,S_CNT,NROLE,LS_ROLE
OK_LDS=j1.J1_LDS
NJ1=112; NJ2=114
def election2(a):
    L=a.lab
    l_w, l_nocas, l_poll, l_got, l_glob, l_fin, l_wk, l_c, l_cok, l_rec = [L('el') for _ in range(10)]
    nrole=NROLE
    a(f'''s_cmp_lg_u32 s{S_WAVE}, 0
    s_cbranch_scc1 {l_w}
    s_getreg_b32 s{S_T0}, hwreg(HW_REG_XCC_ID,0,4)
    s_mov_b64 exec, 1
    s_lshl_b32 s{S_T1}, s{S_T0}, 2
    v_mov_b32 v2, s{S_T1}
    v_mov_b32 v3, 1
    v_mov_b32 v6, 64
    buffer_atomic_add v3, v2, s[12:15], 0 offen sc0 sc1
    s_add_u32 s{S_T0}, s{S_T0}, 1
    s_waitcnt vmcnt(0)
    v_readfirstlane_b32 s{S_T2}, v3
    s_nop 3
    s_cmp_lg_u32 s{S_T2}, {nrole-1}
    s_cbranch_scc1 {l_nocas}
    v_mov_b32 v4, s{S_T0}
    v_mov_b32 v5, 0
    buffer_atomic_cmpswap v[4:5], v6, s[12:15], 0 offen sc0 sc1
    s_waitcnt vmcnt(0)
    {l_nocas}:
    s_mov_b32 s{S_CNT}, 400
    {l_poll}:
    buffer_load_dword v4, v6, s[12:15], 0 offen sc0 sc1
    s_waitcnt vmcnt(0)
    v_readfirstlane_b32 s{S_T3}, v4
    s_nop 3
    s_cmp_lg_u32 s{S_T3}, 0
    s_cbranch_scc1 {l_got}
    s_sub_u32 s{S_CNT}, s{S_CNT}, 1
    s_cbranch_scc0 {l_poll}
    v_mov_b32 v4, 100
    v_mov_b32 v5, 0
    buffer_atomic_cmpswap v[4:5], v6, s[12:15], 0 offen sc0 sc1
    s_waitcnt vmcnt(0)
    v_readfirstlane_b32 s{S_T3}, v4
    s_nop 3
    s_cmp_lg_u32 s{S_T3}, 0
    s_cbranch_scc1 {l_got}
    s_mov_b32 s{S_T3}, 100
    {l_got}:
    s_cmp_eq_u32 s{S_T3}, 100
    s_cbranch_scc1 {l_glob}
    s_cmp_lg_u32 s{S_T3}, s{S_T0}
    s_cbranch_scc1 {l_wk}
    s_cmp_ge_u32 s{S_T2}, {nrole}
    s_cbranch_scc1 {l_wk}
    s_mov_b32 s{S_T4}, s{S_T2}
    s_branch {l_fin}
    {l_wk}:''')
    a(f'''s_mov_b64 exec, 0xffff
    v_lshlrev_b32 v2, 2, v0
    s_mov_b32 s{S_CNT}, 2000
    {l_c}:
    buffer_load_dword v3, v2, s[12:15], 0 offen sc0 sc1
    s_waitcnt vmcnt(0)
    s_mov_b32 s{S_T5}, 0
    s_mov_b32 s{S_T6}, 0''')
    for x in range(16):
        ls=L('els')
        a(f'''v_readlane_b32 s30, v3, {x}
        s_nop 3
        s_add_u32 s{S_T5}, s{S_T5}, s30
        s_cmp_eq_u32 s{S_T3}, {x+1}
        s_cbranch_scc1 {ls}
        s_cmp_eq_u32 s{S_T0}, s{S_T3}
        s_cselect_b32 s31, 99, s{S_T0}
        s_cmp_gt_u32 s31, {x+1}
        s_cselect_b32 s30, s30, 0
        s_add_u32 s{S_T6}, s{S_T6}, s30
        {ls}:''')
    a(f'''s_cmp_ge_u32 s{S_T5}, 256
    s_cbranch_scc1 {l_cok}
    s_sub_u32 s{S_CNT}, s{S_CNT}, 1
    s_cbranch_scc0 {l_c}
    s_mov_b32 s{S_T6}, 1000
    {l_cok}:
    s_cmp_eq_u32 s{S_T0}, s{S_T3}
    s_cselect_b32 s30, {nrole}, 0
    s_sub_u32 s{S_T4}, s{S_T2}, s30
    s_add_u32 s{S_T4}, s{S_T4}, s{S_T6}
    s_add_u32 s{S_T4}, s{S_T4}, {nrole}
    s_min_u32 s{S_T4}, s{S_T4}, 0x3ff
    s_mov_b64 exec, 1
    s_branch {l_fin}
    {l_glob}:
    v_mov_b32 v3, 1
    v_mov_b32 v6, 68
    buffer_atomic_add v3, v6, s[12:15], 0 offen sc0 sc1
    s_waitcnt vmcnt(0)
    v_readfirstlane_b32 s{S_T4}, v3
    s_nop 3
    s_min_u32 s{S_T4}, s{S_T4}, 0x3ff
    s_or_b32 s{S_T4}, s{S_T4}, 0x400
    {l_fin}:
    v_mov_b32 v2, {LS_ROLE}
    v_mov_b32 v3, s{S_T4}
    ds_write_b32 v2, v3
    s_waitcnt lgkmcnt(0)
    s_mov_b64 exec, -1
    {l_w}:
    s_barrier
    v_mov_b32 v2, {LS_ROLE}
    ds_read_b32 v3, v2
    s_waitcnt lgkmcnt(0)
    v_readfirstlane_b32 s{S_T4}, v3
    s_nop 3
    s_and_b32 s{S_ROLE}, s{S_T4}, 0x3ff
    s_lshr_b32 s{S_MODE}, s{S_T4}, 10
    s_barrier''')

def o_kernel(name, src, prof=False, clk=False, workers=True):
    a=Asm(); a.l.append(head(name))
    ex=name+'_exit'; lv=name+'_val'; lwk=name+'_wk'; lj2=name+'_j2'; lnd=name+'_nd'
    rec.prologue(a,256,ex)
    election2(a)
    a(f'''s_cmp_ge_u32 s{S_ROLE}, {NROLE}
    s_cbranch_scc1 {lwk}
    s_cmp_ge_u32 s{S_ROLE}, 16
    s_cbranch_scc1 {lv}''')
    rec.score_role(a,prof,63,clk)
    a(f'{lv}:')
    rec.value_role(a,prof,63,om=True)
    a(f'{lwk}:')
    a(f'''s_sub_u32 s58, s{S_ROLE}, {NROLE}
    s_cmp_ge_u32 s58, {NJ1+NJ2}
    s_cbranch_scc1 {ex}
    s_cmp_ge_u32 s58, 224
    s_cbranch_scc1 {lnd}''')
    a(f'''s_and_b32 s18, s58, 3
    s_lshr_b32 s21, s58, 2
    s_lshr_b32 s16, s21, 2
    s_and_b32 s19, s21, 3''')
    dk.d_body(a,16,19,18,S_WAVE,stflags='sc1',flags=True)
    a(f's_barrier\n{lnd}:\ns_cmp_ge_u32 s58, {NJ1}\ns_cbranch_scc1 {lj2}')
    div_const(a,16,58,7,112)
    a(f'''s_mul_i32 s18, s16, 7
    s_sub_u32 s18, s58, s18
    s_cmp_eq_u32 s18, 0
    s_cselect_b32 s19, 10, 9''')
    j1.j1_body(a,16,18,S_WAVE,None,7,stflags='sc1',om=True,S_N=19)
    a(f's_endpgm\n{lj2}:')
    a(f's_sub_u32 s16, s58, {NJ1}')
    if src=='x':
        a(f"s_load_dwordx2 s[6:7], s[0:1], {KA['x']}\ns_waitcnt lgkmcnt(0)"); srd(a,12,6,1835008); rs,so='s[12:15]','0'
    else: a(f's_mov_b32 s22, {src}'); rs,so='s[8:11]','s22'
    a(f's_mov_b32 s19, {ws.X1}')
    j2.j2_om(a,16,S_WAVE,rs,so,'s19',NJ2)
    a(f'{ex}:\ns_endpgm')
    return a.text()+kd(name,vgpr=256,agpr=256)
if __name__=='__main__':
    t='.amdgcn_target "amdgcn-amd-amdhsa--gfx950"\n'+o_kernel('o_kernel','x')
    open('ok.s','w').write(t); print(len(t))
```

```python
from asm import *
from lay import ws
NROLE=30
S_WS=8; S_DBG=12
S_ROLE=16; S_WAVE=17; S_STEP=18; S_LIM=19; S_MODE=20
S_T0=21; S_T1=22; S_T2=23; S_T3=24; S_T4=25; S_T5=26; S_T6=27
S_CNT=28
POLL_LIM=20000

def prologue(a, nwg, exitlab):
    a(f'''s_cmp_ge_u32 s2, {nwg}
    s_cbranch_scc1 {exitlab}
    s_load_dwordx2 s[4:5], s[0:1], 96
    s_load_dwordx2 s[6:7], s[0:1], 88
    v_lshrrev_b32 v1, 6, v0
    v_and_b32 v0, 63, v0
    s_waitcnt lgkmcnt(0)
    v_readfirstlane_b32 s{S_WAVE}, v1
    s_mov_b32 s8, s4
    s_mov_b32 s9, s5
    s_mov_b32 s10, 0x10000000
    s_mov_b32 s11, 0x00020000
    s_mov_b32 s12, s6
    s_mov_b32 s13, s7
    s_mov_b32 s14, 256
    s_mov_b32 s15, 0x00020000''')

def election(a, lds_role, nrole=NROLE):
    L=a.lab
    l_w, l_nocas, l_poll, l_got, l_glob, l_fin, l_none, l_wr = [L('el') for _ in range(8)]
    a(f'''s_cmp_lg_u32 s{S_WAVE}, 0
    s_cbranch_scc1 {l_w}
    s_getreg_b32 s{S_T0}, hwreg(HW_REG_XCC_ID,0,4)
    s_mov_b64 exec, 1
    s_lshl_b32 s{S_T1}, s{S_T0}, 2
    v_mov_b32 v2, s{S_T1}
    v_mov_b32 v3, 1
    v_mov_b32 v6, 64
    buffer_atomic_add v3, v2, s[12:15], 0 offen sc0 sc1
    s_add_u32 s{S_T0}, s{S_T0}, 1
    s_waitcnt vmcnt(0)
    v_readfirstlane_b32 s{S_T2}, v3
    s_nop 3
    s_cmp_lg_u32 s{S_T2}, {nrole-1}
    s_cbranch_scc1 {l_nocas}
    v_mov_b32 v4, s{S_T0}
    v_mov_b32 v5, 0
    buffer_atomic_cmpswap v[4:5], v6, s[12:15], 0 offen sc0 sc1
    s_waitcnt vmcnt(0)
    {l_nocas}:
    s_mov_b32 s{S_CNT}, 200
    {l_poll}:
    buffer_load_dword v4, v6, s[12:15], 0 offen sc0 sc1
    s_waitcnt vmcnt(0)
    v_readfirstlane_b32 s{S_T3}, v4
    s_nop 3
    s_cmp_lg_u32 s{S_T3}, 0
    s_cbranch_scc1 {l_got}
    s_sub_u32 s{S_CNT}, s{S_CNT}, 1
    s_cbranch_scc0 {l_poll}
    v_mov_b32 v4, 100
    v_mov_b32 v5, 0
    buffer_atomic_cmpswap v[4:5], v6, s[12:15], 0 offen sc0 sc1
    s_waitcnt vmcnt(0)
    v_readfirstlane_b32 s{S_T3}, v4
    s_nop 3
    s_cmp_lg_u32 s{S_T3}, 0
    s_cbranch_scc1 {l_got}
    s_mov_b32 s{S_T3}, 100
    {l_got}:
    s_cmp_eq_u32 s{S_T3}, 100
    s_cbranch_scc1 {l_glob}
    s_cmp_lg_u32 s{S_T3}, s{S_T0}
    s_cbranch_scc1 {l_none}
    s_mov_b32 s{S_T4}, s{S_T2}
    s_branch {l_fin}
    {l_glob}:
    v_mov_b32 v3, 1
    v_mov_b32 v6, 68
    buffer_atomic_add v3, v6, s[12:15], 0 offen sc0 sc1
    s_waitcnt vmcnt(0)
    v_readfirstlane_b32 s{S_T4}, v3
    s_nop 3
    s_min_u32 s{S_T4}, s{S_T4}, 255
    s_or_b32 s{S_T4}, s{S_T4}, 0x100
    s_branch {l_fin}
    {l_none}:
    s_mov_b32 s{S_T4}, 255
    {l_fin}:
    v_mov_b32 v2, {lds_role}
    v_mov_b32 v3, s{S_T4}
    ds_write_b32 v2, v3
    s_waitcnt lgkmcnt(0)
    s_mov_b64 exec, -1
    {l_w}:
    s_barrier
    v_mov_b32 v2, {lds_role}
    ds_read_b32 v3, v2
    s_waitcnt lgkmcnt(0)
    v_readfirstlane_b32 s{S_T4}, v3
    s_nop 3
    s_and_b32 s{S_ROLE}, s{S_T4}, 0xff
    s_lshr_b32 s{S_MODE}, s{S_T4}, 8''')

def load_frags(a, nfr, dst, voff, soff, flags='nt'):
    for f in range(nfr):
        k,b=dst(f)
        for eta in range(2):
            r=(ar if k=='a' else vr)(b+4*eta,4)
            off=((2*f+eta)&3)*1024
            a(f'buffer_load_dwordx4 {r}, v{voff}, s[8:11], s{soff} offen offset:{off} {flags}' if off else f'buffer_load_dwordx4 {r}, v{voff}, s[8:11], s{soff} offen {flags}')
            if ((2*f+eta)&3)==3: a(f's_add_u32 s{soff}, s{soff}, 4096')

def stamp(a, prof, idx):
    if prof: a(f's_memtime s[{40+2*idx}:{41+2*idx}]')
def stamp_flush(a, prof, n, vtmp):
    if not prof: return
    a(f'''s_waitcnt lgkmcnt(0)
    s_lshl_b32 s{S_T0}, s{S_ROLE}, 2
    s_add_u32 s{S_T0}, s{S_T0}, s{S_WAVE}
    s_lshl_b32 s{S_T0}, s{S_T0}, 6
    s_add_u32 s{S_T0}, s{S_T0}, s{S_STEP}
    s_lshl_b32 s{S_T0}, s{S_T0}, 6
    s_add_u32 s{S_T0}, s{S_T0}, {ws.PROF}
    s_mov_b64 s[36:37], exec
    s_mov_b64 exec, 1''')
    for i in range(n):
        a(f'v_mov_b32 v{vtmp}, s{40+2*i}\nv_mov_b32 v{vtmp+1}, {4*i}\nbuffer_store_dword v{vtmp}, v{vtmp+1}, s[8:11], s{S_T0} offen\ns_nop 0')
    a('s_mov_b64 exec, s[36:37]')

def poll_tail(a, lab_retry, lab_ok, vchk):
    a(f'''v_cmp_eq_u32 vcc, -1, v{vchk}
    s_cbranch_vccz {lab_ok}
    s_sub_u32 s{S_CNT}, s{S_CNT}, 1
    s_cbranch_scc0 {lab_retry}
    s_mov_b32 s{S_LIM}, 0
    {lab_ok}:''')

def store2(a, txt):
    l1=a.lab('st'); l2=a.lab('st')
    a(f's_cmp_lg_u32 s{S_MODE}, 0\ns_cbranch_scc1 {l1}')
    for t in txt: a(t)
    a(f's_branch {l2}\n{l1}:')
    for t in txt: a(t+' sc1')
    a(f'{l2}:')

LS_MX=0; LS_XK=8192; LS_T2=36864; LS_SB=51200; LS_SD=59392; LS_ROLE=77824
def score_role(a, prof, nsteps=63, clk=False):
    IDX=1; A0=4
    ACC=[32,36,40]; PK=44
    TF=48
    KD=62
    SC2=86
    VL16=90; VMXW=91; VMK=92; VMKO=93; VXK=94; VXKO=95; VT2W=96; VT2R=97; VSW=98; VSWM=99; VSR=100; VPST=101; VPOLL=102; VDMA=103
    NEG=104
    PL=62
    WV=120
    def wdst(f): return ('a',8*f) if f<32 else ('v',WV+8*(f-32))
    def wreg(f):
        k,b=wdst(f); return (ar if k=='a' else vr)(b,8)
    S_PO=29; S_PO2=30; S_PS=31; S_PP=32; S_XO=33
    L=a.lab
    a(f'''v_lshlrev_b32 v{VL16}, 4, v0
    s_mul_i32 s{S_T0}, s{S_ROLE}, {4*49*2048}
    s_mul_i32 s{S_T1}, s{S_WAVE}, {49*2048}
    s_add_u32 s{S_T0}, s{S_T0}, s{S_T1}
    s_add_u32 s{S_T0}, s{S_T0}, {ws.AI}''')
    load_frags(a,49,wdst,VL16,S_T0)
    a(f'''v_and_b32 v2, 8, v0
    v_mov_b32 v{IDX}, 0x44444444
    v_mov_b32 v3, 0xeeeeeeee
    v_cmp_ne_u32 vcc, 0, v2
    v_mov_b32 v{NEG}, -1
    v_mov_b32 v{NEG+1}, -1
    v_cndmask_b32 v{IDX}, v{IDX}, v3, vcc
    s_lshl_b32 s{S_T1}, s{S_WAVE}, 10
    v_add_u32 v{VMXW}, s{S_T1}, v{VL16}
    v_mov_b32 v{VPOLL}, v{VMXW}''')
    a(f'''s_movk_i32 s{S_T2}, 4096
    s_cmp_eq_u32 s{S_WAVE}, 3
    s_cselect_b32 s{S_T2}, 0x10000000, s{S_T2}
    v_add_u32 v{VDMA}, s{S_T2}, v{VPOLL}''')
    VPOLL2=106
    a(f'v_mov_b32 v{VPOLL2}, v{VDMA}')
    a(f'''v_lshrrev_b32 v2, 4, v0
    v_and_b32 v3, 7, v0
    v_lshlrev_b32 v3, 4, v3
    s_mul_i32 s{S_T1}, s{S_WAVE}, {14*128}
    v_lshlrev_b32 v4, 7, v2
    v_add3_u32 v{VMK}, v4, v3, s{S_T1}
    v_lshrrev_b32 v4, 1, v2
    v_lshlrev_b32 v4, 7, v4
    v_and_b32 v5, 1, v2
    v_lshlrev_b32 v5, 3, v5
    s_add_u32 s{S_T1}, s{S_T1}, {12*128}
    v_add3_u32 v{VMKO}, v4, v3, s{S_T1}
    v_add_u32 v{VMKO}, v{VMKO}, v5
    s_mul_i32 s{S_T1}, s{S_WAVE}, 7168
    s_add_u32 s{S_T1}, s{S_T1}, {LS_XK}
    v_add_u32 v{VXK}, s{S_T1}, v{VL16}
    v_lshlrev_b32 v4, 3, v0
    s_add_u32 s{S_T1}, s{S_T1}, 6144
    v_add_u32 v{VXKO}, s{S_T1}, v4''')
    a(f'''s_mul_i32 s{S_T1}, s{S_WAVE}, 3584
    s_add_u32 s{S_T1}, s{S_T1}, {LS_T2}
    v_and_b32 v3, 15, v0
    v_lshrrev_b32 v4, 2, v3
    v_xor_b32 v4, v4, v2
    v_lshlrev_b32 v4, 3, v4
    v_lshlrev_b32 v5, 5, v3
    v_add3_u32 v{VT2W}, v4, v5, s{S_T1}
    v_and_b32 v4, 3, v0
    v_xor_b32 v4, v4, v2
    v_lshlrev_b32 v4, 3, v4
    v_lshrrev_b32 v5, 2, v0
    v_lshlrev_b32 v5, 5, v5
    v_add3_u32 v{VT2R}, v4, v5, s{S_T1}''')
    a(f'''s_lshl_b32 s{S_T1}, s{S_WAVE}, 11
    s_add_u32 s{S_T1}, s{S_T1}, {LS_SB}
    v_and_b32 v4, 7, v0
    v_lshrrev_b32 v5, 3, v3
    v_lshlrev_b32 v6, 2, v5
    v_add_u32 v6, v6, v2
    v_lshrrev_b32 v7, 1, v6
    v_add_u32 v7, v7, v4
    v_and_b32 v7, 7, v7
    v_lshlrev_b32 v7, 4, v7
    v_lshlrev_b32 v6, 7, v6
    v_add3_u32 v{VSW}, v6, v7, s{S_T1}''')
    a(f'''v_add_u32 v6, 8, v2
    v_lshrrev_b32 v7, 1, v6
    v_add_u32 v7, v7, v4
    v_and_b32 v7, 7, v7
    v_lshlrev_b32 v7, 4, v7
    v_lshlrev_b32 v6, 7, v6
    v_add3_u32 v{VSWM}, v6, v7, s{S_T1}
    v_lshrrev_b32 v6, 1, v2
    v_or_b32 v6, v6, v5
    v_add_u32 v7, {LS_SD}, v{VL16}
    v_cmp_ne_u32 vcc, 0, v6
    s_nop 1
    v_cndmask_b32 v{VSWM}, v{VSWM}, v7, vcc''')
    a(f'''s_lshl_b32 s{S_T1}, s{S_WAVE}, 2
    v_add_u32 v4, s{S_T1}, v2
    v_and_b32 v4, 7, v4
    v_lshrrev_b32 v5, 1, v3
    v_add_u32 v5, v5, v4
    v_and_b32 v5, 7, v5
    v_lshlrev_b32 v5, 4, v5
    v_lshlrev_b32 v6, 7, v3
    v_add_u32 v6, {LS_SB}, v6
    v_add_u32 v{VSR}, v6, v5''')
    a(f'''s_lshr_b32 s{S_T1}, s{S_ROLE}, 2
    s_lshl_b32 s{S_T2}, s{S_T1}, 11
    s_and_b32 s{S_T3}, s{S_ROLE}, 3
    s_lshl_b32 s{S_T3}, s{S_T3}, 8
    s_add_u32 s{S_T2}, s{S_T2}, s{S_T3}
    v_lshrrev_b32 v5, 2, v3
    v_lshlrev_b32 v5, 10, v5
    v_lshrrev_b32 v6, 1, v3
    v_and_b32 v6, 1, v6
    v_lshlrev_b32 v6, 7, v6
    v_lshlrev_b32 v7, 4, v4
    v_add3_u32 v5, v5, v6, v7
    v_and_b32 v6, 1, v3
    v_lshlrev_b32 v8, 3, v6
    v_add3_u32 v5, v5, v8, s{S_T2}
    s_lshl_b32 s{S_T2}, s{S_T1}, 9
    s_and_b32 s{S_T3}, s{S_ROLE}, 1
    s_lshl_b32 s{S_T3}, s{S_T3}, 8
    s_add_u32 s{S_T2}, s{S_T2}, s{S_T3}
    s_lshr_b32 s{S_T3}, s{S_ROLE}, 1
    s_and_b32 s{S_T3}, s{S_T3}, 1
    s_lshl_b32 s{S_T3}, s{S_T3}, 3
    s_add_u32 s{S_T2}, s{S_T2}, s{S_T3}
    s_add_u32 s{S_T2}, s{S_T2}, 8192
    v_lshlrev_b32 v8, 7, v6
    v_add3_u32 v8, v8, v7, s{S_T2}
    v_cmp_gt_u32 vcc, 8, v3
    s_nop 1
    v_cndmask_b32 v5, v8, v5, vcc
    v_mov_b32 v8, 0x10000000
    v_cmp_gt_u32 vcc, 10, v3
    s_nop 1
    v_cndmask_b32 v{VPST}, v8, v5, vcc''')
    a(f'''s_lshl_b32 s{S_T1}, s{S_WAVE}, 11
    s_add_u32 s{S_T1}, s{S_T1}, {LS_SB}
    v_lshlrev_b32 v2, 5, v0
    v_add_u32 v2, s{S_T1}, v2
    v_mov_b32 v4, 0xf149f2ca
    v_mov_b32 v5, v4
    v_mov_b32 v6, v4
    v_mov_b32 v7, v4
    ds_write_b128 v2, v[4:7]
    ds_write_b128 v2, v[4:7] offset:16''')
    def xk_dma(nxt):
        for k in range(14):
            a(f's_add_u32 m0, s{S_T5}, {k*1024}' if k else f's_mov_b32 m0, s{S_T5}')
            off=(k&3)*1024
            a(f's_add_u32 s{S_T6}, s{S_XO}, {k*1024}')
            a(f'buffer_load_dwordx4 v{VL16}, s[8:11], s{S_T6} offen lds')
    lx=L('xk')
    a(f'''s_sub_u32 s{S_T1}, s{S_WAVE}, 2
    s_mul_i32 s{S_T1}, s{S_T1}, 14336
    s_add_u32 s{S_XO}, s{S_T1}, {ws.XK}
    s_add_u32 s{S_T5}, s{S_T1}, {LS_XK}
    s_cmp_lt_u32 s{S_WAVE}, 2
    s_cbranch_scc1 {lx}''')
    xk_dma(0)
    a(f'''{lx}:
    s_mov_b32 s{S_STEP}, 0
    s_mov_b32 s{S_LIM}, {POLL_LIM}
    s_mov_b32 s{S_PO}, {ws.MA}''')
    loop=L('sloop'); pr=L('spoll'); pok=L('spok')
    if clk: a('s_waitcnt vmcnt(0)\ns_memtime s[60:61]\ns_memrealtime s[62:63]\ns_waitcnt lgkmcnt(0)')
    a(f'{loop}:')
    stamp(a,prof,0)
    a(f'''s_mov_b32 s{S_CNT}, s{S_LIM}
    {pr}:
    buffer_load_dwordx4 v[{PL}:{PL+3}], v{VPOLL}, s[8:11], s{S_PO} offen sc1
    buffer_load_dwordx4 v[{PL+4}:{PL+7}], v{VPOLL2}, s[8:11], s{S_PO} offen sc1
    s_waitcnt vmcnt(1)
    ds_write_b128 v{VMXW}, v[{PL}:{PL+3}]
    v_max3_u32 v2, v{PL}, v{PL+1}, v{PL+2}
    v_max_u32 v2, v2, v{PL+3}
    s_waitcnt vmcnt(0)
    ds_write_b128 v{VMXW}, v[{PL+4}:{PL+7}] offset:4096
    v_max3_u32 v2, v2, v{PL+4}, v{PL+5}
    v_max3_u32 v2, v2, v{PL+6}, v{PL+7}''')
    poll_tail(a,pr,pok,2)
    stamp(a,prof,1)
    a('s_waitcnt lgkmcnt(0)\ns_barrier')
    for k in range(7): a(f'ds_read_b128 v[{A0+4*k}:{A0+4*k+3}], v{VL16} offset:{k*1024}')
    for r in range(8): a(f'v_mov_b32 v{ACC[0]+r}, 0')
    stamp(a,prof,2)
    a(f'''s_add_u32 s{S_T0}, s{S_STEP}, 1
    s_and_b32 s{S_T0}, s{S_T0}, 3
    s_mul_i32 s{S_T0}, s{S_T0}, 7168
    s_add_u32 s{S_PO}, s{S_T0}, {ws.MR}
    s_and_b32 s{S_T0}, s{S_STEP}, 3
    s_mul_i32 s{S_T0}, s{S_T0}, 10240
    s_add_u32 s{S_PS}, s{S_T0}, {ws.PR}
    s_add_u32 s{S_T0}, s{S_STEP}, 2
    s_and_b32 s{S_T0}, s{S_T0}, 3
    s_mul_i32 s{S_T0}, s{S_T0}, 10240
    s_add_u32 s{S_PP}, s{S_T0}, {ws.PR}''')
    def keyreg(j,x):
        if j<2: return KD+12*j+4*x
        if j==2: return A0+4*x
        return A0+12+2*x
    def keyread(j,x):
        r=keyreg(j,x)
        if j<3:
            if x==0: return f'ds_read_b128 v[{r}:{r+3}], v{VMK} offset:{j*512}'
            return f'ds_read_b128 v[{r}:{r+3}], v{VXK} offset:{((x-1)*3+j)*1024}'
        if x==0: return f'ds_read_b64 v[{r}:{r+1}], v{VMKO}'
        return f'ds_read_b64 v[{r}:{r+1}], v{VXKO} offset:{(x-1)*512}'
    def tfreg(t): return TF+2*t
    def post(t):
        ac=ACC[t%3]; pk=PK+2*(t&1)
        return ([f'v_cvt_pk_bf16_f32 v{pk}, v{ac}, v{ac+1}', f'v_cvt_pk_bf16_f32 v{pk+1}, v{ac+2}, v{ac+3}'],
                f'ds_write_b64 v{VT2W}, v[{pk}:{pk+1}] offset:{t*512}',
                f'ds_read_b64_tr_b16 v[{tfreg(t)}:{tfreg(t)+1}], v{VT2R} offset:{t*512}')
    kq=[keyread(j,x) for j in range(2) for x in range(3)]
    for t in range(7):
        ac=ACC[t%3]
        for k in range(7):
            if t==0: a(f's_waitcnt lgkmcnt({6-k})')
            a(f'v_smfmac_f32_16x16x64_bf16 v[{ac}:{ac+3}], v[{A0+4*k}:{A0+4*k+3}], {wreg(t*7+k)}, v{IDX}')
            fl=[]
            if t>=1:
                cv,wr,rd=post(t-1)
                if k==3: fl=cv
                if k==4: fl=[wr,rd]
            if 1<=t<6 or t==0:
                nx=ACC[(t+1)%3]
                if t>=1:
                    if k==0: fl=[f'v_mov_b32 v{nx}, 0',f'v_mov_b32 v{nx+1}, 0']
                    if k==1: fl=[f'v_mov_b32 v{nx+2}, 0',f'v_mov_b32 v{nx+3}, 0']
            if t in (2,3,4) and k in (5,6) and kq: fl=[kq.pop(0)]
            for x in fl: a(x)
    assert not kq
    stamp(a,prof,3)
    SA=[SC2,ACC[1],ACC[2]]
    cv,wr,rd=post(6)
    def smf(j,x):
        c='0' if j==0 else f'v[{SA[x]}:{SA[x]+3}]'
        if j<3: return f'v_mfma_f32_16x16x32_bf16 v[{SA[x]}:{SA[x]+3}], v[{keyreg(j,x)}:{keyreg(j,x)+3}], v[{TF+4*j}:{TF+4*j+3}], {c}'
        return f'v_mfma_f32_16x16x16_bf16 v[{SA[x]}:{SA[x]+3}], v[{keyreg(j,x)}:{keyreg(j,x)+1}], v[{tfreg(6)}:{tfreg(6)+1}], {c}'
    a(keyread(2,0)); a(keyread(2,1))
    a('s_waitcnt lgkmcnt(2)')
    a(smf(0,0)); a(keyread(2,2)); a(keyread(3,0))
    a(smf(0,1)); a(keyread(3,1)); a(keyread(3,2))
    a(smf(0,2)); a('s_nop 0')
    a(smf(1,0)); a(cv[0]); a(cv[1])
    a(smf(1,1)); a(wr); a(rd)
    a(smf(1,2))
    a('s_waitcnt lgkmcnt(5)')
    a(smf(2,0)); a(smf(2,1)); a(smf(2,2))
    a('s_waitcnt lgkmcnt(0)')
    a(smf(3,0)); a(smf(3,1)); a(smf(3,2))
    a('s_nop 5')
    for r in range(4): a(f'v_add_f32_dpp v{4+r}, v{SA[0]+r}, v{SA[0]+r} row_ror:8 row_mask:0xf bank_mask:0xf')
    a(f'ds_write_b128 v{VSWM}, v[4:7]')
    for r in range(4): a(f'v_add_f32_dpp v{8+r}, v{SA[1]+r}, v{SA[1]+r} row_ror:8 row_mask:0xf bank_mask:0x3')
    for r in range(4): a(f'v_add_f32_dpp v{8+r}, v{SA[2]+r}, v{SA[2]+r} row_ror:8 row_mask:0xf bank_mask:0xc')
    a(f'ds_write_b128 v{VSW}, v[8:11]')
    stamp(a,prof,4)
    a('s_waitcnt lgkmcnt(0)\ns_barrier')
    lx=L('xk'); lnext=L('snext')
    a(f's_cmp_ge_u32 s{S_WAVE}, 2\ns_cbranch_scc1 {lx}')
    for w in range(4): a(f'ds_read_b128 v[{4+4*w}:{7+4*w}], v{VSR} offset:{w*2048}')
    a('''s_waitcnt lgkmcnt(2)
    v_pk_add_f32 v[4:5], v[4:5], v[8:9]
    v_pk_add_f32 v[6:7], v[6:7], v[10:11]
    s_waitcnt lgkmcnt(0)
    v_pk_add_f32 v[12:13], v[12:13], v[16:17]
    v_pk_add_f32 v[14:15], v[14:15], v[18:19]
    v_pk_add_f32 v[4:5], v[4:5], v[12:13]
    v_pk_add_f32 v[6:7], v[6:7], v[14:15]
    v_max3_f32 v8, v4, v5, v6
    v_max_f32 v8, v8, v7
    s_nop 1
    v_max_f32_dpp v9, v8, v8 row_ror:4 row_mask:0xf bank_mask:0xf
    v_max_f32_dpp v9, v8, v9 row_ror:8 row_mask:0xf bank_mask:0xf
    v_max_f32_dpp v9, v8, v9 row_ror:12 row_mask:0xf bank_mask:0xf
    s_nop 1
    v_max_f32_dpp v10, v9, v9 row_ror:1 row_mask:0xf bank_mask:0xf
    v_max_f32_dpp v10, v9, v10 row_ror:2 row_mask:0xf bank_mask:0xf
    v_max_f32_dpp v10, v9, v10 row_ror:3 row_mask:0xf bank_mask:0xf
    v_pk_add_f32 v[4:5], v[4:5], v[10:11] op_sel_hi:[1,0] neg_lo:[0,1] neg_hi:[0,1]
    v_pk_add_f32 v[6:7], v[6:7], v[10:11] op_sel_hi:[1,0] neg_lo:[0,1] neg_hi:[0,1]
    v_exp_f32 v4, v4
    v_exp_f32 v5, v5
    v_exp_f32 v6, v6
    v_exp_f32 v7, v7
    v_add_f32 v8, v4, v5
    v_add_f32 v9, v6, v7
    v_add_f32 v8, v8, v9
    s_nop 1
    v_add_f32_dpp v9, v8, v8 row_ror:4 row_mask:0xf bank_mask:0xf
    v_add_f32_dpp v9, v8, v9 row_ror:8 row_mask:0xf bank_mask:0xf
    v_add_f32_dpp v9, v8, v9 row_ror:12 row_mask:0xf bank_mask:0xf
    s_nop 1
    v_add_f32_dpp v10, v9, v9 row_ror:1 row_mask:0xf bank_mask:0xf
    v_add_f32_dpp v10, v9, v10 row_ror:2 row_mask:0xf bank_mask:0xf
    v_add_f32_dpp v10, v9, v10 row_ror:3 row_mask:0xf bank_mask:0xf
    v_rcp_f32 v10, v10
    s_nop 0
    v_pk_mul_f32 v[4:5], v[4:5], v[10:11] op_sel_hi:[1,0]
    v_pk_mul_f32 v[6:7], v[6:7], v[10:11] op_sel_hi:[1,0]
    v_cvt_pk_bf16_f32 v4, v4, v5
    v_cvt_pk_bf16_f32 v5, v6, v7''')
    store2(a,[f'buffer_store_dwordx2 v[4:5], v{VPST}, s[8:11], s{S_PS} offen',
              f'buffer_store_dwordx2 v[{NEG}:{NEG+1}], v{VPST}, s[8:11], s{S_PP} offen'])
    stamp(a,prof,5)
    a(f's_branch {lnext}\n{lx}:')
    a(f's_add_u32 s{S_XO}, s{S_XO}, 28672')
    xk_dma(1)
    stamp(a,prof,5)
    a(f'{lnext}:')
    stamp_flush(a,prof,6,2)
    a(f'''s_add_u32 s{S_STEP}, s{S_STEP}, 1
    s_cmp_lt_u32 s{S_STEP}, {nsteps}
    s_cbranch_scc1 {loop}''')
    if clk:
        a(f'''s_memtime s[64:65]
        s_memrealtime s[66:67]
        s_waitcnt lgkmcnt(0)
        s_sub_u32 s64, s64, s60
        s_sub_u32 s66, s66, s62
        s_lshl_b32 s{S_T0}, s{S_ROLE}, 2
        s_add_u32 s{S_T0}, s{S_T0}, s{S_WAVE}
        s_lshl_b32 s{S_T0}, s{S_T0}, 3
        s_add_u32 s{S_T0}, s{S_T0}, {ws.PROF+0xF0000}
        v_mov_b32 v2, s64
        v_mov_b32 v3, s66
        v_mov_b32 v4, 0
        s_nop 4
        buffer_store_dwordx2 v[2:3], v4, s[8:11], s{S_T0} offen''')
    a('''s_waitcnt vmcnt(0)
    s_endpgm''')

LV_MX=0; LV_W=8192; LV_R=73728
def value_role(a, prof, nsteps=63, om=False):
    IDX=1; A0=4
    DF=32
    WB=64
    ACC=[72,76,80,84]; XA=88
    ST=92
    VL16=108; VMXW=109; VPOLL=110; VPOLL2=111; VWL=112; VPX=113; VPM=114; VRW=115; VRR=116; VMS=117
    NEG=118
    VFLAG=120; VZERO=121; VONE=122; VF1=123
    S_DFL=39; S_FF=56
    WV=128
    def wdst(f): return ('a',8*f) if f<32 else ('v',WV+8*(f-32))
    def wreg(f):
        k,b=wdst(f); return (ar if k=='a' else vr)(b,8)
    S_V=29; S_PO=30; S_PS=31; S_MS=32; S_MP=33; S_MA=34; S_DO=35; S_WO=38
    L=a.lab
    a(f'''s_sub_u32 s{S_V}, s{S_ROLE}, 16
    v_lshlrev_b32 v{VL16}, 4, v0
    s_lshl_b32 s{S_T0}, s{S_V}, 2
    s_add_u32 s{S_T0}, s{S_T0}, s{S_WAVE}
    s_mul_i32 s{S_T0}, s{S_T0}, {56*2048}
    s_add_u32 s{S_T0}, s{S_T0}, {ws.CI}''')
    load_frags(a,48,wdst,VL16,S_T0)
    a(f'''s_lshl_b32 s{S_T1}, s{S_WAVE}, 14
    s_add_u32 s{S_T1}, s{S_T1}, {LV_W}''')
    for k in range(16):
        a(f's_add_u32 m0, s{S_T1}, {k*1024}\ns_add_u32 s{S_T2}, s{S_T0}, {k*1024}\nbuffer_load_dwordx4 v{VL16}, s[8:11], s{S_T2} offen lds')
    a(f'''v_add_u32 v{VWL}, s{S_T1}, v{VL16}
    v_and_b32 v2, 8, v0
    v_mov_b32 v{IDX}, 0x44444444
    v_mov_b32 v3, 0xeeeeeeee
    v_cmp_ne_u32 vcc, 0, v2
    v_mov_b32 v{NEG}, -1
    v_mov_b32 v{NEG+1}, -1
    v_cndmask_b32 v{IDX}, v{IDX}, v3, vcc
    s_lshl_b32 s{S_T1}, s{S_WAVE}, 10
    v_add_u32 v{VMXW}, s{S_T1}, v{VL16}
    v_mov_b32 v{VPOLL}, v{VMXW}
    s_movk_i32 s{S_T2}, 4096
    s_cmp_eq_u32 s{S_WAVE}, 3
    s_cselect_b32 s{S_T2}, 0x10000000, s{S_T2}
    v_add_u32 v{VPOLL2}, s{S_T2}, v{VPOLL}''')
    a(f'''s_lshl_b32 s{S_T1}, s{S_WAVE}, 11
    v_add_u32 v{VPX}, s{S_T1}, v{VL16}
    s_lshl_b32 s{S_T1}, s{S_WAVE}, 9
    s_add_u32 s{S_T1}, s{S_T1}, 8192
    v_lshrrev_b32 v2, 4, v0
    v_and_b32 v3, 15, v0
    v_lshlrev_b32 v4, 7, v2
    v_lshlrev_b32 v5, 4, v3
    v_add3_u32 v4, v4, v5, s{S_T1}
    v_mov_b32 v5, 0x10000000
    v_cmp_gt_u32 vcc, 8, v3
    s_nop 1
    v_cndmask_b32 v{VPM}, v5, v4, vcc''')
    a(f'''s_lshl_b32 s{S_T1}, s{S_WAVE}, 10
    s_add_u32 s{S_T1}, s{S_T1}, {LV_R}
    v_lshlrev_b32 v4, 2, v0
    v_add_u32 v{VRW}, s{S_T1}, v4
    v_add_u32 v{VRR}, {LV_R}, v{VL16}''')
    a(f'''v_lshrrev_b32 v2, 4, v0
    v_lshrrev_b32 v3, 2, v0
    v_and_b32 v3, 1, v3
    v_lshlrev_b32 v3, 2, v3
    v_add_u32 v2, v2, v3
    v_lshlrev_b32 v2, 4, v2
    v_lshrrev_b32 v3, 3, v0
    v_and_b32 v3, 1, v3
    v_lshlrev_b32 v3, 1, v3
    v_lshrrev_b32 v4, 1, v0
    v_and_b32 v4, 1, v4
    v_add_u32 v3, v3, v4
    v_lshlrev_b32 v3, 7, v3
    v_and_b32 v4, 1, v0
    v_lshlrev_b32 v4, 3, v4
    v_add3_u32 v2, v2, v3, v4
    s_lshl_b32 s{S_T1}, s{S_V}, 9
    v_add_u32 v{VMS}, s{S_T1}, v2''')
    a(f'''s_lshl_b32 s{S_T1}, s{S_V}, 15
    s_lshl_b32 s{S_T2}, s{S_WAVE}, 13
    s_add_u32 s{S_DO}, s{S_T1}, s{S_T2}
    s_add_u32 s{S_DO}, s{S_DO}, {ws.DI}
    s_lshl_b32 s{S_T1}, s{S_V}, 13
    s_lshl_b32 s{S_T2}, s{S_WAVE}, 11
    s_add_u32 s{S_WO}, s{S_T1}, s{S_T2}
    s_add_u32 s{S_WO}, s{S_WO}, {ws.WI}
    s_mov_b32 s{S_STEP}, 0
    s_mov_b32 s{S_LIM}, {POLL_LIM}
    s_mov_b32 s{S_PO}, {ws.MA}
    s_mov_b32 s{S_MA}, {ws.MA+7168}''')
    SC=' sc1' if om else ''
    def dpoll():
        lr=L('dfp'); lo=L('dfo')
        a(f'''s_mov_b32 s{S_CNT}, s{S_LIM}
        {lr}:
        buffer_load_dword v{VFLAG}, v{VZERO}, s[8:11], s{S_DFL} offen sc1
        s_waitcnt vmcnt(0)
        v_readfirstlane_b32 s{S_T0}, v{VFLAG}
        s_nop 3
        s_cmp_lg_u32 s{S_T0}, 0
        s_cbranch_scc1 {lo}
        s_sub_u32 s{S_CNT}, s{S_CNT}, 1
        s_cbranch_scc0 {lr}
        s_mov_b32 s{S_LIM}, 0
        {lo}:''')
    if om:
        a(f'''v_mov_b32 v{VZERO}, 0
        v_mov_b32 v{VONE}, 1
        s_lshl_b32 s{S_T1}, s{S_V}, 4
        s_lshl_b32 s{S_T2}, s{S_WAVE}, 2
        s_add_u32 s{S_DFL}, s{S_T1}, s{S_T2}
        s_add_u32 s{S_DFL}, s{S_DFL}, {ws.DF}
        s_lshl_b32 s{S_T1}, s{S_V}, 2
        s_add_u32 s{S_FF}, s{S_T1}, {ws.F}
        s_lshl_b32 s{S_T1}, s{S_WAVE}, 6
        v_add_u32 v2, s{S_T1}, v0
        v_mov_b32 v3, 64
        v_cmp_eq_u32 vcc, v2, v3
        v_mov_b32 v3, 0x10000000
        s_nop 0
        v_cndmask_b32 v{VF1}, v3, 0, vcc''')
        dpoll()
    loop=L('vloop'); pr=L('vpoll'); pok=L('vpok'); PL=DF
    a(f'{loop}:')
    stamp(a,prof,0)
    a(f'''s_mov_b32 s{S_CNT}, s{S_LIM}
    {pr}:
    buffer_load_dwordx4 v[{PL}:{PL+3}], v{VPOLL}, s[8:11], s{S_PO} offen sc1
    buffer_load_dwordx4 v[{PL+4}:{PL+7}], v{VPOLL2}, s[8:11], s{S_PO} offen sc1
    s_waitcnt vmcnt(1)
    ds_write_b128 v{VMXW}, v[{PL}:{PL+3}]
    v_max3_u32 v2, v{PL}, v{PL+1}, v{PL+2}
    v_max_u32 v2, v2, v{PL+3}
    s_waitcnt vmcnt(0)
    ds_write_b128 v{VMXW}, v[{PL+4}:{PL+7}] offset:4096
    v_max3_u32 v2, v2, v{PL+4}, v{PL+5}
    v_max3_u32 v2, v2, v{PL+6}, v{PL+7}''')
    poll_tail(a,pr,pok,2)
    stamp(a,prof,1)
    a('s_waitcnt lgkmcnt(0)\ns_barrier')
    for k in range(7): a(f'ds_read_b128 v[{A0+4*k}:{A0+4*k+3}], v{VL16} offset:{k*1024}')
    def sread(f,buf):
        b=ST+8*buf; o=(f-48)*2048
        return [f'ds_read_b128 v[{b}:{b+3}], v{VWL} offset:{o}', f'ds_read_b128 v[{b+4}:{b+7}], v{VWL} offset:{o+1024}']
    for r in range(4): a(f'v_mov_b32 v{ACC[0]+r}, 0')
    for r in range(4): a(f'v_mov_b32 v{XA+r}, 0')
    if om:
        a(f'buffer_store_dword v{VONE}, v{VF1}, s[8:11], s{S_FF} offen sc1\ns_add_u32 s{S_FF}, s{S_FF}, 64')
        lok=L('dok')
        a(f'v_readfirstlane_b32 s{S_T0}, v{VFLAG}\ns_nop 3\ns_cmp_lg_u32 s{S_T0}, 0\ns_cbranch_scc1 {lok}')
        dpoll()
        a(f'{lok}:')
    for q in range(8):
        off=(q&3)*1024
        if q==4: a(f's_add_u32 s{S_T0}, s{S_DO}, 4096')
        so=S_DO if q<4 else S_T0
        a(f'buffer_load_dwordx4 v[{DF+4*q}:{DF+4*q+3}], v{VL16}, s[8:11], s{so} offen offset:{off}{SC}')
    if om: a(f's_add_u32 s{S_DFL}, s{S_DFL}, {14*16}\nbuffer_load_dword v{VFLAG}, v{VZERO}, s[8:11], s{S_DFL} offen sc1')
    a(f'''s_add_u32 s{S_DO}, s{S_DO}, {14*32768}
    s_add_u32 s{S_T0}, s{S_STEP}, 1
    s_and_b32 s{S_T0}, s{S_T0}, 3
    s_mul_i32 s{S_T0}, s{S_T0}, 7168
    s_add_u32 s{S_MS}, s{S_T0}, {ws.MR}
    s_add_u32 s{S_T0}, s{S_STEP}, 3
    s_and_b32 s{S_T0}, s{S_T0}, 3
    s_mul_i32 s{S_T0}, s{S_T0}, 7168
    s_add_u32 s{S_MP}, s{S_T0}, {ws.MR}
    s_and_b32 s{S_T0}, s{S_STEP}, 3
    s_mul_i32 s{S_T0}, s{S_T0}, 10240
    s_add_u32 s{S_PS}, s{S_T0}, {ws.PR}
    s_mov_b32 s{S_PO}, s{S_MS}''')
    stamp(a,prof,2)
    chains=[(0,0),(0,1),(0,2),(0,3),(1,0),(1,1),(1,2)]
    def fidx(tau,hh,k): return hh*14+tau*7+k
    def psum(tau,half,ra,rb):
        o=[]
        for r in range(4): o.append(f'v_permlane32_swap_b32 v{ra+r}, v{rb+r}')
        for r in range(4): o.append(f'v_add_f32 v{ra+r}, v{ra+r}, v{rb+r}')
        d=WB+4*tau+2*half
        o.append(f'v_cvt_pk_bf16_f32 v{d}, v{ra}, v{ra+1}'); o.append(f'v_cvt_pk_bf16_f32 v{d+1}, v{ra+2}, v{ra+3}')
        return o
    pend=[]
    lg=7
    for c,(tau,hh) in enumerate(chains):
        ac=ACC[c%4]
        for k in range(7):
            f=fidx(tau,hh,k)
            if c==0: a(f's_waitcnt lgkmcnt({6-k})')
            if f>=48:
                assert f==48
                a('s_waitcnt lgkmcnt(0)')
                b=vr(ST+8,8)
            else: b=wreg(f)
            a(f'v_smfmac_f32_16x16x64_bf16 v[{ac}:{ac+3}], v[{A0+4*k}:{A0+4*k+3}], {b}, v{IDX}')
            fl=[]
            if k==0: fl+=sread(49+c,0)
            if c==3 and k==1: fl+=sread(48,1)
            if c<6 and k in (2,3):
                nx=ACC[(c+1)%4]; fl+=[f'v_mov_b32 v{nx+2*(k-2)}, 0',f'v_mov_b32 v{nx+2*(k-2)+1}, 0']
            if k>=3 and pend:
                fl+=pend[:2]; pend=pend[2:]
            for x in fl: a(x)
        a('s_waitcnt lgkmcnt(0)')
        a(f'v_smfmac_f32_16x16x64_bf16 v[{XA}:{XA+3}], v[{A0+4*c}:{A0+4*c+3}], {vr(ST,8)}, v{IDX}')
        for x in pend[:2]: a(x)
        pend=pend[2:]
        if c in (1,3,5):
            assert not pend
            pend=psum(0 if c<4 else 1, 0 if c in (1,5) else 1, ACC[(c-1)%4], ACC[c%4])
    for x in pend: a(x)
    a('s_nop 7')
    for x in psum(1,1,ACC[6%4],XA): a(x)
    a(f'buffer_store_dwordx4 v[{WB}:{WB+3}], v{VL16}, s[8:11], s{S_WO} offen{SC}')
    a(f'buffer_store_dwordx4 v[{WB+4}:{WB+7}], v{VL16}, s[8:11], s{S_WO} offen offset:1024{SC}')
    a(f's_add_u32 s{S_WO}, s{S_WO}, {14*8192}')
    stamp(a,prof,3)
    fin=L('vfin')
    a(f's_cmp_ge_u32 s{S_STEP}, {nsteps}\ns_cbranch_scc1 {fin}')
    pr=L('ppoll'); pok=L('ppok')
    O0=ACC[0]; O1=ACC[1]
    a(f'''s_mov_b32 s{S_CNT}, s{S_LIM}
    {pr}:
    buffer_load_dwordx4 v[12:15], v{VPM}, s[8:11], s{S_PS} offen sc1
    buffer_load_dwordx4 v[4:7], v{VPX}, s[8:11], s{S_PS} offen sc1
    buffer_load_dwordx4 v[8:11], v{VPX}, s[8:11], s{S_PS} offen offset:1024 sc1
    s_waitcnt vmcnt(2)
    v_mfma_f32_16x16x32_bf16 v[{O0}:{O0+3}], v[12:15], v[{WB}:{WB+3}], 0
    v_max3_u32 v2, v12, v13, v14
    v_mfma_f32_16x16x32_bf16 v[{O1}:{O1+3}], v[12:15], v[{WB+4}:{WB+7}], 0
    s_waitcnt vmcnt(1)
    v_smfmac_f32_16x16x64_bf16 v[{O0}:{O0+3}], v[4:7], v[{DF}:{DF+7}], v{IDX}
    v_max3_u32 v2, v2, v15, v4
    v_max3_u32 v2, v2, v5, v6
    v_smfmac_f32_16x16x64_bf16 v[{O1}:{O1+3}], v[4:7], v[{DF+16}:{DF+23}], v{IDX}
    s_waitcnt vmcnt(0)
    v_smfmac_f32_16x16x64_bf16 v[{O0}:{O0+3}], v[8:11], v[{DF+8}:{DF+15}], v{IDX}
    v_max3_u32 v2, v2, v7, v8
    v_max3_u32 v2, v2, v9, v10
    v_smfmac_f32_16x16x64_bf16 v[{O1}:{O1+3}], v[8:11], v[{DF+24}:{DF+31}], v{IDX}
    v_max_u32 v2, v2, v11''')
    poll_tail(a,pr,pok,2)
    stamp(a,prof,4)
    a('s_nop 4')
    for r in range(4): a(f'v_permlane32_swap_b32 v{O0+r}, v{O1+r}')
    for r in range(4): a(f'v_add_f32 v{O0+r}, v{O0+r}, v{O1+r}')
    a(f'''ds_write2st64_b32 v{VRW}, v{O0}, v{O0+1} offset0:0 offset1:1
    ds_write2st64_b32 v{VRW}, v{O0+2}, v{O0+3} offset0:2 offset1:3
    s_waitcnt lgkmcnt(0)
    s_barrier''')
    nxt=L('vnext')
    a(f's_cmp_lg_u32 s{S_WAVE}, 0\ns_cbranch_scc1 {nxt}')
    for w in range(4): a(f'ds_read_b128 v[{4+4*w}:{7+4*w}], v{VRR} offset:{w*1024}')
    a('''s_waitcnt lgkmcnt(2)
    v_pk_add_f32 v[4:5], v[4:5], v[8:9]
    v_pk_add_f32 v[6:7], v[6:7], v[10:11]
    s_waitcnt lgkmcnt(0)
    v_pk_add_f32 v[12:13], v[12:13], v[16:17]
    v_pk_add_f32 v[14:15], v[14:15], v[18:19]
    v_pk_add_f32 v[4:5], v[4:5], v[12:13]
    v_pk_add_f32 v[6:7], v[6:7], v[14:15]
    v_cvt_pk_bf16_f32 v4, v4, v5
    v_cvt_pk_bf16_f32 v5, v6, v7''')
    store2(a,[f'buffer_store_dwordx2 v[4:5], v{VMS}, s[8:11], s{S_MS} offen',
              f'buffer_store_dwordx2 v[{NEG}:{NEG+1}], v{VMS}, s[8:11], s{S_MP} offen']+([] if om else [
              f'buffer_store_dwordx2 v[4:5], v{VMS}, s[8:11], s{S_MA} offen']))
    if om: a(f'buffer_store_dwordx2 v[4:5], v{VMS}, s[8:11], s{S_MA} offen sc1')
    a(f'{nxt}:')
    stamp(a,prof,5)
    a(f's_add_u32 s{S_MA}, s{S_MA}, 7168')
    stamp_flush(a,prof,6,2)
    a(f'''s_add_u32 s{S_STEP}, s{S_STEP}, 1
    s_branch {loop}
    {fin}:
    s_waitcnt vmcnt(0)''')
    if om: a(f's_barrier\nbuffer_store_dword v{VONE}, v{VF1}, s[8:11], s{S_FF} offen sc1\ns_waitcnt vmcnt(0)')
    a('s_endpgm')

def rec_kernel(name, prof=False, nsteps=63, clk=False):
    a=Asm(); a.l.append(head(name))
    ex=name+'_exit'; lv=name+'_val'
    prologue(a,256,ex)
    election(a,LS_ROLE)
    a(f'''s_cmp_ge_u32 s{S_ROLE}, {NROLE}
    s_cbranch_scc1 {ex}
    s_cmp_ge_u32 s{S_ROLE}, 16
    s_cbranch_scc1 {lv}''')
    score_role(a,prof,nsteps,clk)
    a(f'{lv}:')
    value_role(a,prof,nsteps)
    a(f'{ex}:\ns_endpgm')
    return a.text()+kd(name,vgpr=256,agpr=256)
REC_LDS=78080
if __name__=='__main__':
    n='rec_kernel'
    t=f'; @launch kernel={n} grid=(256,1,1) block=(256,1,1) lds={REC_LDS}\n.amdgcn_target "amdgcn-amd-amdhsa--gfx950"\n'+rec_kernel(n,prof=True)
    open('rec_test.s','w').write(t)
    print(len(t))
SNAMES=['poll','B1+rd','tgemm','scores','softmax/dma']
VNAMES=['poll','B1+rd','wgemm','Ppoll+pz','reduce']
```

```python
import sys, os
sys.path.insert(0,os.path.dirname(os.path.abspath(__file__)))
import fold, misc, ln, dk, rec, j1, j2, b1, fft, b3, hz, ok
from lay import ws
NAME='interleave_layers__memory_aug_recurrent_mem_tr__spectral_gfnet__prompt'
STUB=f'cdna_kernels/{NAME}.s.ref'
def kernels_v1():
    WT='sc1'
    K={}
    K['fold_kernel']=(fold.fold_kernel('fold_kernel'),224,fold.FOLD_LDS)
    K['misc_kernel']=(misc.misc_kernel('misc_kernel'),misc.MISC_WG,misc.MISC_LDS)
    K['ln0_kernel']=(ln.ln_kernel('ln0_kernel','x'),128,ln.LN_LDS)
    K['ln1_kernel']=(ln.ln_kernel('ln1_kernel',ws.X2),128,ln.LN_LDS)
    K['d_kernel']=(dk.d_kernel('d_kernel',stflags=WT),224,dk.D_LDS)
    K['rec_kernel']=(rec.rec_kernel('rec_kernel'),256,rec.REC_LDS)
    K['j1_kernel']=(j1.j1_kernel('j1_kernel'),256,j1.J1_LDS)
    K['j2a_kernel']=(j2.j2_kernel('j2a_kernel','x'),256,j2.J2_LDS)
    K['j2b_kernel']=(j2.j2_kernel('j2b_kernel',ws.X2),256,j2.J2_LDS)
    K['b1_kernel']=(b1.b1_kernel('b1_kernel'),256,b1.B1_LDS)
    K['fft_kernel']=(fft.fft_kernel('fft_kernel'),225,fft.FFT_LDS)
    K['b3a_kernel']=(b3.b3_kernel('b3a_kernel',ws.X2),256,b3.B3_LDS)
    K['b3b_kernel']=(b3.b3_kernel('b3b_kernel','out'),256,b3.B3_LDS)
    order=['fold_kernel','misc_kernel','ln0_kernel','d_kernel','rec_kernel','j1_kernel','j2a_kernel','b1_kernel','fft_kernel','b3a_kernel',
           'ln1_kernel','d_kernel','rec_kernel','j1_kernel','j2b_kernel','b1_kernel','fft_kernel','b3b_kernel']
    return K,order
def kernels_v2():
    K,_=kernels_v1()
    K['oa_kernel']=(ok.o_kernel('oa_kernel','x'),256,ok.OK_LDS)
    K['ob_kernel']=(ok.o_kernel('ob_kernel',ws.X2),256,ok.OK_LDS)
    order=['fold_kernel','misc_kernel','ln0_kernel','oa_kernel','b1_kernel','fft_kernel','b3a_kernel',
           'ln1_kernel','ob_kernel','b1_kernel','fft_kernel','b3b_kernel']
    return K,order
def assemble_text(K,order):
    hdr=[l for l in open(STUB).read().split('\n') if l.startswith(';') and 'offset' in l or l.startswith('; Kernarg')]
    t='\n'.join(hdr)+'\n'
    for n in order: t+=f'; @launch kernel={n} grid=({K[n][1]},1,1) block=(256,1,1) lds={K[n][2]}\n'
    t+='.amdgcn_target "amdgcn-amd-amdhsa--gfx950"\n'
    body=''.join(K[n][0] for n in dict.fromkeys(order))
    return t+body, body
if __name__=='__main__':
    ver=sys.argv[2] if len(sys.argv)>2 else 'v2'
    K,order=globals()['kernels_'+ver]()
    t,body=assemble_text(K,order)
    hz.check(body)
    out=sys.argv[1] if len(sys.argv)>1 else f'cdna_kernels/{NAME}.s'
    open(out,'w').write(t); print(out,len(t))
```

```python
from common import *
J2_LDS=40960
def j2_body(a, S_S, S_V, S_WAVE, res_srd, res_so, out_so, stflags=''):
    TS=24; VL=1; VR=2; VX=3; RES=8; STG=16; ACC=48; PK=64
    lidle=a.lab('j2idle'); ldone=a.lab('j2done')
    a(f'''v_lshlrev_b32 v{VL}, 4, v0
    s_mul_i32 s{TS}, s{S_S}, 40960
    s_mul_i32 s{TS+1}, s{S_WAVE}, 10240
    s_add_u32 s{TS}, s{TS}, s{TS+1}
    s_add_u32 s{TS}, s{TS}, {ws.PJ}''')
    for t in range(10):
        a(f's_add_u32 m0, s{TS+1}, {t*1024}\ns_add_u32 s{TS+2}, s{TS}, {t*1024}\nbuffer_load_dwordx4 v{VL}, s[8:11], s{TS+2} offen lds')
    a(f's_cmp_ge_u32 s{S_V}, 14\ns_cbranch_scc1 {lidle}')
    a(f'''v_and_b32 v4, 15, v0
    v_lshrrev_b32 v5, 3, v4
    v_lshlrev_b32 v5, 4, v5
    v_lshrrev_b32 v6, 2, v4
    v_and_b32 v6, 1, v6
    v_lshlrev_b32 v6, 2, v6
    v_and_b32 v7, 3, v4
    v_add3_u32 v5, v5, v6, v7
    s_lshl_b32 s{TS}, s{S_S}, 5
    v_add_u32 v5, s{TS}, v5
    v_mul_u32_u24 v5, 896, v5
    v_lshrrev_b32 v6, 4, v0
    v_and_b32 v7, 1, v6
    v_lshlrev_b32 v7, 5, v7
    v_lshrrev_b32 v6, 1, v6
    v_lshlrev_b32 v6, 4, v6
    v_add3_u32 v5, v5, v6, v7
    s_lshl_b32 s{TS}, s{S_V}, 6
    v_add_u32 v{VX}, s{TS}, v5
    v_add_u32 v{VR}, {8*896}, v{VX}''')
    a(f'''s_mul_i32 s{TS}, s{S_S}, 14
    s_add_u32 s{TS}, s{TS}, s{S_V}
    s_lshl_b32 s{TS+1}, s{TS}, 13
    s_add_u32 s{TS+1}, s{TS+1}, {ws.WI}
    s_lshl_b32 s{TS}, s{TS}, 15
    s_add_u32 s{TS}, s{TS}, {ws.DI}''')
    for f in range(8):
        a(f'buffer_load_dwordx4 a[{128+4*f}:{128+4*f+3}], v{VL}, s[8:11], s{TS+1} offen offset:{(f&3)*1024}')
        if f==3: a(f's_add_u32 s{TS+1}, s{TS+1}, 4096')
    for f in range(32):
        a(f'buffer_load_dwordx4 a[{4*f}:{4*f+3}], v{VL}, s[8:11], s{TS} offen offset:{(f&3)*1024}')
        if (f&3)==3: a(f's_add_u32 s{TS}, s{TS}, 4096')
    a(f'buffer_load_dwordx4 v[{RES}:{RES+3}], v{VX}, {res_srd}, {res_so} offen')
    a(f'buffer_load_dwordx4 v[{RES+4}:{RES+7}], v{VR}, {res_srd}, {res_so} offen')
    a('s_waitcnt vmcnt(42)\ns_barrier')
    steps=[]
    for w in range(4): steps.append((32768+w*2048, [128+4*(w*2+tau) for tau in range(2)], 42-8+ (0)))
    for w in range(4):
        for eta in range(2):
            for io in range(2):
                steps.append((w*8192+eta*4096+io*2048, [4*(w*8+tau*4+io*2+eta) for tau in range(2)], None))
    def rd(i):
        b=STG+8*(i&3); o=steps[i][0]
        return [f'ds_read_b128 v[{b}:{b+3}], v{VL} offset:{o}', f'ds_read_b128 v[{b+4}:{b+7}], v{VL} offset:{o+1024}']
    for i in range(2):
        for x in rd(i): a(x)
    for i,(o,A,_) in enumerate(steps):
        b=STG+8*(i&3)
        if i==0: a('s_waitcnt vmcnt(34)')
        if i>=4 and (i-4)%4==0:
            w=(i-4)//4; a(f's_waitcnt vmcnt({34-8*(w+1)})')
        a('s_waitcnt lgkmcnt(2)' if i<len(steps)-1 else 's_waitcnt lgkmcnt(0)')
        fl=rd(i+2) if i+2<len(steps) else []
        for tau in range(2):
            for ab in range(2):
                d=ACC+8*tau+4*ab; c='0' if i==0 else f'v[{d}:{d+3}]'
                a(f'v_mfma_f32_16x16x32_bf16 v[{d}:{d+3}], a[{A[tau]}:{A[tau]+3}], v[{b+4*ab}:{b+4*ab+3}], {c}')
                if fl: a(fl.pop(0))
    a('s_waitcnt vmcnt(0)\ns_nop 6')
    for ab in range(2):
        t0=ACC+4*ab; t1=ACC+8+4*ab; o=PK+4*ab; r=RES+4*ab; F=STG
        a(f'''v_cvt_pk_bf16_f32 v{o}, v{t0}, v{t0+1}
        v_cvt_pk_bf16_f32 v{o+1}, v{t0+2}, v{t0+3}
        v_cvt_pk_bf16_f32 v{o+2}, v{t1}, v{t1+1}
        v_cvt_pk_bf16_f32 v{o+3}, v{t1+2}, v{t1+3}
        s_nop 1
        v_permlane16_swap_b32 v{o}, v{o+2}
        v_permlane16_swap_b32 v{o+1}, v{o+3}''')
        for q in range(4):
            a(f'''v_lshlrev_b32 v{F}, 16, v{o+q}
            v_and_b32 v{F+1}, 0xffff0000, v{o+q}
            v_lshlrev_b32 v{F+2}, 16, v{r+q}
            v_and_b32 v{F+3}, 0xffff0000, v{r+q}
            v_pk_add_f32 v[{F}:{F+1}], v[{F}:{F+1}], v[{F+2}:{F+3}]
            v_cvt_pk_bf16_f32 v{o+q}, v{F}, v{F+1}''')
        a(f'buffer_store_dwordx4 v[{o}:{o+3}], v{VX if ab==0 else VR}, s[8:11], {out_so} offen {stflags}')
    a(f's_branch {ldone}\n{lidle}:\ns_waitcnt vmcnt(0)\ns_barrier\n{ldone}:\ns_waitcnt vmcnt(0)')

def j2_om(a, S_ID, S_WAVE, res_srd, res_so, out_so, NW, S_LIM=39, nx=False):
    TS=24; S_T=32; S_S=33; S_V=34; VL=1; VR=2; VX=3; RES=8; STG=16; ACC=48; PK=64; PJ=72
    loop=a.lab('j2loop'); lidle=a.lab('j2idle'); lnext=a.lab('j2next'); ldone=a.lab('j2done')
    def poll(addr_s, vaddr, nl, val_mask, tag):
        lr=a.lab('j2p'); lo=a.lab('j2o')
        a(f'''s_mov_b32 s{TS+6}, s{S_LIM}
        {lr}:
        buffer_load_dword v5, v{vaddr}, s[8:11], s{addr_s} offen sc1
        s_waitcnt vmcnt(0)
        v_cmp_eq_u32 vcc, 1, v5
        s_nop 1
        s_and_b32 s{TS+7}, vcc_lo, {val_mask}
        s_cmp_eq_u32 s{TS+7}, {val_mask}
        s_cbranch_scc1 {lo}
        s_sleep 2
        s_sub_u32 s{TS+6}, s{TS+6}, 1
        s_cbranch_scc0 {lr}
        s_mov_b32 s{S_LIM}, 0
        {lo}:''')
    a(f'''s_mov_b32 s{S_T}, s{S_ID}
    s_mov_b32 s{S_LIM}, 4000
    v_lshlrev_b32 v{VL}, 4, v0
    v_lshlrev_b32 v4, 2, v0
    {loop}:
    s_lshr_b32 s{S_S}, s{S_T}, 2
    s_and_b32 s{S_V}, s{S_T}, 3
    s_lshl_b32 s{S_V}, s{S_V}, 2
    s_add_u32 s{S_V}, s{S_V}, s{S_WAVE}
    s_cmp_ge_u32 s{S_V}, 14
    s_cbranch_scc1 {lidle}''')
    a(f'''s_mul_i32 s{TS}, s{S_S}, 14
    s_add_u32 s{TS}, s{TS}, s{S_V}
    s_lshl_b32 s{TS+1}, s{TS}, 4
    s_add_u32 s{TS+1}, s{TS+1}, {ws.DF}''')
    poll(TS+1,4,4,'0xf','d')
    if nx: a(f's_lshl_b32 s35, s{TS}, 4\ns_add_u32 s35, s35, {ws.WF}')
    a(f'''s_lshl_b32 s{TS+1}, s{TS}, 13
    s_add_u32 s{TS+1}, s{TS+1}, {ws.WI}
    s_lshl_b32 s{TS}, s{TS}, 15
    s_add_u32 s{TS}, s{TS}, {ws.DI}''')
    for f in range(32):
        a(f'buffer_load_dwordx4 a[{4*f}:{4*f+3}], v{VL}, s[8:11], s{TS} offen offset:{(f&3)*1024} sc1')
        if (f&3)==3: a(f's_add_u32 s{TS}, s{TS}, 4096')
    a(f'''v_and_b32 v6, 15, v0
    v_lshrrev_b32 v5, 3, v6
    v_lshlrev_b32 v5, 4, v5
    v_lshrrev_b32 v7, 2, v6
    v_and_b32 v7, 1, v7
    v_lshlrev_b32 v7, 2, v7
    v_and_b32 v6, 3, v6
    v_add3_u32 v5, v5, v7, v6
    s_lshl_b32 s{TS}, s{S_S}, 5
    v_add_u32 v5, s{TS}, v5
    v_mul_u32_u24 v5, 896, v5
    v_lshrrev_b32 v6, 4, v0
    v_and_b32 v7, 1, v6
    v_lshlrev_b32 v7, 5, v7
    v_lshrrev_b32 v6, 1, v6
    v_lshlrev_b32 v6, 4, v6
    v_add3_u32 v5, v5, v6, v7
    s_lshl_b32 s{TS}, s{S_V}, 6
    v_add_u32 v{VX}, s{TS}, v5
    v_add_u32 v{VR}, {8*896}, v{VX}
    buffer_load_dwordx4 v[{RES}:{RES+3}], v{VX}, {res_srd}, {res_so} offen
    buffer_load_dwordx4 v[{RES+4}:{RES+7}], v{VR}, {res_srd}, {res_so} offen
    {lidle}:''')
    a(f'''s_add_u32 s{TS+2}, s{S_S}, 1
    s_lshl_b32 s{TS+2}, s{TS+2}, 6
    s_add_u32 s{TS+2}, s{TS+2}, {ws.F}
    s_lshl_b32 s{TS+3}, s{S_S}, 7
    s_add_u32 s{TS+3}, s{TS+3}, {ws.PF}''')
    poll(TS+3,4,32,'0xffffffff','p')
    a(f'''s_mul_i32 s{TS}, s{S_S}, 40960
    s_mul_i32 s{TS+4}, s{S_WAVE}, 10240
    s_add_u32 s{TS}, s{TS}, s{TS+4}
    s_add_u32 s{TS}, s{TS}, {ws.PJ}
    v_add_u32 v6, s{TS+4}, v{VL}''')
    for t in range(10):
        a(f'buffer_load_dwordx4 v[{PJ+4*t}:{PJ+4*t+3}], v{VL}, s[8:11], s{TS} offen offset:{(t&3)*1024} sc1')
        if (t&3)==3: a(f's_add_u32 s{TS}, s{TS}, 4096')
    a('s_barrier')
    for t in range(10):
        a(f's_waitcnt vmcnt({9-t})\nds_write_b128 v6, v[{PJ+4*t}:{PJ+4*t+3}] offset:{t*1024}')
    lw=a.lab('j2w')
    a(f's_cmp_ge_u32 s{S_V}, 14\ns_cbranch_scc1 {lw}')
    if nx: poll(35,4,4,'0xf','w')
    else: poll(TS+2,4,14,'0x3fff','f')
    for f in range(8):
        a(f'buffer_load_dwordx4 a[{128+4*f}:{128+4*f+3}], v{VL}, s[8:11], s{TS+1} offen offset:{(f&3)*1024} sc1')
        if f==3: a(f's_add_u32 s{TS+1}, s{TS+1}, 4096')
    a(f'{lw}:\ns_waitcnt lgkmcnt(0)\ns_barrier\ns_cmp_ge_u32 s{S_V}, 14\ns_cbranch_scc1 {lnext}')
    steps=[]
    for w in range(4):
        for eta in range(2):
            for io in range(2):
                steps.append((w*8192+eta*4096+io*2048, [4*(w*8+tau*4+io*2+eta) for tau in range(2)]))
    for w in range(4): steps.append((32768+w*2048, [128+4*(w*2+tau) for tau in range(2)]))
    def rd(i):
        b=STG+8*(i&3); o=steps[i][0]
        return [f'ds_read_b128 v[{b}:{b+3}], v{VL} offset:{o}', f'ds_read_b128 v[{b+4}:{b+7}], v{VL} offset:{o+1024}']
    for i in range(2):
        for x in rd(i): a(x)
    for i,(o,A) in enumerate(steps):
        b=STG+8*(i&3)
        if i==16: a('s_waitcnt vmcnt(0)')
        a('s_waitcnt lgkmcnt(2)' if i<len(steps)-1 else 's_waitcnt lgkmcnt(0)')
        fl=rd(i+2) if i+2<len(steps) else []
        for tau in range(2):
            for ab in range(2):
                d=ACC+8*tau+4*ab; c='0' if i==0 else f'v[{d}:{d+3}]'
                a(f'v_mfma_f32_16x16x32_bf16 v[{d}:{d+3}], a[{A[tau]}:{A[tau]+3}], v[{b+4*ab}:{b+4*ab+3}], {c}')
                if fl: a(fl.pop(0))
    a('s_nop 7')
    for ab in range(2):
        t0=ACC+4*ab; t1=ACC+8+4*ab; o=PK+4*ab; r=RES+4*ab; F=STG
        a(f'''v_cvt_pk_bf16_f32 v{o}, v{t0}, v{t0+1}
        v_cvt_pk_bf16_f32 v{o+1}, v{t0+2}, v{t0+3}
        v_cvt_pk_bf16_f32 v{o+2}, v{t1}, v{t1+1}
        v_cvt_pk_bf16_f32 v{o+3}, v{t1+2}, v{t1+3}
        s_nop 1
        v_permlane16_swap_b32 v{o}, v{o+2}
        v_permlane16_swap_b32 v{o+1}, v{o+3}''')
        for q in range(4):
            a(f'''v_lshlrev_b32 v{F}, 16, v{o+q}
            v_and_b32 v{F+1}, 0xffff0000, v{o+q}
            v_lshlrev_b32 v{F+2}, 16, v{r+q}
            v_and_b32 v{F+3}, 0xffff0000, v{r+q}
            v_pk_add_f32 v[{F}:{F+1}], v[{F}:{F+1}], v[{F+2}:{F+3}]
            v_cvt_pk_bf16_f32 v{o+q}, v{F}, v{F+1}''')
        a(f'buffer_store_dwordx4 v[{o}:{o+3}], v{VX if ab==0 else VR}, s[8:11], {out_so} offen')
    a(f'''{lnext}:
    s_add_u32 s{S_T}, s{S_T}, {NW}
    s_cmp_lt_u32 s{S_T}, 256
    s_cbranch_scc1 {loop}
    s_waitcnt vmcnt(0)''')

def j2_kernel(name, src, stflags=''):
    a=Asm(); a.l.append(head(name)); ex=name+'_exit'
    a(f'''s_cmp_ge_u32 s2, 256
    s_cbranch_scc1 {ex}
    s_load_dwordx2 s[4:5], s[0:1], {KA['ws']}
    s_load_dwordx2 s[6:7], s[0:1], {KA['x']}
    v_lshrrev_b32 v1, 6, v0
    v_and_b32 v0, 63, v0
    s_and_b32 s20, s2, 7
    s_lshr_b32 s21, s2, 5
    v_readfirstlane_b32 s17, v1
    s_lshl_b32 s21, s21, 3
    s_add_u32 s16, s21, s20
    s_lshr_b32 s21, s2, 3
    s_and_b32 s21, s21, 3
    s_lshl_b32 s21, s21, 2
    s_add_u32 s18, s21, s17
    s_mov_b32 s19, {ws.X1}
    s_waitcnt lgkmcnt(0)''')
    srd(a,8,4,0x10000000)
    if src=='x': srd(a,12,6,1835008); rs,so='s[12:15]','0'
    else: a(f's_mov_b32 s22, {src}'); rs,so='s[8:11]','s22'
    j2_body(a,16,18,17,rs,so,'s19',stflags)
    a(f'{ex}:\ns_endpgm')
    return a.text()+kd(name,vgpr=72,agpr=160)
if __name__=='__main__':
    t='.amdgcn_target "amdgcn-amd-amdhsa--gfx950"\n'+j2_kernel('j2_kernel','x')
    open('j2.s','w').write(t)
```

```python
from common import *
import rec2 as rec, dk, j1, j2
from rec2 import S_ROLE,S_WAVE,S_MODE,S_T0,S_T1,S_T2,S_T3,S_T4,S_T5,S_T6,S_CNT,NROLE,LS_ROLE
OK_LDS=j1.J1_LDS
NJ1=112; NJ2=114
def election2(a):
    L=a.lab
    l_w, l_nocas, l_poll, l_got, l_glob, l_fin, l_wk, l_c, l_cok, l_rec = [L('el') for _ in range(10)]
    nrole=NROLE
    a(f'''s_cmp_lg_u32 s{S_WAVE}, 0
    s_cbranch_scc1 {l_w}
    s_getreg_b32 s{S_T0}, hwreg(HW_REG_XCC_ID,0,4)
    s_mov_b64 exec, 1
    s_lshl_b32 s{S_T1}, s{S_T0}, 2
    v_mov_b32 v2, s{S_T1}
    v_mov_b32 v3, 1
    v_mov_b32 v6, 64
    buffer_atomic_add v3, v2, s[12:15], 0 offen sc0 sc1
    s_add_u32 s{S_T0}, s{S_T0}, 1
    s_waitcnt vmcnt(0)
    v_readfirstlane_b32 s{S_T2}, v3
    s_nop 3
    s_cmp_lg_u32 s{S_T2}, {nrole-1}
    s_cbranch_scc1 {l_nocas}
    v_mov_b32 v4, s{S_T0}
    v_mov_b32 v5, 0
    buffer_atomic_cmpswap v[4:5], v6, s[12:15], 0 offen sc0 sc1
    s_waitcnt vmcnt(0)
    {l_nocas}:
    s_mov_b32 s{S_CNT}, 400
    {l_poll}:
    buffer_load_dword v4, v6, s[12:15], 0 offen sc0 sc1
    s_waitcnt vmcnt(0)
    v_readfirstlane_b32 s{S_T3}, v4
    s_nop 3
    s_cmp_lg_u32 s{S_T3}, 0
    s_cbranch_scc1 {l_got}
    s_sub_u32 s{S_CNT}, s{S_CNT}, 1
    s_cbranch_scc0 {l_poll}
    v_mov_b32 v4, 100
    v_mov_b32 v5, 0
    buffer_atomic_cmpswap v[4:5], v6, s[12:15], 0 offen sc0 sc1
    s_waitcnt vmcnt(0)
    v_readfirstlane_b32 s{S_T3}, v4
    s_nop 3
    s_cmp_lg_u32 s{S_T3}, 0
    s_cbranch_scc1 {l_got}
    s_mov_b32 s{S_T3}, 100
    {l_got}:
    s_cmp_eq_u32 s{S_T3}, 100
    s_cbranch_scc1 {l_glob}
    s_cmp_lg_u32 s{S_T3}, s{S_T0}
    s_cbranch_scc1 {l_wk}
    s_cmp_ge_u32 s{S_T2}, {nrole}
    s_cbranch_scc1 {l_wk}
    s_mov_b32 s{S_T4}, s{S_T2}
    s_branch {l_fin}
    {l_wk}:''')
    a(f'''s_mov_b64 exec, 0xffff
    v_lshlrev_b32 v2, 2, v0
    s_mov_b32 s{S_CNT}, 2000
    {l_c}:
    buffer_load_dword v3, v2, s[12:15], 0 offen sc0 sc1
    s_waitcnt vmcnt(0)
    s_mov_b32 s{S_T5}, 0
    s_mov_b32 s{S_T6}, 0''')
    for x in range(16):
        ls=L('els')
        a(f'''v_readlane_b32 s30, v3, {x}
        s_nop 3
        s_add_u32 s{S_T5}, s{S_T5}, s30
        s_cmp_eq_u32 s{S_T3}, {x+1}
        s_cbranch_scc1 {ls}
        s_cmp_eq_u32 s{S_T0}, s{S_T3}
        s_cselect_b32 s31, 99, s{S_T0}
        s_cmp_gt_u32 s31, {x+1}
        s_cselect_b32 s30, s30, 0
        s_add_u32 s{S_T6}, s{S_T6}, s30
        {ls}:''')
    a(f'''s_cmp_ge_u32 s{S_T5}, 256
    s_cbranch_scc1 {l_cok}
    s_sub_u32 s{S_CNT}, s{S_CNT}, 1
    s_cbranch_scc0 {l_c}
    s_mov_b32 s{S_T6}, 1000
    {l_cok}:
    s_cmp_eq_u32 s{S_T0}, s{S_T3}
    s_cselect_b32 s30, {nrole}, 0
    s_sub_u32 s{S_T4}, s{S_T2}, s30
    s_add_u32 s{S_T4}, s{S_T4}, s{S_T6}
    s_add_u32 s{S_T4}, s{S_T4}, {nrole}
    s_min_u32 s{S_T4}, s{S_T4}, 0x3ff
    s_mov_b64 exec, 1
    s_branch {l_fin}
    {l_glob}:
    v_mov_b32 v3, 1
    v_mov_b32 v6, 68
    buffer_atomic_add v3, v6, s[12:15], 0 offen sc0 sc1
    s_waitcnt vmcnt(0)
    v_readfirstlane_b32 s{S_T4}, v3
    s_nop 3
    s_min_u32 s{S_T4}, s{S_T4}, 0x3ff
    s_or_b32 s{S_T4}, s{S_T4}, 0x400
    {l_fin}:
    v_mov_b32 v2, {LS_ROLE}
    v_mov_b32 v3, s{S_T4}
    ds_write_b32 v2, v3
    s_waitcnt lgkmcnt(0)
    s_mov_b64 exec, -1
    {l_w}:
    s_barrier
    v_mov_b32 v2, {LS_ROLE}
    ds_read_b32 v3, v2
    s_waitcnt lgkmcnt(0)
    v_readfirstlane_b32 s{S_T4}, v3
    s_nop 3
    s_and_b32 s{S_ROLE}, s{S_T4}, 0x3ff
    s_lshr_b32 s{S_MODE}, s{S_T4}, 10
    s_barrier''')

OPT=dict(fill=1,static=1,xkbar=1,vfill=1,dls=['pre']*8,wi_late=1)
def o_kernel(name, src, prof=False, clk=False, workers=True, o=None):
    o=OPT if o is None else o
    a=Asm(); a.l.append(head(name))
    ex=name+'_exit'; lv=name+'_val'; lwk=name+'_wk'; lj2=name+'_j2'; lnd=name+'_nd'
    rec.prologue(a,256,ex)
    election2(a)
    a(f'''s_cmp_ge_u32 s{S_ROLE}, {NROLE}
    s_cbranch_scc1 {lwk}''')
    rec.roles(a,name,prof,clk,63,True,o)
    a(f'{lwk}:')
    a(f'''s_sub_u32 s58, s{S_ROLE}, {NROLE}
    s_cmp_ge_u32 s58, {NJ1+NJ2}
    s_cbranch_scc1 {ex}
    s_cmp_ge_u32 s58, 224
    s_cbranch_scc1 {lnd}''')
    a(f'''s_and_b32 s18, s58, 3
    s_lshr_b32 s21, s58, 2
    s_lshr_b32 s16, s21, 2
    s_and_b32 s19, s21, 3''')
    dk.d_body(a,16,19,18,S_WAVE,stflags='sc1',flags=True)
    a(f's_barrier\n{lnd}:\ns_cmp_ge_u32 s58, {NJ1}\ns_cbranch_scc1 {lj2}')
    div_const(a,16,58,7,112)
    a(f'''s_mul_i32 s18, s16, 7
    s_sub_u32 s18, s58, s18
    s_cmp_eq_u32 s18, 0
    s_cselect_b32 s19, 10, 9''')
    j1.j1_body(a,16,18,S_WAVE,None,7,stflags='sc1',om=True,S_N=19)
    a(f's_endpgm\n{lj2}:')
    a(f's_sub_u32 s16, s58, {NJ1}')
    if src=='x':
        a(f"s_load_dwordx2 s[6:7], s[0:1], {KA['x']}\ns_waitcnt lgkmcnt(0)"); srd(a,12,6,1835008); rs,so='s[12:15]','0'
    else: a(f's_mov_b32 s22, {src}'); rs,so='s[8:11]','s22'
    a(f's_mov_b32 s19, {ws.X1}')
    j2.j2_om(a,16,S_WAVE,rs,so,'s19',NJ2,nx=o.get('nx',0))
    a(f'{ex}:\ns_endpgm')
    return a.text()+kd(name,vgpr=256,agpr=256)
if __name__=='__main__':
    t='.amdgcn_target "amdgcn-amd-amdhsa--gfx950"\n'+o_kernel('o_kernel','x')
    open('ok.s','w').write(t); print(len(t))
```

```python
from asm import *
from lay import ws
NROLE=30
S_WS=8; S_DBG=12
S_ROLE=16; S_WAVE=17; S_STEP=18; S_LIM=19; S_MODE=20
S_T0=21; S_T1=22; S_T2=23; S_T3=24; S_T4=25; S_T5=26; S_T6=27
S_CNT=28
POLL_LIM=20000

def prologue(a, nwg, exitlab):
    a(f'''s_cmp_ge_u32 s2, {nwg}
    s_cbranch_scc1 {exitlab}
    s_load_dwordx2 s[4:5], s[0:1], 96
    s_load_dwordx2 s[6:7], s[0:1], 88
    v_lshrrev_b32 v1, 6, v0
    v_and_b32 v0, 63, v0
    s_waitcnt lgkmcnt(0)
    v_readfirstlane_b32 s{S_WAVE}, v1
    s_mov_b32 s8, s4
    s_mov_b32 s9, s5
    s_mov_b32 s10, 0x10000000
    s_mov_b32 s11, 0x00020000
    s_mov_b32 s12, s6
    s_mov_b32 s13, s7
    s_mov_b32 s14, 256
    s_mov_b32 s15, 0x00020000''')

def election(a, lds_role, nrole=NROLE):
    L=a.lab
    l_w, l_nocas, l_poll, l_got, l_glob, l_fin, l_none, l_wr = [L('el') for _ in range(8)]
    a(f'''s_cmp_lg_u32 s{S_WAVE}, 0
    s_cbranch_scc1 {l_w}
    s_getreg_b32 s{S_T0}, hwreg(HW_REG_XCC_ID,0,4)
    s_mov_b64 exec, 1
    s_lshl_b32 s{S_T1}, s{S_T0}, 2
    v_mov_b32 v2, s{S_T1}
    v_mov_b32 v3, 1
    v_mov_b32 v6, 64
    buffer_atomic_add v3, v2, s[12:15], 0 offen sc0 sc1
    s_add_u32 s{S_T0}, s{S_T0}, 1
    s_waitcnt vmcnt(0)
    v_readfirstlane_b32 s{S_T2}, v3
    s_nop 3
    s_cmp_lg_u32 s{S_T2}, {nrole-1}
    s_cbranch_scc1 {l_nocas}
    v_mov_b32 v4, s{S_T0}
    v_mov_b32 v5, 0
    buffer_atomic_cmpswap v[4:5], v6, s[12:15], 0 offen sc0 sc1
    s_waitcnt vmcnt(0)
    {l_nocas}:
    s_mov_b32 s{S_CNT}, 200
    {l_poll}:
    buffer_load_dword v4, v6, s[12:15], 0 offen sc0 sc1
    s_waitcnt vmcnt(0)
    v_readfirstlane_b32 s{S_T3}, v4
    s_nop 3
    s_cmp_lg_u32 s{S_T3}, 0
    s_cbranch_scc1 {l_got}
    s_sub_u32 s{S_CNT}, s{S_CNT}, 1
    s_cbranch_scc0 {l_poll}
    v_mov_b32 v4, 100
    v_mov_b32 v5, 0
    buffer_atomic_cmpswap v[4:5], v6, s[12:15], 0 offen sc0 sc1
    s_waitcnt vmcnt(0)
    v_readfirstlane_b32 s{S_T3}, v4
    s_nop 3
    s_cmp_lg_u32 s{S_T3}, 0
    s_cbranch_scc1 {l_got}
    s_mov_b32 s{S_T3}, 100
    {l_got}:
    s_cmp_eq_u32 s{S_T3}, 100
    s_cbranch_scc1 {l_glob}
    s_cmp_lg_u32 s{S_T3}, s{S_T0}
    s_cbranch_scc1 {l_none}
    s_mov_b32 s{S_T4}, s{S_T2}
    s_branch {l_fin}
    {l_glob}:
    v_mov_b32 v3, 1
    v_mov_b32 v6, 68
    buffer_atomic_add v3, v6, s[12:15], 0 offen sc0 sc1
    s_waitcnt vmcnt(0)
    v_readfirstlane_b32 s{S_T4}, v3
    s_nop 3
    s_min_u32 s{S_T4}, s{S_T4}, 255
    s_or_b32 s{S_T4}, s{S_T4}, 0x100
    s_branch {l_fin}
    {l_none}:
    s_mov_b32 s{S_T4}, 255
    {l_fin}:
    v_mov_b32 v2, {lds_role}
    v_mov_b32 v3, s{S_T4}
    ds_write_b32 v2, v3
    s_waitcnt lgkmcnt(0)
    s_mov_b64 exec, -1
    {l_w}:
    s_barrier
    v_mov_b32 v2, {lds_role}
    ds_read_b32 v3, v2
    s_waitcnt lgkmcnt(0)
    v_readfirstlane_b32 s{S_T4}, v3
    s_nop 3
    s_and_b32 s{S_ROLE}, s{S_T4}, 0xff
    s_lshr_b32 s{S_MODE}, s{S_T4}, 8''')

class DsTrack:
    def __init__(s,a): s.a=a; s.q=[]; s.done=0
    def note(s,tag): s.q.append(tag)
    def ds(s,ins,tag): s.a(ins); s.q.append(tag)
    def wait(s,tag):
        i=s.q.index(tag)+1
        if i<=s.done: return
        n=len(s.q)-i
        s.a(f's_waitcnt lgkmcnt({min(n,15)})'); s.done=max(i,len(s.q)-min(n,15))
def load_frags(a, nfr, dst, voff, soff, flags='nt'):
    for f in range(nfr):
        k,b=dst(f)
        for eta in range(2):
            r=(ar if k=='a' else vr)(b+4*eta,4)
            off=((2*f+eta)&3)*1024
            a(f'buffer_load_dwordx4 {r}, v{voff}, s[8:11], s{soff} offen offset:{off} {flags}' if off else f'buffer_load_dwordx4 {r}, v{voff}, s[8:11], s{soff} offen {flags}')
            if ((2*f+eta)&3)==3: a(f's_add_u32 s{soff}, s{soff}, 4096')

LITE={'s':(0,5,6),'v':(0,3,5,6)}
CUR=['s']
def stamp(a, prof, idx):
    if prof=='lite':
        if idx in LITE[CUR[0]]: a(f's_memrealtime s[{40+2*idx}:{41+2*idx}]')
        return
    if prof: a(f"{'s_memrealtime' if prof=='rt' else 's_memtime'} s[{40+2*idx}:{41+2*idx}]")
LS_PROF=LS_PROF0=78080
def prof_init(a, prof, vaddr):
    if not prof: return
    a(f'''s_lshl_b32 s{S_T0}, s{S_WAVE}, 11
    s_add_u32 s{S_T0}, s{S_T0}, {LS_PROF}
    v_lshlrev_b32 v2, 2, v0
    v_add_u32 v{vaddr}, s{S_T0}, v2
    v_mov_b32 v3, {LS_PROF+8192}
    v_cmp_gt_u32 vcc, 8, v0
    s_nop 1
    v_cndmask_b32 v{vaddr}, v3, v{vaddr}, vcc''')
def stamp_flush(a, prof, n, vtmp, vaddr=None):
    if not prof: return
    a('s_waitcnt lgkmcnt(0)')
    for i in range(n): a(f'v_writelane_b32 v{vtmp}, s{40+2*i}, {i}')
    a(f'''s_nop 0
    ds_write_b32 v{vaddr}, v{vtmp}
    v_cmp_gt_u32 vcc, 8, v0
    v_add_u32 v{vtmp}, 32, v{vaddr}
    s_nop 0
    v_cndmask_b32 v{vaddr}, v{vaddr}, v{vtmp}, vcc''')
def prof_dump(a, prof):
    if not prof: return
    a(f'''s_waitcnt lgkmcnt(0) vmcnt(0)
    s_lshl_b32 s{S_T0}, s{S_WAVE}, 11
    s_add_u32 s{S_T0}, s{S_T0}, {LS_PROF}
    v_lshlrev_b32 v2, 5, v0
    v_add_u32 v2, s{S_T0}, v2
    ds_read_b128 v[4:7], v2
    ds_read_b128 v[8:11], v2 offset:16
    s_lshl_b32 s{S_T0}, s{S_ROLE}, 2
    s_add_u32 s{S_T0}, s{S_T0}, s{S_WAVE}
    s_lshl_b32 s{S_T0}, s{S_T0}, 12
    s_add_u32 s{S_T0}, s{S_T0}, {ws.PROF}
    v_lshlrev_b32 v3, 6, v0
    s_waitcnt lgkmcnt(0)
    buffer_store_dwordx4 v[4:7], v3, s[8:11], s{S_T0} offen
    buffer_store_dwordx4 v[8:11], v3, s[8:11], s{S_T0} offen offset:16
    s_waitcnt vmcnt(0)''')

def poll_tail(a, lab_retry, lab_ok, vchk):
    a(f'''v_cmp_eq_u32 vcc, -1, v{vchk}
    s_cbranch_vccz {lab_ok}
    s_sub_u32 s{S_CNT}, s{S_CNT}, 1
    s_cbranch_scc0 {lab_retry}
    s_mov_b32 s{S_LIM}, 0
    {lab_ok}:''')

def hint_poll(a, vaddr, soff, regs, pw, sexp, gap='s_sleep 1'):
    lb=a.lab('hb'); lr=a.lab('hr')
    a(f's_cmp_lg_u32 s{S_WAVE}, {pw}\ns_cbranch_scc1 {lb}')
    n=len(regs)
    a(f's_mov_b32 s{S_CNT}, s{S_LIM}')
    for i,r in enumerate(regs):
        a(f'buffer_load_dword v{r}, v{vaddr}, s[8:11], s{soff} offen sc1')
        if i<n-1: a(gap)
    a(f'{lr}:')
    for i,r in enumerate(regs):
        a(f'''s_waitcnt vmcnt({n-1})
        v_cmp_gt_u32 vcc, s{sexp}, v{r}
        s_cbranch_vccz {lb}
        buffer_load_dword v{r}, v{vaddr}, s[8:11], s{soff} offen sc1''')
    a(f'''s_sub_u32 s{S_CNT}, s{S_CNT}, 1
    s_cbranch_scc0 {lr}
    s_mov_b32 s{S_LIM}, 0
    {lb}:
    s_barrier''')

def store2(a, txt, mode=None):
    if mode is not None:
        for t in txt: a(t+(' sc1' if mode else ''))
        return
    return store2_dyn(a,txt)
def store2_dyn(a, txt):
    l1=a.lab('st'); l2=a.lab('st')
    a(f's_cmp_lg_u32 s{S_MODE}, 0\ns_cbranch_scc1 {l1}')
    for t in txt: a(t)
    a(f's_branch {l2}\n{l1}:')
    for t in txt: a(t+' sc1')
    a(f'{l2}:')

LS_MX=0; LS_XK=8192; LS_T2=36864; LS_SB=51200; LS_SD=59392; LS_ROLE=77824
def score_role(a, prof, nsteps=63, clk=False, mode=None, o={}):
    CUR[0]='s'
    hint=o.get('hint',0); hint_sm=o.get('hint_sm',hint); hint_vp=o.get('hint_vp',hint)
    fill=o.get('fill',0); tail=o.get('tail',0); hp_pos=o.get('hp_pos',1); SCM=' sc1' if mode else ''
    IDX=1; A0=4
    ACC=[32,36,40]; PK=44
    TF=48
    KD=62
    SC2=86
    VL16=90; VMXW=91; VMK=92; VMKO=93; VXK=94; VXKO=95; VT2W=96; VT2R=97; VSW=98; VSWM=99; VSR=100; VPST=101; VPOLL=102; VDMA=103
    NEG=104
    PL=62
    WV=120
    def wdst(f): return ('a',8*f) if f<32 else ('v',WV+8*(f-32))
    def wreg(f):
        k,b=wdst(f); return (ar if k=='a' else vr)(b,8)
    S_PO=29; S_PO2=30; S_PS=31; S_PP=32; S_XO=33; S_HO=34
    VHP=107; VHS=108; VONE=109; VPA=110
    L=a.lab
    a(f'''v_lshlrev_b32 v{VL16}, 4, v0
    s_mul_i32 s{S_T0}, s{S_ROLE}, {4*49*2048}
    s_mul_i32 s{S_T1}, s{S_WAVE}, {49*2048}
    s_add_u32 s{S_T0}, s{S_T0}, s{S_T1}
    s_add_u32 s{S_T0}, s{S_T0}, {ws.AI}''')
    load_frags(a,49,wdst,VL16,S_T0)
    a(f'''v_and_b32 v2, 8, v0
    v_mov_b32 v{IDX}, 0x44444444
    v_mov_b32 v3, 0xeeeeeeee
    v_cmp_ne_u32 vcc, 0, v2
    v_mov_b32 v{NEG}, -1
    v_mov_b32 v{NEG+1}, -1
    v_cndmask_b32 v{IDX}, v{IDX}, v3, vcc
    s_lshl_b32 s{S_T1}, s{S_WAVE}, 10
    v_add_u32 v{VMXW}, s{S_T1}, v{VL16}
    v_mov_b32 v{VPOLL}, v{VMXW}''')
    a(f'''s_movk_i32 s{S_T2}, 4096
    s_cmp_eq_u32 s{S_WAVE}, 3
    s_cselect_b32 s{S_T2}, 0x10000000, s{S_T2}
    v_add_u32 v{VDMA}, s{S_T2}, v{VPOLL}''')
    VPOLL2=106
    a(f'v_mov_b32 v{VPOLL2}, v{VDMA}')
    a(f'''v_lshrrev_b32 v2, 4, v0
    v_and_b32 v3, 7, v0
    v_lshlrev_b32 v3, 4, v3
    s_mul_i32 s{S_T1}, s{S_WAVE}, {14*128}
    v_lshlrev_b32 v4, 7, v2
    v_add3_u32 v{VMK}, v4, v3, s{S_T1}
    v_lshrrev_b32 v4, 1, v2
    v_lshlrev_b32 v4, 7, v4
    v_and_b32 v5, 1, v2
    v_lshlrev_b32 v5, 3, v5
    s_add_u32 s{S_T1}, s{S_T1}, {12*128}
    v_add3_u32 v{VMKO}, v4, v3, s{S_T1}
    v_add_u32 v{VMKO}, v{VMKO}, v5
    s_mul_i32 s{S_T1}, s{S_WAVE}, 7168
    s_add_u32 s{S_T1}, s{S_T1}, {LS_XK}
    v_add_u32 v{VXK}, s{S_T1}, v{VL16}
    v_lshlrev_b32 v4, 3, v0
    s_add_u32 s{S_T1}, s{S_T1}, 6144
    v_add_u32 v{VXKO}, s{S_T1}, v4''')
    a(f'''s_mul_i32 s{S_T1}, s{S_WAVE}, 3584
    s_add_u32 s{S_T1}, s{S_T1}, {LS_T2}
    v_and_b32 v3, 15, v0
    v_lshrrev_b32 v4, 2, v3
    v_xor_b32 v4, v4, v2
    v_lshlrev_b32 v4, 3, v4
    v_lshlrev_b32 v5, 5, v3
    v_add3_u32 v{VT2W}, v4, v5, s{S_T1}
    v_and_b32 v4, 3, v0
    v_xor_b32 v4, v4, v2
    v_lshlrev_b32 v4, 3, v4
    v_lshrrev_b32 v5, 2, v0
    v_lshlrev_b32 v5, 5, v5
    v_add3_u32 v{VT2R}, v4, v5, s{S_T1}''')
    a(f'''s_lshl_b32 s{S_T1}, s{S_WAVE}, 11
    s_add_u32 s{S_T1}, s{S_T1}, {LS_SB}
    v_and_b32 v4, 7, v0
    v_lshrrev_b32 v5, 3, v3
    v_lshlrev_b32 v6, 2, v5
    v_add_u32 v6, v6, v2
    v_lshrrev_b32 v7, 1, v6
    v_add_u32 v7, v7, v4
    v_and_b32 v7, 7, v7
    v_lshlrev_b32 v7, 4, v7
    v_lshlrev_b32 v6, 7, v6
    v_add3_u32 v{VSW}, v6, v7, s{S_T1}''')
    a(f'''v_add_u32 v6, 8, v2
    v_lshrrev_b32 v7, 1, v6
    v_add_u32 v7, v7, v4
    v_and_b32 v7, 7, v7
    v_lshlrev_b32 v7, 4, v7
    v_lshlrev_b32 v6, 7, v6
    v_add3_u32 v{VSWM}, v6, v7, s{S_T1}
    v_lshrrev_b32 v6, 1, v2
    v_or_b32 v6, v6, v5
    v_add_u32 v7, {LS_SD}, v{VL16}
    v_cmp_ne_u32 vcc, 0, v6
    s_nop 1
    v_cndmask_b32 v{VSWM}, v{VSWM}, v7, vcc''')
    a(f'''s_lshl_b32 s{S_T1}, s{S_WAVE}, 2
    v_add_u32 v4, s{S_T1}, v2
    v_and_b32 v4, 7, v4
    v_lshrrev_b32 v5, 1, v3
    v_add_u32 v5, v5, v4
    v_and_b32 v5, 7, v5
    v_lshlrev_b32 v5, 4, v5
    v_lshlrev_b32 v6, 7, v3
    v_add_u32 v6, {LS_SB}, v6
    v_add_u32 v{VSR}, v6, v5''')
    a(f'''s_lshr_b32 s{S_T1}, s{S_ROLE}, 2
    s_lshl_b32 s{S_T2}, s{S_T1}, 11
    s_and_b32 s{S_T3}, s{S_ROLE}, 3
    s_lshl_b32 s{S_T3}, s{S_T3}, 8
    s_add_u32 s{S_T2}, s{S_T2}, s{S_T3}
    v_lshrrev_b32 v5, 2, v3
    v_lshlrev_b32 v5, 10, v5
    v_lshrrev_b32 v6, 1, v3
    v_and_b32 v6, 1, v6
    v_lshlrev_b32 v6, 7, v6
    v_lshlrev_b32 v7, 4, v4
    v_add3_u32 v5, v5, v6, v7
    v_and_b32 v6, 1, v3
    v_lshlrev_b32 v8, 3, v6
    v_add3_u32 v5, v5, v8, s{S_T2}
    s_lshl_b32 s{S_T2}, s{S_T1}, 9
    s_and_b32 s{S_T3}, s{S_ROLE}, 1
    s_lshl_b32 s{S_T3}, s{S_T3}, 8
    s_add_u32 s{S_T2}, s{S_T2}, s{S_T3}
    s_lshr_b32 s{S_T3}, s{S_ROLE}, 1
    s_and_b32 s{S_T3}, s{S_T3}, 1
    s_lshl_b32 s{S_T3}, s{S_T3}, 3
    s_add_u32 s{S_T2}, s{S_T2}, s{S_T3}
    s_add_u32 s{S_T2}, s{S_T2}, 8192
    v_lshlrev_b32 v8, 7, v6
    v_add3_u32 v8, v8, v7, s{S_T2}
    v_cmp_gt_u32 vcc, 8, v3
    s_nop 1
    v_cndmask_b32 v5, v8, v5, vcc
    v_mov_b32 v8, 0x10000000
    v_cmp_gt_u32 vcc, 10, v3
    s_nop 1
    v_cndmask_b32 v{VPST}, v8, v5, vcc''')
    a(f'''s_lshl_b32 s{S_T1}, s{S_WAVE}, 11
    s_add_u32 s{S_T1}, s{S_T1}, {LS_SB}
    v_lshlrev_b32 v2, 5, v0
    v_add_u32 v2, s{S_T1}, v2
    v_mov_b32 v4, 0xf149f2ca
    v_mov_b32 v5, v4
    v_mov_b32 v6, v4
    v_mov_b32 v7, v4
    ds_write_b128 v2, v[4:7]
    ds_write_b128 v2, v[4:7] offset:16''')
    def xk_dma(nxt):
        for k in range(14):
            a(f's_add_u32 m0, s{S_T5}, {k*1024}' if k else f's_mov_b32 m0, s{S_T5}')
            off=(k&3)*1024
            a(f's_add_u32 s{S_T6}, s{S_XO}, {k*1024}')
            a(f'buffer_load_dwordx4 v{VL16}, s[8:11], s{S_T6} offen lds')
    lx=L('xk')
    a(f'''s_sub_u32 s{S_T1}, s{S_WAVE}, 2
    s_mul_i32 s{S_T1}, s{S_T1}, 14336
    s_add_u32 s{S_XO}, s{S_T1}, {ws.XK}
    s_add_u32 s{S_T5}, s{S_T1}, {LS_XK}
    s_cmp_lt_u32 s{S_WAVE}, 2
    s_cbranch_scc1 {lx}''')
    xk_dma(0)
    a(f'''{lx}:
    s_mov_b32 s{S_STEP}, 0
    s_mov_b32 s{S_LIM}, {POLL_LIM}
    s_mov_b32 s{S_PO}, {ws.MA}
    s_mov_b32 s{S_HO}, {ws.H}
    v_min_u32 v{VHP}, 55, v0
    v_lshlrev_b32 v{VHP}, 2, v{VHP}
    s_lshl_b32 s{S_T1}, s{S_ROLE}, 1
    s_add_u32 s{S_T1}, s{S_T1}, s{S_WAVE}
    s_lshl_b32 s{S_T1}, s{S_T1}, 2
    s_add_u32 s{S_T1}, s{S_T1}, 256
    v_mov_b32 v2, s{S_T1}
    v_mov_b32 v3, 0x10000000
    v_cmp_eq_u32 vcc, 0, v0
    v_mov_b32 v{VONE}, 1
    s_nop 0
    v_cndmask_b32 v{VHS}, v3, v2, vcc''')
    loop=L('sloop'); pr=L('spoll'); pok=L('spok')
    prof_init(a,prof,VPA)
    if clk: a('s_waitcnt vmcnt(0)\ns_memtime s[60:61]\ns_memrealtime s[62:63]\ns_waitcnt lgkmcnt(0)')
    a(f'{loop}:')
    stamp(a,prof,0)
    if fill:
        for r in range(0,8,2): a(f'v_mov_b64 v[{ACC[0]+r}:{ACC[0]+r+1}], 0')
    if hint_vp: a(f's_add_u32 s{S_T1}, s{S_STEP}, 1\nv_mov_b32 v{VONE}, s{S_T1}')
    if hint_sm: hint_poll(a,VHP,S_HO,[4,5,6],0,S_STEP)
    stamp(a,prof,6)
    a(f'''s_mov_b32 s{S_CNT}, s{S_LIM}
    {pr}:
    buffer_load_dwordx4 v[{PL}:{PL+3}], v{VPOLL}, s[8:11], s{S_PO} offen sc1
    buffer_load_dwordx4 v[{PL+4}:{PL+7}], v{VPOLL2}, s[8:11], s{S_PO} offen sc1
    s_waitcnt vmcnt(1)
    ds_write_b128 v{VMXW}, v[{PL}:{PL+3}]
    v_max3_u32 v2, v{PL}, v{PL+1}, v{PL+2}
    v_max_u32 v2, v2, v{PL+3}
    s_waitcnt vmcnt(0)
    ds_write_b128 v{VMXW}, v[{PL+4}:{PL+7}] offset:4096
    v_max3_u32 v2, v2, v{PL+4}, v{PL+5}
    v_max3_u32 v2, v2, v{PL+6}, v{PL+7}''')
    poll_tail(a,pr,pok,2)
    stamp(a,prof,1)
    if prof: a(f's_sub_u32 s54, s{S_LIM}, s{S_CNT}')
    a('s_waitcnt lgkmcnt(0)\ns_barrier')
    for k in range(7): a(f'ds_read_b128 v[{A0+4*k}:{A0+4*k+3}], v{VL16} offset:{k*1024}')
    if not fill:
        for r in range(8): a(f'v_mov_b32 v{ACC[0]+r}, 0')
    stamp(a,prof,2)
    a(f'''s_add_u32 s{S_T0}, s{S_STEP}, 1
    s_and_b32 s{S_T0}, s{S_T0}, 3
    s_mul_i32 s{S_T0}, s{S_T0}, 7168
    s_add_u32 s{S_PO}, s{S_T0}, {ws.MR}
    s_and_b32 s{S_T0}, s{S_STEP}, 3
    s_mul_i32 s{S_T0}, s{S_T0}, 10240
    s_add_u32 s{S_PS}, s{S_T0}, {ws.PR}
    s_add_u32 s{S_T0}, s{S_STEP}, 2
    s_and_b32 s{S_T0}, s{S_T0}, 3
    s_mul_i32 s{S_T0}, s{S_T0}, 10240
    s_add_u32 s{S_PP}, s{S_T0}, {ws.PR}''')
    def keyreg(j,x):
        if j<2: return KD+12*j+4*x
        if j==2: return A0+4*x
        return A0+12+2*x
    def keyread(j,x):
        r=keyreg(j,x)
        if j<3:
            if x==0: return f'ds_read_b128 v[{r}:{r+3}], v{VMK} offset:{j*512}'
            return f'ds_read_b128 v[{r}:{r+3}], v{VXK} offset:{((x-1)*3+j)*1024}'
        if x==0: return f'ds_read_b64 v[{r}:{r+1}], v{VMKO}'
        return f'ds_read_b64 v[{r}:{r+1}], v{VXKO} offset:{(x-1)*512}'
    def tfreg(t): return TF+2*t
    def post(t):
        ac=ACC[t%3]; pk=PK+2*(t&1)
        return ([f'v_cvt_pk_bf16_f32 v{pk}, v{ac}, v{ac+1}', f'v_cvt_pk_bf16_f32 v{pk+1}, v{ac+2}, v{ac+3}'],
                f'ds_write_b64 v{VT2W}, v[{pk}:{pk+1}] offset:{t*512}',
                f'ds_read_b64_tr_b16 v[{tfreg(t)}:{tfreg(t)+1}], v{VT2R} offset:{t*512}')
    SA=[SC2,ACC[1],ACC[2]]
    def smf(j,x):
        c='0' if j==0 else f'v[{SA[x]}:{SA[x]+3}]'
        if j<3: return f'v_mfma_f32_16x16x32_bf16 v[{SA[x]}:{SA[x]+3}], v[{keyreg(j,x)}:{keyreg(j,x)+3}], v[{TF+4*j}:{TF+4*j+3}], {c}'
        return f'v_mfma_f32_16x16x16_bf16 v[{SA[x]}:{SA[x]+3}], v[{keyreg(j,x)}:{keyreg(j,x)+1}], v[{tfreg(6)}:{tfreg(6)+1}], {c}'
    if not fill:
        kq=[keyread(j,x) for j in range(2) for x in range(3)]
        for t in range(7):
            ac=ACC[t%3]
            for k in range(7):
                if t==0: a(f's_waitcnt lgkmcnt({6-k})')
                a(f'v_smfmac_f32_16x16x64_bf16 v[{ac}:{ac+3}], v[{A0+4*k}:{A0+4*k+3}], {wreg(t*7+k)}, v{IDX}')
                fl=[]
                if t>=1:
                    cv,wr,rd=post(t-1)
                    if k==3: fl=cv
                    if k==4: fl=[wr,rd]
                if 1<=t<6 or t==0:
                    nx=ACC[(t+1)%3]
                    if t>=1:
                        if k==0: fl=[f'v_mov_b32 v{nx}, 0',f'v_mov_b32 v{nx+1}, 0']
                        if k==1: fl=[f'v_mov_b32 v{nx+2}, 0',f'v_mov_b32 v{nx+3}, 0']
                if t in (2,3,4) and k in (5,6) and kq: fl=[kq.pop(0)]
                for x in fl: a(x)
        assert not kq
        stamp(a,prof,3)
        cv,wr,rd=post(6)
        a(keyread(2,0)); a(keyread(2,1))
        a('s_waitcnt lgkmcnt(2)')
        a(smf(0,0)); a(keyread(2,2)); a(keyread(3,0))
        a(smf(0,1)); a(keyread(3,1)); a(keyread(3,2))
        a(smf(0,2)); a('s_nop 0')
        a(smf(1,0)); a(cv[0]); a(cv[1])
        a(smf(1,1)); a(wr); a(rd)
        a(smf(1,2))
        a('s_waitcnt lgkmcnt(5)')
        a(smf(2,0)); a(smf(2,1)); a(smf(2,2))
        a('s_waitcnt lgkmcnt(0)')
        a(smf(3,0)); a(smf(3,1)); a(smf(3,2))
        a('s_nop 5')
        for r in range(4): a(f'v_add_f32_dpp v{4+r}, v{SA[0]+r}, v{SA[0]+r} row_ror:8 row_mask:0xf bank_mask:0xf')
        a(f'ds_write_b128 v{VSWM}, v[4:7]')
        for r in range(4): a(f'v_add_f32_dpp v{8+r}, v{SA[1]+r}, v{SA[1]+r} row_ror:8 row_mask:0xf bank_mask:0x3')
        for r in range(4): a(f'v_add_f32_dpp v{8+r}, v{SA[2]+r}, v{SA[2]+r} row_ror:8 row_mask:0xf bank_mask:0xc')
        a(f'ds_write_b128 v{VSW}, v[8:11]')
    else:
        T=DsTrack(a)
        for k in range(7): T.note(('A',k))
        kq=[(('K',j,x),keyread(j,x)) for j in range(2) for x in range(3)]
        def post2(t):
            ac=ACC[t%3]; pk=PK+2*(t&1)
            return ([f'v_cvt_pk_bf16_f32 v{pk}, v{ac}, v{ac+1}', f'v_cvt_pk_bf16_f32 v{pk+1}, v{ac+2}, v{ac+3}'],
                    [f'ds_write_b32 v{VT2W}, v{pk} offset:{t*512}', f'ds_write_b32 v{VT2W}, v{pk+1} offset:{t*512+4}'],
                    f'ds_read_b64_tr_b16 v[{tfreg(t)}:{tfreg(t)+1}], v{VT2R} offset:{t*512}')
        for t in range(7):
            ac=ACC[t%3]
            for k in range(7):
                if t==0: T.wait(('A',k))
                a(f'v_smfmac_f32_16x16x64_bf16 v[{ac}:{ac+3}], v[{A0+4*k}:{A0+4*k+3}], {wreg(t*7+k)}, v{IDX}')
                if t>=1:
                    cv,wr,rd=post2(t-1)
                    nx=ACC[(t+1)%3]
                    if k==0 and t<6: a(f'v_mov_b64 v[{nx}:{nx+1}], 0')
                    if k==1 and t<6: a(f'v_mov_b64 v[{nx+2}:{nx+3}], 0')
                    if k==2: a(cv[0])
                    if k==3: a(cv[1])
                    if k==4: T.ds(wr[0],('W0',t-1))
                    if k==5: T.ds(wr[1],('W1',t-1))
                    if k==6: T.ds(rd,('T',t-1))
                    if t in (2,3,4) and k in (0,1) and kq:
                        tg,ins=kq.pop(0); T.ds(ins,tg)
                if t==6:
                    if k in (0,1,2): T.ds(keyread(2,k),('K',2,k))
                    if k==4: pass
                    if k==5: T.ds(keyread(3,0),('K',3,0))
                    if k==6: T.ds(keyread(3,1),('K',3,1))
        assert not kq
        stamp(a,prof,3)
        cv,_,_=post2(6); _,wr,rd=post(6)
        def S(j,x):
            T.wait(('K',j,x)); T.wait(('T',min(2*j+1,6))); a(smf(j,x))
        S(0,0); T.ds(keyread(3,2),('K',3,2))
        S(0,1); a(cv[0]); a(cv[1])
        S(0,2); T.ds(wr,('W',6)); T.ds(rd,('T',6))
        for j in range(1,4):
            for x in range(3): S(j,x)
        for r in range(4): a(f'v_add_f32_dpp v{4+r}, v{SA[0]+r}, v{SA[0]+r} row_ror:8 row_mask:0xf bank_mask:0xf')
        a(f'ds_write_b128 v{VSWM}, v[4:7]')
        for r in range(4): a(f'v_add_f32_dpp v{8+r}, v{SA[1]+r}, v{SA[1]+r} row_ror:8 row_mask:0xf bank_mask:0x3')
        for r in range(4): a(f'v_add_f32_dpp v{8+r}, v{SA[2]+r}, v{SA[2]+r} row_ror:8 row_mask:0xf bank_mask:0xc')
        a(f'ds_write_b128 v{VSW}, v[8:11]')
    a('s_waitcnt lgkmcnt(0)\ns_barrier')
    stamp(a,prof,4)
    lx=L('xk'); lnext=L('snext')
    a(f's_cmp_ge_u32 s{S_WAVE}, 2\ns_cbranch_scc1 {lx}')
    HST=f'buffer_store_dword v{VONE}, v{VHS}, s[8:11], s{S_HO} offen{SCM}'
    hp=lambda pos: HST if (hint_vp and hp_pos==pos) else ''
    a(hp(0))
    for w in range(4): a(f'ds_read_b128 v[{4+4*w}:{7+4*w}], v{VSR} offset:{w*2048}')
    a(f'''s_waitcnt lgkmcnt(2)
    v_pk_add_f32 v[4:5], v[4:5], v[8:9]
    v_pk_add_f32 v[6:7], v[6:7], v[10:11]
    s_waitcnt lgkmcnt(0)
    v_pk_add_f32 v[12:13], v[12:13], v[16:17]
    v_pk_add_f32 v[14:15], v[14:15], v[18:19]
    v_pk_add_f32 v[4:5], v[4:5], v[12:13]
    v_pk_add_f32 v[6:7], v[6:7], v[14:15]
    {hp(1)}
    v_max3_f32 v8, v4, v5, v6
    v_max_f32 v8, v8, v7
    s_nop 1
    v_max_f32_dpp v9, v8, v8 row_ror:4 row_mask:0xf bank_mask:0xf
    v_max_f32_dpp v9, v8, v9 row_ror:8 row_mask:0xf bank_mask:0xf
    v_max_f32_dpp v9, v8, v9 row_ror:12 row_mask:0xf bank_mask:0xf
    s_nop 1
    v_max_f32_dpp v10, v9, v9 row_ror:1 row_mask:0xf bank_mask:0xf
    v_max_f32_dpp v10, v9, v10 row_ror:2 row_mask:0xf bank_mask:0xf
    v_max_f32_dpp v10, v9, v10 row_ror:3 row_mask:0xf bank_mask:0xf
    {hp(2)}
    v_pk_add_f32 v[4:5], v[4:5], v[10:11] op_sel_hi:[1,0] neg_lo:[0,1] neg_hi:[0,1]
    v_pk_add_f32 v[6:7], v[6:7], v[10:11] op_sel_hi:[1,0] neg_lo:[0,1] neg_hi:[0,1]
    v_exp_f32 v4, v4
    v_exp_f32 v5, v5
    v_exp_f32 v6, v6
    v_exp_f32 v7, v7
    {hp(3)}
    v_add_f32 v8, v4, v5
    v_add_f32 v9, v6, v7
    v_add_f32 v8, v8, v9
    s_nop 1
    v_add_f32_dpp v9, v8, v8 row_ror:4 row_mask:0xf bank_mask:0xf
    v_add_f32_dpp v9, v8, v9 row_ror:8 row_mask:0xf bank_mask:0xf
    v_add_f32_dpp v9, v8, v9 row_ror:12 row_mask:0xf bank_mask:0xf
    s_nop 1
    v_add_f32_dpp v10, v9, v9 row_ror:1 row_mask:0xf bank_mask:0xf
    v_add_f32_dpp v10, v9, v10 row_ror:2 row_mask:0xf bank_mask:0xf
    v_add_f32_dpp v10, v9, v10 row_ror:3 row_mask:0xf bank_mask:0xf
    v_rcp_f32 v10, v10
    s_nop 0
    v_pk_mul_f32 v[4:5], v[4:5], v[10:11] op_sel_hi:[1,0]
    v_pk_mul_f32 v[6:7], v[6:7], v[10:11] op_sel_hi:[1,0]
    v_cvt_pk_bf16_f32 v4, v4, v5
    v_cvt_pk_bf16_f32 v5, v6, v7''')
    store2(a,[f'buffer_store_dwordx2 v[4:5], v{VPST}, s[8:11], s{S_PS} offen',
              f'buffer_store_dwordx2 v[{NEG}:{NEG+1}], v{VPST}, s[8:11], s{S_PP} offen'],mode)
    stamp(a,prof,5)
    if o.get('xkbar',0): a('s_barrier')
    a(f's_branch {lnext}\n{lx}:')
    if o.get('xkbar',0): a('s_barrier')
    a(f's_add_u32 s{S_XO}, s{S_XO}, 28672')
    xk_dma(1)
    stamp(a,prof,5)
    a(f'{lnext}:')
    stamp_flush(a,prof,8,2,VPA)
    a(f'''s_add_u32 s{S_STEP}, s{S_STEP}, 1
    s_cmp_lt_u32 s{S_STEP}, {nsteps}
    s_cbranch_scc1 {loop}''')
    if clk:
        a(f'''s_memtime s[64:65]
        s_memrealtime s[66:67]
        s_waitcnt lgkmcnt(0)
        s_sub_u32 s64, s64, s60
        s_sub_u32 s66, s66, s62
        s_lshl_b32 s{S_T0}, s{S_ROLE}, 2
        s_add_u32 s{S_T0}, s{S_T0}, s{S_WAVE}
        s_lshl_b32 s{S_T0}, s{S_T0}, 3
        s_add_u32 s{S_T0}, s{S_T0}, {ws.PROF+0xF0000}
        v_mov_b32 v2, s64
        v_mov_b32 v3, s66
        v_mov_b32 v4, 0
        s_nop 4
        buffer_store_dwordx2 v[2:3], v4, s[8:11], s{S_T0} offen''')
    prof_dump(a,prof)
    a('''s_waitcnt vmcnt(0)
    s_endpgm''')

LV_MX=0; LV_W=8192; LV_R=73728
def value_role(a, prof, nsteps=63, om=False, mode=None, o={}):
    CUR[0]='v'
    hint=o.get('hint',0); hint_sm=o.get('hint_sm',hint); hint_vp=o.get('hint_vp',hint); hint_vm=o.get('hint_vm',hint); nx=(o.get('nx',0) if om else 0)
    fill=o.get('fill',0); hm_pos=o.get('hm_pos',1); wi_late=o.get('wi_late',0); SCM=' sc1' if mode else ''
    IDX=1; A0=4
    DF=32
    WB=64
    ACC=[72,76,80,84]; XA=88
    ST=92
    VL16=108; VMXW=109; VPOLL=109; VPOLL2=111; VWL=112; VPX=113; VPM=114; VRW=115; VRR=116; VMS=117
    NEG=118
    VFLAG=120; VZERO=121; VONE=122; VF1=123
    VHP=124; VHM=125; VHS=126; VHV=127; S_HO=57; S_HE=59; S_WF=61; S_W1=62; S_M1=63; VMA=3
    S_DFL=39; S_FF=56
    WV=128
    def wdst(f): return ('a',8*f) if f<32 else ('v',WV+8*(f-32))
    def wreg(f):
        k,b=wdst(f); return (ar if k=='a' else vr)(b,8)
    S_V=29; S_PO=30; S_PS=31; S_MS=32; S_MP=33; S_MA=34; S_DO=35; S_WO=38
    L=a.lab
    a(f'''s_sub_u32 s{S_V}, s{S_ROLE}, 16
    v_lshlrev_b32 v{VL16}, 4, v0
    s_lshl_b32 s{S_T0}, s{S_V}, 2
    s_add_u32 s{S_T0}, s{S_T0}, s{S_WAVE}
    s_mul_i32 s{S_T0}, s{S_T0}, {56*2048}
    s_add_u32 s{S_T0}, s{S_T0}, {ws.CI}''')
    load_frags(a,48,wdst,VL16,S_T0)
    a(f'''s_lshl_b32 s{S_T1}, s{S_WAVE}, 14
    s_add_u32 s{S_T1}, s{S_T1}, {LV_W}''')
    for k in range(16):
        a(f's_add_u32 m0, s{S_T1}, {k*1024}\ns_add_u32 s{S_T2}, s{S_T0}, {k*1024}\nbuffer_load_dwordx4 v{VL16}, s[8:11], s{S_T2} offen lds')
    a(f'''v_add_u32 v{VWL}, s{S_T1}, v{VL16}
    v_and_b32 v2, 8, v0
    v_mov_b32 v{IDX}, 0x44444444
    v_mov_b32 v3, 0xeeeeeeee
    v_cmp_ne_u32 vcc, 0, v2
    v_mov_b32 v{NEG}, -1
    v_mov_b32 v{NEG+1}, -1
    v_cndmask_b32 v{IDX}, v{IDX}, v3, vcc
    s_lshl_b32 s{S_T1}, s{S_WAVE}, 10
    v_add_u32 v{VMXW}, s{S_T1}, v{VL16}
    s_movk_i32 s{S_T2}, 4096
    s_cmp_eq_u32 s{S_WAVE}, 3
    s_cselect_b32 s{S_T2}, 0x10000000, s{S_T2}
    v_add_u32 v{VPOLL2}, s{S_T2}, v{VPOLL}''')
    a(f'''s_lshl_b32 s{S_T1}, s{S_WAVE}, 11
    v_add_u32 v{VPX}, s{S_T1}, v{VL16}
    s_lshl_b32 s{S_T1}, s{S_WAVE}, 9
    s_add_u32 s{S_T1}, s{S_T1}, 8192
    v_lshrrev_b32 v2, 4, v0
    v_and_b32 v3, 15, v0
    v_lshlrev_b32 v4, 7, v2
    v_lshlrev_b32 v5, 4, v3
    v_add3_u32 v4, v4, v5, s{S_T1}
    v_mov_b32 v5, 0x10000000
    v_cmp_gt_u32 vcc, 8, v3
    s_nop 1
    v_cndmask_b32 v{VPM}, v5, v4, vcc''')
    a(f'''s_lshl_b32 s{S_T1}, s{S_WAVE}, 10
    s_add_u32 s{S_T1}, s{S_T1}, {LV_R}
    v_lshlrev_b32 v4, 2, v0
    v_add_u32 v{VRW}, s{S_T1}, v4
    v_add_u32 v{VRR}, {LV_R}, v{VL16}''')
    a(f'''v_lshrrev_b32 v2, 4, v0
    v_lshrrev_b32 v3, 2, v0
    v_and_b32 v3, 1, v3
    v_lshlrev_b32 v3, 2, v3
    v_add_u32 v2, v2, v3
    v_lshlrev_b32 v2, 4, v2
    v_lshrrev_b32 v3, 3, v0
    v_and_b32 v3, 1, v3
    v_lshlrev_b32 v3, 1, v3
    v_lshrrev_b32 v4, 1, v0
    v_and_b32 v4, 1, v4
    v_add_u32 v3, v3, v4
    v_lshlrev_b32 v3, 7, v3
    v_and_b32 v4, 1, v0
    v_lshlrev_b32 v4, 3, v4
    v_add3_u32 v2, v2, v3, v4
    s_lshl_b32 s{S_T1}, s{S_V}, 9
    v_add_u32 v{VMS}, s{S_T1}, v2''')
    a(f'''s_lshl_b32 s{S_T1}, s{S_V}, 15
    s_lshl_b32 s{S_T2}, s{S_WAVE}, 13
    s_add_u32 s{S_DO}, s{S_T1}, s{S_T2}
    s_add_u32 s{S_DO}, s{S_DO}, {ws.DI}
    s_lshl_b32 s{S_T1}, s{S_V}, 13
    s_lshl_b32 s{S_T2}, s{S_WAVE}, 11
    s_add_u32 s{S_WO}, s{S_T1}, s{S_T2}
    s_add_u32 s{S_WO}, s{S_WO}, {ws.WI}
    s_mov_b32 s{S_STEP}, 0
    s_mov_b32 s{S_LIM}, {POLL_LIM}
    s_mov_b32 s{S_PO}, {ws.MA}
    s_mov_b32 s{S_MA}, {ws.MA+7168}
    s_mov_b32 s{S_HO}, {ws.H}
    v_min_u32 v{VHM}, 55, v0
    v_lshlrev_b32 v{VHM}, 2, v{VHM}
    v_and_b32 v{VHP}, 31, v0
    v_lshlrev_b32 v{VHP}, 2, v{VHP}
    v_add_u32 v{VHP}, 256, v{VHP}
    s_lshl_b32 s{S_T1}, s{S_V}, 2
    s_add_u32 s{S_T1}, s{S_T1}, s{S_WAVE}
    s_lshl_b32 s{S_T1}, s{S_T1}, 2
    v_mov_b32 v2, s{S_T1}
    v_mov_b32 v3, 0x10000000
    v_cmp_eq_u32 vcc, 0, v0
    v_mov_b32 v{VONE}, 1
    s_nop 0
    v_cndmask_b32 v{VHS}, v3, v2, vcc''')
    SC=' sc1' if om else ''
    def dpoll():
        lr=L('dfp'); lo=L('dfo')
        a(f'''s_mov_b32 s{S_CNT}, s{S_LIM}
        {lr}:
        buffer_load_dword v{VFLAG}, v{VZERO}, s[8:11], s{S_DFL} offen sc1
        s_waitcnt vmcnt(0)
        v_readfirstlane_b32 s{S_T0}, v{VFLAG}
        s_nop 3
        s_cmp_lg_u32 s{S_T0}, 0
        s_cbranch_scc1 {lo}
        s_sub_u32 s{S_CNT}, s{S_CNT}, 1
        s_cbranch_scc0 {lr}
        s_mov_b32 s{S_LIM}, 0
        {lo}:''')
    if om:
        a(f'''v_mov_b32 v{VZERO}, 0
        v_mov_b32 v{VONE}, 1
        s_lshl_b32 s{S_T1}, s{S_V}, 4
        s_lshl_b32 s{S_T2}, s{S_WAVE}, 2
        s_add_u32 s{S_DFL}, s{S_T1}, s{S_T2}
        s_add_u32 s{S_DFL}, s{S_DFL}, {ws.DF}
        s_lshl_b32 s{S_T1}, s{S_V}, 2
        s_add_u32 s{S_FF}, s{S_T1}, {ws.F}
        s_lshl_b32 s{S_T1}, s{S_WAVE}, 6
        v_add_u32 v2, s{S_T1}, v0
        v_mov_b32 v3, {0 if nx else 64}
        v_cmp_eq_u32 vcc, v2, v3
        v_mov_b32 v3, 0x10000000
        s_nop 0
        v_cndmask_b32 v{VF1}, v3, 0, vcc''')
        if nx: a(f's_mov_b32 s{S_MA}, {ws.MA}\ns_mov_b32 s{S_WF}, {ws.WF-448}')
        if nx==2:
            a(f'''s_sub_u32 s{S_FF}, s{S_FF}, 64
            s_cmp_eq_u32 s{S_WAVE}, 0
            s_cselect_b32 s{S_T1}, 0, 0x10000000
            v_add_u32 v{VMA}, s{S_T1}, v{VMS}''')
        dpoll()
    VPA=110
    prof_init(a,prof,VPA)
    dsplit=o.get('dsplit',0)
    loop=L('vloop'); pr=L('vpoll'); pok=L('vpok'); PL=4 if dsplit else DF
    def dload(q,so):
        return f'buffer_load_dwordx4 v[{DF+4*q}:{DF+4*q+3}], v{VL16}, s[8:11], s{so} offen offset:{(q&3)*1024}{SC}'
    if dsplit:
        for q in range(4): a(dload(q,S_DO))
    a(f'{loop}:')
    stamp(a,prof,0)
    vfill=o.get('vfill',0); S_DO2=60
    if vfill:
        for r in (0,2): a(f'v_mov_b64 v[{ACC[0]+r}:{ACC[0]+r+1}], 0\nv_mov_b64 v[{XA+r}:{XA+r+1}], 0')
    a(f's_add_u32 s{S_HE}, s{S_STEP}, 1')
    if hint_sm or hint_vm: a(f'v_mov_b32 v{VHV}, s{S_HE}')
    if hint_vm: hint_poll(a,VHM,S_HO,[16,17,18],1,S_STEP)
    a(f'''s_mov_b32 s{S_CNT}, s{S_LIM}
    {pr}:
    buffer_load_dwordx4 v[{PL}:{PL+3}], v{VPOLL}, s[8:11], s{S_PO} offen sc1
    buffer_load_dwordx4 v[{PL+4}:{PL+7}], v{VPOLL2}, s[8:11], s{S_PO} offen sc1
    s_waitcnt vmcnt(1)
    ds_write_b128 v{VMXW}, v[{PL}:{PL+3}]
    v_max3_u32 v2, v{PL}, v{PL+1}, v{PL+2}
    v_max_u32 v2, v2, v{PL+3}
    s_waitcnt vmcnt(0)
    ds_write_b128 v{VMXW}, v[{PL+4}:{PL+7}] offset:4096
    v_max3_u32 v2, v2, v{PL+4}, v{PL+5}
    v_max3_u32 v2, v2, v{PL+6}, v{PL+7}''')
    poll_tail(a,pr,pok,2)
    stamp(a,prof,1)
    a('s_waitcnt lgkmcnt(0)\ns_barrier')
    for k in range(7): a(f'ds_read_b128 v[{A0+4*k}:{A0+4*k+3}], v{VL16} offset:{k*1024}')
    def sread(f,buf):
        b=ST+8*buf; o=(f-48)*2048
        return [f'ds_read_b128 v[{b}:{b+3}], v{VWL} offset:{o}', f'ds_read_b128 v[{b+4}:{b+7}], v{VWL} offset:{o+1024}']
    if not vfill:
        for r in range(4): a(f'v_mov_b32 v{ACC[0]+r}, 0')
        for r in range(4): a(f'v_mov_b32 v{XA+r}, 0')
    def dcheck():
        lok=L('dok')
        a(f'v_readfirstlane_b32 s{S_T0}, v{VFLAG}\ns_nop 3\ns_cmp_lg_u32 s{S_T0}, 0\ns_cbranch_scc1 {lok}')
        dpoll()
        a(f'{lok}:')
    def wi_export():
        a(f'buffer_store_dwordx4 v[{WB}:{WB+3}], v{VL16}, s[8:11], s{S_WO} offen{SC}')
        a(f'buffer_store_dwordx4 v[{WB+4}:{WB+7}], v{VL16}, s[8:11], s{S_WO} offen offset:1024{SC}')
        a(f's_add_u32 s{S_WO}, s{S_WO}, {14*8192}')
    FST=f'buffer_store_dword v{VONE}, v{VF1}, s[8:11], s{S_FF} offen sc1'
    ord2=o.get('ord2',0)
    if om and not nx:
        if not ord2: a(f'{FST}\ns_add_u32 s{S_FF}, s{S_FF}, 64')
        if not dsplit: dcheck()
    if nx==2:
        l63=L('l63')
        a(f'''s_cmp_lg_u32 s{S_STEP}, {nsteps}
        s_cbranch_scc1 {l63}
        s_add_u32 s{S_T0}, s{S_FF}, 64
        buffer_store_dword v{VONE}, v{VF1}, s[8:11], s{S_T0} offen sc1
        {l63}:''')
        dcheck()
        a(f'''s_cmp_eq_u32 s{S_STEP}, 0
        s_cselect_b32 s{S_W1}, {ws.DUM}, s{S_WO}
        s_cselect_b32 s{S_M1}, {ws.DUM+16384}, s{S_MA}
        s_cselect_b32 s{S_T0}, 0, {14*8192}
        s_add_u32 s{S_WO}, s{S_WO}, s{S_T0}''')
    elif nx:
        l63=L('l63'); l0=L('l0')
        a(f's_cmp_lg_u32 s{S_STEP}, {nsteps}\ns_cbranch_scc1 {l63}\n{FST}\n{l63}:')
        dcheck()
        a(f'buffer_store_dword v{VONE}, v{VHS}, s[8:11], s{S_WF} offen sc1\ns_add_u32 s{S_WF}, s{S_WF}, 224')
        a(f's_cmp_eq_u32 s{S_STEP}, 0\ns_cbranch_scc1 {l0}')
        wi_export()
        a(f's_cmp_lg_u32 s{S_WAVE}, 0\ns_cbranch_scc1 {l0}')
        a(f'buffer_store_dwordx2 v[{ST+8}:{ST+9}], v{VMS}, s[8:11], s{S_MA} offen sc1')
        a(f'{l0}:')
    dl=[]
    for q in range(8):
        off=(q&3)*1024
        so=S_DO if q<4 else S_DO2
        dl.append(f'buffer_load_dwordx4 v[{DF+4*q}:{DF+4*q+3}], v{VL16}, s[8:11], s{so} offen offset:{off}{SC}')
    a(f's_add_u32 s{S_DO2}, s{S_DO}, 4096')
    flagld=f's_add_u32 s{S_DFL}, s{S_DFL}, {14*16}\nbuffer_load_dword v{VFLAG}, v{VZERO}, s[8:11], s{S_DFL} offen sc1'
    dls=o.get('dls')
    if vfill and dls and nx!=2:
        for q,p in enumerate(dls):
            if p=='pre': a(dl[q])
        if om and ord2:
            a(flagld)
            if not nx: a(f'{FST}\ns_add_u32 s{S_FF}, s{S_FF}, 64')
    if not vfill:
        for x in dl: a(x)
        if om: a(flagld)
        a(f's_add_u32 s{S_DO}, s{S_DO}, {14*32768}')
    a(f'''s_add_u32 s{S_T0}, s{S_STEP}, 1
    s_and_b32 s{S_T0}, s{S_T0}, 3
    s_mul_i32 s{S_T0}, s{S_T0}, 7168
    s_add_u32 s{S_MS}, s{S_T0}, {ws.MR}
    s_add_u32 s{S_T0}, s{S_STEP}, 3
    s_and_b32 s{S_T0}, s{S_T0}, 3
    s_mul_i32 s{S_T0}, s{S_T0}, 7168
    s_add_u32 s{S_MP}, s{S_T0}, {ws.MR}
    s_and_b32 s{S_T0}, s{S_STEP}, 3
    s_mul_i32 s{S_T0}, s{S_T0}, 10240
    s_add_u32 s{S_PS}, s{S_T0}, {ws.PR}
    s_mov_b32 s{S_PO}, s{S_MS}''')
    stamp(a,prof,2)
    chains=[(0,0),(0,1),(0,2),(0,3),(1,0),(1,1),(1,2)]
    def fidx(tau,hh,k): return hh*14+tau*7+k
    def psum(tau,half,ra,rb):
        o=[]
        for r in range(4): o.append(f'v_permlane32_swap_b32 v{ra+r}, v{rb+r}')
        for r in range(4): o.append(f'v_add_f32 v{ra+r}, v{ra+r}, v{rb+r}')
        d=WB+4*tau+2*half
        o.append(f'v_cvt_pk_bf16_f32 v{d}, v{ra}, v{ra+1}'); o.append(f'v_cvt_pk_bf16_f32 v{d+1}, v{ra+2}, v{ra+3}')
        return o
    if not vfill:
        pend=[]
        lg=7
        for c,(tau,hh) in enumerate(chains):
            ac=ACC[c%4]
            for k in range(7):
                f=fidx(tau,hh,k)
                if c==0: a(f's_waitcnt lgkmcnt({6-k})')
                if f>=48:
                    assert f==48
                    a('s_waitcnt lgkmcnt(0)')
                    b=vr(ST+8,8)
                else: b=wreg(f)
                a(f'v_smfmac_f32_16x16x64_bf16 v[{ac}:{ac+3}], v[{A0+4*k}:{A0+4*k+3}], {b}, v{IDX}')
                fl=[]
                if k==0: fl+=sread(49+c,0)
                if c==3 and k==1: fl+=sread(48,1)
                if c<6 and k in (2,3):
                    nx=ACC[(c+1)%4]; fl+=[f'v_mov_b32 v{nx+2*(k-2)}, 0',f'v_mov_b32 v{nx+2*(k-2)+1}, 0']
                if k>=3 and pend:
                    fl+=pend[:2]; pend=pend[2:]
                for x in fl: a(x)
            a('s_waitcnt lgkmcnt(0)')
            a(f'v_smfmac_f32_16x16x64_bf16 v[{XA}:{XA+3}], v[{A0+4*c}:{A0+4*c+3}], {vr(ST,8)}, v{IDX}')
            for x in pend[:2]: a(x)
            pend=pend[2:]
            if c in (1,3,5):
                assert not pend
                pend=psum(0 if c<4 else 1, 0 if c in (1,5) else 1, ACC[(c-1)%4], ACC[c%4])
        for x in pend: a(x)
        a('s_nop 7')
        for x in psum(1,1,ACC[6%4],XA): a(x)
    else:
        T=DsTrack(a)
        for k in range(7): T.note(('A',k))
        z=lambda r:[f'v_mov_b64 v[{r}:{r+1}], 0',f'v_mov_b64 v[{r+2}:{r+3}], 0']
        p01=psum(0,0,ACC[0],ACC[1]); p23=psum(0,1,ACC[2],ACC[3]); p45=psum(1,0,ACC[0],ACC[1])
        V={}
        def put(c,g0,ops):
            for i,x in enumerate(ops): assert (c,g0+i) not in V; V[(c,g0+i)]=x
        put(0,0,z(ACC[1])); put(1,0,z(ACC[2])); put(2,0,z(ACC[3])); put(2,2,p01[:6]); put(3,0,p01[6:]); put(3,4,z(ACC[0]))
        put(4,0,z(ACC[1])); put(4,2,p23[:6]); put(5,0,p23[6:]); put(5,4,z(ACC[2])); put(6,2,p45[:6])
        M={(c,3):dl[c+1] for c in range(7)}; M[(0,1)]=dl[0]
        if dsplit: M={(0,1):dl[4],(0,3):dl[5],(0,5):dl[6],(1,0):dl[7]}
        if dls:
            M={p:dl[q] for q,p in enumerate(dls) if p!='pre'}
        if nx==2:
            ops=dl+[flagld,
                f'buffer_store_dword v{VONE}, v{VHS}, s[8:11], s{S_WF} offen sc1\ns_add_u32 s{S_WF}, s{S_WF}, 224',
                f'{FST}\ns_add_u32 s{S_FF}, s{S_FF}, 64',
                f'buffer_store_dwordx4 v[{WB}:{WB+3}], v{VL16}, s[8:11], s{S_W1} offen sc1',
                f'buffer_store_dwordx4 v[{WB+4}:{WB+7}], v{VL16}, s[8:11], s{S_W1} offen offset:1024 sc1',
                f'buffer_store_dwordx2 v[{ST+8}:{ST+9}], v{VMA}, s[8:11], s{S_M1} offen sc1']
            slots=o.get('nxslots') or [(c,k) for c in range(3) for k in range(7)]
            npre=o.get('npre',0)
            for x in ops[:npre]: a(x)
            M={slots[i]:x for i,x in enumerate(ops[npre:])}
        for c,(tau,hh) in enumerate(chains):
            ac=ACC[c%4]
            for k in range(7):
                f=fidx(tau,hh,k)
                if c==0: T.wait(('A',k))
                if f>=48:
                    assert f==48
                    T.wait(('S48',1)); b=vr(ST+8,8)
                else: b=wreg(f)
                a(f'v_smfmac_f32_16x16x64_bf16 v[{ac}:{ac+3}], v[{A0+4*k}:{A0+4*k+3}], {b}, v{IDX}')
                if (c,k) in V: a(V[(c,k)])
                if k==0:
                    r=sread(49+c,0); T.ds(r[0],('X',c,0)); T.ds(r[1],('X',c,1))
                if c==3 and k==1:
                    r=sread(48,1); T.ds(r[0],('S48',0)); T.ds(r[1],('S48',1))
                if (c,k) in M: a(M[(c,k)])
            T.wait(('X',c,1))
            a(f'v_smfmac_f32_16x16x64_bf16 v[{XA}:{XA+3}], v[{A0+4*c}:{A0+4*c+3}], {vr(ST,8)}, v{IDX}')
            if (c,7) in V: a(V[(c,7)])
            if nx==1 and c==o.get('fpos',5): a(f's_waitcnt vmcnt({9 if ord2 else 8})\n{FST}\ns_add_u32 s{S_FF}, s{S_FF}, 64')
        if om and not ord2 and nx!=2: a(flagld)
        a(f's_add_u32 s{S_DO}, s{S_DO}, {14*32768}')
        for x in p45[6:]: a(x)
        a('s_nop 3')
        for x in psum(1,1,ACC[6%4],XA): a(x)
    if not wi_late and not nx: wi_export()
    stamp(a,prof,3)
    fin=L('vfin')
    a(f's_cmp_ge_u32 s{S_STEP}, {nsteps}\ns_cbranch_scc1 {fin}')
    if hint_vp: hint_poll(a,VHP,S_HO,[16,17,18],3,S_HE)
    stamp(a,prof,6)
    pr=L('ppoll'); pok=L('ppok')
    O0=ACC[0]; O1=ACC[1]
    a(f'''s_mov_b32 s{S_CNT}, s{S_LIM}
    {pr}:
    buffer_load_dwordx4 v[12:15], v{VPM}, s[8:11], s{S_PS} offen sc1
    buffer_load_dwordx4 v[4:7], v{VPX}, s[8:11], s{S_PS} offen sc1
    buffer_load_dwordx4 v[8:11], v{VPX}, s[8:11], s{S_PS} offen offset:1024 sc1
    s_waitcnt vmcnt(2)
    v_mfma_f32_16x16x32_bf16 v[{O0}:{O0+3}], v[12:15], v[{WB}:{WB+3}], 0
    v_max3_u32 v2, v12, v13, v14
    v_mfma_f32_16x16x32_bf16 v[{O1}:{O1+3}], v[12:15], v[{WB+4}:{WB+7}], 0
    s_waitcnt vmcnt(1)
    v_smfmac_f32_16x16x64_bf16 v[{O0}:{O0+3}], v[4:7], v[{DF}:{DF+7}], v{IDX}
    v_max3_u32 v2, v2, v15, v4
    v_max3_u32 v2, v2, v5, v6
    v_smfmac_f32_16x16x64_bf16 v[{O1}:{O1+3}], v[4:7], v[{DF+16}:{DF+23}], v{IDX}
    s_waitcnt vmcnt(0)
    v_smfmac_f32_16x16x64_bf16 v[{O0}:{O0+3}], v[8:11], v[{DF+8}:{DF+15}], v{IDX}
    v_max3_u32 v2, v2, v7, v8
    v_max3_u32 v2, v2, v9, v10
    v_smfmac_f32_16x16x64_bf16 v[{O1}:{O1+3}], v[8:11], v[{DF+24}:{DF+31}], v{IDX}
    v_max_u32 v2, v2, v11''')
    poll_tail(a,pr,pok,2)
    stamp(a,prof,4)
    if prof: a(f's_sub_u32 s54, s{S_LIM}, s{S_CNT}')
    HST=f'buffer_store_dword v{VHV}, v{VHS}, s[8:11], s{S_HO} offen{SCM}'
    hm=lambda pos: HST if ((hint_sm or hint_vm) and hm_pos==pos) else ''
    a(hm(0)) if hm(0) else None
    a('s_nop 4')
    for r in range(4): a(f'v_permlane32_swap_b32 v{O0+r}, v{O1+r}')
    for r in range(4): a(f'v_add_f32 v{O0+r}, v{O0+r}, v{O1+r}')
    a(f'''ds_write2st64_b32 v{VRW}, v{O0}, v{O0+1} offset0:0 offset1:1
    ds_write2st64_b32 v{VRW}, v{O0+2}, v{O0+3} offset0:2 offset1:3
    {hm(1)}
    s_waitcnt lgkmcnt(0)
    s_barrier
    {hm(2)}''')
    nxt=L('vnext')
    a(f's_cmp_lg_u32 s{S_WAVE}, 0\ns_cbranch_scc1 {nxt}')
    for w in range(4): a(f'ds_read_b128 v[{4+4*w}:{7+4*w}], v{VRR} offset:{w*1024}')
    a('''s_waitcnt lgkmcnt(2)
    v_pk_add_f32 v[4:5], v[4:5], v[8:9]
    v_pk_add_f32 v[6:7], v[6:7], v[10:11]
    s_waitcnt lgkmcnt(0)
    v_pk_add_f32 v[12:13], v[12:13], v[16:17]
    v_pk_add_f32 v[14:15], v[14:15], v[18:19]
    v_pk_add_f32 v[4:5], v[4:5], v[12:13]
    v_pk_add_f32 v[6:7], v[6:7], v[14:15]
    v_cvt_pk_bf16_f32 v4, v4, v5
    v_cvt_pk_bf16_f32 v5, v6, v7''')
    store2(a,[f'buffer_store_dwordx2 v[4:5], v{VMS}, s[8:11], s{S_MS} offen',
              f'buffer_store_dwordx2 v[{NEG}:{NEG+1}], v{VMS}, s[8:11], s{S_MP} offen']+([] if om else [
              f'buffer_store_dwordx2 v[4:5], v{VMS}, s[8:11], s{S_MA} offen']),mode)
    if om and not nx: a(f'buffer_store_dwordx2 v[4:5], v{VMS}, s[8:11], s{S_MA} offen sc1')
    if nx:
        lq=L('lq')
        a(f'''v_mov_b64 v[{ST+8}:{ST+9}], v[4:5]
        s_cmp_lg_u32 s{S_STEP}, {nsteps-1}
        s_cbranch_scc1 {lq}
        s_add_u32 s{S_T0}, s{S_MA}, 7168
        buffer_store_dwordx2 v[4:5], v{VMS}, s[8:11], s{S_T0} offen sc1
        {lq}:''')
    a(f'{nxt}:')
    stamp(a,prof,5)
    if dsplit:
        if o.get('dbar',0): a('s_barrier')
        if om: dcheck()
        for q in range(4): a(dload(q,S_DO))
    if wi_late:
        if not (dsplit and o.get('dbar',0)): a('s_barrier')
        wi_export()
    a(f's_add_u32 s{S_MA}, s{S_MA}, 7168')
    stamp_flush(a,prof,8,2,VPA)
    a(f'''s_add_u32 s{S_STEP}, s{S_STEP}, 1
    s_branch {loop}
    {fin}:''')
    if wi_late or nx: wi_export()
    a('s_waitcnt vmcnt(0)')
    if nx: a(f'buffer_store_dword v{VONE}, v{VHS}, s[8:11], s{S_WF} offen sc1\nbuffer_store_dword v{VONE}, v{VHS}, s[8:11], s{S_WF} offen offset:224 sc1\ns_waitcnt vmcnt(0)')
    elif om: a(f's_barrier\nbuffer_store_dword v{VONE}, v{VF1}, s[8:11], s{S_FF} offen sc1\ns_waitcnt vmcnt(0)')
    prof_dump(a,prof)
    a('s_endpgm')

def roles(a, name, prof, clk, nsteps, om, o):
    l1=name+'_m1'
    if not o.get('static',0):
        lv=name+'_val'
        a(f's_cmp_ge_u32 s{S_ROLE}, 16\ns_cbranch_scc1 {lv}')
        score_role(a,prof,nsteps,clk,None,o); a(f'{lv}:'); value_role(a,prof,nsteps,om,None,o); return
    a(f's_cmp_lg_u32 s{S_MODE}, 0\ns_cbranch_scc1 {l1}')
    for mode in (0,1):
        lv=f'{name}_val{mode}'
        if mode: a(f'{l1}:')
        a(f's_cmp_ge_u32 s{S_ROLE}, 16\ns_cbranch_scc1 {lv}')
        score_role(a,prof if mode==0 else False,nsteps,clk and mode==0,mode,o)
        a(f'{lv}:')
        value_role(a,prof if mode==0 else False,nsteps,om,mode,o)
def rec_kernel(name, prof=False, nsteps=63, clk=False, o={}):
    a=Asm(); a.l.append(head(name))
    ex=name+'_exit'
    prologue(a,256,ex)
    election(a,LS_ROLE)
    a(f'''s_cmp_ge_u32 s{S_ROLE}, {NROLE}
    s_cbranch_scc1 {ex}''')
    roles(a,name,prof,clk,nsteps,False,o)
    a(f'{ex}:\ns_endpgm')
    return a.text()+kd(name,vgpr=256,agpr=256)
REC_LDS=78080+8192+256
if __name__=='__main__':
    n='rec_kernel'
    t=f'; @launch kernel={n} grid=(256,1,1) block=(256,1,1) lds={REC_LDS}\n.amdgcn_target "amdgcn-amd-amdhsa--gfx950"\n'+rec_kernel(n,prof=True)
    open('rec_test.s','w').write(t)
    print(len(t))
SNAMES=['poll','B1+rd','tgemm','scores','softmax/dma']
VNAMES=['poll','B1+rd','wgemm','Ppoll+pz','reduce']
```

```python
from common import *
import struct
def fbits(x): return struct.unpack('<I',struct.pack('<f',x))[0]
def load_ptr_srd(a, karg, s, nbytes, tmp=4):
    a(f's_load_dwordx2 s[{tmp}:{tmp+1}], s[0:1], {KA[karg]}')
    return lambda: srd(a,s,tmp,nbytes)

def reduce32(a, s, t):
    a('s_nop 1')
    for r in (8,4,2,1):
        a(f'v_add_f32_dpp v{s}, v{s}, v{s} row_ror:{r} row_mask:0xf bank_mask:0xf')
        a('s_nop 1')
    a(f'v_mov_b32 v{t}, v{s}\ns_nop 1\nv_permlane16_swap_b32 v{s}, v{t}\nv_add_f32 v{s}, v{s}, v{t}')

def ln_core(a, X, F, T, s_mask, s_act, packed=True):
    if packed:
        for i in range(8):
            a(f'v_lshlrev_b32 v{F+2*i}, 16, v{X+i}\nv_and_b32 v{F+2*i+1}, s{s_mask}, v{X+i}')
    a(f'''v_pk_add_f32 v[{T}:{T+1}], v[{F}:{F+1}], v[{F+2}:{F+3}]
    v_pk_add_f32 v[{T+2}:{T+3}], v[{F+4}:{F+5}], v[{F+6}:{F+7}]
    v_pk_add_f32 v[{T+4}:{T+5}], v[{F+8}:{F+9}], v[{F+10}:{F+11}]
    v_pk_add_f32 v[{T+6}:{T+7}], v[{F+12}:{F+13}], v[{F+14}:{F+15}]
    v_pk_add_f32 v[{T}:{T+1}], v[{T}:{T+1}], v[{T+2}:{T+3}]
    v_pk_add_f32 v[{T+4}:{T+5}], v[{T+4}:{T+5}], v[{T+6}:{T+7}]
    v_pk_add_f32 v[{T}:{T+1}], v[{T}:{T+1}], v[{T+4}:{T+5}]
    v_add_f32 v{T}, v{T}, v{T+1}''')
    reduce32(a,T,T+1)
    a(f'''v_mul_f32 v{T}, {hex(fbits(1/448.0))}, v{T}
    v_cndmask_b32 v{T+2}, 0, v{T}, s[{s_act}:{s_act+1}]''')
    for i in range(8):
        t=X+2*(i&3) if X%2==0 else None
        acc=T+4+2*(i&1)
        a(f'v_pk_add_f32 v[{t}:{t+1}], v[{F+2*i}:{F+2*i+1}], v[{T+2}:{T+3}] op_sel_hi:[1,0] neg_lo:[0,1] neg_hi:[0,1]')
        if i<2: a(f'v_pk_mul_f32 v[{acc}:{acc+1}], v[{t}:{t+1}], v[{t}:{t+1}]')
        else: a(f'v_pk_fma_f32 v[{acc}:{acc+1}], v[{t}:{t+1}], v[{t}:{t+1}], v[{acc}:{acc+1}]')
    a(f'''v_pk_add_f32 v[{T+4}:{T+5}], v[{T+4}:{T+5}], v[{T+6}:{T+7}]
    v_add_f32 v{T+4}, v{T+4}, v{T+5}''')
    reduce32(a,T+4,T+5)
    a(f'''v_mul_f32 v{T+4}, {hex(fbits(1/448.0))}, v{T+4}
    v_cvt_pk_bf16_f32 v{T}, v{T}, v{T}
    v_cvt_pk_bf16_f32 v{T+4}, v{T+4}, v{T+4}
    v_and_b32 v{T}, s{s_mask}, v{T}
    v_and_b32 v{T+4}, s{s_mask}, v{T+4}
    v_add_f32 v{T+4}, {hex(fbits(1e-5))}, v{T+4}
    v_cvt_pk_bf16_f32 v{T+4}, v{T+4}, v{T+4}
    v_and_b32 v{T+4}, s{s_mask}, v{T+4}
    v_sqrt_f32 v{T+4}, v{T+4}
    s_nop 0
    v_cvt_pk_bf16_f32 v{T+4}, v{T+4}, v{T+4}
    v_and_b32 v{T+4}, s{s_mask}, v{T+4}
    v_rcp_f32 v{T+4}, v{T+4}
    s_nop 0''')
    for i in range(8):
        f=F+2*i
        a(f'''v_pk_add_f32 v[{f}:{f+1}], v[{f}:{f+1}], v[{T}:{T+1}] op_sel_hi:[1,0] neg_lo:[0,1] neg_hi:[0,1]
        v_cvt_pk_bf16_f32 v{X+i}, v{f}, v{f+1}''')
    for i in range(8):
        f=F+2*i
        a(f'''v_lshlrev_b32 v{f}, 16, v{X+i}
        v_and_b32 v{f+1}, s{s_mask}, v{X+i}
        v_pk_mul_f32 v[{f}:{f+1}], v[{f}:{f+1}], v[{T+4}:{T+5}] op_sel_hi:[1,0]''')
    for i in range(8):
        f=F+2*i
        a(f'v_cvt_pk_bf16_f32 v{X+i}, v{f}, v{f+1}')

def ln_multi(a, insts, s_mask, s_act):
    ls=[]
    for X,F,T in insts:
        b=Asm(); ln_core(b,X,F,T,s_mask,s_act); ls.append([x for x in b.l if not (len(insts)>=3 and x.startswith('s_nop'))])
    n=max(len(l) for l in ls)
    for i in range(n):
        for l in ls:
            if i<len(l): a(l[i])

RS=912
def emit_images(a, LR, s_wave, s_seg, s_iota, tv, ts, srd_ws=8):
    V=tv; D=tv+8
    a(f'''v_and_b32 v{V}, 1, v0
    v_lshrrev_b32 v{V+1}, 1, v0
    v_and_b32 v{V+1}, 1, v{V+1}
    v_lshlrev_b32 v{V+1}, 3, v{V+1}
    v_add_u32 v{V}, v{V}, v{V+1}
    v_lshrrev_b32 v{V+1}, 2, v0
    v_and_b32 v{V+1}, 1, v{V+1}
    v_lshlrev_b32 v{V+1}, 2, v{V+1}
    v_add_u32 v{V}, v{V}, v{V+1}
    v_lshrrev_b32 v{V+1}, 3, v0
    v_and_b32 v{V+1}, 1, v{V+1}
    v_lshlrev_b32 v{V+1}, 1, v{V+1}
    v_add_u32 v{V}, v{V}, v{V+1}
    v_mul_u32_u24 v{V}, {RS}, v{V}
    s_mul_i32 s{ts}, s{s_wave}, 224
    s_add_u32 s{ts}, s{ts}, {LR}
    v_lshrrev_b32 v{V+1}, 4, v0
    v_lshlrev_b32 v{V+2}, 4, v{V+1}
    v_add3_u32 v{V+2}, v{V}, v{V+2}, s{ts}
    v_lshlrev_b32 v{V+3}, 3, v{V+1}
    v_add3_u32 v{V+3}, v{V}, v{V+3}, s{ts}''')
    for j in range(3): a(f'ds_read_b128 v[{D+4*j}:{D+4*j+3}], v{V+2} offset:{64*j}')
    a(f'ds_read_b64 v[{D+12}:{D+13}], v{V+3} offset:192')
    a(f'''s_mul_i32 s{ts}, s{s_seg}, 28672
    s_mul_i32 s{ts+1}, s{s_wave}, 7168
    s_add_u32 s{ts}, s{ts}, s{ts+1}
    s_add_u32 s{ts}, s{ts}, {ws.XK}
    s_mul_i32 s{ts+1}, s{s_iota}, 3072
    s_add_u32 s{ts+1}, s{ts+1}, s{ts}
    s_lshl_b32 s{ts+2}, s{s_iota}, 9
    s_add_u32 s{ts+2}, s{ts+2}, s{ts}
    s_add_u32 s{ts+2}, s{ts+2}, 6144
    v_lshlrev_b32 v{V+4}, 4, v0
    v_lshlrev_b32 v{V+5}, 3, v0''')
    for j in range(3):
        a(f's_waitcnt lgkmcnt({3-j})\nbuffer_store_dwordx4 v[{D+4*j}:{D+4*j+3}], v{V+4}, s[{srd_ws}:{srd_ws+3}], s{ts+1} offen offset:{1024*j}')
    a(f's_waitcnt lgkmcnt(0)\nbuffer_store_dwordx2 v[{D+12}:{D+13}], v{V+5}, s[{srd_ws}:{srd_ws+3}], s{ts+2} offen')
    a(f'''v_and_b32 v{V}, 7, v0
    v_lshrrev_b32 v{V+1}, 2, v{V}
    v_lshlrev_b32 v{V+1}, 2, v{V+1}
    v_and_b32 v{V+2}, 3, v0
    v_add_u32 v{V+1}, v{V+1}, v{V+2}
    v_mul_u32_u24 v{V+1}, {RS}, v{V+1}
    v_lshrrev_b32 v{V+2}, 5, v0
    v_lshlrev_b32 v{V+3}, 6, v{V+2}
    v_add_u32 v{V+1}, v{V+1}, v{V+3}
    v_lshrrev_b32 v{V+3}, 4, v0
    v_and_b32 v{V+3}, 1, v{V+3}
    v_lshlrev_b32 v{V+3}, 5, v{V+3}
    v_add_u32 v{V+1}, v{V+1}, v{V+3}
    v_lshrrev_b32 v{V+3}, 3, v0
    v_and_b32 v{V+3}, 1, v{V+3}
    v_lshlrev_b32 v{V+3}, 3, v{V+3}
    v_add3_u32 v{V+1}, v{V+1}, v{V+3}, {LR}''' if LR<=64 else f'''v_and_b32 v{V}, 7, v0
    v_lshrrev_b32 v{V+1}, 2, v{V}
    v_lshlrev_b32 v{V+1}, 2, v{V+1}
    v_and_b32 v{V+2}, 3, v0
    v_add_u32 v{V+1}, v{V+1}, v{V+2}
    v_mul_u32_u24 v{V+1}, {RS}, v{V+1}
    v_lshrrev_b32 v{V+2}, 5, v0
    v_lshlrev_b32 v{V+3}, 6, v{V+2}
    v_add_u32 v{V+1}, v{V+1}, v{V+3}
    v_lshrrev_b32 v{V+3}, 4, v0
    v_and_b32 v{V+3}, 1, v{V+3}
    v_lshlrev_b32 v{V+3}, 5, v{V+3}
    v_add_u32 v{V+1}, v{V+1}, v{V+3}
    v_lshrrev_b32 v{V+3}, 3, v0
    v_and_b32 v{V+3}, 1, v{V+3}
    v_lshlrev_b32 v{V+3}, 3, v{V+3}
    v_add_u32 v{V+1}, v{V+1}, v{V+3}
    v_add_u32 v{V+1}, {LR}, v{V+1}''')
    a(f'''v_lshlrev_b32 v{V+2}, 10, v{V+2}
    v_lshrrev_b32 v{V+3}, 3, v0
    v_and_b32 v{V+3}, 3, v{V+3}
    v_lshlrev_b32 v{V+3}, 8, v{V+3}
    v_lshlrev_b32 v{V}, 4, v{V}
    v_add3_u32 v{V+2}, v{V+2}, v{V+3}, v{V}
    s_lshl_b32 s{ts+1}, s{s_iota}, 7
    v_add_u32 v{V+2}, s{ts+1}, v{V+2}
    s_mul_i32 s{ts}, s{s_seg}, 28672
    s_add_u32 s{ts}, s{ts}, {ws.XT}''')
    for n in range(4):
        lskip=a.lab('xt')
        a(f'''s_add_u32 s{ts+1}, s{s_wave}, {4*n}''')
        if n==3: a(f's_cmp_ge_u32 s{ts+1}, 14\ns_cbranch_scc1 {lskip}')
        a(f'''s_cmp_ge_u32 s{ts+1}, 7
        s_cselect_b32 s{ts+2}, {8*RS-7*128}, 0
        s_lshl_b32 s{ts+3}, s{ts+1}, 7
        s_add_u32 s{ts+2}, s{ts+2}, s{ts+3}
        v_add_u32 v{V+3}, s{ts+2}, v{V+1}
        s_lshl_b32 s{ts+1}, s{ts+1}, 11
        s_add_u32 s{ts+1}, s{ts+1}, s{ts}
        ds_read2_b32 v[{D+16+0}:{D+16+1}], v{V+3} offset0:0 offset1:4
        ds_read2_b32 v[{D+16+2}:{D+16+3}], v{V+3} offset0:1 offset1:5
        s_waitcnt lgkmcnt(0)
        buffer_store_dwordx4 v[{D+16}:{D+19}], v{V+2}, s[{srd_ws}:{srd_ws+3}], s{ts+1} offen
        s_nop 1
        {lskip}:''')

LN_LDS=16*RS
def ln_kernel(name, src):
    a=Asm(); a.l.append(head(name)); ex=name+'_exit'
    S_W=17; S_SEG=18; S_IO=19; S_MASK=20; S_ACT=22; TS=24
    a(f'''s_cmp_ge_u32 s2, 128
    s_cbranch_scc1 {ex}
    s_load_dwordx2 s[4:5], s[0:1], {KA['ws']}
    s_load_dwordx2 s[6:7], s[0:1], {KA['x']}
    v_lshrrev_b32 v1, 6, v0
    v_and_b32 v0, 63, v0
    s_lshr_b32 s{S_SEG}, s2, 1
    s_and_b32 s{S_IO}, s2, 1
    v_readfirstlane_b32 s{S_W}, v1
    s_mov_b32 s{S_MASK}, 0xffff0000
    v_and_b32 v2, 31, v0
    v_cmp_gt_u32 s[{S_ACT}:{S_ACT+1}], 28, v2
    s_waitcnt lgkmcnt(0)''')
    srd(a,8,4,0x10000000)
    if src=='x': srd(a,12,6,1835008); so='0'
    else:
        srd(a,12,4,0x10000000); so=f's{TS+3}'; a(f's_mov_b32 s{TS+3}, {src}')
    a(f'''s_lshl_b32 s{TS}, s2, 4
    s_lshl_b32 s{TS+1}, s{S_W}, 2
    s_add_u32 s{TS}, s{TS}, s{TS+1}
    v_lshrrev_b32 v3, 5, v0
    v_add_u32 v4, s{TS}, v3
    v_mul_u32_u24 v4, 896, v4
    v_lshlrev_b32 v5, 5, v2
    v_add_u32 v4, v4, v5
    v_mov_b32 v6, 0x10000000
    v_cndmask_b32 v4, v6, v4, s[{S_ACT}:{S_ACT+1}]
    v_add_u32 v7, s{TS+1}, v3
    v_mul_u32_u24 v7, {RS}, v7
    v_add_u32 v7, v7, v5''')
    for it in range(2):
        a(f'buffer_load_dwordx4 v[{8+8*it}:{11+8*it}], v4, s[12:15], {so} offen offset:{it*1792}')
        a(f'buffer_load_dwordx4 v[{12+8*it}:{15+8*it}], v4, s[12:15], {so} offen offset:{it*1792+16}')
    lp=a.lab('np')
    a(f'''s_cmp_ge_u32 s2, 17
    s_cbranch_scc1 {lp}
    s_lshl_b32 s{TS}, s2, 12
    s_lshl_b32 s{TS+1}, s{S_W}, 10
    s_add_u32 s{TS}, s{TS}, s{TS+1}
    s_add_u32 s{TS}, s{TS}, {ws.MR}
    v_lshlrev_b32 v5, 4, v0
    v_mov_b32 v60, -1
    v_mov_b32 v61, -1
    v_mov_b32 v62, -1
    v_mov_b32 v63, -1
    buffer_store_dwordx4 v[60:63], v5, s[8:11], s{TS} offen
    {lp}:''')
    a(f'''s_lshl_b32 s{TS}, s2, 8
    s_lshl_b32 s{TS+1}, s{S_W}, 6
    s_add_u32 s{TS}, s{TS}, s{TS+1}
    v_add_u32 v5, s{TS}, v0
    v_mov_b32 v60, {63*448}
    v_cmp_gt_u32 vcc, v60, v5
    v_lshlrev_b32 v5, 4, v5
    v_mov_b32 v61, 0x10000000
    v_mov_b32 v60, -1
    v_cndmask_b32 v5, v61, v5, vcc
    v_mov_b32 v61, -1
    v_mov_b32 v62, -1
    v_mov_b32 v63, -1
    s_mov_b32 s{TS}, {ws.MA+7168}
    buffer_store_dwordx4 v[60:63], v5, s[8:11], s{TS} offen''')
    lz=a.lab('nz')
    a(f'''s_sub_u32 s{TS}, s2, 17
    s_cmp_ge_u32 s{TS}, 16
    s_cbranch_scc1 {lz}
    s_lshl_b32 s{TS}, s{TS}, 12
    s_lshl_b32 s{TS+1}, s{S_W}, 10
    s_add_u32 s{TS}, s{TS}, s{TS+1}
    s_add_u32 s{TS}, s{TS}, {ws.FLG}
    v_lshlrev_b32 v5, 4, v0
    v_mov_b32 v60, 0
    v_mov_b32 v61, 0
    v_mov_b32 v62, 0
    v_mov_b32 v63, 0
    buffer_store_dwordx4 v[60:63], v5, s[8:11], s{TS} offen
    {lz}:''')
    for it in range(2):
        a(f's_waitcnt vmcnt({2 if it==0 else 0})') if False else None
    a('s_waitcnt vmcnt(0)')
    for it in range(2):
        ln_core(a, 8+8*it, 24, 40, S_MASK, S_ACT)
    a(f's_mov_b64 s[{TS}:{TS+1}], exec\ns_mov_b64 exec, s[{S_ACT}:{S_ACT+1}]')
    for it in range(2):
        a(f'ds_write_b128 v7, v[{8+8*it}:{11+8*it}] offset:{it*2*RS}')
        a(f'ds_write_b128 v7, v[{12+8*it}:{15+8*it}] offset:{it*2*RS+16}')
    a(f's_mov_b64 exec, s[{TS}:{TS+1}]\ns_waitcnt lgkmcnt(0)\ns_barrier')
    emit_images(a,0,S_W,S_SEG,S_IO,8,TS)
    a(f's_waitcnt vmcnt(0)\n{ex}:\ns_endpgm')
    return a.text()+kd(name,vgpr=64)
if __name__=='__main__':
    t='.amdgcn_target "amdgcn-amd-amdhsa--gfx950"\n'+ln_kernel('ln_kernel','x')
    open('ln.s','w').write(t)
```

```python
from common import *
import rec2 as rec, dk, j1, j2
from rec2 import S_ROLE,S_WAVE,S_MODE,S_T0,S_T1,S_T2,S_T3,S_T4,S_T5,S_T6,S_CNT,NROLE,LS_ROLE
OK_LDS=j1.J1_LDS
NJ1=112; NJ2=114
def election2(a,nrole=NROLE):
    L=a.lab
    l_w, l_nocas, l_poll, l_got, l_glob, l_fin, l_wk, l_c, l_cok, l_rec = [L('el') for _ in range(10)]
    a(f'''s_cmp_lg_u32 s{S_WAVE}, 0
    s_cbranch_scc1 {l_w}
    s_getreg_b32 s{S_T0}, hwreg(HW_REG_XCC_ID,0,4)
    s_mov_b64 exec, 1
    s_lshl_b32 s{S_T1}, s{S_T0}, 2
    v_mov_b32 v2, s{S_T1}
    v_mov_b32 v3, 1
    v_mov_b32 v6, 64
    buffer_atomic_add v3, v2, s[12:15], 0 offen sc0 sc1
    s_add_u32 s{S_T0}, s{S_T0}, 1
    s_waitcnt vmcnt(0)
    v_readfirstlane_b32 s{S_T2}, v3
    s_nop 3
    s_cmp_lg_u32 s{S_T2}, {nrole-1}
    s_cbranch_scc1 {l_nocas}
    v_mov_b32 v4, s{S_T0}
    v_mov_b32 v5, 0
    buffer_atomic_cmpswap v[4:5], v6, s[12:15], 0 offen sc0 sc1
    s_waitcnt vmcnt(0)
    {l_nocas}:
    s_mov_b32 s{S_CNT}, 400
    {l_poll}:
    buffer_load_dword v4, v6, s[12:15], 0 offen sc0 sc1
    s_waitcnt vmcnt(0)
    v_readfirstlane_b32 s{S_T3}, v4
    s_nop 3
    s_cmp_lg_u32 s{S_T3}, 0
    s_cbranch_scc1 {l_got}
    s_sub_u32 s{S_CNT}, s{S_CNT}, 1
    s_cbranch_scc0 {l_poll}
    v_mov_b32 v4, 100
    v_mov_b32 v5, 0
    buffer_atomic_cmpswap v[4:5], v6, s[12:15], 0 offen sc0 sc1
    s_waitcnt vmcnt(0)
    v_readfirstlane_b32 s{S_T3}, v4
    s_nop 3
    s_cmp_lg_u32 s{S_T3}, 0
    s_cbranch_scc1 {l_got}
    s_mov_b32 s{S_T3}, 100
    {l_got}:
    s_cmp_eq_u32 s{S_T3}, 100
    s_cbranch_scc1 {l_glob}
    s_cmp_lg_u32 s{S_T3}, s{S_T0}
    s_cbranch_scc1 {l_wk}
    s_cmp_ge_u32 s{S_T2}, {nrole}
    s_cbranch_scc1 {l_wk}
    s_mov_b32 s{S_T4}, s{S_T2}
    s_branch {l_fin}
    {l_wk}:''')
    a(f'''s_mov_b64 exec, 0xffff
    v_lshlrev_b32 v2, 2, v0
    s_mov_b32 s{S_CNT}, 2000
    {l_c}:
    buffer_load_dword v3, v2, s[12:15], 0 offen sc0 sc1
    s_waitcnt vmcnt(0)
    s_mov_b32 s{S_T5}, 0
    s_mov_b32 s{S_T6}, 0''')
    for x in range(16):
        ls=L('els')
        a(f'''v_readlane_b32 s30, v3, {x}
        s_nop 3
        s_add_u32 s{S_T5}, s{S_T5}, s30
        s_cmp_eq_u32 s{S_T3}, {x+1}
        s_cbranch_scc1 {ls}
        s_cmp_eq_u32 s{S_T0}, s{S_T3}
        s_cselect_b32 s31, 99, s{S_T0}
        s_cmp_gt_u32 s31, {x+1}
        s_cselect_b32 s30, s30, 0
        s_add_u32 s{S_T6}, s{S_T6}, s30
        {ls}:''')
    a(f'''s_cmp_ge_u32 s{S_T5}, 256
    s_cbranch_scc1 {l_cok}
    s_sub_u32 s{S_CNT}, s{S_CNT}, 1
    s_cbranch_scc0 {l_c}
    s_mov_b32 s{S_T6}, 1000
    {l_cok}:
    s_cmp_eq_u32 s{S_T0}, s{S_T3}
    s_cselect_b32 s30, {nrole}, 0
    s_sub_u32 s{S_T4}, s{S_T2}, s30
    s_add_u32 s{S_T4}, s{S_T4}, s{S_T6}
    s_add_u32 s{S_T4}, s{S_T4}, {nrole}
    s_min_u32 s{S_T4}, s{S_T4}, 0x3ff
    s_mov_b64 exec, 1
    s_branch {l_fin}
    {l_glob}:
    v_mov_b32 v3, 1
    v_mov_b32 v6, 68
    buffer_atomic_add v3, v6, s[12:15], 0 offen sc0 sc1
    s_waitcnt vmcnt(0)
    v_readfirstlane_b32 s{S_T4}, v3
    s_nop 3
    s_min_u32 s{S_T4}, s{S_T4}, 0x3ff
    s_or_b32 s{S_T4}, s{S_T4}, 0x400
    {l_fin}:
    v_mov_b32 v2, {LS_ROLE}
    v_mov_b32 v3, s{S_T4}
    ds_write_b32 v2, v3
    s_waitcnt lgkmcnt(0)
    s_mov_b64 exec, -1
    {l_w}:
    s_barrier
    v_mov_b32 v2, {LS_ROLE}
    ds_read_b32 v3, v2
    s_waitcnt lgkmcnt(0)
    v_readfirstlane_b32 s{S_T4}, v3
    s_nop 3
    s_and_b32 s{S_ROLE}, s{S_T4}, 0x3ff
    s_lshr_b32 s{S_MODE}, s{S_T4}, 10
    s_barrier''')

OPT=dict(fill=1,static=1,xkbar=1,vfill=1,dls=['pre']*8,wi_late=1,hlp=2,hslp=4,dfl=8)
def tstamp(a,i,tl):
    if tl: a(f's_memrealtime s[{70+2*i}:{71+2*i}]')
def tdump(a,n,tl,wk=False):
    if not tl: return
    if wk: a(f's_add_u32 s{S_ROLE}, s58, {wk}')
    a(f'''s_waitcnt lgkmcnt(0)
    s_lshl_b32 s{S_T0}, s{S_ROLE}, 2
    s_add_u32 s{S_T0}, s{S_T0}, s{S_WAVE}
    s_lshl_b32 s{S_T0}, s{S_T0}, 6
    s_add_u32 s{S_T0}, s{S_T0}, {ws.PROF+0xE0000}
    s_mov_b64 exec, -1
    v_mov_b32 v2, 0''')
    for i in range(n): a(f'v_writelane_b32 v2, s{70+2*i}, {i}')
    a(f'''v_lshlrev_b32 v3, 2, v0
    v_mov_b32 v4, 0x10000000
    v_cmp_gt_u32 vcc, 16, v0
    s_nop 1
    v_cndmask_b32 v3, v4, v3, vcc
    buffer_store_dword v2, v3, s[8:11], s{S_T0} offen
    s_waitcnt vmcnt(0)''')
def o_kernel(name, src, prof=False, clk=False, workers=True, o=None, tl=False):
    o=OPT if o is None else o
    a=Asm(); a.l.append(head(name))
    ex=name+'_exit'; lv=name+'_val'; lwk=name+'_wk'; lj2=name+'_j2'; lnd=name+'_nd'
    tstamp(a,0,tl)
    hlp=o.get('hlp',0); NR=32 if hlp else NROLE; NJ2_=112 if hlp else NJ2
    rec.prologue(a,256,ex)
    election2(a,NR)
    tstamp(a,1,tl)
    o=dict(o); o['tl']=(lambda i: tstamp(a,i,tl), lambda n: tdump(a,n,tl))
    a(f'''s_cmp_ge_u32 s{S_ROLE}, {NR}
    s_cbranch_scc1 {lwk}''')
    rec.roles(a,name,prof,clk,63,True,o)
    a(f'{lwk}:')
    a(f'''s_sub_u32 s58, s{S_ROLE}, {NR}
    s_cmp_ge_u32 s58, {NJ1+NJ2_}
    s_cbranch_scc1 {ex}
    s_cmp_ge_u32 s58, 224
    s_cbranch_scc1 {lnd}''')
    a(f'''s_and_b32 s18, s58, 3
    s_lshr_b32 s21, s58, 2
    s_lshr_b32 s16, s21, 2
    s_and_b32 s19, s21, 3''')
    dk.d_body(a,16,19,18,S_WAVE,stflags='sc1',flags=True)
    a(f's_barrier\n{lnd}:')
    tstamp(a,2,tl)
    a(f's_cmp_ge_u32 s58, {NJ1}\ns_cbranch_scc1 {lj2}')
    div_const(a,16,58,7,112)
    a(f'''s_mul_i32 s18, s16, 7
    s_sub_u32 s18, s58, s18
    s_cmp_eq_u32 s18, 0
    s_cselect_b32 s19, 10, 9''')
    j1.j1_body(a,16,18,S_WAVE,None,7,stflags='sc1',om=True,S_N=19)
    tstamp(a,3,tl); tdump(a,4,tl,NR)
    a(f's_endpgm\n{lj2}:')
    a(f's_sub_u32 s16, s58, {NJ1}')
    if src=='x':
        a(f"s_load_dwordx2 s[6:7], s[0:1], {KA['x']}\ns_waitcnt lgkmcnt(0)"); srd(a,12,6,1835008); rs,so='s[12:15]','0'
    else: a(f's_mov_b32 s22, {src}'); rs,so='s[8:11]','s22'
    a(f's_mov_b32 s19, {ws.X1}')
    j2.j2_om(a,16,S_WAVE,rs,so,'s19',NJ2_,nx=o.get('nx',0) or hlp)
    tstamp(a,3,tl); tdump(a,4,tl,NR)
    a(f'{ex}:\ns_endpgm')
    return a.text()+kd(name,vgpr=256,agpr=256)
if __name__=='__main__':
    t='.amdgcn_target "amdgcn-amd-amdhsa--gfx950"\n'+o_kernel('o_kernel','x')
    open('ok.s','w').write(t); print(len(t))
```

```python
from asm import *
from lay import ws
NROLE=30
S_WS=8; S_DBG=12
S_ROLE=16; S_WAVE=17; S_STEP=18; S_LIM=19; S_MODE=20
S_T0=21; S_T1=22; S_T2=23; S_T3=24; S_T4=25; S_T5=26; S_T6=27
S_CNT=28
POLL_LIM=20000

def prologue(a, nwg, exitlab):
    a(f'''s_cmp_ge_u32 s2, {nwg}
    s_cbranch_scc1 {exitlab}
    s_load_dwordx2 s[4:5], s[0:1], 96
    s_load_dwordx2 s[6:7], s[0:1], 88
    v_lshrrev_b32 v1, 6, v0
    v_and_b32 v0, 63, v0
    s_waitcnt lgkmcnt(0)
    v_readfirstlane_b32 s{S_WAVE}, v1
    s_mov_b32 s8, s4
    s_mov_b32 s9, s5
    s_mov_b32 s10, 0x10000000
    s_mov_b32 s11, 0x00020000
    s_mov_b32 s12, s6
    s_mov_b32 s13, s7
    s_mov_b32 s14, 256
    s_mov_b32 s15, 0x00020000''')

def election(a, lds_role, nrole=NROLE):
    L=a.lab
    l_w, l_nocas, l_poll, l_got, l_glob, l_fin, l_none, l_wr = [L('el') for _ in range(8)]
    a(f'''s_cmp_lg_u32 s{S_WAVE}, 0
    s_cbranch_scc1 {l_w}
    s_getreg_b32 s{S_T0}, hwreg(HW_REG_XCC_ID,0,4)
    s_mov_b64 exec, 1
    s_lshl_b32 s{S_T1}, s{S_T0}, 2
    v_mov_b32 v2, s{S_T1}
    v_mov_b32 v3, 1
    v_mov_b32 v6, 64
    buffer_atomic_add v3, v2, s[12:15], 0 offen sc0 sc1
    s_add_u32 s{S_T0}, s{S_T0}, 1
    s_waitcnt vmcnt(0)
    v_readfirstlane_b32 s{S_T2}, v3
    s_nop 3
    s_cmp_lg_u32 s{S_T2}, {nrole-1}
    s_cbranch_scc1 {l_nocas}
    v_mov_b32 v4, s{S_T0}
    v_mov_b32 v5, 0
    buffer_atomic_cmpswap v[4:5], v6, s[12:15], 0 offen sc0 sc1
    s_waitcnt vmcnt(0)
    {l_nocas}:
    s_mov_b32 s{S_CNT}, 200
    {l_poll}:
    buffer_load_dword v4, v6, s[12:15], 0 offen sc0 sc1
    s_waitcnt vmcnt(0)
    v_readfirstlane_b32 s{S_T3}, v4
    s_nop 3
    s_cmp_lg_u32 s{S_T3}, 0
    s_cbranch_scc1 {l_got}
    s_sub_u32 s{S_CNT}, s{S_CNT}, 1
    s_cbranch_scc0 {l_poll}
    v_mov_b32 v4, 100
    v_mov_b32 v5, 0
    buffer_atomic_cmpswap v[4:5], v6, s[12:15], 0 offen sc0 sc1
    s_waitcnt vmcnt(0)
    v_readfirstlane_b32 s{S_T3}, v4
    s_nop 3
    s_cmp_lg_u32 s{S_T3}, 0
    s_cbranch_scc1 {l_got}
    s_mov_b32 s{S_T3}, 100
    {l_got}:
    s_cmp_eq_u32 s{S_T3}, 100
    s_cbranch_scc1 {l_glob}
    s_cmp_lg_u32 s{S_T3}, s{S_T0}
    s_cbranch_scc1 {l_none}
    s_mov_b32 s{S_T4}, s{S_T2}
    s_branch {l_fin}
    {l_glob}:
    v_mov_b32 v3, 1
    v_mov_b32 v6, 68
    buffer_atomic_add v3, v6, s[12:15], 0 offen sc0 sc1
    s_waitcnt vmcnt(0)
    v_readfirstlane_b32 s{S_T4}, v3
    s_nop 3
    s_min_u32 s{S_T4}, s{S_T4}, 255
    s_or_b32 s{S_T4}, s{S_T4}, 0x100
    s_branch {l_fin}
    {l_none}:
    s_mov_b32 s{S_T4}, 255
    {l_fin}:
    v_mov_b32 v2, {lds_role}
    v_mov_b32 v3, s{S_T4}
    ds_write_b32 v2, v3
    s_waitcnt lgkmcnt(0)
    s_mov_b64 exec, -1
    {l_w}:
    s_barrier
    v_mov_b32 v2, {lds_role}
    ds_read_b32 v3, v2
    s_waitcnt lgkmcnt(0)
    v_readfirstlane_b32 s{S_T4}, v3
    s_nop 3
    s_and_b32 s{S_ROLE}, s{S_T4}, 0xff
    s_lshr_b32 s{S_MODE}, s{S_T4}, 8''')

class DsTrack:
    def __init__(s,a): s.a=a; s.q=[]; s.done=0
    def note(s,tag): s.q.append(tag)
    def ds(s,ins,tag): s.a(ins); s.q.append(tag)
    def wait(s,tag):
        i=s.q.index(tag)+1
        if i<=s.done: return
        n=len(s.q)-i
        s.a(f's_waitcnt lgkmcnt({min(n,15)})'); s.done=max(i,len(s.q)-min(n,15))
def load_frags(a, nfr, dst, voff, soff, flags='nt'):
    for f in range(nfr):
        k,b=dst(f)
        for eta in range(2):
            r=(ar if k=='a' else vr)(b+4*eta,4)
            off=((2*f+eta)&3)*1024
            a(f'buffer_load_dwordx4 {r}, v{voff}, s[8:11], s{soff} offen offset:{off} {flags}' if off else f'buffer_load_dwordx4 {r}, v{voff}, s[8:11], s{soff} offen {flags}')
            if ((2*f+eta)&3)==3: a(f's_add_u32 s{soff}, s{soff}, 4096')

LITE={'s':(0,5,6),'v':(0,3,5,6)}
CUR=['s']
def stamp(a, prof, idx):
    if prof=='lite':
        if idx in LITE[CUR[0]]: a(f's_memrealtime s[{40+2*idx}:{41+2*idx}]')
        return
    if prof: a(f"{'s_memrealtime' if prof=='rt' else 's_memtime'} s[{40+2*idx}:{41+2*idx}]")
LS_PROF=LS_PROF0=78080
def prof_init(a, prof, vaddr):
    if not prof: return
    a(f'''s_lshl_b32 s{S_T0}, s{S_WAVE}, 11
    s_add_u32 s{S_T0}, s{S_T0}, {LS_PROF}
    v_lshlrev_b32 v2, 2, v0
    v_add_u32 v{vaddr}, s{S_T0}, v2
    v_mov_b32 v3, {LS_PROF+8192}
    v_cmp_gt_u32 vcc, 8, v0
    s_nop 1
    v_cndmask_b32 v{vaddr}, v3, v{vaddr}, vcc''')
def stamp_flush(a, prof, n, vtmp, vaddr=None):
    if not prof: return
    a('s_waitcnt lgkmcnt(0)')
    for i in range(n): a(f'v_writelane_b32 v{vtmp}, s{40+2*i}, {i}')
    a(f'''s_nop 0
    ds_write_b32 v{vaddr}, v{vtmp}
    v_cmp_gt_u32 vcc, 8, v0
    v_add_u32 v{vtmp}, 32, v{vaddr}
    s_nop 0
    v_cndmask_b32 v{vaddr}, v{vaddr}, v{vtmp}, vcc''')
def prof_dump(a, prof):
    if not prof: return
    a(f'''s_waitcnt lgkmcnt(0) vmcnt(0)
    s_lshl_b32 s{S_T0}, s{S_WAVE}, 11
    s_add_u32 s{S_T0}, s{S_T0}, {LS_PROF}
    v_lshlrev_b32 v2, 5, v0
    v_add_u32 v2, s{S_T0}, v2
    ds_read_b128 v[4:7], v2
    ds_read_b128 v[8:11], v2 offset:16
    s_lshl_b32 s{S_T0}, s{S_ROLE}, 2
    s_add_u32 s{S_T0}, s{S_T0}, s{S_WAVE}
    s_lshl_b32 s{S_T0}, s{S_T0}, 12
    s_add_u32 s{S_T0}, s{S_T0}, {ws.PROF}
    v_lshlrev_b32 v3, 6, v0
    s_waitcnt lgkmcnt(0)
    buffer_store_dwordx4 v[4:7], v3, s[8:11], s{S_T0} offen
    buffer_store_dwordx4 v[8:11], v3, s[8:11], s{S_T0} offen offset:16
    s_waitcnt vmcnt(0)''')

def poll_tail(a, lab_retry, lab_ok, vchk):
    a(f'''v_cmp_eq_u32 vcc, -1, v{vchk}
    s_cbranch_vccz {lab_ok}
    s_sub_u32 s{S_CNT}, s{S_CNT}, 1
    s_cbranch_scc0 {lab_retry}
    s_mov_b32 s{S_LIM}, 0
    {lab_ok}:''')

def hint_poll(a, vaddr, soff, regs, pw, sexp, gap='s_sleep 1'):
    lb=a.lab('hb'); lr=a.lab('hr')
    a(f's_cmp_lg_u32 s{S_WAVE}, {pw}\ns_cbranch_scc1 {lb}')
    n=len(regs)
    a(f's_mov_b32 s{S_CNT}, s{S_LIM}')
    for i,r in enumerate(regs):
        a(f'buffer_load_dword v{r}, v{vaddr}, s[8:11], s{soff} offen sc1')
        if i<n-1: a(gap)
    a(f'{lr}:')
    for i,r in enumerate(regs):
        a(f'''s_waitcnt vmcnt({n-1})
        v_cmp_gt_u32 vcc, s{sexp}, v{r}
        s_cbranch_vccz {lb}
        buffer_load_dword v{r}, v{vaddr}, s[8:11], s{soff} offen sc1''')
    a(f'''s_sub_u32 s{S_CNT}, s{S_CNT}, 1
    s_cbranch_scc0 {lr}
    s_mov_b32 s{S_LIM}, 0
    {lb}:
    s_barrier''')

def store2(a, txt, mode=None):
    if mode is not None:
        for t in txt: a(t+(' sc1' if mode else ''))
        return
    return store2_dyn(a,txt)
def store2_dyn(a, txt):
    l1=a.lab('st'); l2=a.lab('st')
    a(f's_cmp_lg_u32 s{S_MODE}, 0\ns_cbranch_scc1 {l1}')
    for t in txt: a(t)
    a(f's_branch {l2}\n{l1}:')
    for t in txt: a(t+' sc1')
    a(f'{l2}:')

LS_MX=0; LS_XK=8192; LS_T2=36864; LS_SB=51200; LS_SD=59392; LS_ROLE=77824
def score_role(a, prof, nsteps=63, clk=False, mode=None, o={}):
    CUR[0]='s'
    hint=o.get('hint',0); hint_sm=o.get('hint_sm',hint); hint_vp=o.get('hint_vp',hint)
    fill=o.get('fill',0); tail=o.get('tail',0); hp_pos=o.get('hp_pos',1); SCM=' sc1' if mode else ''
    IDX=1; A0=4
    ACC=[32,36,40]; PK=44
    TF=48
    KD=62
    SC2=86
    VL16=90; VMXW=91; VMK=92; VMKO=93; VXK=94; VXKO=95; VT2W=96; VT2R=97; VSW=98; VSWM=99; VSR=100; VPST=101; VPOLL=102; VDMA=103
    NEG=104
    PL=62
    WV=120
    def wdst(f): return ('a',8*f) if f<32 else ('v',WV+8*(f-32))
    def wreg(f):
        k,b=wdst(f); return (ar if k=='a' else vr)(b,8)
    S_PO=29; S_PO2=30; S_PS=31; S_PP=32; S_XO=33; S_HO=34
    VHP=107; VHS=108; VONE=109; VPA=110
    L=a.lab
    a(f'''v_lshlrev_b32 v{VL16}, 4, v0
    s_mul_i32 s{S_T0}, s{S_ROLE}, {4*49*2048}
    s_mul_i32 s{S_T1}, s{S_WAVE}, {49*2048}
    s_add_u32 s{S_T0}, s{S_T0}, s{S_T1}
    s_add_u32 s{S_T0}, s{S_T0}, {ws.AI}''')
    load_frags(a,49,wdst,VL16,S_T0)
    a(f'''v_and_b32 v2, 8, v0
    v_mov_b32 v{IDX}, 0x44444444
    v_mov_b32 v3, 0xeeeeeeee
    v_cmp_ne_u32 vcc, 0, v2
    v_mov_b32 v{NEG}, -1
    v_mov_b32 v{NEG+1}, -1
    v_cndmask_b32 v{IDX}, v{IDX}, v3, vcc
    s_lshl_b32 s{S_T1}, s{S_WAVE}, 10
    v_add_u32 v{VMXW}, s{S_T1}, v{VL16}
    v_mov_b32 v{VPOLL}, v{VMXW}''')
    a(f'''s_movk_i32 s{S_T2}, 4096
    s_cmp_eq_u32 s{S_WAVE}, 3
    s_cselect_b32 s{S_T2}, 0x10000000, s{S_T2}
    v_add_u32 v{VDMA}, s{S_T2}, v{VPOLL}''')
    VPOLL2=106
    a(f'v_mov_b32 v{VPOLL2}, v{VDMA}')
    a(f'''v_lshrrev_b32 v2, 4, v0
    v_and_b32 v3, 7, v0
    v_lshlrev_b32 v3, 4, v3
    s_mul_i32 s{S_T1}, s{S_WAVE}, {14*128}
    v_lshlrev_b32 v4, 7, v2
    v_add3_u32 v{VMK}, v4, v3, s{S_T1}
    v_lshrrev_b32 v4, 1, v2
    v_lshlrev_b32 v4, 7, v4
    v_and_b32 v5, 1, v2
    v_lshlrev_b32 v5, 3, v5
    s_add_u32 s{S_T1}, s{S_T1}, {12*128}
    v_add3_u32 v{VMKO}, v4, v3, s{S_T1}
    v_add_u32 v{VMKO}, v{VMKO}, v5
    s_mul_i32 s{S_T1}, s{S_WAVE}, 7168
    s_add_u32 s{S_T1}, s{S_T1}, {LS_XK}
    v_add_u32 v{VXK}, s{S_T1}, v{VL16}
    v_lshlrev_b32 v4, 3, v0
    s_add_u32 s{S_T1}, s{S_T1}, 6144
    v_add_u32 v{VXKO}, s{S_T1}, v4''')
    a(f'''s_mul_i32 s{S_T1}, s{S_WAVE}, 3584
    s_add_u32 s{S_T1}, s{S_T1}, {LS_T2}
    v_and_b32 v3, 15, v0
    v_lshrrev_b32 v4, 2, v3
    v_xor_b32 v4, v4, v2
    v_lshlrev_b32 v4, 3, v4
    v_lshlrev_b32 v5, 5, v3
    v_add3_u32 v{VT2W}, v4, v5, s{S_T1}
    v_and_b32 v4, 3, v0
    v_xor_b32 v4, v4, v2
    v_lshlrev_b32 v4, 3, v4
    v_lshrrev_b32 v5, 2, v0
    v_lshlrev_b32 v5, 5, v5
    v_add3_u32 v{VT2R}, v4, v5, s{S_T1}''')
    a(f'''s_lshl_b32 s{S_T1}, s{S_WAVE}, 11
    s_add_u32 s{S_T1}, s{S_T1}, {LS_SB}
    v_and_b32 v4, 7, v0
    v_lshrrev_b32 v5, 3, v3
    v_lshlrev_b32 v6, 2, v5
    v_add_u32 v6, v6, v2
    v_lshrrev_b32 v7, 1, v6
    v_add_u32 v7, v7, v4
    v_and_b32 v7, 7, v7
    v_lshlrev_b32 v7, 4, v7
    v_lshlrev_b32 v6, 7, v6
    v_add3_u32 v{VSW}, v6, v7, s{S_T1}''')
    a(f'''v_add_u32 v6, 8, v2
    v_lshrrev_b32 v7, 1, v6
    v_add_u32 v7, v7, v4
    v_and_b32 v7, 7, v7
    v_lshlrev_b32 v7, 4, v7
    v_lshlrev_b32 v6, 7, v6
    v_add3_u32 v{VSWM}, v6, v7, s{S_T1}
    v_lshrrev_b32 v6, 1, v2
    v_or_b32 v6, v6, v5
    v_add_u32 v7, {LS_SD}, v{VL16}
    v_cmp_ne_u32 vcc, 0, v6
    s_nop 1
    v_cndmask_b32 v{VSWM}, v{VSWM}, v7, vcc''')
    a(f'''s_lshl_b32 s{S_T1}, s{S_WAVE}, 2
    v_add_u32 v4, s{S_T1}, v2
    v_and_b32 v4, 7, v4
    v_lshrrev_b32 v5, 1, v3
    v_add_u32 v5, v5, v4
    v_and_b32 v5, 7, v5
    v_lshlrev_b32 v5, 4, v5
    v_lshlrev_b32 v6, 7, v3
    v_add_u32 v6, {LS_SB}, v6
    v_add_u32 v{VSR}, v6, v5''')
    a(f'''s_lshr_b32 s{S_T1}, s{S_ROLE}, 2
    s_lshl_b32 s{S_T2}, s{S_T1}, 11
    s_and_b32 s{S_T3}, s{S_ROLE}, 3
    s_lshl_b32 s{S_T3}, s{S_T3}, 8
    s_add_u32 s{S_T2}, s{S_T2}, s{S_T3}
    v_lshrrev_b32 v5, 2, v3
    v_lshlrev_b32 v5, 10, v5
    v_lshrrev_b32 v6, 1, v3
    v_and_b32 v6, 1, v6
    v_lshlrev_b32 v6, 7, v6
    v_lshlrev_b32 v7, 4, v4
    v_add3_u32 v5, v5, v6, v7
    v_and_b32 v6, 1, v3
    v_lshlrev_b32 v8, 3, v6
    v_add3_u32 v5, v5, v8, s{S_T2}
    s_lshl_b32 s{S_T2}, s{S_T1}, 9
    s_and_b32 s{S_T3}, s{S_ROLE}, 1
    s_lshl_b32 s{S_T3}, s{S_T3}, 8
    s_add_u32 s{S_T2}, s{S_T2}, s{S_T3}
    s_lshr_b32 s{S_T3}, s{S_ROLE}, 1
    s_and_b32 s{S_T3}, s{S_T3}, 1
    s_lshl_b32 s{S_T3}, s{S_T3}, 3
    s_add_u32 s{S_T2}, s{S_T2}, s{S_T3}
    s_add_u32 s{S_T2}, s{S_T2}, 8192
    v_lshlrev_b32 v8, 7, v6
    v_add3_u32 v8, v8, v7, s{S_T2}
    v_cmp_gt_u32 vcc, 8, v3
    s_nop 1
    v_cndmask_b32 v5, v8, v5, vcc
    v_mov_b32 v8, 0x10000000
    v_cmp_gt_u32 vcc, 10, v3
    s_nop 1
    v_cndmask_b32 v{VPST}, v8, v5, vcc''')
    a(f'''s_lshl_b32 s{S_T1}, s{S_WAVE}, 11
    s_add_u32 s{S_T1}, s{S_T1}, {LS_SB}
    v_lshlrev_b32 v2, 5, v0
    v_add_u32 v2, s{S_T1}, v2
    v_mov_b32 v4, 0xf149f2ca
    v_mov_b32 v5, v4
    v_mov_b32 v6, v4
    v_mov_b32 v7, v4
    ds_write_b128 v2, v[4:7]
    ds_write_b128 v2, v[4:7] offset:16''')
    def xk_dma(nxt):
        for k in range(14):
            a(f's_add_u32 m0, s{S_T5}, {k*1024}' if k else f's_mov_b32 m0, s{S_T5}')
            off=(k&3)*1024
            a(f's_add_u32 s{S_T6}, s{S_XO}, {k*1024}')
            a(f'buffer_load_dwordx4 v{VL16}, s[8:11], s{S_T6} offen lds')
    lx=L('xk')
    a(f'''s_sub_u32 s{S_T1}, s{S_WAVE}, 2
    s_mul_i32 s{S_T1}, s{S_T1}, 14336
    s_add_u32 s{S_XO}, s{S_T1}, {ws.XK}
    s_add_u32 s{S_T5}, s{S_T1}, {LS_XK}
    s_cmp_lt_u32 s{S_WAVE}, 2
    s_cbranch_scc1 {lx}''')
    xk_dma(0)
    a(f'''{lx}:
    s_mov_b32 s{S_STEP}, 0
    s_mov_b32 s{S_LIM}, {POLL_LIM}
    s_mov_b32 s{S_PO}, {ws.MA}
    s_mov_b32 s{S_HO}, {ws.H}
    v_min_u32 v{VHP}, 55, v0
    v_lshlrev_b32 v{VHP}, 2, v{VHP}
    s_lshl_b32 s{S_T1}, s{S_ROLE}, 1
    s_add_u32 s{S_T1}, s{S_T1}, s{S_WAVE}
    s_lshl_b32 s{S_T1}, s{S_T1}, 2
    s_add_u32 s{S_T1}, s{S_T1}, 256
    v_mov_b32 v2, s{S_T1}
    v_mov_b32 v3, 0x10000000
    v_cmp_eq_u32 vcc, 0, v0
    v_mov_b32 v{VONE}, 1
    s_nop 0
    v_cndmask_b32 v{VHS}, v3, v2, vcc''')
    loop=L('sloop'); pr=L('spoll'); pok=L('spok')
    prof_init(a,prof,VPA)
    if clk: a('s_waitcnt vmcnt(0)\ns_memtime s[60:61]\ns_memrealtime s[62:63]\ns_waitcnt lgkmcnt(0)')
    if 'tl' in o: o['tl'][0](2)
    a(f'{loop}:')
    stamp(a,prof,0)
    if fill:
        for r in range(0,8,2): a(f'v_mov_b64 v[{ACC[0]+r}:{ACC[0]+r+1}], 0')
    if hint_vp: a(f's_add_u32 s{S_T1}, s{S_STEP}, 1\nv_mov_b32 v{VONE}, s{S_T1}')
    if hint_sm: hint_poll(a,VHP,S_HO,[4,5,6],0,S_STEP)
    stamp(a,prof,6)
    a(f'''s_mov_b32 s{S_CNT}, s{S_LIM}
    {pr}:
    buffer_load_dwordx4 v[{PL}:{PL+3}], v{VPOLL}, s[8:11], s{S_PO} offen sc1
    buffer_load_dwordx4 v[{PL+4}:{PL+7}], v{VPOLL2}, s[8:11], s{S_PO} offen sc1
    s_waitcnt vmcnt(1)
    ds_write_b128 v{VMXW}, v[{PL}:{PL+3}]
    v_max3_u32 v2, v{PL}, v{PL+1}, v{PL+2}
    v_max_u32 v2, v2, v{PL+3}
    s_waitcnt vmcnt(0)
    ds_write_b128 v{VMXW}, v[{PL+4}:{PL+7}] offset:4096
    v_max3_u32 v2, v2, v{PL+4}, v{PL+5}
    v_max3_u32 v2, v2, v{PL+6}, v{PL+7}''')
    poll_tail(a,pr,pok,2)
    stamp(a,prof,1)
    if prof: a(f's_sub_u32 s54, s{S_LIM}, s{S_CNT}')
    a('s_waitcnt lgkmcnt(0)\ns_barrier')
    for k in range(7): a(f'ds_read_b128 v[{A0+4*k}:{A0+4*k+3}], v{VL16} offset:{k*1024}')
    if not fill:
        for r in range(8): a(f'v_mov_b32 v{ACC[0]+r}, 0')
    stamp(a,prof,2)
    a(f'''s_add_u32 s{S_T0}, s{S_STEP}, 1
    s_and_b32 s{S_T0}, s{S_T0}, 3
    s_mul_i32 s{S_T0}, s{S_T0}, 7168
    s_add_u32 s{S_PO}, s{S_T0}, {ws.MR}
    s_and_b32 s{S_T0}, s{S_STEP}, 3
    s_mul_i32 s{S_T0}, s{S_T0}, 10240
    s_add_u32 s{S_PS}, s{S_T0}, {ws.PR}
    s_add_u32 s{S_T0}, s{S_STEP}, 2
    s_and_b32 s{S_T0}, s{S_T0}, 3
    s_mul_i32 s{S_T0}, s{S_T0}, 10240
    s_add_u32 s{S_PP}, s{S_T0}, {ws.PR}''')
    def keyreg(j,x):
        if j<2: return KD+12*j+4*x
        if j==2: return A0+4*x
        return A0+12+2*x
    def keyread(j,x):
        r=keyreg(j,x)
        if j<3:
            if x==0: return f'ds_read_b128 v[{r}:{r+3}], v{VMK} offset:{j*512}'
            return f'ds_read_b128 v[{r}:{r+3}], v{VXK} offset:{((x-1)*3+j)*1024}'
        if x==0: return f'ds_read_b64 v[{r}:{r+1}], v{VMKO}'
        return f'ds_read_b64 v[{r}:{r+1}], v{VXKO} offset:{(x-1)*512}'
    def tfreg(t): return TF+2*t
    def post(t):
        ac=ACC[t%3]; pk=PK+2*(t&1)
        return ([f'v_cvt_pk_bf16_f32 v{pk}, v{ac}, v{ac+1}', f'v_cvt_pk_bf16_f32 v{pk+1}, v{ac+2}, v{ac+3}'],
                f'ds_write_b64 v{VT2W}, v[{pk}:{pk+1}] offset:{t*512}',
                f'ds_read_b64_tr_b16 v[{tfreg(t)}:{tfreg(t)+1}], v{VT2R} offset:{t*512}')
    SA=[SC2,ACC[1],ACC[2]]
    def smf(j,x):
        c='0' if j==0 else f'v[{SA[x]}:{SA[x]+3}]'
        if j<3: return f'v_mfma_f32_16x16x32_bf16 v[{SA[x]}:{SA[x]+3}], v[{keyreg(j,x)}:{keyreg(j,x)+3}], v[{TF+4*j}:{TF+4*j+3}], {c}'
        return f'v_mfma_f32_16x16x16_bf16 v[{SA[x]}:{SA[x]+3}], v[{keyreg(j,x)}:{keyreg(j,x)+1}], v[{tfreg(6)}:{tfreg(6)+1}], {c}'
    if not fill:
        kq=[keyread(j,x) for j in range(2) for x in range(3)]
        for t in range(7):
            ac=ACC[t%3]
            for k in range(7):
                if t==0: a(f's_waitcnt lgkmcnt({6-k})')
                a(f'v_smfmac_f32_16x16x64_bf16 v[{ac}:{ac+3}], v[{A0+4*k}:{A0+4*k+3}], {wreg(t*7+k)}, v{IDX}')
                fl=[]
                if t>=1:
                    cv,wr,rd=post(t-1)
                    if k==3: fl=cv
                    if k==4: fl=[wr,rd]
                if 1<=t<6 or t==0:
                    nx=ACC[(t+1)%3]
                    if t>=1:
                        if k==0: fl=[f'v_mov_b32 v{nx}, 0',f'v_mov_b32 v{nx+1}, 0']
                        if k==1: fl=[f'v_mov_b32 v{nx+2}, 0',f'v_mov_b32 v{nx+3}, 0']
                if t in (2,3,4) and k in (5,6) and kq: fl=[kq.pop(0)]
                for x in fl: a(x)
        assert not kq
        stamp(a,prof,3)
        cv,wr,rd=post(6)
        a(keyread(2,0)); a(keyread(2,1))
        a('s_waitcnt lgkmcnt(2)')
        a(smf(0,0)); a(keyread(2,2)); a(keyread(3,0))
        a(smf(0,1)); a(keyread(3,1)); a(keyread(3,2))
        a(smf(0,2)); a('s_nop 0')
        a(smf(1,0)); a(cv[0]); a(cv[1])
        a(smf(1,1)); a(wr); a(rd)
        a(smf(1,2))
        a('s_waitcnt lgkmcnt(5)')
        a(smf(2,0)); a(smf(2,1)); a(smf(2,2))
        a('s_waitcnt lgkmcnt(0)')
        a(smf(3,0)); a(smf(3,1)); a(smf(3,2))
        a('s_nop 5')
        for r in range(4): a(f'v_add_f32_dpp v{4+r}, v{SA[0]+r}, v{SA[0]+r} row_ror:8 row_mask:0xf bank_mask:0xf')
        a(f'ds_write_b128 v{VSWM}, v[4:7]')
        for r in range(4): a(f'v_add_f32_dpp v{8+r}, v{SA[1]+r}, v{SA[1]+r} row_ror:8 row_mask:0xf bank_mask:0x3')
        for r in range(4): a(f'v_add_f32_dpp v{8+r}, v{SA[2]+r}, v{SA[2]+r} row_ror:8 row_mask:0xf bank_mask:0xc')
        a(f'ds_write_b128 v{VSW}, v[8:11]')
    else:
        T=DsTrack(a)
        for k in range(7): T.note(('A',k))
        kq=[(('K',j,x),keyread(j,x)) for j in range(2) for x in range(3)]
        def post2(t):
            ac=ACC[t%3]; pk=PK+2*(t&1)
            return ([f'v_cvt_pk_bf16_f32 v{pk}, v{ac}, v{ac+1}', f'v_cvt_pk_bf16_f32 v{pk+1}, v{ac+2}, v{ac+3}'],
                    [f'ds_write_b32 v{VT2W}, v{pk} offset:{t*512}', f'ds_write_b32 v{VT2W}, v{pk+1} offset:{t*512+4}'],
                    f'ds_read_b64_tr_b16 v[{tfreg(t)}:{tfreg(t)+1}], v{VT2R} offset:{t*512}')
        for t in range(7):
            ac=ACC[t%3]
            for k in range(7):
                if t==0: T.wait(('A',k))
                a(f'v_smfmac_f32_16x16x64_bf16 v[{ac}:{ac+3}], v[{A0+4*k}:{A0+4*k+3}], {wreg(t*7+k)}, v{IDX}')
                if t>=1:
                    cv,wr,rd=post2(t-1)
                    nx=ACC[(t+1)%3]
                    if k==0 and t<6: a(f'v_mov_b64 v[{nx}:{nx+1}], 0')
                    if k==1 and t<6: a(f'v_mov_b64 v[{nx+2}:{nx+3}], 0')
                    if k==2: a(cv[0])
                    if k==3: a(cv[1])
                    if k==4: T.ds(wr[0],('W0',t-1))
                    if k==5: T.ds(wr[1],('W1',t-1))
                    if k==6: T.ds(rd,('T',t-1))
                    if t in (2,3,4) and k in (0,1) and kq:
                        tg,ins=kq.pop(0); T.ds(ins,tg)
                if t==6:
                    if k in (0,1,2): T.ds(keyread(2,k),('K',2,k))
                    if k==4: pass
                    if k==5: T.ds(keyread(3,0),('K',3,0))
                    if k==6: T.ds(keyread(3,1),('K',3,1))
        assert not kq
        stamp(a,prof,3)
        cv,_,_=post2(6); _,wr,rd=post(6)
        def S(j,x):
            T.wait(('K',j,x)); T.wait(('T',min(2*j+1,6))); a(smf(j,x))
        S(0,0); T.ds(keyread(3,2),('K',3,2))
        S(0,1); a(cv[0]); a(cv[1])
        S(0,2); T.ds(wr,('W',6)); T.ds(rd,('T',6))
        for j in range(1,4):
            for x in range(3): S(j,x)
        for r in range(4): a(f'v_add_f32_dpp v{4+r}, v{SA[0]+r}, v{SA[0]+r} row_ror:8 row_mask:0xf bank_mask:0xf')
        a(f'ds_write_b128 v{VSWM}, v[4:7]')
        for r in range(4): a(f'v_add_f32_dpp v{8+r}, v{SA[1]+r}, v{SA[1]+r} row_ror:8 row_mask:0xf bank_mask:0x3')
        for r in range(4): a(f'v_add_f32_dpp v{8+r}, v{SA[2]+r}, v{SA[2]+r} row_ror:8 row_mask:0xf bank_mask:0xc')
        a(f'ds_write_b128 v{VSW}, v[8:11]')
    a('s_waitcnt lgkmcnt(0)\ns_barrier')
    stamp(a,prof,4)
    lx=L('xk'); lnext=L('snext')
    a(f's_cmp_ge_u32 s{S_WAVE}, 2\ns_cbranch_scc1 {lx}')
    HST=f'buffer_store_dword v{VONE}, v{VHS}, s[8:11], s{S_HO} offen{SCM}'
    hp=lambda pos: HST if (hint_vp and hp_pos==pos) else ''
    a(hp(0))
    for w in range(4): a(f'ds_read_b128 v[{4+4*w}:{7+4*w}], v{VSR} offset:{w*2048}')
    a(f'''s_waitcnt lgkmcnt(2)
    v_pk_add_f32 v[4:5], v[4:5], v[8:9]
    v_pk_add_f32 v[6:7], v[6:7], v[10:11]
    s_waitcnt lgkmcnt(0)
    v_pk_add_f32 v[12:13], v[12:13], v[16:17]
    v_pk_add_f32 v[14:15], v[14:15], v[18:19]
    v_pk_add_f32 v[4:5], v[4:5], v[12:13]
    v_pk_add_f32 v[6:7], v[6:7], v[14:15]
    {hp(1)}
    v_max3_f32 v8, v4, v5, v6
    v_max_f32 v8, v8, v7
    s_nop 1
    v_max_f32_dpp v9, v8, v8 row_ror:4 row_mask:0xf bank_mask:0xf
    v_max_f32_dpp v9, v8, v9 row_ror:8 row_mask:0xf bank_mask:0xf
    v_max_f32_dpp v9, v8, v9 row_ror:12 row_mask:0xf bank_mask:0xf
    s_nop 1
    v_max_f32_dpp v10, v9, v9 row_ror:1 row_mask:0xf bank_mask:0xf
    v_max_f32_dpp v10, v9, v10 row_ror:2 row_mask:0xf bank_mask:0xf
    v_max_f32_dpp v10, v9, v10 row_ror:3 row_mask:0xf bank_mask:0xf
    {hp(2)}
    v_pk_add_f32 v[4:5], v[4:5], v[10:11] op_sel_hi:[1,0] neg_lo:[0,1] neg_hi:[0,1]
    v_pk_add_f32 v[6:7], v[6:7], v[10:11] op_sel_hi:[1,0] neg_lo:[0,1] neg_hi:[0,1]
    v_exp_f32 v4, v4
    v_exp_f32 v5, v5
    v_exp_f32 v6, v6
    v_exp_f32 v7, v7
    {hp(3)}
    v_add_f32 v8, v4, v5
    v_add_f32 v9, v6, v7
    v_add_f32 v8, v8, v9
    s_nop 1
    v_add_f32_dpp v9, v8, v8 row_ror:4 row_mask:0xf bank_mask:0xf
    v_add_f32_dpp v9, v8, v9 row_ror:8 row_mask:0xf bank_mask:0xf
    v_add_f32_dpp v9, v8, v9 row_ror:12 row_mask:0xf bank_mask:0xf
    s_nop 1
    v_add_f32_dpp v10, v9, v9 row_ror:1 row_mask:0xf bank_mask:0xf
    v_add_f32_dpp v10, v9, v10 row_ror:2 row_mask:0xf bank_mask:0xf
    v_add_f32_dpp v10, v9, v10 row_ror:3 row_mask:0xf bank_mask:0xf
    v_rcp_f32 v10, v10
    s_nop 0
    v_pk_mul_f32 v[4:5], v[4:5], v[10:11] op_sel_hi:[1,0]
    v_pk_mul_f32 v[6:7], v[6:7], v[10:11] op_sel_hi:[1,0]
    v_cvt_pk_bf16_f32 v4, v4, v5
    v_cvt_pk_bf16_f32 v5, v6, v7''')
    store2(a,[f'buffer_store_dwordx2 v[4:5], v{VPST}, s[8:11], s{S_PS} offen',
              f'buffer_store_dwordx2 v[{NEG}:{NEG+1}], v{VPST}, s[8:11], s{S_PP} offen'],mode)
    stamp(a,prof,5)
    if o.get('xkbar',0): a('s_barrier')
    a(f's_branch {lnext}\n{lx}:')
    if o.get('xkbar',0): a('s_barrier')
    a(f's_add_u32 s{S_XO}, s{S_XO}, 28672')
    xk_dma(1)
    stamp(a,prof,5)
    a(f'{lnext}:')
    stamp_flush(a,prof,8,2,VPA)
    a(f'''s_add_u32 s{S_STEP}, s{S_STEP}, 1
    s_cmp_lt_u32 s{S_STEP}, {nsteps}
    s_cbranch_scc1 {loop}''')
    if clk:
        a(f'''s_memtime s[64:65]
        s_memrealtime s[66:67]
        s_waitcnt lgkmcnt(0)
        s_sub_u32 s64, s64, s60
        s_sub_u32 s66, s66, s62
        s_lshl_b32 s{S_T0}, s{S_ROLE}, 2
        s_add_u32 s{S_T0}, s{S_T0}, s{S_WAVE}
        s_lshl_b32 s{S_T0}, s{S_T0}, 3
        s_add_u32 s{S_T0}, s{S_T0}, {ws.PROF+0xF0000}
        v_mov_b32 v2, s64
        v_mov_b32 v3, s66
        v_mov_b32 v4, 0
        s_nop 4
        buffer_store_dwordx2 v[2:3], v4, s[8:11], s{S_T0} offen''')
    prof_dump(a,prof)
    if 'tl' in o: o['tl'][0](3); o['tl'][1](4)
    a('''s_waitcnt vmcnt(0)
    s_endpgm''')

LV_MX=0; LV_W=8192; LV_R=73728
def value_role(a, prof, nsteps=63, om=False, mode=None, o={}):
    CUR[0]='v'
    hint=o.get('hint',0); hint_sm=o.get('hint_sm',hint); hint_vp=o.get('hint_vp',hint); hint_vm=o.get('hint_vm',hint); nx=(o.get('nx',0) if om else 0)
    fill=o.get('fill',0); hm_pos=o.get('hm_pos',1); wi_late=o.get('wi_late',0); SCM=' sc1' if mode else ''
    IDX=1; A0=4
    DF=32
    WB=64
    ACC=[72,76,80,84]; XA=88
    ST=92
    VL16=108; VMXW=109; VPOLL=109; VPOLL2=111; VWL=112; VPX=113; VPM=114; VRW=115; VRR=116; VMS=117
    NEG=118
    VFLAG=120; VZERO=121; VONE=122; VF1=123
    VHP=124; VHM=125; VHS=126; VHV=127; S_HO=57; S_HE=59; S_WF=61; S_W1=62; S_M1=63; VMA=3
    S_DFL=39; S_FF=56
    WV=128
    def wdst(f): return ('a',8*f) if f<32 else ('v',WV+8*(f-32))
    def wreg(f):
        k,b=wdst(f); return (ar if k=='a' else vr)(b,8)
    S_V=29; S_PO=30; S_PS=31; S_MS=32; S_MP=33; S_MA=34; S_DO=35; S_WO=38
    L=a.lab
    a(f'''s_sub_u32 s{S_V}, s{S_ROLE}, 16
    v_lshlrev_b32 v{VL16}, 4, v0
    s_lshl_b32 s{S_T0}, s{S_V}, 2
    s_add_u32 s{S_T0}, s{S_T0}, s{S_WAVE}
    s_mul_i32 s{S_T0}, s{S_T0}, {56*2048}
    s_add_u32 s{S_T0}, s{S_T0}, {ws.CI}''')
    load_frags(a,48,wdst,VL16,S_T0)
    a(f'''s_lshl_b32 s{S_T1}, s{S_WAVE}, 14
    s_add_u32 s{S_T1}, s{S_T1}, {LV_W}''')
    for k in range(16):
        a(f's_add_u32 m0, s{S_T1}, {k*1024}\ns_add_u32 s{S_T2}, s{S_T0}, {k*1024}\nbuffer_load_dwordx4 v{VL16}, s[8:11], s{S_T2} offen lds')
    a(f'''v_add_u32 v{VWL}, s{S_T1}, v{VL16}
    v_and_b32 v2, 8, v0
    v_mov_b32 v{IDX}, 0x44444444
    v_mov_b32 v3, 0xeeeeeeee
    v_cmp_ne_u32 vcc, 0, v2
    v_mov_b32 v{NEG}, -1
    v_mov_b32 v{NEG+1}, -1
    v_cndmask_b32 v{IDX}, v{IDX}, v3, vcc
    s_lshl_b32 s{S_T1}, s{S_WAVE}, 10
    v_add_u32 v{VMXW}, s{S_T1}, v{VL16}
    s_movk_i32 s{S_T2}, 4096
    s_cmp_eq_u32 s{S_WAVE}, 3
    s_cselect_b32 s{S_T2}, 0x10000000, s{S_T2}
    v_add_u32 v{VPOLL2}, s{S_T2}, v{VPOLL}''')
    a(f'''s_lshl_b32 s{S_T1}, s{S_WAVE}, 11
    v_add_u32 v{VPX}, s{S_T1}, v{VL16}
    s_lshl_b32 s{S_T1}, s{S_WAVE}, 9
    s_add_u32 s{S_T1}, s{S_T1}, 8192
    v_lshrrev_b32 v2, 4, v0
    v_and_b32 v3, 15, v0
    v_lshlrev_b32 v4, 7, v2
    v_lshlrev_b32 v5, 4, v3
    v_add3_u32 v4, v4, v5, s{S_T1}
    v_mov_b32 v5, 0x10000000
    v_cmp_gt_u32 vcc, 8, v3
    s_nop 1
    v_cndmask_b32 v{VPM}, v5, v4, vcc''')
    a(f'''s_lshl_b32 s{S_T1}, s{S_WAVE}, 10
    s_add_u32 s{S_T1}, s{S_T1}, {LV_R}
    v_lshlrev_b32 v4, 2, v0
    v_add_u32 v{VRW}, s{S_T1}, v4
    v_add_u32 v{VRR}, {LV_R}, v{VL16}''')
    a(f'''v_lshrrev_b32 v2, 4, v0
    v_lshrrev_b32 v3, 2, v0
    v_and_b32 v3, 1, v3
    v_lshlrev_b32 v3, 2, v3
    v_add_u32 v2, v2, v3
    v_lshlrev_b32 v2, 4, v2
    v_lshrrev_b32 v3, 3, v0
    v_and_b32 v3, 1, v3
    v_lshlrev_b32 v3, 1, v3
    v_lshrrev_b32 v4, 1, v0
    v_and_b32 v4, 1, v4
    v_add_u32 v3, v3, v4
    v_lshlrev_b32 v3, 7, v3
    v_and_b32 v4, 1, v0
    v_lshlrev_b32 v4, 3, v4
    v_add3_u32 v2, v2, v3, v4
    s_lshl_b32 s{S_T1}, s{S_V}, 9
    v_add_u32 v{VMS}, s{S_T1}, v2''')
    a(f'''s_lshl_b32 s{S_T1}, s{S_V}, 15
    s_lshl_b32 s{S_T2}, s{S_WAVE}, 13
    s_add_u32 s{S_DO}, s{S_T1}, s{S_T2}
    s_add_u32 s{S_DO}, s{S_DO}, {ws.DI}
    s_lshl_b32 s{S_T1}, s{S_V}, 13
    s_lshl_b32 s{S_T2}, s{S_WAVE}, 11
    s_add_u32 s{S_WO}, s{S_T1}, s{S_T2}
    s_add_u32 s{S_WO}, s{S_WO}, {ws.WI}
    s_mov_b32 s{S_STEP}, 0
    s_mov_b32 s{S_LIM}, {POLL_LIM}
    s_mov_b32 s{S_PO}, {ws.MA}
    s_mov_b32 s{S_MA}, {ws.MA+7168}
    s_mov_b32 s{S_HO}, {ws.H}
    v_min_u32 v{VHM}, 55, v0
    v_lshlrev_b32 v{VHM}, 2, v{VHM}
    v_and_b32 v{VHP}, 31, v0
    v_lshlrev_b32 v{VHP}, 2, v{VHP}
    v_add_u32 v{VHP}, 256, v{VHP}
    s_lshl_b32 s{S_T1}, s{S_V}, 2
    s_add_u32 s{S_T1}, s{S_T1}, s{S_WAVE}
    s_lshl_b32 s{S_T1}, s{S_T1}, 2
    v_mov_b32 v2, s{S_T1}
    v_mov_b32 v3, 0x10000000
    v_cmp_eq_u32 vcc, 0, v0
    v_mov_b32 v{VONE}, 1
    s_nop 0
    v_cndmask_b32 v{VHS}, v3, v2, vcc''')
    SC=' sc1' if om else ''
    def dpoll():
        lr=L('dfp'); lo=L('dfo')
        a(f'''s_mov_b32 s{S_CNT}, s{S_LIM}
        {lr}:
        buffer_load_dword v{VFLAG}, v{VZERO}, s[8:11], s{S_DFL} offen sc1
        s_waitcnt vmcnt(0)
        v_readfirstlane_b32 s{S_T0}, v{VFLAG}
        s_nop 3
        s_cmp_lg_u32 s{S_T0}, 0
        s_cbranch_scc1 {lo}
        s_sub_u32 s{S_CNT}, s{S_CNT}, 1
        s_cbranch_scc0 {lr}
        s_mov_b32 s{S_LIM}, 0
        {lo}:''')
    if om:
        a(f'''v_mov_b32 v{VZERO}, 0
        v_mov_b32 v{VONE}, 1
        s_lshl_b32 s{S_T1}, s{S_V}, 4
        s_lshl_b32 s{S_T2}, s{S_WAVE}, 2
        s_add_u32 s{S_DFL}, s{S_T1}, s{S_T2}
        s_add_u32 s{S_DFL}, s{S_DFL}, {ws.DF}
        s_lshl_b32 s{S_T1}, s{S_V}, 2
        s_add_u32 s{S_FF}, s{S_T1}, {ws.F}
        s_lshl_b32 s{S_T1}, s{S_WAVE}, 6
        v_add_u32 v2, s{S_T1}, v0
        v_mov_b32 v3, {0 if nx else 64}
        v_cmp_eq_u32 vcc, v2, v3
        v_mov_b32 v3, 0x10000000
        s_nop 0
        v_cndmask_b32 v{VF1}, v3, 0, vcc''')
        if nx: a(f's_mov_b32 s{S_MA}, {ws.MA}\ns_mov_b32 s{S_WF}, {ws.WF-448}')
        if nx==2:
            a(f'''s_sub_u32 s{S_FF}, s{S_FF}, 64
            s_cmp_eq_u32 s{S_WAVE}, 0
            s_cselect_b32 s{S_T1}, 0, 0x10000000
            v_add_u32 v{VMA}, s{S_T1}, v{VMS}''')
        dpoll()
    VPA=110
    prof_init(a,prof,VPA)
    dsplit=o.get('dsplit',0)
    loop=L('vloop'); pr=L('vpoll'); pok=L('vpok'); PL=4 if dsplit else DF
    def dload(q,so):
        return f'buffer_load_dwordx4 v[{DF+4*q}:{DF+4*q+3}], v{VL16}, s[8:11], s{so} offen offset:{(q&3)*1024}{SC}'
    if dsplit:
        for q in range(4): a(dload(q,S_DO))
    if 'tl' in o: o['tl'][0](2)
    a(f'{loop}:')
    stamp(a,prof,0)
    vfill=o.get('vfill',0); S_DO2=60
    if vfill:
        for r in (0,2): a(f'v_mov_b64 v[{ACC[0]+r}:{ACC[0]+r+1}], 0\nv_mov_b64 v[{XA+r}:{XA+r+1}], 0')
    a(f's_add_u32 s{S_HE}, s{S_STEP}, 1')
    if hint_sm or hint_vm: a(f'v_mov_b32 v{VHV}, s{S_HE}')
    if hint_vm: hint_poll(a,VHM,S_HO,[16,17,18],1,S_STEP)
    a(f'''s_mov_b32 s{S_CNT}, s{S_LIM}
    {pr}:
    buffer_load_dwordx4 v[{PL}:{PL+3}], v{VPOLL}, s[8:11], s{S_PO} offen sc1
    buffer_load_dwordx4 v[{PL+4}:{PL+7}], v{VPOLL2}, s[8:11], s{S_PO} offen sc1
    s_waitcnt vmcnt(1)
    ds_write_b128 v{VMXW}, v[{PL}:{PL+3}]
    v_max3_u32 v2, v{PL}, v{PL+1}, v{PL+2}
    v_max_u32 v2, v2, v{PL+3}
    s_waitcnt vmcnt(0)
    ds_write_b128 v{VMXW}, v[{PL+4}:{PL+7}] offset:4096
    v_max3_u32 v2, v2, v{PL+4}, v{PL+5}
    v_max3_u32 v2, v2, v{PL+6}, v{PL+7}''')
    poll_tail(a,pr,pok,2)
    stamp(a,prof,1)
    a('s_waitcnt lgkmcnt(0)\ns_barrier')
    for k in range(7): a(f'ds_read_b128 v[{A0+4*k}:{A0+4*k+3}], v{VL16} offset:{k*1024}')
    def sread(f,buf):
        b=ST+8*buf; o=(f-48)*2048
        return [f'ds_read_b128 v[{b}:{b+3}], v{VWL} offset:{o}', f'ds_read_b128 v[{b+4}:{b+7}], v{VWL} offset:{o+1024}']
    if not vfill:
        for r in range(4): a(f'v_mov_b32 v{ACC[0]+r}, 0')
        for r in range(4): a(f'v_mov_b32 v{XA+r}, 0')
    def dcheck():
        lok=L('dok')
        a(f'v_readfirstlane_b32 s{S_T0}, v{VFLAG}\ns_nop 3\ns_cmp_lg_u32 s{S_T0}, 0\ns_cbranch_scc1 {lok}')
        dpoll()
        a(f'{lok}:')
    SCX='' if o.get('xpl',0) else SC
    hlp=(o.get('hlp',0) if om else 0); dfl=o.get('dfl',0) if om else 0
    if hlp: SCX=SCM
    SCW=' sc1' if hlp==2 else SCM
    def wi_export(sc=None):
        sc=SCX if sc is None else sc
        a(f'buffer_store_dwordx4 v[{WB}:{WB+3}], v{VL16}, s[8:11], s{S_WO} offen{sc}')
        a(f'buffer_store_dwordx4 v[{WB+4}:{WB+7}], v{VL16}, s[8:11], s{S_WO} offen offset:1024{sc}')
        a(f's_add_u32 s{S_WO}, s{S_WO}, {14*8192}')
    FST=f'buffer_store_dword v{VONE}, v{VF1}, s[8:11], s{S_FF} offen'+(' sc1' if o.get('xpl',0)<2 else '')
    ord2=o.get('ord2',0)
    if om and not nx:
        if not ord2 and not hlp: a(f'{FST}\ns_add_u32 s{S_FF}, s{S_FF}, 64')
        if not dsplit:
            if dfl:
                lq=L('dq'); lr=L('dr'); lo=L('do')
                a(f's_cmp_gt_u32 s{S_STEP}, {dfl}\ns_cbranch_scc1 {lq}')
                dcheck()
                a(f'''s_cmp_lg_u32 s{S_STEP}, {dfl}
                s_cbranch_scc1 {lq}
                s_lshl_b32 s{S_T1}, s{S_V}, 4
                s_lshl_b32 s{S_T2}, s{S_WAVE}, 2
                s_add_u32 s{S_T1}, s{S_T1}, s{S_T2}
                s_add_u32 s{S_T1}, s{S_T1}, {ws.DF+60*224}
                v_and_b32 v2, 3, v0
                v_mul_u32_u24 v2, 224, v2
                s_mov_b32 s{S_CNT}, s{S_LIM}
                {lr}:
                buffer_load_dword v{VFLAG}, v2, s[8:11], s{S_T1} offen sc1
                s_waitcnt vmcnt(0)
                v_cmp_eq_u32 vcc, 0, v{VFLAG}
                s_cbranch_vccz {lo}
                s_sub_u32 s{S_CNT}, s{S_CNT}, 1
                s_cbranch_scc0 {lr}
                s_mov_b32 s{S_LIM}, 0
                {lo}:
                {lq}:''')
            else: dcheck()
    if nx==2:
        l63=L('l63')
        a(f'''s_cmp_lg_u32 s{S_STEP}, {nsteps}
        s_cbranch_scc1 {l63}
        s_add_u32 s{S_T0}, s{S_FF}, 64
        buffer_store_dword v{VONE}, v{VF1}, s[8:11], s{S_T0} offen sc1
        {l63}:''')
        dcheck()
        a(f'''s_cmp_eq_u32 s{S_STEP}, 0
        s_cselect_b32 s{S_W1}, {ws.DUM}, s{S_WO}
        s_cselect_b32 s{S_M1}, {ws.DUM+16384}, s{S_MA}
        s_cselect_b32 s{S_T0}, 0, {14*8192}
        s_add_u32 s{S_WO}, s{S_WO}, s{S_T0}''')
    elif nx:
        l63=L('l63'); l0=L('l0')
        a(f's_cmp_lg_u32 s{S_STEP}, {nsteps}\ns_cbranch_scc1 {l63}\n{FST}\n{l63}:')
        dcheck()
        a(f'buffer_store_dword v{VONE}, v{VHS}, s[8:11], s{S_WF} offen sc1\ns_add_u32 s{S_WF}, s{S_WF}, 224')
        a(f's_cmp_eq_u32 s{S_STEP}, 0\ns_cbranch_scc1 {l0}')
        wi_export()
        a(f's_cmp_lg_u32 s{S_WAVE}, 0\ns_cbranch_scc1 {l0}')
        a(f'buffer_store_dwordx2 v[{ST+8}:{ST+9}], v{VMS}, s[8:11], s{S_MA} offen sc1')
        a(f'{l0}:')
    dl=[]
    for q in range(8):
        off=(q&3)*1024
        so=S_DO if q<4 else S_DO2
        dl.append(f'buffer_load_dwordx4 v[{DF+4*q}:{DF+4*q+3}], v{VL16}, s[8:11], s{so} offen offset:{off}{o.get("dsc",SC)}')
    a(f's_add_u32 s{S_DO2}, s{S_DO}, 4096')
    flagld=f's_add_u32 s{S_DFL}, s{S_DFL}, {14*16}\nbuffer_load_dword v{VFLAG}, v{VZERO}, s[8:11], s{S_DFL} offen sc1'
    dls=o.get('dls')
    if vfill and dls and nx!=2:
        for q,p in enumerate(dls):
            if p=='pre': a(dl[q])
        if om and ord2:
            a(flagld)
            if not nx: a(f'{FST}\ns_add_u32 s{S_FF}, s{S_FF}, 64')
    if not vfill:
        for x in dl: a(x)
        if om: a(flagld)
        a(f's_add_u32 s{S_DO}, s{S_DO}, {14*32768}')
    a(f'''s_add_u32 s{S_T0}, s{S_STEP}, 1
    s_and_b32 s{S_T0}, s{S_T0}, 3
    s_mul_i32 s{S_T0}, s{S_T0}, 7168
    s_add_u32 s{S_MS}, s{S_T0}, {ws.MR}
    s_add_u32 s{S_T0}, s{S_STEP}, 3
    s_and_b32 s{S_T0}, s{S_T0}, 3
    s_mul_i32 s{S_T0}, s{S_T0}, 7168
    s_add_u32 s{S_MP}, s{S_T0}, {ws.MR}
    s_and_b32 s{S_T0}, s{S_STEP}, 3
    s_mul_i32 s{S_T0}, s{S_T0}, 10240
    s_add_u32 s{S_PS}, s{S_T0}, {ws.PR}
    s_mov_b32 s{S_PO}, s{S_MS}''')
    stamp(a,prof,2)
    chains=[(0,0),(0,1),(0,2),(0,3),(1,0),(1,1),(1,2)]
    def fidx(tau,hh,k): return hh*14+tau*7+k
    def psum(tau,half,ra,rb):
        o=[]
        for r in range(4): o.append(f'v_permlane32_swap_b32 v{ra+r}, v{rb+r}')
        for r in range(4): o.append(f'v_add_f32 v{ra+r}, v{ra+r}, v{rb+r}')
        d=WB+4*tau+2*half
        o.append(f'v_cvt_pk_bf16_f32 v{d}, v{ra}, v{ra+1}'); o.append(f'v_cvt_pk_bf16_f32 v{d+1}, v{ra+2}, v{ra+3}')
        return o
    if not vfill:
        pend=[]
        lg=7
        for c,(tau,hh) in enumerate(chains):
            ac=ACC[c%4]
            for k in range(7):
                f=fidx(tau,hh,k)
                if c==0: a(f's_waitcnt lgkmcnt({6-k})')
                if f>=48:
                    assert f==48
                    a('s_waitcnt lgkmcnt(0)')
                    b=vr(ST+8,8)
                else: b=wreg(f)
                a(f'v_smfmac_f32_16x16x64_bf16 v[{ac}:{ac+3}], v[{A0+4*k}:{A0+4*k+3}], {b}, v{IDX}')
                fl=[]
                if k==0: fl+=sread(49+c,0)
                if c==3 and k==1: fl+=sread(48,1)
                if c<6 and k in (2,3):
                    nx=ACC[(c+1)%4]; fl+=[f'v_mov_b32 v{nx+2*(k-2)}, 0',f'v_mov_b32 v{nx+2*(k-2)+1}, 0']
                if k>=3 and pend:
                    fl+=pend[:2]; pend=pend[2:]
                for x in fl: a(x)
            a('s_waitcnt lgkmcnt(0)')
            a(f'v_smfmac_f32_16x16x64_bf16 v[{XA}:{XA+3}], v[{A0+4*c}:{A0+4*c+3}], {vr(ST,8)}, v{IDX}')
            for x in pend[:2]: a(x)
            pend=pend[2:]
            if c in (1,3,5):
                assert not pend
                pend=psum(0 if c<4 else 1, 0 if c in (1,5) else 1, ACC[(c-1)%4], ACC[c%4])
        for x in pend: a(x)
        a('s_nop 7')
        for x in psum(1,1,ACC[6%4],XA): a(x)
    else:
        T=DsTrack(a)
        for k in range(7): T.note(('A',k))
        z=lambda r:[f'v_mov_b64 v[{r}:{r+1}], 0',f'v_mov_b64 v[{r+2}:{r+3}], 0']
        p01=psum(0,0,ACC[0],ACC[1]); p23=psum(0,1,ACC[2],ACC[3]); p45=psum(1,0,ACC[0],ACC[1])
        V={}
        def put(c,g0,ops):
            for i,x in enumerate(ops): assert (c,g0+i) not in V; V[(c,g0+i)]=x
        put(0,0,z(ACC[1])); put(1,0,z(ACC[2])); put(2,0,z(ACC[3])); put(2,2,p01[:6]); put(3,0,p01[6:]); put(3,4,z(ACC[0]))
        put(4,0,z(ACC[1])); put(4,2,p23[:6]); put(5,0,p23[6:]); put(5,4,z(ACC[2])); put(6,2,p45[:6])
        M={(c,3):dl[c+1] for c in range(7)}; M[(0,1)]=dl[0]
        if dsplit: M={(0,1):dl[4],(0,3):dl[5],(0,5):dl[6],(1,0):dl[7]}
        if dls:
            M={p:dl[q] for q,p in enumerate(dls) if p!='pre'}
        if nx==2:
            ops=dl+[flagld,
                f'buffer_store_dword v{VONE}, v{VHS}, s[8:11], s{S_WF} offen sc1\ns_add_u32 s{S_WF}, s{S_WF}, 224',
                f'{FST}\ns_add_u32 s{S_FF}, s{S_FF}, 64',
                f'buffer_store_dwordx4 v[{WB}:{WB+3}], v{VL16}, s[8:11], s{S_W1} offen sc1',
                f'buffer_store_dwordx4 v[{WB+4}:{WB+7}], v{VL16}, s[8:11], s{S_W1} offen offset:1024 sc1',
                f'buffer_store_dwordx2 v[{ST+8}:{ST+9}], v{VMA}, s[8:11], s{S_M1} offen sc1']
            slots=o.get('nxslots') or [(c,k) for c in range(3) for k in range(7)]
            npre=o.get('npre',0)
            for x in ops[:npre]: a(x)
            M={slots[i]:x for i,x in enumerate(ops[npre:])}
        for c,(tau,hh) in enumerate(chains):
            ac=ACC[c%4]
            for k in range(7):
                f=fidx(tau,hh,k)
                if c==0: T.wait(('A',k))
                if f>=48:
                    assert f==48
                    T.wait(('S48',1)); b=vr(ST+8,8)
                else: b=wreg(f)
                a(f'v_smfmac_f32_16x16x64_bf16 v[{ac}:{ac+3}], v[{A0+4*k}:{A0+4*k+3}], {b}, v{IDX}')
                if (c,k) in V: a(V[(c,k)])
                if k==0:
                    r=sread(49+c,0); T.ds(r[0],('X',c,0)); T.ds(r[1],('X',c,1))
                if c==3 and k==1:
                    r=sread(48,1); T.ds(r[0],('S48',0)); T.ds(r[1],('S48',1))
                if (c,k) in M: a(M[(c,k)])
            T.wait(('X',c,1))
            a(f'v_smfmac_f32_16x16x64_bf16 v[{XA}:{XA+3}], v[{A0+4*c}:{A0+4*c+3}], {vr(ST,8)}, v{IDX}')
            if (c,7) in V: a(V[(c,7)])
            if nx==1 and c==o.get('fpos',5): a(f's_waitcnt vmcnt({9 if ord2 else 8})\n{FST}\ns_add_u32 s{S_FF}, s{S_FF}, 64')
        if om and not ord2 and nx!=2:
            if dfl:
                lq=L('nf'); a(f"s_cmp_ge_u32 s{S_STEP}, {dfl}\ns_cbranch_scc1 {lq}"); a(flagld); a(f'{lq}:')
            else: a(flagld)
        a(f's_add_u32 s{S_DO}, s{S_DO}, {14*32768}')
        for x in p45[6:]: a(x)
        a('s_nop 3')
        for x in psum(1,1,ACC[6%4],XA): a(x)
    if not wi_late and not nx: wi_export(' sc1' if hlp==2 else None)
    stamp(a,prof,3)
    fin=L('vfin')
    a(f's_cmp_ge_u32 s{S_STEP}, {nsteps}\ns_cbranch_scc1 {fin}')
    if hint_vp: hint_poll(a,VHP,S_HO,[16,17,18],3,S_HE)
    stamp(a,prof,6)
    pr=L('ppoll'); pok=L('ppok')
    O0=ACC[0]; O1=ACC[1]
    a(f'''s_mov_b32 s{S_CNT}, s{S_LIM}
    {pr}:
    buffer_load_dwordx4 v[12:15], v{VPM}, s[8:11], s{S_PS} offen sc1
    buffer_load_dwordx4 v[4:7], v{VPX}, s[8:11], s{S_PS} offen sc1
    buffer_load_dwordx4 v[8:11], v{VPX}, s[8:11], s{S_PS} offen offset:1024 sc1
    s_waitcnt vmcnt(2)
    v_mfma_f32_16x16x32_bf16 v[{O0}:{O0+3}], v[12:15], v[{WB}:{WB+3}], 0
    v_max3_u32 v2, v12, v13, v14
    v_mfma_f32_16x16x32_bf16 v[{O1}:{O1+3}], v[12:15], v[{WB+4}:{WB+7}], 0
    s_waitcnt vmcnt(1)
    v_smfmac_f32_16x16x64_bf16 v[{O0}:{O0+3}], v[4:7], v[{DF}:{DF+7}], v{IDX}
    v_max3_u32 v2, v2, v15, v4
    v_max3_u32 v2, v2, v5, v6
    v_smfmac_f32_16x16x64_bf16 v[{O1}:{O1+3}], v[4:7], v[{DF+16}:{DF+23}], v{IDX}
    s_waitcnt vmcnt(0)
    v_smfmac_f32_16x16x64_bf16 v[{O0}:{O0+3}], v[8:11], v[{DF+8}:{DF+15}], v{IDX}
    v_max3_u32 v2, v2, v7, v8
    v_max3_u32 v2, v2, v9, v10
    v_smfmac_f32_16x16x64_bf16 v[{O1}:{O1+3}], v[8:11], v[{DF+24}:{DF+31}], v{IDX}
    v_max_u32 v2, v2, v11''')
    poll_tail(a,pr,pok,2)
    stamp(a,prof,4)
    if prof: a(f's_sub_u32 s54, s{S_LIM}, s{S_CNT}')
    HST=f'buffer_store_dword v{VHV}, v{VHS}, s[8:11], s{S_HO} offen{SCM}'
    hm=lambda pos: HST if ((hint_sm or hint_vm) and hm_pos==pos) else ''
    a(hm(0)) if hm(0) else None
    a('s_nop 4')
    for r in range(4): a(f'v_permlane32_swap_b32 v{O0+r}, v{O1+r}')
    for r in range(4): a(f'v_add_f32 v{O0+r}, v{O0+r}, v{O1+r}')
    a(f'''ds_write2st64_b32 v{VRW}, v{O0}, v{O0+1} offset0:0 offset1:1
    ds_write2st64_b32 v{VRW}, v{O0+2}, v{O0+3} offset0:2 offset1:3
    {hm(1)}
    s_waitcnt lgkmcnt(0)
    s_barrier
    {hm(2)}''')
    nxt=L('vnext')
    a(f's_cmp_lg_u32 s{S_WAVE}, 0\ns_cbranch_scc1 {nxt}')
    for w in range(4): a(f'ds_read_b128 v[{4+4*w}:{7+4*w}], v{VRR} offset:{w*1024}')
    a('''s_waitcnt lgkmcnt(2)
    v_pk_add_f32 v[4:5], v[4:5], v[8:9]
    v_pk_add_f32 v[6:7], v[6:7], v[10:11]
    s_waitcnt lgkmcnt(0)
    v_pk_add_f32 v[12:13], v[12:13], v[16:17]
    v_pk_add_f32 v[14:15], v[14:15], v[18:19]
    v_pk_add_f32 v[4:5], v[4:5], v[12:13]
    v_pk_add_f32 v[6:7], v[6:7], v[14:15]
    v_cvt_pk_bf16_f32 v4, v4, v5
    v_cvt_pk_bf16_f32 v5, v6, v7''')
    store2(a,[f'buffer_store_dwordx2 v[4:5], v{VMS}, s[8:11], s{S_MS} offen',
              f'buffer_store_dwordx2 v[{NEG}:{NEG+1}], v{VMS}, s[8:11], s{S_MP} offen']+([] if om else [
              f'buffer_store_dwordx2 v[4:5], v{VMS}, s[8:11], s{S_MA} offen']),mode)
    if om and not nx: a(f'buffer_store_dwordx2 v[4:5], v{VMS}, s[8:11], s{S_MA} offen{SCX}')
    if nx:
        lq=L('lq')
        a(f'''v_mov_b64 v[{ST+8}:{ST+9}], v[4:5]
        s_cmp_lg_u32 s{S_STEP}, {nsteps-1}
        s_cbranch_scc1 {lq}
        s_add_u32 s{S_T0}, s{S_MA}, 7168
        buffer_store_dwordx2 v[4:5], v{VMS}, s[8:11], s{S_T0} offen sc1
        {lq}:''')
    a(f'{nxt}:')
    stamp(a,prof,5)
    if dsplit:
        if o.get('dbar',0): a('s_barrier')
        if om: dcheck()
        for q in range(4): a(dload(q,S_DO))
    if wi_late:
        if not (dsplit and o.get('dbar',0)): a('s_barrier')
        if hlp:
            lq=L('w62'); lq2=L('w62')
            a(f's_cmp_eq_u32 s{S_STEP}, {nsteps-1}\ns_cbranch_scc1 {lq}')
            t=S_WO; wi_export_n=lambda sc: (a(f'buffer_store_dwordx4 v[{WB}:{WB+3}], v{VL16}, s[8:11], s{S_WO} offen{sc}'), a(f'buffer_store_dwordx4 v[{WB+4}:{WB+7}], v{VL16}, s[8:11], s{S_WO} offen offset:1024{sc}'))
            wi_export_n(SCW); a(f's_branch {lq2}\n{lq}:'); wi_export_n(' sc1'); a(f'{lq2}:\ns_add_u32 s{S_WO}, s{S_WO}, {14*8192}')
        else: wi_export()
    a(f's_add_u32 s{S_MA}, s{S_MA}, 7168')
    stamp_flush(a,prof,8,2,VPA)
    a(f'''s_add_u32 s{S_STEP}, s{S_STEP}, 1
    s_branch {loop}
    {fin}:''')
    if wi_late or nx: wi_export(' sc1' if hlp else None)
    a('s_waitcnt vmcnt(0)')
    if hlp: a(f's_mov_b32 s{S_T0}, {ws.WF+62*224}\nbuffer_store_dword v{VONE}, v{VHS}, s[8:11], s{S_T0} offen sc1\nbuffer_store_dword v{VONE}, v{VHS}, s[8:11], s{S_T0} offen offset:224 sc1\ns_waitcnt vmcnt(0)')
    elif nx: a(f'buffer_store_dword v{VONE}, v{VHS}, s[8:11], s{S_WF} offen sc1\nbuffer_store_dword v{VONE}, v{VHS}, s[8:11], s{S_WF} offen offset:224 sc1\ns_waitcnt vmcnt(0)')
    elif om: a(f's_barrier\nbuffer_store_dword v{VONE}, v{VF1}, s[8:11], s{S_FF} offen sc1\ns_waitcnt vmcnt(0)')
    prof_dump(a,prof)
    if 'tl' in o: o['tl'][0](3); o['tl'][1](4)
    a('s_endpgm')

def helper_role(a, o):
    L=a.lab; S_J=29; S_S=30; S_PO=31; S_SRC=32; S_SR2=33; S_FL=34
    VL16=1; VF=2; VONE=3; PL=4; DAT=8
    lma=L('hma')
    a(f'''s_sub_u32 s{S_J}, s{S_ROLE}, 30
    s_lshl_b32 s{S_J}, s{S_J}, 2
    s_add_u32 s{S_J}, s{S_J}, s{S_WAVE}
    v_lshlrev_b32 v{VL16}, 4, v0
    v_mov_b32 v{VONE}, 1
    s_mov_b32 s{S_LIM}, {POLL_LIM}
    s_cmp_eq_u32 s{S_J}, 7
    s_cbranch_scc1 {lma}''')
    hlp=o['hlp']; slp=o.get('hslp',0)
    if hlp>=2: a('s_endpgm')
    loop=L('hl'); pr=L('hp'); pok=L('ho')
    a(f'''s_lshl_b32 s{S_T0}, s{S_J}, 10
    s_add_u32 s{S_PO}, s{S_T0}, {ws.MA+2*7168}
    s_lshl_b32 s{S_T0}, s{S_J}, 14
    s_add_u32 s{S_SRC}, s{S_T0}, {ws.WI}
    s_lshl_b32 s{S_T0}, s{S_J}, 5
    s_add_u32 s{S_FL}, s{S_T0}, {ws.WF}
    v_lshlrev_b32 v{VF}, 2, v0
    v_mov_b32 v4, 0x10000000
    v_cmp_gt_u32 vcc, 8, v0
    s_mov_b32 s{S_S}, 0
    s_nop 0
    v_cndmask_b32 v{VF}, v4, v{VF}, vcc
    {loop}:
    s_mov_b32 s{S_CNT}, s{S_LIM}
    {pr}:
    {f's_sleep {slp}' if slp else ''}
    buffer_load_dwordx4 v[{PL}:{PL+3}], v{VL16}, s[8:11], s{S_PO} offen sc1
    s_waitcnt vmcnt(0)
    v_max3_u32 v{PL}, v{PL}, v{PL+1}, v{PL+2}
    v_max_u32 v{PL}, v{PL}, v{PL+3}''')
    poll_tail(a,pr,pok,PL)
    for k in range(16):
        if k%4==0: a(f's_add_u32 s{S_SR2}, s{S_SRC}, {k*1024}')
        a(f'buffer_load_dwordx4 v[{DAT+4*k}:{DAT+4*k+3}], v{VL16}, s[8:11], s{S_SR2} offen offset:{(k&3)*1024} sc1')
    for k in range(16):
        if k%4==0: a(f's_add_u32 s{S_SR2}, s{S_SRC}, {k*1024}')
        a(f's_waitcnt vmcnt(15)')
        a(f'buffer_store_dwordx4 v[{DAT+4*k}:{DAT+4*k+3}], v{VL16}, s[8:11], s{S_SR2} offen offset:{(k&3)*1024} sc1')
    a(f'''s_waitcnt vmcnt(0)
    buffer_store_dword v{VONE}, v{VF}, s[8:11], s{S_FL} offen sc1
    s_add_u32 s{S_FL}, s{S_FL}, 224
    s_add_u32 s{S_SRC}, s{S_SRC}, {14*8192}
    s_add_u32 s{S_PO}, s{S_PO}, 7168
    s_add_u32 s{S_S}, s{S_S}, 1
    s_cmp_lt_u32 s{S_S}, 62
    s_cbranch_scc1 {loop}
    s_waitcnt vmcnt(0)
    s_endpgm''')
    loop=L('ml'); pr=L('mp'); pok=L('mo')
    a(f'''{lma}:
    v_lshlrev_b32 v{VF}, 2, v0
    v_mov_b32 v4, 0x10000000
    v_cmp_gt_u32 vcc, 14, v0
    s_mov_b32 s{S_FL}, {ws.F}
    s_mov_b32 s{S_PO}, {ws.MA+7168}
    v_cndmask_b32 v{VF}, v4, v{VF}, vcc
    s_mov_b32 s{S_S}, 1
    buffer_store_dword v{VONE}, v{VF}, s[8:11], s{S_FL} offen sc1
    v_lshlrev_b32 v5, 2, v0
    v_cmp_gt_u32 vcc, 56, v0
    s_mov_b32 s{S_SRC}, {ws.WF-224}
    s_nop 0
    v_cndmask_b32 v5, v4, v5, vcc
    {loop}:
    s_add_u32 s{S_FL}, s{S_FL}, 64
    s_add_u32 s{S_SR2}, s{S_PO}, 4096
    s_mov_b32 s{S_CNT}, s{S_LIM}
    {pr}:''')
    if slp: a(f's_sleep {slp}')
    so=lambda k: S_PO if k<4 else S_SR2
    for k in range(7): a(f'buffer_load_dwordx4 v[{DAT+4*k}:{DAT+4*k+3}], v{VL16}, s[8:11], s{so(k)} offen offset:{(k&3)*1024} sc1')
    for k in range(7):
        a(f's_waitcnt vmcnt({6-k})')
        r=DAT+4*k
        if k==0: a(f'v_max3_u32 v{PL}, v{r}, v{r+1}, v{r+2}\nv_max_u32 v{PL}, v{PL}, v{r+3}')
        else: a(f'v_max3_u32 v{PL}, v{PL}, v{r}, v{r+1}\nv_max3_u32 v{PL}, v{PL}, v{r+2}, v{r+3}')
    poll_tail(a,pr,pok,PL)
    for k in range(7): a(f'buffer_store_dwordx4 v[{DAT+4*k}:{DAT+4*k+3}], v{VL16}, s[8:11], s{so(k)} offen offset:{(k&3)*1024} sc1')
    if hlp>=2:
        lq=L('hq'); a(f's_cmp_lt_u32 s{S_S}, 2\ns_cbranch_scc1 {lq}\nbuffer_store_dword v{VONE}, v5, s[8:11], s{S_SRC} offen sc1\n{lq}:\ns_add_u32 s{S_SRC}, s{S_SRC}, 224')
    a(f'''s_waitcnt vmcnt(0)
    buffer_store_dword v{VONE}, v{VF}, s[8:11], s{S_FL} offen sc1
    s_add_u32 s{S_PO}, s{S_PO}, 7168
    s_add_u32 s{S_S}, s{S_S}, 1
    s_cmp_lt_u32 s{S_S}, 64
    s_cbranch_scc1 {loop}
    s_waitcnt vmcnt(0)
    s_endpgm''')

def roles(a, name, prof, clk, nsteps, om, o):
    l1=name+'_m1'
    if o.get('hlp',0):
        lh=name+'_nh'
        a(f's_cmp_lt_u32 s{S_ROLE}, 30\ns_cbranch_scc1 {lh}')
        helper_role(a,o)
        a(f'{lh}:')
    if not o.get('static',0):
        lv=name+'_val'
        a(f's_cmp_ge_u32 s{S_ROLE}, 16\ns_cbranch_scc1 {lv}')
        score_role(a,prof,nsteps,clk,None,o); a(f'{lv}:'); value_role(a,prof,nsteps,om,None,o); return
    a(f's_cmp_lg_u32 s{S_MODE}, 0\ns_cbranch_scc1 {l1}')
    for mode in (0,1):
        lv=f'{name}_val{mode}'
        if mode: a(f'{l1}:')
        a(f's_cmp_ge_u32 s{S_ROLE}, 16\ns_cbranch_scc1 {lv}')
        score_role(a,prof if mode==0 else False,nsteps,clk and mode==0,mode,o)
        a(f'{lv}:')
        value_role(a,prof if mode==0 else False,nsteps,om,mode,o)
def rec_kernel(name, prof=False, nsteps=63, clk=False, o={}):
    a=Asm(); a.l.append(head(name))
    ex=name+'_exit'
    prologue(a,256,ex)
    election(a,LS_ROLE)
    a(f'''s_cmp_ge_u32 s{S_ROLE}, {NROLE}
    s_cbranch_scc1 {ex}''')
    roles(a,name,prof,clk,nsteps,False,o)
    a(f'{ex}:\ns_endpgm')
    return a.text()+kd(name,vgpr=256,agpr=256)
REC_LDS=78080+8192+256
if __name__=='__main__':
    n='rec_kernel'
    t=f'; @launch kernel={n} grid=(256,1,1) block=(256,1,1) lds={REC_LDS}\n.amdgcn_target "amdgcn-amd-amdhsa--gfx950"\n'+rec_kernel(n,prof=True)
    open('rec_test.s','w').write(t)
    print(len(t))
SNAMES=['poll','B1+rd','tgemm','scores','softmax/dma']
VNAMES=['poll','B1+rd','wgemm','Ppoll+pz','reduce']
```

```python
from common import *
import math
def fold_kernel(name,loc=True):
    a=Asm(); a.l.append(head(name))
    ex=name+'_exit'
    fold_body(a,ex,True,loc)
    a(f'{ex}:\ns_endpgm')
    return a.text()+kd(name,vgpr=160,agpr=128)
def fold_body(a,ex,pro,loc=True,S_ID=16,stflags=''):
    LA=0; LB=32768
    S_W=17; S_MAT=18; S_H=19; S_J=20; T0=21;T1=22;T2=23;T3=24; S_G=25; S_LB=26; S_RB=27; S_OB=28; S_IT=29; S_DL=30; S_SC=31
    if pro:
        a(f'''s_cmp_ge_u32 s2, 224
        s_cbranch_scc1 {ex}
        s_load_dwordx2 s[4:5], s[0:1], 96
        v_lshrrev_b32 v1, 6, v0
        v_and_b32 v0, 63, v0
        s_mov_b32 s{S_ID}, s2
        v_readfirstlane_b32 s{S_W}, v1''')
    a(f'''s_load_dwordx4 s[36:39], s[0:1], 16
    s_load_dwordx4 s[40:43], s[0:1], 32''')
    if loc:
        a(f's_lshr_b32 s{T0}, s{S_ID}, 3')
        div_const(a,T1,T0,7,32)
        a(f'''s_mul_i32 s{T2}, s{T1}, 7
        s_sub_u32 s{S_J}, s{T0}, s{T2}
        s_and_b32 s{T2}, s{S_ID}, 7
        s_lshl_b32 s{T2}, s{T2}, 2
        s_add_u32 s{T2}, s{T2}, s{T1}
        s_lshr_b32 s{S_MAT}, s{T2}, 4
        s_and_b32 s{S_H}, s{T2}, 15
        s_waitcnt lgkmcnt(0)''')
    else:
        a(f'''s_cmp_ge_u32 s{S_ID}, 112
        s_cselect_b32 s{S_MAT}, 1, 0
        s_mul_i32 s{T0}, s{S_MAT}, 112
        s_sub_u32 s{T0}, s{S_ID}, s{T0}''')
        div_const(a,S_H,T0,7,112)
        a(f'''s_mul_i32 s{T1}, s{S_H}, 7
        s_sub_u32 s{S_J}, s{T0}, s{T1}
        s_waitcnt lgkmcnt(0)''')
    srd(a,8,4,0x10000000)
    a(f'''s_cmp_eq_u32 s{S_MAT}, 0
    s_cselect_b32 s12, s36, s40
    s_cselect_b32 s13, s37, s41
    s_mov_b32 s14, 3670016
    s_mov_b32 s15, 0x00020000
    s_cselect_b32 s44, s38, s42
    s_cselect_b32 s45, s39, s43
    s_mov_b32 s46, 3670016
    s_mov_b32 s47, 0x00020000''')
    a('''v_lshrrev_b32 v10, 5, v0
    v_and_b32 v11, 31, v0
    v_lshlrev_b32 v12, 13, v10''')
    for t in range(8):
        a(f'''v_add_u32 v13, {2*t}, v10
        v_xor_b32 v13, v13, v11
        v_lshlrev_b32 v13, 4, v13
        v_add_u32 v{2+t}, v13, v12''')
    a(f'''s_lshl_b32 s{T0}, s{S_J}, 6
    s_lshl_b32 s{T1}, s{S_W}, 4
    s_add_u32 s{T0}, s{T0}, s{T1}
    s_lshl_b32 s{T0}, s{T0}, 13
    s_lshl_b32 s{T1}, s{S_H}, 9
    s_add_u32 s{T0}, s{T0}, s{T1}
    s_lshl_b32 s{T2}, s{S_W}, 13''')
    for t in range(8):
        a(f'''s_add_u32 m0, s{T2}, {LA+t*1024}
        s_add_u32 s{T1}, s{T0}, {t*2*8192}
        buffer_load_dwordx4 v{2+t}, s[12:15], s{T1} offen lds''')
    a(f'''s_lshl_b32 s{S_LB}, s{S_W}, 14
    s_add_u32 s{S_LB}, s{S_LB}, {LB}''')
    a(f'''v_and_b32 v13, 15, v0
    v_xor_b32 v13, v13, v10
    v_lshlrev_b32 v13, 4, v13
    v_lshlrev_b32 v14, 9, v11
    v_add_u32 v14, v14, v13
    v_add_u32 v15, s{S_LB}, v14''')
    a(f'''v_lshrrev_b32 v13, 5, v0
    v_lshlrev_b32 v13, 9, v13
    v_lshrrev_b32 v17, 2, v0
    v_and_b32 v17, 3, v17
    v_lshlrev_b32 v17, 6, v17
    v_add_u32 v13, v13, v17
    v_lshrrev_b32 v17, 4, v0
    v_and_b32 v17, 1, v17
    v_lshlrev_b32 v17, 5, v17
    v_add_u32 v13, v13, v17
    v_and_b32 v17, 3, v0
    v_lshlrev_b32 v17, 3, v17
    v_add3_u32 v16, v13, v17, s{S_LB}''')
    a('''v_lshrrev_b32 v13, 2, v0
    v_mul_u32_u24 v13, 896, v13
    v_and_b32 v17, 3, v0
    v_lshlrev_b32 v17, 4, v17
    v_add_u32 v17, v17, v13''')
    a('''v_and_b32 v13, 15, v0
    v_lshlrev_b32 v18, 4, v10
    v_add_u32 v13, v13, v18
    v_lshlrev_b32 v13, 4, v13
    v_lshrrev_b32 v18, 4, v11
    v_mul_u32_u24 v19, 0x18800, v18
    v_mul_u32_u24 v18, 0x3800, v18
    v_add_u32 v18, v18, v13
    v_add_u32 v19, v19, v13''')
    eoff_pair=lambda c: 8*((c&15)>>2)+4*(c>>4)+(c&3)
    eoff_odd=lambda c: 112*(c>>4)+(c&15)
    def dmaB(kind):
        for t in range(16):
            if kind=='C':
                a(f's_add_u32 m0, s{S_LB}, {t*1024}\ns_add_u32 s{T1}, s{S_RB}, {t*16*896}\nbuffer_load_dwordx4 v17, s[44:47], s{T1} offen lds')
            else:
                eo=(eoff_pair if kind=='P' else eoff_odd)(2*t)
                a(f's_add_u32 m0, s{S_LB}, {t*1024}\ns_add_u32 s{T1}, s{S_RB}, {eo*8192}\nbuffer_load_dwordx4 v{2+(t&7)}, s[44:47], s{T1} offen lds')
    def setup_and_dma(tag):
        lC=a.lab('fC'); lO=a.lab('fO'); lE=a.lab('fE')
        a(f's_cmp_lg_u32 s{S_MAT}, 0\ns_cbranch_scc1 {lC}\ns_cmp_ge_u32 s{S_G}, 12\ns_cbranch_scc1 {lO}')
        div_const(a,T0,S_G,3,16)
        a(f'''s_mul_i32 s{T1}, s{T0}, 3
        s_sub_u32 s{T1}, s{S_G}, s{T1}
        s_mul_i32 s{T2}, s{T0}, 112
        s_lshl_b32 s{T3}, s{T1}, 5
        s_add_u32 s{T2}, s{T2}, s{T3}
        s_lshl_b32 s{T2}, s{T2}, 13
        s_lshl_b32 s{T3}, s{S_H}, 9
        s_add_u32 s{S_RB}, s{T2}, s{T3}''')
        dmaB('P')
        a(f's_branch {lE}\n{lO}:')
        a(f'''s_sub_u32 s{T0}, s{S_G}, 12
        s_mul_i32 s{T2}, s{T0}, 224
        s_add_u32 s{T2}, s{T2}, 96
        s_lshl_b32 s{T2}, s{T2}, 13
        s_lshl_b32 s{T3}, s{S_H}, 9
        s_add_u32 s{S_RB}, s{T2}, s{T3}''')
        dmaB('O')
        a(f's_branch {lE}\n{lC}:')
        a(f'''s_mul_i32 s{T2}, s{S_H}, 229376
        s_lshl_b32 s{T3}, s{S_G}, 6
        s_add_u32 s{S_RB}, s{T2}, s{T3}''')
        dmaB('C')
        a(f'{lE}:')
    a(f's_mov_b32 s{S_G}, s{S_W}')
    setup_and_dma(0)
    a(f's_waitcnt vmcnt(16)\ns_barrier')
    for ks in range(16):
        a(f'v_xor_b32 v13, {ks<<5}, v14')
        a(f'ds_read_b128 a[{4*ks}:{4*ks+3}], v13')
        a(f'ds_read_b128 a[{64+4*ks}:{64+4*ks+3}], v13 offset:16384')
    sc=math.log2(math.e)/16.0
    import struct
    scb=struct.unpack('<I',struct.pack('<f',sc))[0]
    a(f's_cmp_eq_u32 s{S_MAT}, 0\ns_cselect_b32 s{S_SC}, {hex(scb)}, 1.0')
    loop=a.lab('floop'); last=a.lab('flast'); l1=a.lab('fr'); l2=a.lab('fr')
    a(f'{loop}:')
    a('s_waitcnt vmcnt(0) lgkmcnt(0)')
    a(f's_cmp_lg_u32 s{S_MAT}, 0\ns_cbranch_scc1 {l1}')
    for ks in range(16):
        a(f'v_xor_b32 v13, {ks<<5}, v15\nds_read_b128 v[{64+4*ks}:{64+4*ks+3}], v13')
    a(f's_branch {l2}\n{l1}:')
    for ks in range(16):
        a(f'ds_read_b64_tr_b16 v[{64+4*ks}:{64+4*ks+1}], v16 offset:{ks*1024}')
        a(f'ds_read_b64_tr_b16 v[{64+4*ks+2}:{64+4*ks+3}], v16 offset:{ks*1024+256}')
    a(f'{l2}:')
    lC=a.lab('oC'); lO=a.lab('oO'); lE=a.lab('oE')
    a(f's_cmp_lg_u32 s{S_MAT}, 0\ns_cbranch_scc1 {lC}\ns_cmp_ge_u32 s{S_G}, 12\ns_cbranch_scc1 {lO}')
    div_const(a,T0,S_G,3,16)
    a(f'''s_mul_i32 s{T1}, s{T0}, 3
    s_sub_u32 s{T1}, s{S_G}, s{T1}
    s_lshl_b32 s{T2}, s{S_H}, 2
    s_add_u32 s{T2}, s{T2}, s{T0}
    s_mul_i32 s{T2}, s{T2}, 49
    s_mul_i32 s{T1}, s{T1}, 14
    s_add_u32 s{T2}, s{T2}, s{T1}
    s_add_u32 s{T2}, s{T2}, s{S_J}
    s_lshl_b32 s{T2}, s{T2}, 11
    s_add_u32 s{S_OB}, s{T2}, {ws.AI}
    v_mov_b32 v20, v18
    s_branch {lE}
    {lO}:
    s_sub_u32 s{T0}, s{S_G}, 12
    s_lshl_b32 s{T0}, s{T0}, 1
    s_lshl_b32 s{T2}, s{S_H}, 2
    s_add_u32 s{T2}, s{T2}, s{T0}
    s_mul_i32 s{T2}, s{T2}, 49
    s_add_u32 s{T2}, s{T2}, 42
    s_add_u32 s{T2}, s{T2}, s{S_J}
    s_lshl_b32 s{T2}, s{T2}, 11
    s_add_u32 s{S_OB}, s{T2}, {ws.AI}
    v_mov_b32 v20, v19
    s_branch {lE}
    {lC}:
    s_lshl_b32 s{T2}, s{S_G}, 4
    s_add_u32 s{T2}, s{T2}, s{S_H}
    s_mul_i32 s{T2}, s{T2}, 14
    s_add_u32 s{T2}, s{T2}, s{S_J}
    s_lshl_b32 s{T2}, s{T2}, 11
    s_add_u32 s{S_OB}, s{T2}, {ws.CI}
    v_mov_b32 v20, v18
    {lE}:''')
    a(f's_waitcnt lgkmcnt(0)\ns_add_u32 s{S_G}, s{S_G}, 4\ns_cmp_ge_u32 s{S_G}, 14\ns_cbranch_scc1 {last}')
    setup_and_dma(1)
    a(f'{last}:')
    for ks in range(16):
        for eta in range(2):
            c='0' if ks==0 else f'v[{128+16*eta}:{128+16*eta+15}]'
            a(f'v_mfma_f32_32x32x16_bf16 v[{128+16*eta}:{128+16*eta+15}], a[{64*eta+4*ks}:{64*eta+4*ks+3}], v[{64+4*ks}:{64+4*ks+3}], {c}')
    a('s_nop 7\ns_nop 3')
    for eta in range(2):
        b=128+16*eta
        if eta==1: a('s_nop 0')
        for r in range(16): a(f'v_mul_f32 v{b+r}, s{S_SC}, v{b+r}')
        for aa in range(2):
            o=24+4*aa+8*eta; q=b+8*aa
            a(f'''v_cvt_pk_bf16_f32 v{o}, v{q}, v{q+1}
            v_cvt_pk_bf16_f32 v{o+1}, v{q+4}, v{q+5}
            v_cvt_pk_bf16_f32 v{o+2}, v{q+2}, v{q+3}
            v_cvt_pk_bf16_f32 v{o+3}, v{q+6}, v{q+7}
            buffer_store_dwordx4 v[{o}:{o+3}], v20, s[8:11], s{S_OB} offen offset:{eta*1024+aa*512} {stflags}''')
    a(f's_cmp_lt_u32 s{S_G}, 14\ns_cbranch_scc1 {loop}')
    a(f's_waitcnt vmcnt(0)')
FOLD_LDS=32768+4*16384
```

```python
from common import *
import struct
def fbits(x): return struct.unpack('<I',struct.pack('<f',x))[0]
def load_ptr_srd(a, karg, s, nbytes, tmp=4):
    a(f's_load_dwordx2 s[{tmp}:{tmp+1}], s[0:1], {KA[karg]}')
    return lambda: srd(a,s,tmp,nbytes)

def reduce32(a, s, t):
    a('s_nop 1')
    for r in (8,4,2,1):
        a(f'v_add_f32_dpp v{s}, v{s}, v{s} row_ror:{r} row_mask:0xf bank_mask:0xf')
        a('s_nop 1')
    a(f'v_mov_b32 v{t}, v{s}\ns_nop 1\nv_permlane16_swap_b32 v{s}, v{t}\nv_add_f32 v{s}, v{s}, v{t}')

def ln_core(a, X, F, T, s_mask, s_act, packed=True):
    if packed:
        for i in range(8):
            a(f'v_lshlrev_b32 v{F+2*i}, 16, v{X+i}\nv_and_b32 v{F+2*i+1}, s{s_mask}, v{X+i}')
    a(f'''v_pk_add_f32 v[{T}:{T+1}], v[{F}:{F+1}], v[{F+2}:{F+3}]
    v_pk_add_f32 v[{T+2}:{T+3}], v[{F+4}:{F+5}], v[{F+6}:{F+7}]
    v_pk_add_f32 v[{T+4}:{T+5}], v[{F+8}:{F+9}], v[{F+10}:{F+11}]
    v_pk_add_f32 v[{T+6}:{T+7}], v[{F+12}:{F+13}], v[{F+14}:{F+15}]
    v_pk_add_f32 v[{T}:{T+1}], v[{T}:{T+1}], v[{T+2}:{T+3}]
    v_pk_add_f32 v[{T+4}:{T+5}], v[{T+4}:{T+5}], v[{T+6}:{T+7}]
    v_pk_add_f32 v[{T}:{T+1}], v[{T}:{T+1}], v[{T+4}:{T+5}]
    v_add_f32 v{T}, v{T}, v{T+1}''')
    reduce32(a,T,T+1)
    a(f'''v_mul_f32 v{T}, {hex(fbits(1/448.0))}, v{T}
    v_cndmask_b32 v{T+2}, 0, v{T}, s[{s_act}:{s_act+1}]''')
    for i in range(8):
        t=X+2*(i&3) if X%2==0 else None
        acc=T+4+2*(i&1)
        a(f'v_pk_add_f32 v[{t}:{t+1}], v[{F+2*i}:{F+2*i+1}], v[{T+2}:{T+3}] op_sel_hi:[1,0] neg_lo:[0,1] neg_hi:[0,1]')
        if i<2: a(f'v_pk_mul_f32 v[{acc}:{acc+1}], v[{t}:{t+1}], v[{t}:{t+1}]')
        else: a(f'v_pk_fma_f32 v[{acc}:{acc+1}], v[{t}:{t+1}], v[{t}:{t+1}], v[{acc}:{acc+1}]')
    a(f'''v_pk_add_f32 v[{T+4}:{T+5}], v[{T+4}:{T+5}], v[{T+6}:{T+7}]
    v_add_f32 v{T+4}, v{T+4}, v{T+5}''')
    reduce32(a,T+4,T+5)
    a(f'''v_mul_f32 v{T+4}, {hex(fbits(1/448.0))}, v{T+4}
    v_cvt_pk_bf16_f32 v{T}, v{T}, v{T}
    v_cvt_pk_bf16_f32 v{T+4}, v{T+4}, v{T+4}
    v_and_b32 v{T}, s{s_mask}, v{T}
    v_and_b32 v{T+4}, s{s_mask}, v{T+4}
    v_add_f32 v{T+4}, {hex(fbits(1e-5))}, v{T+4}
    v_cvt_pk_bf16_f32 v{T+4}, v{T+4}, v{T+4}
    v_and_b32 v{T+4}, s{s_mask}, v{T+4}
    v_sqrt_f32 v{T+4}, v{T+4}
    s_nop 0
    v_cvt_pk_bf16_f32 v{T+4}, v{T+4}, v{T+4}
    v_and_b32 v{T+4}, s{s_mask}, v{T+4}
    v_rcp_f32 v{T+4}, v{T+4}
    s_nop 0''')
    for i in range(8):
        f=F+2*i
        a(f'''v_pk_add_f32 v[{f}:{f+1}], v[{f}:{f+1}], v[{T}:{T+1}] op_sel_hi:[1,0] neg_lo:[0,1] neg_hi:[0,1]
        v_cvt_pk_bf16_f32 v{X+i}, v{f}, v{f+1}''')
    for i in range(8):
        f=F+2*i
        a(f'''v_lshlrev_b32 v{f}, 16, v{X+i}
        v_and_b32 v{f+1}, s{s_mask}, v{X+i}
        v_pk_mul_f32 v[{f}:{f+1}], v[{f}:{f+1}], v[{T+4}:{T+5}] op_sel_hi:[1,0]''')
    for i in range(8):
        f=F+2*i
        a(f'v_cvt_pk_bf16_f32 v{X+i}, v{f}, v{f+1}')

def ln_multi(a, insts, s_mask, s_act):
    ls=[]
    for X,F,T in insts:
        b=Asm(); ln_core(b,X,F,T,s_mask,s_act); ls.append([x for x in b.l if not (len(insts)>=3 and x.startswith('s_nop'))])
    n=max(len(l) for l in ls)
    for i in range(n):
        for l in ls:
            if i<len(l): a(l[i])

RS=912
def emit_images(a, LR, s_wave, s_seg, s_iota, tv, ts, srd_ws=8):
    V=tv; D=tv+8
    a(f'''v_and_b32 v{V}, 1, v0
    v_lshrrev_b32 v{V+1}, 1, v0
    v_and_b32 v{V+1}, 1, v{V+1}
    v_lshlrev_b32 v{V+1}, 3, v{V+1}
    v_add_u32 v{V}, v{V}, v{V+1}
    v_lshrrev_b32 v{V+1}, 2, v0
    v_and_b32 v{V+1}, 1, v{V+1}
    v_lshlrev_b32 v{V+1}, 2, v{V+1}
    v_add_u32 v{V}, v{V}, v{V+1}
    v_lshrrev_b32 v{V+1}, 3, v0
    v_and_b32 v{V+1}, 1, v{V+1}
    v_lshlrev_b32 v{V+1}, 1, v{V+1}
    v_add_u32 v{V}, v{V}, v{V+1}
    v_mul_u32_u24 v{V}, {RS}, v{V}
    s_mul_i32 s{ts}, s{s_wave}, 224
    s_add_u32 s{ts}, s{ts}, {LR}
    v_lshrrev_b32 v{V+1}, 4, v0
    v_lshlrev_b32 v{V+2}, 4, v{V+1}
    v_add3_u32 v{V+2}, v{V}, v{V+2}, s{ts}
    v_lshlrev_b32 v{V+3}, 3, v{V+1}
    v_add3_u32 v{V+3}, v{V}, v{V+3}, s{ts}''')
    for j in range(3): a(f'ds_read_b128 v[{D+4*j}:{D+4*j+3}], v{V+2} offset:{64*j}')
    a(f'ds_read_b64 v[{D+12}:{D+13}], v{V+3} offset:192')
    a(f'''s_mul_i32 s{ts}, s{s_seg}, 28672
    s_mul_i32 s{ts+1}, s{s_wave}, 7168
    s_add_u32 s{ts}, s{ts}, s{ts+1}
    s_add_u32 s{ts}, s{ts}, {ws.XK}
    s_mul_i32 s{ts+1}, s{s_iota}, 3072
    s_add_u32 s{ts+1}, s{ts+1}, s{ts}
    s_lshl_b32 s{ts+2}, s{s_iota}, 9
    s_add_u32 s{ts+2}, s{ts+2}, s{ts}
    s_add_u32 s{ts+2}, s{ts+2}, 6144
    v_lshlrev_b32 v{V+4}, 4, v0
    v_lshlrev_b32 v{V+5}, 3, v0''')
    for j in range(3):
        a(f's_waitcnt lgkmcnt({3-j})\nbuffer_store_dwordx4 v[{D+4*j}:{D+4*j+3}], v{V+4}, s[{srd_ws}:{srd_ws+3}], s{ts+1} offen offset:{1024*j}')
    a(f's_waitcnt lgkmcnt(0)\nbuffer_store_dwordx2 v[{D+12}:{D+13}], v{V+5}, s[{srd_ws}:{srd_ws+3}], s{ts+2} offen')
    a(f'''v_and_b32 v{V}, 7, v0
    v_lshrrev_b32 v{V+1}, 2, v{V}
    v_lshlrev_b32 v{V+1}, 2, v{V+1}
    v_and_b32 v{V+2}, 3, v0
    v_add_u32 v{V+1}, v{V+1}, v{V+2}
    v_mul_u32_u24 v{V+1}, {RS}, v{V+1}
    v_lshrrev_b32 v{V+2}, 5, v0
    v_lshlrev_b32 v{V+3}, 6, v{V+2}
    v_add_u32 v{V+1}, v{V+1}, v{V+3}
    v_lshrrev_b32 v{V+3}, 4, v0
    v_and_b32 v{V+3}, 1, v{V+3}
    v_lshlrev_b32 v{V+3}, 5, v{V+3}
    v_add_u32 v{V+1}, v{V+1}, v{V+3}
    v_lshrrev_b32 v{V+3}, 3, v0
    v_and_b32 v{V+3}, 1, v{V+3}
    v_lshlrev_b32 v{V+3}, 3, v{V+3}
    v_add3_u32 v{V+1}, v{V+1}, v{V+3}, {LR}''' if LR<=64 else f'''v_and_b32 v{V}, 7, v0
    v_lshrrev_b32 v{V+1}, 2, v{V}
    v_lshlrev_b32 v{V+1}, 2, v{V+1}
    v_and_b32 v{V+2}, 3, v0
    v_add_u32 v{V+1}, v{V+1}, v{V+2}
    v_mul_u32_u24 v{V+1}, {RS}, v{V+1}
    v_lshrrev_b32 v{V+2}, 5, v0
    v_lshlrev_b32 v{V+3}, 6, v{V+2}
    v_add_u32 v{V+1}, v{V+1}, v{V+3}
    v_lshrrev_b32 v{V+3}, 4, v0
    v_and_b32 v{V+3}, 1, v{V+3}
    v_lshlrev_b32 v{V+3}, 5, v{V+3}
    v_add_u32 v{V+1}, v{V+1}, v{V+3}
    v_lshrrev_b32 v{V+3}, 3, v0
    v_and_b32 v{V+3}, 1, v{V+3}
    v_lshlrev_b32 v{V+3}, 3, v{V+3}
    v_add_u32 v{V+1}, v{V+1}, v{V+3}
    v_add_u32 v{V+1}, {LR}, v{V+1}''')
    a(f'''v_lshlrev_b32 v{V+2}, 10, v{V+2}
    v_lshrrev_b32 v{V+3}, 3, v0
    v_and_b32 v{V+3}, 3, v{V+3}
    v_lshlrev_b32 v{V+3}, 8, v{V+3}
    v_lshlrev_b32 v{V}, 4, v{V}
    v_add3_u32 v{V+2}, v{V+2}, v{V+3}, v{V}
    s_lshl_b32 s{ts+1}, s{s_iota}, 7
    v_add_u32 v{V+2}, s{ts+1}, v{V+2}
    s_mul_i32 s{ts}, s{s_seg}, 28672
    s_add_u32 s{ts}, s{ts}, {ws.XT}''')
    for n in range(4):
        lskip=a.lab('xt')
        a(f'''s_add_u32 s{ts+1}, s{s_wave}, {4*n}''')
        if n==3: a(f's_cmp_ge_u32 s{ts+1}, 14\ns_cbranch_scc1 {lskip}')
        a(f'''s_cmp_ge_u32 s{ts+1}, 7
        s_cselect_b32 s{ts+2}, {8*RS-7*128}, 0
        s_lshl_b32 s{ts+3}, s{ts+1}, 7
        s_add_u32 s{ts+2}, s{ts+2}, s{ts+3}
        v_add_u32 v{V+3}, s{ts+2}, v{V+1}
        s_lshl_b32 s{ts+1}, s{ts+1}, 11
        s_add_u32 s{ts+1}, s{ts+1}, s{ts}
        ds_read2_b32 v[{D+16+0}:{D+16+1}], v{V+3} offset0:0 offset1:4
        ds_read2_b32 v[{D+16+2}:{D+16+3}], v{V+3} offset0:1 offset1:5
        s_waitcnt lgkmcnt(0)
        buffer_store_dwordx4 v[{D+16}:{D+19}], v{V+2}, s[{srd_ws}:{srd_ws+3}], s{ts+1} offen
        s_nop 1
        {lskip}:''')

def init_stores(a, sid, S_W, TS):
    lp=a.lab('np')
    a(f'''s_cmp_ge_u32 {sid}, 17
    s_cbranch_scc1 {lp}
    s_lshl_b32 s{TS}, {sid}, 12
    s_lshl_b32 s{TS+1}, s{S_W}, 10
    s_add_u32 s{TS}, s{TS}, s{TS+1}
    s_add_u32 s{TS}, s{TS}, {ws.MR}
    v_lshlrev_b32 v5, 4, v0
    v_mov_b32 v60, -1
    v_mov_b32 v61, -1
    v_mov_b32 v62, -1
    v_mov_b32 v63, -1
    buffer_store_dwordx4 v[60:63], v5, s[8:11], s{TS} offen
    {lp}:''')
    a(f'''s_lshl_b32 s{TS}, {sid}, 8
    s_lshl_b32 s{TS+1}, s{S_W}, 6
    s_add_u32 s{TS}, s{TS}, s{TS+1}
    v_add_u32 v5, s{TS}, v0
    v_mov_b32 v60, {63*448}
    v_cmp_gt_u32 vcc, v60, v5
    v_lshlrev_b32 v5, 4, v5
    v_mov_b32 v61, 0x10000000
    v_mov_b32 v60, -1
    v_cndmask_b32 v5, v61, v5, vcc
    v_mov_b32 v61, -1
    v_mov_b32 v62, -1
    v_mov_b32 v63, -1
    s_mov_b32 s{TS}, {ws.MA+7168}
    buffer_store_dwordx4 v[60:63], v5, s[8:11], s{TS} offen''')
    lz=a.lab('nz')
    a(f'''s_sub_u32 s{TS}, {sid}, 17
    s_cmp_ge_u32 s{TS}, 16
    s_cbranch_scc1 {lz}
    s_lshl_b32 s{TS}, s{TS}, 12
    s_lshl_b32 s{TS+1}, s{S_W}, 10
    s_add_u32 s{TS}, s{TS}, s{TS+1}
    s_add_u32 s{TS}, s{TS}, {ws.FLG}
    v_lshlrev_b32 v5, 4, v0
    v_mov_b32 v60, 0
    v_mov_b32 v61, 0
    v_mov_b32 v62, 0
    v_mov_b32 v63, 0
    buffer_store_dwordx4 v[60:63], v5, s[8:11], s{TS} offen
    {lz}:''')

LN_LDS=16*RS
def ln_kernel(name, src, init=True):
    a=Asm(); a.l.append(head(name)); ex=name+'_exit'
    S_W=17; S_SEG=18; S_IO=19; S_MASK=20; S_ACT=22; TS=24
    a(f'''s_cmp_ge_u32 s2, 128
    s_cbranch_scc1 {ex}
    s_load_dwordx2 s[4:5], s[0:1], {KA['ws']}
    s_load_dwordx2 s[6:7], s[0:1], {KA['x']}
    v_lshrrev_b32 v1, 6, v0
    v_and_b32 v0, 63, v0
    s_lshr_b32 s{S_SEG}, s2, 1
    s_and_b32 s{S_IO}, s2, 1
    v_readfirstlane_b32 s{S_W}, v1
    s_mov_b32 s{S_MASK}, 0xffff0000
    v_and_b32 v2, 31, v0
    v_cmp_gt_u32 s[{S_ACT}:{S_ACT+1}], 28, v2
    s_waitcnt lgkmcnt(0)''')
    srd(a,8,4,0x10000000)
    if src=='x': srd(a,12,6,1835008); so='0'
    else:
        srd(a,12,4,0x10000000); so=f's{TS+3}'; a(f's_mov_b32 s{TS+3}, {src}')
    a(f'''s_lshl_b32 s{TS}, s2, 4
    s_lshl_b32 s{TS+1}, s{S_W}, 2
    s_add_u32 s{TS}, s{TS}, s{TS+1}
    v_lshrrev_b32 v3, 5, v0
    v_add_u32 v4, s{TS}, v3
    v_mul_u32_u24 v4, 896, v4
    v_lshlrev_b32 v5, 5, v2
    v_add_u32 v4, v4, v5
    v_mov_b32 v6, 0x10000000
    v_cndmask_b32 v4, v6, v4, s[{S_ACT}:{S_ACT+1}]
    v_add_u32 v7, s{TS+1}, v3
    v_mul_u32_u24 v7, {RS}, v7
    v_add_u32 v7, v7, v5''')
    for it in range(2):
        a(f'buffer_load_dwordx4 v[{8+8*it}:{11+8*it}], v4, s[12:15], {so} offen offset:{it*1792}')
        a(f'buffer_load_dwordx4 v[{12+8*it}:{15+8*it}], v4, s[12:15], {so} offen offset:{it*1792+16}')
    if init: init_stores(a,'s2',S_W,TS)
    for it in range(2):
        a(f's_waitcnt vmcnt({2 if it==0 else 0})') if False else None
    a('s_waitcnt vmcnt(0)')
    for it in range(2):
        ln_core(a, 8+8*it, 24, 40, S_MASK, S_ACT)
    a(f's_mov_b64 s[{TS}:{TS+1}], exec\ns_mov_b64 exec, s[{S_ACT}:{S_ACT+1}]')
    for it in range(2):
        a(f'ds_write_b128 v7, v[{8+8*it}:{11+8*it}] offset:{it*2*RS}')
        a(f'ds_write_b128 v7, v[{12+8*it}:{15+8*it}] offset:{it*2*RS+16}')
    a(f's_mov_b64 exec, s[{TS}:{TS+1}]\ns_waitcnt lgkmcnt(0)\ns_barrier')
    emit_images(a,0,S_W,S_SEG,S_IO,8,TS)
    a(f's_waitcnt vmcnt(0)\n{ex}:\ns_endpgm')
    return a.text()+kd(name,vgpr=64)
if __name__=='__main__':
    t='.amdgcn_target "amdgcn-amd-amdhsa--gfx950"\n'+ln_kernel('ln_kernel','x')
    open('ln.s','w').write(t)
```

```python
from common import *
from ln import fbits
MISC_LDS=65536
N_WT=32; N_TB=104
MISC_WG=N_WT+N_TB+1
def misc_body(a, s_id, ex, S_W=17, TS=24, ma0=True, st=''):
    ltb=a.lab('mtb'); lma=a.lab('mma')
    a(f's_cmp_ge_u32 s{s_id}, {N_WT}\ns_cbranch_scc1 {ltb}')
    a(f'''s_load_dwordx4 s[36:39], s[0:1], {KA['wr']}
    s_lshr_b32 s{TS}, s{s_id}, 3
    s_lshl_b32 s{TS}, s{TS}, 4
    s_and_b32 s{TS+1}, s{s_id}, 7
    s_lshl_b32 s{TS+1}, s{TS+1}, 2
    s_add_u32 s{TS+1}, s{TS+1}, s{S_W}
    s_lshl_b32 s{TS+1}, s{TS+1}, 6
    s_add_u32 s{TS}, s{TS}, s{TS+1}
    s_mul_i32 s{TS}, s{TS}, 450
    v_lshlrev_b32 v2, 4, v0
    s_waitcnt lgkmcnt(0)''')
    srd(a,12,36,921600); srd(a,40,38,921600)
    for arr in range(2):
        sr_='s[12:15]' if arr==0 else 's[40:43]'
        for t in range(8):
            a(f'''s_lshl_b32 s{TS+1}, s{S_W}, 13
            s_add_u32 m0, s{TS+1}, {arr*32768+t*1024}
            s_add_u32 s{TS+2}, s{TS}, {t*1024}
            buffer_load_dwordx4 v2, {sr_}, s{TS+2} offen lds''')
    a(f'''s_lshl_b32 s{TS+1}, s{S_W}, 2
    v_and_b32 v3, 15, v0
    v_lshrrev_b32 v4, 4, v0
    v_add_u32 v4, s{TS+1}, v4
    v_mul_u32_u24 v5, 450, v3
    v_lshlrev_b32 v6, 1, v4
    v_add_u32 v5, v5, v6
    v_lshlrev_b32 v6, 13, v4
    v_lshlrev_b32 v7, 4, v3
    v_add_u32 v6, v6, v7
    s_lshr_b32 s{TS}, s{s_id}, 2
    s_lshl_b32 s{TS}, s{TS}, 10
    s_and_b32 s{TS+1}, s{s_id}, 3
    s_lshl_b32 s{TS+1}, s{TS+1}, 8
    s_add_u32 s{TS}, s{TS}, s{TS+1}
    s_add_u32 s{TS}, s{TS}, {ws.WT}
    s_waitcnt vmcnt(0)
    s_barrier''')
    for it in range(15):
        b=8+4*(it&3)
        if it==14: a('v_cmp_gt_u32 vcc, 1, v4\ns_and_saveexec_b64 s[44:45], vcc')
        for r in range(4):
            a(f'ds_read_u16 v{b+r}, v5 offset:{r*8192+it*32}')
        for r in range(4):
            a(f'ds_read_u16 v{28+r}, v5 offset:{32768+r*8192+it*32}')
        a('s_waitcnt lgkmcnt(0)')
        for r in range(4): a(f'v_lshl_or_b32 v{b+r}, v{28+r}, 16, v{b+r}')
        a(f'buffer_store_dwordx4 v[{b}:{b+3}], v6, s[8:11], s{TS} offen {st}')
        a(f's_add_u32 s{TS}, s{TS}, {16*8192}')
        if (it&3)==3: a('s_waitcnt vmcnt(0)')
    a(f's_mov_b64 exec, -1\ns_branch {ex}\n{ltb}:')
    if ma0: a(f's_cmp_ge_u32 s{s_id}, {N_WT+N_TB}\ns_cbranch_scc1 {lma}')
    a(f'''s_sub_u32 s{TS}, s{s_id}, {N_WT}
    s_lshl_b32 s{TS}, s{TS}, 3
    s_lshl_b32 s{TS+1}, s{S_W}, 1
    s_add_u32 s{TS}, s{TS}, s{TS+1}
    v_and_b32 v2, 31, v0
    v_lshrrev_b32 v3, 5, v0
    v_lshlrev_b32 v3, 3, v3
    v_lshlrev_b32 v20, 4, v0''')
    for it in range(2):
        liv=a.lab('iv'); lgo=a.lab('go'); lsk=a.lab('sk')
        a(f's_cmp_ge_u32 s{TS}, 826\ns_cbranch_scc1 {lsk}\ns_cmp_ge_u32 s{TS}, 420\ns_cbranch_scc1 {liv}')
        div_const(a,TS+1,TS,28,420)
        a(f'''s_mul_i32 s{TS+2}, s{TS+1}, 28
        s_sub_u32 s{TS+2}, s{TS}, s{TS+2}
        s_lshl_b32 s{TS+1}, s{TS+1}, 5
        s_lshl_b32 s{TS+2}, s{TS+2}, 4
        v_add_u32 v4, s{TS+1}, v2
        v_add_u32 v5, s{TS+2}, v3
        s_mov_b32 s{TS+3}, 0
        s_lshl_b32 s{TS+4}, s{TS}, 10
        s_add_u32 s{TS+4}, s{TS+4}, {ws.FW}
        s_branch {lgo}
        {liv}:
        s_sub_u32 s{TS+5}, s{TS}, 420''')
        div_const(a,TS+1,TS+5,29,406)
        a(f'''s_mul_i32 s{TS+2}, s{TS+1}, 29
        s_sub_u32 s{TS+2}, s{TS+5}, s{TS+2}
        s_lshl_b32 s{TS+1}, s{TS+1}, 5
        s_lshl_b32 s{TS+2}, s{TS+2}, 4
        v_add_u32 v4, s{TS+2}, v3
        v_add_u32 v5, s{TS+1}, v2
        s_mov_b32 s{TS+3}, 1
        s_lshl_b32 s{TS+4}, s{TS+5}, 10
        s_add_u32 s{TS+4}, s{TS+4}, {ws.IV}
        {lgo}:''')
        a(f'''s_xor_b32 s{TS+5}, s{TS+3}, 1
        s_mov_b32 s{TS+6}, {hex(fbits(1/448.0))}
        s_mov_b32 s{TS+7}, {hex(fbits(2/448.0))}''')
        for u in range(8):
            a(f'''s_mul_i32 s{TS+8}, s{TS+3}, {u}
            s_mul_i32 s{TS+9}, s{TS+5}, {u}
            v_add_u32 v6, s{TS+8}, v4
            v_add_u32 v7, s{TS+9}, v5
            v_subrev_u32 v8, 225, v6
            v_cmp_gt_u32 vcc, 225, v6
            v_mov_b32 v10, 0.25
            s_nop 0
            v_cndmask_b32 v8, v8, v6, vcc
            v_cndmask_b32 v10, v10, 0, vcc
            v_mul_u32_u24 v9, v8, v7
            v_cvt_f32_u32 v9, v9
            v_mul_f32 v11, s{TS+6}, v9
            v_floor_f32 v11, v11
            v_mul_f32 v11, 0xc3e00000, v11
            v_add_f32 v9, v9, v11
            v_fma_f32 v9, v9, s{TS+6}, v10
            v_cos_f32 v9, v9
            v_mov_b32 v11, 1.0
            s_cmp_eq_u32 s{TS+3}, 0
            s_cbranch_scc1 .Lm{it}_{u}_{a.n}
            v_mov_b32 v11, s{TS+7}
            v_mov_b32 v12, s{TS+6}
            v_cmp_eq_u32 vcc, 0, v8
            s_nop 1
            v_cndmask_b32 v11, v11, v12, vcc
            v_mov_b32 v13, 224
            v_cmp_eq_u32 vcc, v13, v8
            s_nop 1
            v_cndmask_b32 v11, v11, v12, vcc
            .Lm{it}_{u}_{a.n}:
            v_mov_b32 v13, 450
            v_cmp_gt_u32 vcc, v13, v6
            s_nop 1
            v_cndmask_b32 v11, 0, v11, vcc
            v_mul_f32 v{22+u}, v9, v11''')
        for q in range(4): a(f'v_cvt_pk_bf16_f32 v{32+q}, v{22+2*q}, v{23+2*q}')
        a(f'buffer_store_dwordx4 v[32:35], v20, s[8:11], s{TS+4} offen {st}\ns_waitcnt vmcnt(0)\n{lsk}:\ns_add_u32 s{TS}, s{TS}, 1')
    a(f's_branch {ex}')
    if not ma0: return
    a(f'{lma}:')
    ma0_body(a,S_W,TS)
    a(f's_branch {ex}')

def ma0_body(a,S_W=17,TS=24):
    a(f'''s_load_dwordx2 s[36:37], s[0:1], {KA['mem0']}
    s_lshl_b32 s{TS}, s{S_W}, 6
    v_add_u32 v2, s{TS}, v0
    v_mov_b32 v8, 0
    v_mov_b32 v9, 0
    v_mov_b32 v10, 0
    v_mov_b32 v11, 0
    v_lshlrev_b32 v3, 4, v2
    s_waitcnt lgkmcnt(0)''')
    srd(a,12,36,7168)
    for k in range(14):
        a(f's_mov_b32 s{TS+1}, {ws.GT+(450+k)*4096}\nbuffer_store_dwordx4 v[8:11], v3, s[8:11], s{TS+1} offen')
    for it in range(2):
        a(f'''v_add_u32 v4, {256*it}, v2
        v_and_b32 v5, 7, v4
        v_mul_u32_u24 v5, 896, v5
        v_lshrrev_b32 v6, 3, v4
        v_lshlrev_b32 v6, 4, v6
        v_add_u32 v5, v5, v6
        v_lshlrev_b32 v6, 4, v4
        v_mov_b32 v7, 448
        v_cmp_gt_u32 vcc, v7, v4
        v_mov_b32 v7, 0x10000000
        s_nop 0
        v_cndmask_b32 v5, v7, v5, vcc
        v_cndmask_b32 v6, v7, v6, vcc
        buffer_load_dwordx4 v[12:15], v5, s[12:15], 0 offen
        s_mov_b32 s{TS+1}, {ws.MA}
        s_waitcnt vmcnt(0)
        buffer_store_dwordx4 v[12:15], v6, s[8:11], s{TS+1} offen
        s_waitcnt vmcnt(0)''')

def misc_kernel(name):
    a=Asm(); a.l.append(head(name)); ex=name+'_exit'; fin=name+'_fin'
    a(f'''s_cmp_ge_u32 s2, {MISC_WG}
    s_cbranch_scc1 {ex}
    s_load_dwordx2 s[4:5], s[0:1], {KA['ws']}
    v_lshrrev_b32 v1, 6, v0
    v_and_b32 v0, 63, v0
    s_mov_b32 s16, s2
    v_readfirstlane_b32 s17, v1
    s_waitcnt lgkmcnt(0)''')
    srd(a,8,4,0x10000000)
    misc_body(a,16,fin)
    a(f'{fin}:\ns_waitcnt vmcnt(0)\n{ex}:\ns_endpgm')
    return a.text()+kd(name,vgpr=64)
if __name__=='__main__':
    t='.amdgcn_target "amdgcn-amd-amdhsa--gfx950"\n'+misc_kernel('misc_kernel')
    open('misc.s','w').write(t)
```

```python
from common import *
import rec2 as rec, dk, j1, j2, misc
from rec2 import S_ROLE,S_WAVE,S_MODE,S_T0,S_T1,S_T2,S_T3,S_T4,S_T5,S_T6,S_CNT,NROLE,LS_ROLE
OK_LDS=j1.J1_LDS
NJ1=112; NJ2=114
def election2(a,nrole=NROLE):
    L=a.lab
    l_w, l_nocas, l_poll, l_got, l_glob, l_fin, l_wk, l_c, l_cok, l_rec = [L('el') for _ in range(10)]
    a(f'''s_cmp_lg_u32 s{S_WAVE}, 0
    s_cbranch_scc1 {l_w}
    s_getreg_b32 s{S_T0}, hwreg(HW_REG_XCC_ID,0,4)
    s_mov_b64 exec, 1
    s_lshl_b32 s{S_T1}, s{S_T0}, 2
    v_mov_b32 v2, s{S_T1}
    v_mov_b32 v3, 1
    v_mov_b32 v6, 64
    buffer_atomic_add v3, v2, s[12:15], 0 offen sc0 sc1
    s_add_u32 s{S_T0}, s{S_T0}, 1
    s_waitcnt vmcnt(0)
    v_readfirstlane_b32 s{S_T2}, v3
    s_nop 3
    s_cmp_lg_u32 s{S_T2}, {nrole-1}
    s_cbranch_scc1 {l_nocas}
    v_mov_b32 v4, s{S_T0}
    v_mov_b32 v5, 0
    buffer_atomic_cmpswap v[4:5], v6, s[12:15], 0 offen sc0 sc1
    s_waitcnt vmcnt(0)
    {l_nocas}:
    s_mov_b32 s{S_CNT}, 400
    {l_poll}:
    buffer_load_dword v4, v6, s[12:15], 0 offen sc0 sc1
    s_waitcnt vmcnt(0)
    v_readfirstlane_b32 s{S_T3}, v4
    s_nop 3
    s_cmp_lg_u32 s{S_T3}, 0
    s_cbranch_scc1 {l_got}
    s_sub_u32 s{S_CNT}, s{S_CNT}, 1
    s_cbranch_scc0 {l_poll}
    v_mov_b32 v4, 100
    v_mov_b32 v5, 0
    buffer_atomic_cmpswap v[4:5], v6, s[12:15], 0 offen sc0 sc1
    s_waitcnt vmcnt(0)
    v_readfirstlane_b32 s{S_T3}, v4
    s_nop 3
    s_cmp_lg_u32 s{S_T3}, 0
    s_cbranch_scc1 {l_got}
    s_mov_b32 s{S_T3}, 100
    {l_got}:
    s_cmp_eq_u32 s{S_T3}, 100
    s_cbranch_scc1 {l_glob}
    s_cmp_lg_u32 s{S_T3}, s{S_T0}
    s_cbranch_scc1 {l_wk}
    s_cmp_ge_u32 s{S_T2}, {nrole}
    s_cbranch_scc1 {l_wk}
    s_mov_b32 s{S_T4}, s{S_T2}
    s_branch {l_fin}
    {l_wk}:''')
    a(f'''s_mov_b64 exec, 0xffff
    v_lshlrev_b32 v2, 2, v0
    s_mov_b32 s{S_CNT}, 2000
    {l_c}:
    buffer_load_dword v3, v2, s[12:15], 0 offen sc0 sc1
    s_waitcnt vmcnt(0)
    s_mov_b32 s{S_T5}, 0
    s_mov_b32 s{S_T6}, 0''')
    for x in range(16):
        ls=L('els')
        a(f'''v_readlane_b32 s30, v3, {x}
        s_nop 3
        s_add_u32 s{S_T5}, s{S_T5}, s30
        s_cmp_eq_u32 s{S_T3}, {x+1}
        s_cbranch_scc1 {ls}
        s_cmp_eq_u32 s{S_T0}, s{S_T3}
        s_cselect_b32 s31, 99, s{S_T0}
        s_cmp_gt_u32 s31, {x+1}
        s_cselect_b32 s30, s30, 0
        s_add_u32 s{S_T6}, s{S_T6}, s30
        {ls}:''')
    a(f'''s_cmp_ge_u32 s{S_T5}, 256
    s_cbranch_scc1 {l_cok}
    s_sub_u32 s{S_CNT}, s{S_CNT}, 1
    s_cbranch_scc0 {l_c}
    s_mov_b32 s{S_T6}, 1000
    {l_cok}:
    s_cmp_eq_u32 s{S_T0}, s{S_T3}
    s_cselect_b32 s30, {nrole}, 0
    s_sub_u32 s{S_T4}, s{S_T2}, s30
    s_add_u32 s{S_T4}, s{S_T4}, s{S_T6}
    s_add_u32 s{S_T4}, s{S_T4}, {nrole}
    s_min_u32 s{S_T4}, s{S_T4}, 0x3ff
    s_mov_b64 exec, 1
    s_branch {l_fin}
    {l_glob}:
    v_mov_b32 v3, 1
    v_mov_b32 v6, 68
    buffer_atomic_add v3, v6, s[12:15], 0 offen sc0 sc1
    s_waitcnt vmcnt(0)
    v_readfirstlane_b32 s{S_T4}, v3
    s_nop 3
    s_min_u32 s{S_T4}, s{S_T4}, 0x3ff
    s_or_b32 s{S_T4}, s{S_T4}, 0x400
    {l_fin}:
    v_mov_b32 v2, {LS_ROLE}
    v_mov_b32 v3, s{S_T4}
    ds_write_b32 v2, v3
    s_waitcnt lgkmcnt(0)
    s_mov_b64 exec, -1
    {l_w}:
    s_barrier
    v_mov_b32 v2, {LS_ROLE}
    ds_read_b32 v3, v2
    s_waitcnt lgkmcnt(0)
    v_readfirstlane_b32 s{S_T4}, v3
    s_nop 3
    s_and_b32 s{S_ROLE}, s{S_T4}, 0x3ff
    s_lshr_b32 s{S_MODE}, s{S_T4}, 10
    s_barrier''')

OPT=dict(fill=1,static=1,xkbar=1,vfill=1,dls=['pre']*8,wi_late=1,hlp=2,hslp=4,dfl=8)
def tstamp(a,i,tl):
    if tl: a(f's_memrealtime s[{70+2*i}:{71+2*i}]')
def tdump(a,n,tl,wk=False):
    if not tl: return
    if wk: a(f's_add_u32 s{S_ROLE}, s58, {wk}')
    a(f'''s_waitcnt lgkmcnt(0)
    s_lshl_b32 s{S_T0}, s{S_ROLE}, 2
    s_add_u32 s{S_T0}, s{S_T0}, s{S_WAVE}
    s_lshl_b32 s{S_T0}, s{S_T0}, 6
    s_add_u32 s{S_T0}, s{S_T0}, {ws.PROF+0xE0000}
    s_mov_b64 exec, -1
    v_mov_b32 v2, 0''')
    for i in range(n): a(f'v_writelane_b32 v2, s{70+2*i}, {i}')
    a(f'''v_lshlrev_b32 v3, 2, v0
    v_mov_b32 v4, 0x10000000
    v_cmp_gt_u32 vcc, 16, v0
    s_nop 1
    v_cndmask_b32 v3, v4, v3, vcc
    buffer_store_dword v2, v3, s[8:11], s{S_T0} offen
    s_waitcnt vmcnt(0)''')
def o_kernel(name, src, prof=False, clk=False, workers=True, o=None, tl=False, do_misc=False):
    o=OPT if o is None else o
    a=Asm(); a.l.append(head(name))
    ex=name+'_exit'; lv=name+'_val'; lwk=name+'_wk'; lj2=name+'_j2'; lnd=name+'_nd'
    tstamp(a,0,tl)
    hlp=o.get('hlp',0); NR=32 if hlp else NROLE; NJ2_=112 if hlp else NJ2
    rec.prologue(a,256,ex)
    election2(a,NR)
    tstamp(a,1,tl)
    o=dict(o); o['tl']=(lambda i: tstamp(a,i,tl), lambda n: tdump(a,n,tl))
    a(f'''s_cmp_ge_u32 s{S_ROLE}, {NR}
    s_cbranch_scc1 {lwk}''')
    rec.roles(a,name,prof,clk,63,True,o)
    a(f'{lwk}:')
    a(f'''s_sub_u32 s58, s{S_ROLE}, {NR}
    s_cmp_ge_u32 s58, {NJ1+NJ2_}
    s_cbranch_scc1 {ex}
    s_cmp_ge_u32 s58, 224
    s_cbranch_scc1 {lnd}''')
    a(f'''s_and_b32 s18, s58, 3
    s_lshr_b32 s21, s58, 2
    s_lshr_b32 s16, s21, 2
    s_and_b32 s19, s21, 3''')
    dk.d_body(a,16,19,18,S_WAVE,stflags='sc1',flags=True)
    a(f's_barrier\n{lnd}:')
    tstamp(a,2,tl)
    a(f's_cmp_ge_u32 s58, {NJ1}\ns_cbranch_scc1 {lj2}')
    div_const(a,16,58,7,112)
    a(f'''s_mul_i32 s18, s16, 7
    s_sub_u32 s18, s58, s18
    s_cmp_eq_u32 s18, 0
    s_cselect_b32 s19, 10, 9''')
    j1.j1_body(a,16,18,S_WAVE,None,7,stflags='sc1',om=True,S_N=19)
    tstamp(a,3,tl); tdump(a,4,tl,NR)
    a(f's_endpgm\n{lj2}:')
    if do_misc:
        lm=a.lab('ml'); ln_=a.lab('mn'); ld=a.lab('md')
        a(f's_sub_u32 s59, s58, {NJ1}\n{lm}:\ns_cmp_ge_u32 s59, {misc.N_WT+misc.N_TB}\ns_cbranch_scc1 {ld}')
        misc.misc_body(a,59,ln_,17,24,False)
        a(f'{ln_}:\ns_waitcnt vmcnt(0) lgkmcnt(0)\ns_barrier\ns_add_u32 s59, s59, {NJ2_}\ns_branch {lm}\n{ld}:')
    a(f's_sub_u32 s16, s58, {NJ1}')
    if src=='x':
        a(f"s_load_dwordx2 s[6:7], s[0:1], {KA['x']}\ns_waitcnt lgkmcnt(0)"); srd(a,12,6,1835008); rs,so='s[12:15]','0'
    else: a(f's_mov_b32 s22, {src}'); rs,so='s[8:11]','s22'
    a(f's_mov_b32 s19, {ws.X1}')
    j2.j2_om(a,16,S_WAVE,rs,so,'s19',NJ2_,nx=o.get('nx',0) or hlp)
    tstamp(a,3,tl); tdump(a,4,tl,NR)
    a(f'{ex}:\ns_endpgm')
    return a.text()+kd(name,vgpr=256,agpr=256)
if __name__=='__main__':
    t='.amdgcn_target "amdgcn-amd-amdhsa--gfx950"\n'+o_kernel('o_kernel','x')
    open('ok.s','w').write(t); print(len(t))
```

```python
from common import *
import fold, misc
from ln import *
PRE_LDS=fold.FOLD_LDS
def ln4_body(a, S_K, S_W, src_srd, so):
    S_SEG=18; S_IO=19; S_MASK=20; S_ACT=22; TS=24
    XB=[8+8*i for i in range(8)]
    F=[72,88,104,120]; T=[136,144,152,160]
    a(f'''s_mov_b32 s{S_MASK}, 0xffff0000
    v_and_b32 v2, 31, v0
    v_cmp_gt_u32 s[{S_ACT}:{S_ACT+1}], 28, v2
    s_lshl_b32 s{TS}, s{S_K}, 6
    s_lshl_b32 s{TS+1}, s{S_W}, 2
    s_add_u32 s{TS}, s{TS}, s{TS+1}
    v_lshrrev_b32 v3, 5, v0
    v_add_u32 v4, s{TS}, v3
    v_mul_u32_u24 v4, 896, v4
    v_lshlrev_b32 v5, 5, v2
    v_add_u32 v4, v4, v5
    v_mov_b32 v6, 0x10000000
    v_cndmask_b32 v4, v6, v4, s[{S_ACT}:{S_ACT+1}]
    v_add_u32 v7, s{TS+1}, v3
    v_mul_u32_u24 v7, {RS}, v7
    v_add_u32 v7, v7, v5''')
    for i in range(4):
        a(f's_add_u32 s{TS+2}, {so}, {i*16*896}')
        for it in range(2):
            r=XB[2*i+it]
            a(f'buffer_load_dwordx4 v[{r}:{r+3}], v4, {src_srd}, s{TS+2} offen offset:{it*1792}')
            a(f'buffer_load_dwordx4 v[{r+4}:{r+7}], v4, {src_srd}, s{TS+2} offen offset:{it*1792+16}')
    for half in range(2):
        a(f's_waitcnt vmcnt({8 if half==0 else 0})')
        ln_multi(a,[(XB[4*half+i],F[i],T[i]) for i in range(4)],S_MASK,S_ACT)
        a(f's_mov_b64 s[{TS}:{TS+1}], exec\ns_mov_b64 exec, s[{S_ACT}:{S_ACT+1}]')
        for i in range(4):
            q=4*half+i; item=q>>1; it=q&1; r=XB[q]
            a(f'ds_write_b128 v7, v[{r}:{r+3}] offset:{item*16*RS+it*2*RS}')
            a(f'ds_write_b128 v7, v[{r+4}:{r+7}] offset:{item*16*RS+it*2*RS+16}')
        a(f's_mov_b64 exec, s[{TS}:{TS+1}]')
    a('s_waitcnt lgkmcnt(0)\ns_barrier')
    for i in range(4):
        a(f's_lshl_b32 s{S_SEG}, s{S_K}, 1\ns_add_u32 s{S_SEG}, s{S_SEG}, {i>>1}\ns_mov_b32 s{S_IO}, {i&1}')
        emit_images(a,i*16*RS,S_W,S_SEG,S_IO,8,TS)
def pre_kernel(name, loc=True):
    a=Asm(); a.l.append(head(name)); ex=name+'_exit'; lln=name+'_ln'; lnm=name+'_nm'
    a(f'''s_cmp_ge_u32 s2, 256
    s_cbranch_scc1 {ex}
    s_load_dwordx2 s[4:5], s[0:1], {KA['ws']}
    s_load_dwordx2 s[6:7], s[0:1], {KA['x']}
    v_lshrrev_b32 v1, 6, v0
    v_and_b32 v0, 63, v0
    s_mov_b32 s16, s2
    v_readfirstlane_b32 s17, v1
    s_waitcnt lgkmcnt(0)''')
    srd(a,8,4,0x10000000)
    a(f's_cmp_ge_u32 s16, 224\ns_cbranch_scc1 {lln}')
    init_stores(a,'s16',17,24)
    fold.fold_body(a,ex,False,loc,16)
    a(f's_endpgm\n{lln}:')
    srd(a,48,6,1835008)
    a('s_sub_u32 s16, s16, 224')
    ln4_body(a,16,17,'s[48:51]','0')
    a(f's_cmp_lg_u32 s16, 31\ns_cbranch_scc1 {lnm}')
    misc.ma0_body(a,17,24)
    a(f'{lnm}:\ns_waitcnt vmcnt(0)\n{ex}:\ns_endpgm')
    return a.text()+kd(name,vgpr=168,agpr=128)
if __name__=='__main__':
    import hz
    t='.amdgcn_target "amdgcn-amd-amdhsa--gfx950"\n'+pre_kernel('pre_kernel'); hz.check(t)
    open('pre.s','w').write(t)
```

```python
import sys, os
sys.path.insert(0,os.path.dirname(os.path.abspath(__file__)))
import fold, misc, ln, dk, rec, j1, j2, b1, fft, b3, hz, ok, pre
from lay import ws
NAME='interleave_layers__memory_aug_recurrent_mem_tr__spectral_gfnet__prompt'
STUB=f'cdna_kernels/{NAME}.s.ref'
def kernels_v1():
    WT='sc1'
    K={}
    K['fold_kernel']=(fold.fold_kernel('fold_kernel'),224,fold.FOLD_LDS)
    K['misc_kernel']=(misc.misc_kernel('misc_kernel'),misc.MISC_WG,misc.MISC_LDS)
    K['ln0_kernel']=(ln.ln_kernel('ln0_kernel','x'),128,ln.LN_LDS)
    K['ln1_kernel']=(ln.ln_kernel('ln1_kernel',ws.X2),128,ln.LN_LDS)
    K['d_kernel']=(dk.d_kernel('d_kernel',stflags=WT),224,dk.D_LDS)
    K['rec_kernel']=(rec.rec_kernel('rec_kernel'),256,rec.REC_LDS)
    K['j1_kernel']=(j1.j1_kernel('j1_kernel'),256,j1.J1_LDS)
    K['j2a_kernel']=(j2.j2_kernel('j2a_kernel','x'),256,j2.J2_LDS)
    K['j2b_kernel']=(j2.j2_kernel('j2b_kernel',ws.X2),256,j2.J2_LDS)
    K['b1_kernel']=(b1.b1_kernel('b1_kernel'),256,b1.B1_LDS)
    K['fft_kernel']=(fft.fft_kernel('fft_kernel'),225,fft.FFT_LDS)
    K['b3a_kernel']=(b3.b3_kernel('b3a_kernel',ws.X2),256,b3.B3_LDS)
    K['b3b_kernel']=(b3.b3_kernel('b3b_kernel','out'),256,b3.B3_LDS)
    order=['fold_kernel','misc_kernel','ln0_kernel','d_kernel','rec_kernel','j1_kernel','j2a_kernel','b1_kernel','fft_kernel','b3a_kernel',
           'ln1_kernel','d_kernel','rec_kernel','j1_kernel','j2b_kernel','b1_kernel','fft_kernel','b3b_kernel']
    return K,order
def kernels_v2():
    K,_=kernels_v1()
    K['oa_kernel']=(ok.o_kernel('oa_kernel','x'),256,ok.OK_LDS)
    K['ob_kernel']=(ok.o_kernel('ob_kernel',ws.X2),256,ok.OK_LDS)
    order=['fold_kernel','misc_kernel','ln0_kernel','oa_kernel','b1_kernel','fft_kernel','b3a_kernel',
           'ln1_kernel','ob_kernel','b1_kernel','fft_kernel','b3b_kernel']
    return K,order
def kernels_v3():
    K,_=kernels_v1()
    K['pre_kernel']=(pre.pre_kernel('pre_kernel'),256,pre.PRE_LDS)
    K['oa_kernel']=(ok.o_kernel('oa_kernel','x',do_misc=True),256,ok.OK_LDS)
    K['ob_kernel']=(ok.o_kernel('ob_kernel',ws.X2),256,ok.OK_LDS)
    order=['pre_kernel','oa_kernel','b1_kernel','fft_kernel','b3a_kernel',
           'ln1_kernel','ob_kernel','b1_kernel','fft_kernel','b3b_kernel']
    return K,order
def assemble_text(K,order):
    hdr=[l for l in open(STUB).read().split('\n') if l.startswith(';') and 'offset' in l or l.startswith('; Kernarg')]
    t='\n'.join(hdr)+'\n'
    for n in order: t+=f'; @launch kernel={n} grid=({K[n][1]},1,1) block=(256,1,1) lds={K[n][2]}\n'
    t+='.amdgcn_target "amdgcn-amd-amdhsa--gfx950"\n'
    body=''.join(K[n][0] for n in dict.fromkeys(order))
    return t+body, body
if __name__=='__main__':
    ver=sys.argv[2] if len(sys.argv)>2 else 'v2'
    K,order=globals()['kernels_'+ver]()
    t,body=assemble_text(K,order)
    hz.check(body)
    out=sys.argv[1] if len(sys.argv)>1 else f'cdna_kernels/{NAME}.s'
    open(out,'w').write(t); print(out,len(t))
```

```python
from common import *
from ln import *
B1_LDS=32*RS
def b1_kernel(name, stflags=''):
    a=Asm(); a.l.append(head(name)); ex=name+'_exit'
    S_W=17; S_TB=18; S_TL=19; S_MASK=20; S_ACT=22; TS=24
    X=[8,16,24,32]; F=[40,56,72,88]; T=[104,112,120,128]
    a(f'''s_cmp_ge_u32 s2, 256
    s_cbranch_scc1 {ex}
    s_load_dwordx2 s[4:5], s[0:1], {KA['ws']}
    v_lshrrev_b32 v1, 6, v0
    v_and_b32 v0, 63, v0
    s_lshr_b32 s{S_TB}, s2, 2
    s_and_b32 s{S_TL}, s2, 3
    v_readfirstlane_b32 s{S_W}, v1
    s_mov_b32 s{S_MASK}, 0xffff0000
    v_and_b32 v2, 31, v0
    v_cmp_gt_u32 s[{S_ACT}:{S_ACT+1}], 28, v2
    s_lshl_b32 s{S_TL}, s{S_TL}, 2
    s_waitcnt lgkmcnt(0)
    s_add_u32 s{S_TL}, s{S_TL}, s{S_W}''')
    srd(a,8,4,0x10000000)
    a(f'''s_lshl_b32 s{TS}, s{S_TB}, 5
    s_lshl_b32 s{TS+1}, s{S_W}, 3
    s_add_u32 s{TS}, s{TS}, s{TS+1}
    v_lshrrev_b32 v3, 5, v0
    v_add_u32 v4, s{TS}, v3
    v_mul_u32_u24 v4, 896, v4
    v_lshlrev_b32 v5, 5, v2
    v_add_u32 v4, v4, v5
    v_mov_b32 v6, 0x10000000
    v_cndmask_b32 v4, v6, v4, s[{S_ACT}:{S_ACT+1}]
    v_add_u32 v7, s{TS+1}, v3
    v_mul_u32_u24 v7, {RS}, v7
    v_add_u32 v7, v7, v5
    s_mov_b32 s{TS+2}, {ws.X1}
    s_add_u32 s{TS+3}, s{TS+2}, 3584''')
    for it in range(4):
        so=TS+2 if it<2 else TS+3; o=(it&1)*1792
        a(f'buffer_load_dwordx4 v[{X[it]}:{X[it]+3}], v4, s[8:11], s{so} offen offset:{o}')
        a(f'buffer_load_dwordx4 v[{X[it]+4}:{X[it]+7}], v4, s[8:11], s{so} offen offset:{o+16}')
    lnt=a.lab('b1nt')
    a(f'''v_lshlrev_b32 v1, 4, v0
    s_mul_i32 s{TS+4}, s{S_TL}, 28672
    s_add_u32 s{TS+4}, s{TS+4}, {ws.FW}
    s_cmp_ge_u32 s{S_TL}, 15
    s_cselect_b32 s{TS+5}, 0x10000000, 0
    v_add_u32 v1, s{TS+5}, v1''')
    for f in range(28):
        a(f'buffer_load_dwordx4 a[{4*f}:{4*f+3}], v1, s[8:11], s{TS+4} offen offset:{(f&3)*1024}')
        if (f&3)==3: a(f's_add_u32 s{TS+4}, s{TS+4}, 4096')
    a('s_waitcnt vmcnt(28)')
    ln_multi(a,[(X[i],F[i],T[i]) for i in range(4)],S_MASK,S_ACT)
    a(f's_mov_b64 s[{TS}:{TS+1}], exec\ns_mov_b64 exec, s[{S_ACT}:{S_ACT+1}]')
    for it in range(4):
        a(f'ds_write_b128 v7, v[{X[it]}:{X[it]+3}] offset:{it*2*RS}')
        a(f'ds_write_b128 v7, v[{X[it]+4}:{X[it]+7}] offset:{it*2*RS+16}')
    a(f's_mov_b64 exec, s[{TS}:{TS+1}]')
    a(f'''v_mul_u32_u24 v5, {RS}, v2
    v_lshlrev_b32 v6, 4, v3
    v_add_u32 v5, v5, v6
    s_lshl_b32 s{TS}, s{S_TL}, 5
    v_add_u32 v7, s{TS}, v2
    v_lshlrev_b32 v7, 12, v7
    v_add_u32 v7, v7, v6
    s_lshl_b32 s{TS}, s{S_TB}, 6
    s_add_u32 s{TS}, s{TS}, {ws.FT}
    s_waitcnt lgkmcnt(0)
    s_barrier
    s_cmp_ge_u32 s{S_TL}, 15
    s_cbranch_scc1 {ex}''')
    A=40
    for ks in range(28):
        a(f'ds_read_b128 v[{A+4*ks}:{A+4*ks+3}], v5 offset:{ks*32}')
        if ks==13: a('s_waitcnt lgkmcnt(8)')
    ACC=8
    a('s_waitcnt vmcnt(0)')
    for ks in range(28):
        if ks<28-14 and ks%2==0: a(f's_waitcnt lgkmcnt({max(0,min(14,12-ks))})') if False else None
    a('s_waitcnt lgkmcnt(14)')
    for ks in range(28):
        if ks==14: a('s_waitcnt lgkmcnt(0)')
        c='0' if ks==0 else f'v[{ACC}:{ACC+15}]'
        a(f'v_mfma_f32_32x32x16_bf16 v[{ACC}:{ACC+15}], v[{A+4*ks}:{A+4*ks+3}], a[{4*ks}:{4*ks+3}], {c}')
    a('s_nop 7\ns_nop 3')
    O=24
    for qp in range(2):
        q0=ACC+8*qp; q1=q0+4; o=O+4*qp
        a(f'''v_cvt_pk_bf16_f32 v{o}, v{q0}, v{q0+1}
        v_cvt_pk_bf16_f32 v{o+1}, v{q0+2}, v{q0+3}
        v_cvt_pk_bf16_f32 v{o+2}, v{q1}, v{q1+1}
        v_cvt_pk_bf16_f32 v{o+3}, v{q1+2}, v{q1+3}
        s_nop 1
        v_permlane32_swap_b32 v{o}, v{o+2}
        v_permlane32_swap_b32 v{o+1}, v{o+3}
        buffer_store_dwordx4 v[{o}:{o+3}], v7, s[8:11], s{TS} offen offset:{32*qp} {stflags}''')
    a(f's_waitcnt vmcnt(0)\n{ex}:\ns_endpgm')
    return a.text()+kd(name,vgpr=152,agpr=112)
def b1_om(a, S_ID, S_W, nrep, S_LIM=39):
    S_TB=18; S_TL=19; S_MASK=20; S_ACT=22; TS=24; S_Q=34; S_CNT=35; S_T=36; S_FA=37; S_ST=38
    X=[8,16,24,32]; F=[40,56,72,88]; T=[104,112,120,128]
    VG=1; VL=2; VH=3; VX=4; VA=5; VW=7; VS=152; VFL=153; VONE=154; VP=155; VT=156
    loop=a.lab('b1l'); lsk=a.lab('b1s')
    a(f'''s_and_b32 s{S_Q}, s{S_ID}, 3
    s_lshr_b32 s{S_TB}, s{S_ID}, 2
    s_lshl_b32 s{S_TL}, s{S_Q}, 2
    s_add_u32 s{S_TL}, s{S_TL}, s{S_W}
    s_mov_b32 s{S_MASK}, 0xffff0000
    s_mov_b32 s{S_LIM}, 4000
    v_and_b32 v{VL}, 31, v0
    v_cmp_gt_u32 s[{S_ACT}:{S_ACT+1}], 28, v{VL}
    v_lshlrev_b32 v{VP}, 2, v0
    s_mov_b32 s{S_FA}, {ws.TF+32*4}''')
    poll_flags(a,S_FA,VP,VT,(1<<64)-1,S_CNT,S_LIM,S_T,sleep=8)
    a(f'''v_lshlrev_b32 v{VG}, 4, v0
    s_mul_i32 s{TS+4}, s{S_TL}, 28672
    s_add_u32 s{TS+4}, s{TS+4}, {ws.FW}
    s_cmp_ge_u32 s{S_TL}, 15
    s_cselect_b32 s{TS+5}, 0x10000000, 0
    v_add_u32 v{VG}, s{TS+5}, v{VG}''')
    for f in range(28):
        a(f'buffer_load_dwordx4 a[{4*f}:{4*f+3}], v{VG}, s[8:11], s{TS+4} offen offset:{(f&3)*1024}')
        if (f&3)==3: a(f's_add_u32 s{TS+4}, s{TS+4}, 4096')
    a(f'''s_lshl_b32 s{TS+1}, s{S_W}, 3
    v_lshrrev_b32 v{VH}, 5, v0
    v_add_u32 v{VX}, s{TS+1}, v{VH}
    v_mul_u32_u24 v{VW}, {RS}, v{VX}
    v_mul_u32_u24 v{VX}, 896, v{VX}
    v_lshlrev_b32 v6, 5, v{VL}
    v_add_u32 v{VX}, v{VX}, v6
    v_add_u32 v{VW}, v{VW}, v6
    v_mov_b32 v6, 0x10000000
    v_cndmask_b32 v{VX}, v6, v{VX}, s[{S_ACT}:{S_ACT+1}]
    v_mul_u32_u24 v{VA}, {RS}, v{VL}
    v_lshlrev_b32 v6, 4, v{VH}
    v_add_u32 v{VA}, v{VA}, v6
    s_lshl_b32 s{TS}, s{S_TL}, 5
    v_add_u32 v{VS}, s{TS}, v{VL}
    v_lshlrev_b32 v{VS}, 12, v{VS}
    v_add_u32 v{VS}, v{VS}, v6
    s_lshl_b32 s{TS}, s{S_W}, 6
    v_add_u32 v6, s{TS}, v0
    v_cmp_eq_u32 vcc, 0, v6
    v_mov_b32 v6, 0x10000000
    v_mov_b32 v{VONE}, 1
    v_cndmask_b32 v{VFL}, v6, 0, vcc
    {loop}:
    s_lshl_b32 s{S_FA}, s{S_TB}, 6
    s_add_u32 s{S_FA}, s{S_FA}, {ws.XF}''')
    poll_flags(a,S_FA,VP,VT,0x3fff,S_CNT,S_LIM,S_T)
    a(f'''s_mul_i32 s{TS+2}, s{S_TB}, {32*896}
    s_add_u32 s{TS+2}, s{TS+2}, {ws.X1}
    s_add_u32 s{TS+3}, s{TS+2}, 3584''')
    for it in range(4):
        so=TS+2 if it<2 else TS+3; o=(it&1)*1792
        a(f'buffer_load_dwordx4 v[{X[it]}:{X[it]+3}], v{VX}, s[8:11], s{so} offen offset:{o} sc1')
        a(f'buffer_load_dwordx4 v[{X[it]+4}:{X[it]+7}], v{VX}, s[8:11], s{so} offen offset:{o+16} sc1')
    a(f'''s_lshl_b32 s{S_ST}, s{S_TB}, 6
    s_add_u32 s{S_ST}, s{S_ST}, {ws.FT}
    s_waitcnt vmcnt(0)''')
    ln_multi(a,[(X[i],F[i],T[i]) for i in range(4)],S_MASK,S_ACT)
    a(f's_mov_b64 s[{TS}:{TS+1}], exec\ns_mov_b64 exec, s[{S_ACT}:{S_ACT+1}]')
    for it in range(4):
        a(f'ds_write_b128 v{VW}, v[{X[it]}:{X[it]+3}] offset:{it*2*RS}')
        a(f'ds_write_b128 v{VW}, v[{X[it]+4}:{X[it]+7}] offset:{it*2*RS+16}')
    a(f'''s_mov_b64 exec, s[{TS}:{TS+1}]
    s_waitcnt lgkmcnt(0)
    s_barrier
    s_cmp_ge_u32 s{S_TL}, 15
    s_cbranch_scc1 {lsk}''')
    A=40
    for ks in range(28): a(f'ds_read_b128 v[{A+4*ks}:{A+4*ks+3}], v{VA} offset:{ks*32}')
    ACC=8
    for ks in range(28):
        if ks in (0,7,14,21): a(f's_waitcnt lgkmcnt({min(15,21-ks)})' if ks<21 else 's_waitcnt lgkmcnt(0)')
        c='0' if ks==0 else f'v[{ACC}:{ACC+15}]'
        a(f'v_mfma_f32_32x32x16_bf16 v[{ACC}:{ACC+15}], v[{A+4*ks}:{A+4*ks+3}], a[{4*ks}:{4*ks+3}], {c}')
    a('s_nop 7\ns_nop 3')
    O=24
    for qp in range(2):
        q0=ACC+8*qp; q1=q0+4; o=O+4*qp
        a(f'''v_cvt_pk_bf16_f32 v{o}, v{q0}, v{q0+1}
        v_cvt_pk_bf16_f32 v{o+1}, v{q0+2}, v{q0+3}
        v_cvt_pk_bf16_f32 v{o+2}, v{q1}, v{q1+1}
        v_cvt_pk_bf16_f32 v{o+3}, v{q1+2}, v{q1+3}
        s_nop 1
        v_permlane32_swap_b32 v{o}, v{o+2}
        v_permlane32_swap_b32 v{o+1}, v{o+3}
        buffer_store_dwordx4 v[{o}:{o+3}], v{VS}, s[8:11], s{S_ST} offen offset:{32*qp} sc1''')
    a(f'''{lsk}:
    s_lshl_b32 s{S_FA}, s{S_TB}, 4
    s_lshl_b32 s{S_T}, s{S_Q}, 2
    s_add_u32 s{S_FA}, s{S_FA}, s{S_T}
    s_add_u32 s{S_FA}, s{S_FA}, {ws.BF}
    s_waitcnt vmcnt(0)
    s_barrier
    buffer_store_dword v{VONE}, v{VFL}, s[8:11], s{S_FA} offen sc1
    s_add_u32 s{S_TB}, s{S_TB}, {nrep}
    s_cmp_lt_u32 s{S_TB}, 64
    s_cbranch_scc1 {loop}
    s_waitcnt vmcnt(0)''')
if __name__=='__main__':
    t='.amdgcn_target "amdgcn-amd-amdhsa--gfx950"\n'+b1_kernel('b1_kernel')
    open('b1.s','w').write(t)
```

```python
from asm import *
from lay import ws
KA=dict(x=0,mem0=8,wq=16,wk=24,wv=32,wo=40,wr=64,wi=72,out=80,dbg=88,ws=96)
def srd(a, s, karg_reg, nbytes):
    a(f'''s_mov_b32 s{s}, s{karg_reg}
    s_mov_b32 s{s+1}, s{karg_reg+1}
    s_mov_b32 s{s+2}, {nbytes}
    s_mov_b32 s{s+3}, 0x00020000''')
def div_const(a, dst, src, d, maxv):
    for sh in range(8,28):
        m=((1<<sh)+d-1)//d
        if all((x*m)>>sh==x//d for x in range(maxv)) and m*maxv<(1<<31):
            a(f's_mul_i32 s{dst}, s{src}, {m}\ns_lshr_b32 s{dst}, s{dst}, {sh}'); return
    raise Exception('no magic')

def poll_flags(a, s_addr, vaddr, vtmp, mask, s_cnt, s_lim, s_tmp, sleep=2):
    lr=a.lab('pf'); lo=a.lab('po')
    lo32=mask&0xffffffff; hi32=mask>>32
    a(f'''s_mov_b32 s{s_cnt}, s{s_lim}
    {lr}:
    buffer_load_dword v{vtmp}, v{vaddr}, s[8:11], s{s_addr} offen sc1
    s_waitcnt vmcnt(0)
    v_cmp_eq_u32 vcc, 1, v{vtmp}
    s_nop 1''')
    if hi32==0xffffffff and lo32==0xffffffff:
        a(f's_and_b32 s{s_tmp}, vcc_lo, vcc_hi\ns_cmp_eq_u32 s{s_tmp}, -1')
    elif hi32==0:
        a(f's_and_b32 s{s_tmp}, vcc_lo, {hex(lo32)}\ns_cmp_eq_u32 s{s_tmp}, {hex(lo32)}')
    else:
        assert lo32==0xffffffff
        a(f's_and_b32 s{s_tmp}, vcc_hi, {hex(hi32)}\ns_xor_b32 s{s_tmp}, s{s_tmp}, {hex(hi32)}\ns_andn2_b32 vcc_lo, -1, vcc_lo\ns_or_b32 s{s_tmp}, s{s_tmp}, vcc_lo\ns_cmp_eq_u32 s{s_tmp}, 0')
    a(f'''s_cbranch_scc1 {lo}
    s_sleep {sleep}
    s_sub_u32 s{s_cnt}, s{s_cnt}, 1
    s_cbranch_scc0 {lr}
    s_mov_b32 s{s_lim}, 0
    {lo}:''')
def flag_store(a, s_addr, vaddr, vone, lane_cond_wave=None):
    a(f'buffer_store_dword v{vone}, v{vaddr}, s[8:11], s{s_addr} offen sc1')
```

```python
from common import *
J2_LDS=40960
def j2_body(a, S_S, S_V, S_WAVE, res_srd, res_so, out_so, stflags=''):
    TS=24; VL=1; VR=2; VX=3; RES=8; STG=16; ACC=48; PK=64
    lidle=a.lab('j2idle'); ldone=a.lab('j2done')
    a(f'''v_lshlrev_b32 v{VL}, 4, v0
    s_mul_i32 s{TS}, s{S_S}, 40960
    s_mul_i32 s{TS+1}, s{S_WAVE}, 10240
    s_add_u32 s{TS}, s{TS}, s{TS+1}
    s_add_u32 s{TS}, s{TS}, {ws.PJ}''')
    for t in range(10):
        a(f's_add_u32 m0, s{TS+1}, {t*1024}\ns_add_u32 s{TS+2}, s{TS}, {t*1024}\nbuffer_load_dwordx4 v{VL}, s[8:11], s{TS+2} offen lds')
    a(f's_cmp_ge_u32 s{S_V}, 14\ns_cbranch_scc1 {lidle}')
    a(f'''v_and_b32 v4, 15, v0
    v_lshrrev_b32 v5, 3, v4
    v_lshlrev_b32 v5, 4, v5
    v_lshrrev_b32 v6, 2, v4
    v_and_b32 v6, 1, v6
    v_lshlrev_b32 v6, 2, v6
    v_and_b32 v7, 3, v4
    v_add3_u32 v5, v5, v6, v7
    s_lshl_b32 s{TS}, s{S_S}, 5
    v_add_u32 v5, s{TS}, v5
    v_mul_u32_u24 v5, 896, v5
    v_lshrrev_b32 v6, 4, v0
    v_and_b32 v7, 1, v6
    v_lshlrev_b32 v7, 5, v7
    v_lshrrev_b32 v6, 1, v6
    v_lshlrev_b32 v6, 4, v6
    v_add3_u32 v5, v5, v6, v7
    s_lshl_b32 s{TS}, s{S_V}, 6
    v_add_u32 v{VX}, s{TS}, v5
    v_add_u32 v{VR}, {8*896}, v{VX}''')
    a(f'''s_mul_i32 s{TS}, s{S_S}, 14
    s_add_u32 s{TS}, s{TS}, s{S_V}
    s_lshl_b32 s{TS+1}, s{TS}, 13
    s_add_u32 s{TS+1}, s{TS+1}, {ws.WI}
    s_lshl_b32 s{TS}, s{TS}, 15
    s_add_u32 s{TS}, s{TS}, {ws.DI}''')
    for f in range(8):
        a(f'buffer_load_dwordx4 a[{128+4*f}:{128+4*f+3}], v{VL}, s[8:11], s{TS+1} offen offset:{(f&3)*1024}')
        if f==3: a(f's_add_u32 s{TS+1}, s{TS+1}, 4096')
    for f in range(32):
        a(f'buffer_load_dwordx4 a[{4*f}:{4*f+3}], v{VL}, s[8:11], s{TS} offen offset:{(f&3)*1024}')
        if (f&3)==3: a(f's_add_u32 s{TS}, s{TS}, 4096')
    a(f'buffer_load_dwordx4 v[{RES}:{RES+3}], v{VX}, {res_srd}, {res_so} offen')
    a(f'buffer_load_dwordx4 v[{RES+4}:{RES+7}], v{VR}, {res_srd}, {res_so} offen')
    a('s_waitcnt vmcnt(42)\ns_barrier')
    steps=[]
    for w in range(4): steps.append((32768+w*2048, [128+4*(w*2+tau) for tau in range(2)], 42-8+ (0)))
    for w in range(4):
        for eta in range(2):
            for io in range(2):
                steps.append((w*8192+eta*4096+io*2048, [4*(w*8+tau*4+io*2+eta) for tau in range(2)], None))
    def rd(i):
        b=STG+8*(i&3); o=steps[i][0]
        return [f'ds_read_b128 v[{b}:{b+3}], v{VL} offset:{o}', f'ds_read_b128 v[{b+4}:{b+7}], v{VL} offset:{o+1024}']
    for i in range(2):
        for x in rd(i): a(x)
    for i,(o,A,_) in enumerate(steps):
        b=STG+8*(i&3)
        if i==0: a('s_waitcnt vmcnt(34)')
        if i>=4 and (i-4)%4==0:
            w=(i-4)//4; a(f's_waitcnt vmcnt({34-8*(w+1)})')
        a('s_waitcnt lgkmcnt(2)' if i<len(steps)-1 else 's_waitcnt lgkmcnt(0)')
        fl=rd(i+2) if i+2<len(steps) else []
        for tau in range(2):
            for ab in range(2):
                d=ACC+8*tau+4*ab; c='0' if i==0 else f'v[{d}:{d+3}]'
                a(f'v_mfma_f32_16x16x32_bf16 v[{d}:{d+3}], a[{A[tau]}:{A[tau]+3}], v[{b+4*ab}:{b+4*ab+3}], {c}')
                if fl: a(fl.pop(0))
    a('s_waitcnt vmcnt(0)\ns_nop 6')
    for ab in range(2):
        t0=ACC+4*ab; t1=ACC+8+4*ab; o=PK+4*ab; r=RES+4*ab; F=STG
        a(f'''v_cvt_pk_bf16_f32 v{o}, v{t0}, v{t0+1}
        v_cvt_pk_bf16_f32 v{o+1}, v{t0+2}, v{t0+3}
        v_cvt_pk_bf16_f32 v{o+2}, v{t1}, v{t1+1}
        v_cvt_pk_bf16_f32 v{o+3}, v{t1+2}, v{t1+3}
        s_nop 1
        v_permlane16_swap_b32 v{o}, v{o+2}
        v_permlane16_swap_b32 v{o+1}, v{o+3}''')
        for q in range(4):
            a(f'''v_lshlrev_b32 v{F}, 16, v{o+q}
            v_and_b32 v{F+1}, 0xffff0000, v{o+q}
            v_lshlrev_b32 v{F+2}, 16, v{r+q}
            v_and_b32 v{F+3}, 0xffff0000, v{r+q}
            v_pk_add_f32 v[{F}:{F+1}], v[{F}:{F+1}], v[{F+2}:{F+3}]
            v_cvt_pk_bf16_f32 v{o+q}, v{F}, v{F+1}''')
        a(f'buffer_store_dwordx4 v[{o}:{o+3}], v{VX if ab==0 else VR}, s[8:11], {out_so} offen {stflags}')
    a(f's_branch {ldone}\n{lidle}:\ns_waitcnt vmcnt(0)\ns_barrier\n{ldone}:\ns_waitcnt vmcnt(0)')

def j2_om(a, S_ID, S_WAVE, res_srd, res_so, out_so, NW, S_LIM=39, nx=False, xf=False):
    TS=24; S_T=32; S_S=33; S_V=34; VL=1; VR=2; VX=3; RES=8; STG=16; ACC=48; PK=64; PJ=72
    loop=a.lab('j2loop'); lidle=a.lab('j2idle'); lnext=a.lab('j2next'); ldone=a.lab('j2done')
    def poll(addr_s, vaddr, nl, val_mask, tag):
        lr=a.lab('j2p'); lo=a.lab('j2o')
        a(f'''s_mov_b32 s{TS+6}, s{S_LIM}
        {lr}:
        buffer_load_dword v5, v{vaddr}, s[8:11], s{addr_s} offen sc1
        s_waitcnt vmcnt(0)
        v_cmp_eq_u32 vcc, 1, v5
        s_nop 1
        s_and_b32 s{TS+7}, vcc_lo, {val_mask}
        s_cmp_eq_u32 s{TS+7}, {val_mask}
        s_cbranch_scc1 {lo}
        s_sleep 2
        s_sub_u32 s{TS+6}, s{TS+6}, 1
        s_cbranch_scc0 {lr}
        s_mov_b32 s{S_LIM}, 0
        {lo}:''')
    a(f'''s_mov_b32 s{S_T}, s{S_ID}
    s_mov_b32 s{S_LIM}, 4000
    v_lshlrev_b32 v{VL}, 4, v0
    v_lshlrev_b32 v4, 2, v0
    {loop}:
    s_lshr_b32 s{S_S}, s{S_T}, 2
    s_and_b32 s{S_V}, s{S_T}, 3
    s_lshl_b32 s{S_V}, s{S_V}, 2
    s_add_u32 s{S_V}, s{S_V}, s{S_WAVE}
    s_cmp_ge_u32 s{S_V}, 14
    s_cbranch_scc1 {lidle}''')
    a(f'''s_mul_i32 s{TS}, s{S_S}, 14
    s_add_u32 s{TS}, s{TS}, s{S_V}
    s_lshl_b32 s{TS+1}, s{TS}, 4
    s_add_u32 s{TS+1}, s{TS+1}, {ws.DF}''')
    poll(TS+1,4,4,'0xf','d')
    if nx: a(f's_lshl_b32 s35, s{TS}, 4\ns_add_u32 s35, s35, {ws.WF}')
    a(f'''s_lshl_b32 s{TS+1}, s{TS}, 13
    s_add_u32 s{TS+1}, s{TS+1}, {ws.WI}
    s_lshl_b32 s{TS}, s{TS}, 15
    s_add_u32 s{TS}, s{TS}, {ws.DI}''')
    for f in range(32):
        a(f'buffer_load_dwordx4 a[{4*f}:{4*f+3}], v{VL}, s[8:11], s{TS} offen offset:{(f&3)*1024} sc1')
        if (f&3)==3: a(f's_add_u32 s{TS}, s{TS}, 4096')
    a(f'''v_and_b32 v6, 15, v0
    v_lshrrev_b32 v5, 3, v6
    v_lshlrev_b32 v5, 4, v5
    v_lshrrev_b32 v7, 2, v6
    v_and_b32 v7, 1, v7
    v_lshlrev_b32 v7, 2, v7
    v_and_b32 v6, 3, v6
    v_add3_u32 v5, v5, v7, v6
    s_lshl_b32 s{TS}, s{S_S}, 5
    v_add_u32 v5, s{TS}, v5
    v_mul_u32_u24 v5, 896, v5
    v_lshrrev_b32 v6, 4, v0
    v_and_b32 v7, 1, v6
    v_lshlrev_b32 v7, 5, v7
    v_lshrrev_b32 v6, 1, v6
    v_lshlrev_b32 v6, 4, v6
    v_add3_u32 v5, v5, v6, v7
    s_lshl_b32 s{TS}, s{S_V}, 6
    v_add_u32 v{VX}, s{TS}, v5
    v_add_u32 v{VR}, {8*896}, v{VX}
    buffer_load_dwordx4 v[{RES}:{RES+3}], v{VX}, {res_srd}, {res_so} offen
    buffer_load_dwordx4 v[{RES+4}:{RES+7}], v{VR}, {res_srd}, {res_so} offen
    {lidle}:''')
    a(f'''s_add_u32 s{TS+2}, s{S_S}, 1
    s_lshl_b32 s{TS+2}, s{TS+2}, 6
    s_add_u32 s{TS+2}, s{TS+2}, {ws.F}
    s_lshl_b32 s{TS+3}, s{S_S}, 7
    s_add_u32 s{TS+3}, s{TS+3}, {ws.PF}''')
    poll(TS+3,4,32,'0xffffffff','p')
    a(f'''s_mul_i32 s{TS}, s{S_S}, 40960
    s_mul_i32 s{TS+4}, s{S_WAVE}, 10240
    s_add_u32 s{TS}, s{TS}, s{TS+4}
    s_add_u32 s{TS}, s{TS}, {ws.PJ}
    v_add_u32 v6, s{TS+4}, v{VL}''')
    for t in range(10):
        a(f'buffer_load_dwordx4 v[{PJ+4*t}:{PJ+4*t+3}], v{VL}, s[8:11], s{TS} offen offset:{(t&3)*1024} sc1')
        if (t&3)==3: a(f's_add_u32 s{TS}, s{TS}, 4096')
    a('s_barrier')
    for t in range(10):
        a(f's_waitcnt vmcnt({9-t})\nds_write_b128 v6, v[{PJ+4*t}:{PJ+4*t+3}] offset:{t*1024}')
    lw=a.lab('j2w')
    a(f's_cmp_ge_u32 s{S_V}, 14\ns_cbranch_scc1 {lw}')
    if nx: poll(35,4,4,'0xf','w')
    else: poll(TS+2,4,14,'0x3fff','f')
    for f in range(8):
        a(f'buffer_load_dwordx4 a[{128+4*f}:{128+4*f+3}], v{VL}, s[8:11], s{TS+1} offen offset:{(f&3)*1024} sc1')
        if f==3: a(f's_add_u32 s{TS+1}, s{TS+1}, 4096')
    a(f'{lw}:\ns_waitcnt lgkmcnt(0)\ns_barrier\ns_cmp_ge_u32 s{S_V}, 14\ns_cbranch_scc1 {lnext}')
    steps=[]
    for w in range(4):
        for eta in range(2):
            for io in range(2):
                steps.append((w*8192+eta*4096+io*2048, [4*(w*8+tau*4+io*2+eta) for tau in range(2)]))
    for w in range(4): steps.append((32768+w*2048, [128+4*(w*2+tau) for tau in range(2)]))
    def rd(i):
        b=STG+8*(i&3); o=steps[i][0]
        return [f'ds_read_b128 v[{b}:{b+3}], v{VL} offset:{o}', f'ds_read_b128 v[{b+4}:{b+7}], v{VL} offset:{o+1024}']
    for i in range(2):
        for x in rd(i): a(x)
    for i,(o,A) in enumerate(steps):
        b=STG+8*(i&3)
        if i==16: a('s_waitcnt vmcnt(0)')
        a('s_waitcnt lgkmcnt(2)' if i<len(steps)-1 else 's_waitcnt lgkmcnt(0)')
        fl=rd(i+2) if i+2<len(steps) else []
        for tau in range(2):
            for ab in range(2):
                d=ACC+8*tau+4*ab; c='0' if i==0 else f'v[{d}:{d+3}]'
                a(f'v_mfma_f32_16x16x32_bf16 v[{d}:{d+3}], a[{A[tau]}:{A[tau]+3}], v[{b+4*ab}:{b+4*ab+3}], {c}')
                if fl: a(fl.pop(0))
    a('s_nop 7')
    for ab in range(2):
        t0=ACC+4*ab; t1=ACC+8+4*ab; o=PK+4*ab; r=RES+4*ab; F=STG
        a(f'''v_cvt_pk_bf16_f32 v{o}, v{t0}, v{t0+1}
        v_cvt_pk_bf16_f32 v{o+1}, v{t0+2}, v{t0+3}
        v_cvt_pk_bf16_f32 v{o+2}, v{t1}, v{t1+1}
        v_cvt_pk_bf16_f32 v{o+3}, v{t1+2}, v{t1+3}
        s_nop 1
        v_permlane16_swap_b32 v{o}, v{o+2}
        v_permlane16_swap_b32 v{o+1}, v{o+3}''')
        for q in range(4):
            a(f'''v_lshlrev_b32 v{F}, 16, v{o+q}
            v_and_b32 v{F+1}, 0xffff0000, v{o+q}
            v_lshlrev_b32 v{F+2}, 16, v{r+q}
            v_and_b32 v{F+3}, 0xffff0000, v{r+q}
            v_pk_add_f32 v[{F}:{F+1}], v[{F}:{F+1}], v[{F+2}:{F+3}]
            v_cvt_pk_bf16_f32 v{o+q}, v{F}, v{F+1}''')
        a(f'buffer_store_dwordx4 v[{o}:{o+3}], v{VX if ab==0 else VR}, s[8:11], {out_so} offen'+(' sc1' if xf else ''))
    if xf:
        a(f'''s_lshl_b32 s{TS}, s{S_S}, 6
        s_lshl_b32 s{TS+1}, s{S_V}, 2
        s_add_u32 s{TS}, s{TS}, s{TS+1}
        s_add_u32 s{TS}, s{TS}, {ws.XF}
        v_mov_b32 v5, 0x10000000
        v_cmp_eq_u32 vcc, 0, v0
        v_mov_b32 v6, 1
        s_nop 0
        v_cndmask_b32 v5, v5, 0, vcc
        s_waitcnt vmcnt(0)
        buffer_store_dword v6, v5, s[8:11], s{TS} offen sc1''')
    a(f'''{lnext}:
    s_add_u32 s{S_T}, s{S_T}, {NW}
    s_cmp_lt_u32 s{S_T}, 256
    s_cbranch_scc1 {loop}
    s_waitcnt vmcnt(0)''')

def j2_kernel(name, src, stflags=''):
    a=Asm(); a.l.append(head(name)); ex=name+'_exit'
    a(f'''s_cmp_ge_u32 s2, 256
    s_cbranch_scc1 {ex}
    s_load_dwordx2 s[4:5], s[0:1], {KA['ws']}
    s_load_dwordx2 s[6:7], s[0:1], {KA['x']}
    v_lshrrev_b32 v1, 6, v0
    v_and_b32 v0, 63, v0
    s_and_b32 s20, s2, 7
    s_lshr_b32 s21, s2, 5
    v_readfirstlane_b32 s17, v1
    s_lshl_b32 s21, s21, 3
    s_add_u32 s16, s21, s20
    s_lshr_b32 s21, s2, 3
    s_and_b32 s21, s21, 3
    s_lshl_b32 s21, s21, 2
    s_add_u32 s18, s21, s17
    s_mov_b32 s19, {ws.X1}
    s_waitcnt lgkmcnt(0)''')
    srd(a,8,4,0x10000000)
    if src=='x': srd(a,12,6,1835008); rs,so='s[12:15]','0'
    else: a(f's_mov_b32 s22, {src}'); rs,so='s[8:11]','s22'
    j2_body(a,16,18,17,rs,so,'s19',stflags)
    a(f'{ex}:\ns_endpgm')
    return a.text()+kd(name,vgpr=72,agpr=160)
if __name__=='__main__':
    t='.amdgcn_target "amdgcn-amd-amdhsa--gfx950"\n'+j2_kernel('j2_kernel','x')
    open('j2.s','w').write(t)
```

```python
import numpy as np
S=2048; DM=448; H=16; M=8; SEG=32; NSEG=64
def f2bf(x):
    x=np.ascontiguousarray(x,np.float32); u=x.view(np.uint32)
    r=((u+0x7FFF+((u>>16)&1))>>16).astype(np.uint16)
    return r
def bf2f(u):
    return (np.ascontiguousarray(u,np.uint16).astype(np.uint32)<<16).view(np.float32)
def rb(x): return bf2f(f2bf(x)).reshape(np.shape(x))

L=np.arange(64); N16=L&15; G=L>>4; U=np.arange(8)
def dperm():
    eta=np.arange(2)[:,None,None]; gB=G[None,:,None]; u=U[None,None,:]
    return 16*(2*eta+(gB>>1))+8*((u>>1)&1)+4*(gB&1)+2*((u>>2)&1)+(u&1)
DP=dperm()

def memx_image(mem):
    return np.ascontiguousarray(mem.reshape(8,56,8).transpose(1,0,2))
def memx_unimage(img):
    return np.ascontiguousarray(img.reshape(56,8,8).transpose(1,0,2)).reshape(8,448)

def e_of_tile(w,t):
    n=np.arange(16)
    if t<6: return 112*w+32*(t>>1)+8*(n>>2)+4*(t&1)+(n&3)
    return 112*w+96+n
def ai_image(A):
    out=np.zeros((16,4,7,7,2,64,8),np.uint16)
    for w in range(4):
        for t in range(7):
            e=e_of_tile(w,t)[N16][None,:,None]
            for k in range(7):
                d=64*k+DP
                out[:,w,t,k]=A[:,d,np.broadcast_to(e,d.shape)]
    return out
def ci_image(C):
    out=np.zeros((14,4,4,2,7,2,64,8),np.uint16)
    for v in range(14):
        for tau in range(2):
            c=(32*v+16*tau+N16)[None,:,None]
            for k in range(7):
                d=64*k+DP
                x=C[:,d,np.broadcast_to(c,d.shape)]
                out[v,:,:,tau,k]=x.reshape(4,4,2,64,8)
    return out
def key_tok(iota):
    m=np.arange(16); gd=m>>2; r=m&3; phi=gd>>1; half=gd&1
    return 16*iota+2*phi+4*half+np.array([0,1,8,9])[r]
def xk_image(xn):
    out=np.zeros((64,4,3584),np.uint16)
    for w in range(4):
        for io in range(2):
            tok=key_tok(io)[N16]
            for j in range(3):
                e=112*w+32*j+8*G[:,None]+U[None,:]
                for s in range(64):
                    out[s,w,(io*3+j)*512:(io*3+j+1)*512]=xn[32*s+tok[:,None],e].reshape(-1)
            e=112*w+96+4*G[:,None]+np.arange(4)[None,:]
            for s in range(64):
                out[s,w,3072+io*256:3072+(io+1)*256]=xn[32*s+tok[:,None],e].reshape(-1)
    return out
def di_index():
    io=np.arange(2)[:,None,None,None]; eta=np.arange(2)[None,:,None,None]
    gB=G[None,None,:,None]; u=U[None,None,None,:]
    tok=16*io+8*(u>>2)+4*(gB&1)+(u&3)+0*eta
    hd=2*eta+(gB>>1)+0*io+0*u
    return tok,hd
def di_image(D):
    out=np.zeros((64,14,4,2,2,2,64,8),np.uint16)
    tok,hd=di_index()
    n=N16[None,None,:,None]
    for v in range(14):
        for w in range(4):
            for tau in range(2):
                c=np.broadcast_to(32*v+16*tau+n,tok.shape)
                for s in range(64):
                    out[s,v,w,tau]=D[4*w+hd,32*s+tok,c]
    return out
def wi_index():
    g=G[:,None]; u=U[None,:]
    hd=2*(u>>2)+(g>>1); i2=4*(g&1)+(u&3)
    return hd,i2
def wi_image(Wall):
    ns=Wall.shape[0]
    out=np.zeros((ns,14,4,2,64,8),np.uint16)
    hd,i2=wi_index()
    for v in range(14):
        for w in range(4):
            for tau in range(2):
                c=np.broadcast_to((32*v+16*tau+N16)[:,None],hd.shape)
                out[:,v,w,tau]=Wall[:,4*w+hd,i2,c]
    return out
def xt_tok(ab):
    m=np.arange(16)
    return 16*(m>>3)+4*((m>>2)&1)+(m&3)+8*ab
def xt_image(xn):
    out=np.zeros((64,2,7,2,64,8),np.uint16)
    for ab in range(2):
        tok=xt_tok(ab)[N16][None,:,None]
        for k in range(7):
            d=64*k+DP
            for s in range(64):
                out[s,ab,k]=xn[32*s+np.broadcast_to(tok,d.shape),d]
    return out

def fw_table():
    j=np.arange(480)[:,None]; d=np.arange(448)[None,:]
    f=np.where(j<225,j,j-225); ang=2*np.pi*((f*d)%448)/448.0
    t=np.where(j<225,np.cos(ang),-np.sin(ang)); t=np.where(j<450,t,0.0)
    return t
def fw_image():
    t=f2bf(fw_table().astype(np.float32)).reshape(480,448)
    out=np.zeros((15,28,64,8),np.uint16); n=(L&31)[:,None]; hi=(L>>5)[:,None]
    for tl in range(15):
        for ks in range(28): out[tl,ks]=t[32*tl+n,16*ks+8*hi+U[None,:]]
    return out
def iv_table():
    j=np.arange(464)[:,None]; d=np.arange(448)[None,:]
    f=np.where(j<225,j,j-225); ang=2*np.pi*((f*d)%448)/448.0
    wg=np.where((f==0)|(f==224),1.0,2.0)/448.0
    t=np.where(j<225,np.cos(ang),-np.sin(ang))*wg; t=np.where(j<450,t,0.0)
    return t
def iv_image():
    t=f2bf(iv_table().astype(np.float32)).reshape(464,448)
    out=np.zeros((14,29,64,8),np.uint16); m=(L&31)[:,None]; hi=(L>>5)[:,None]
    for dt in range(14):
        for ks in range(29): out[dt,ks]=t[16*ks+8*hi+U[None,:],32*dt+m]
    return out
def wt_image(wr,wi):
    out=np.zeros((225,4,2,64,4),np.uint32); r=np.arange(4)[None,:]
    for w in range(4):
        for t2 in range(2):
            k=(16*w+N16[:,None])+64*(16*t2+4*G[:,None]+r)
            out[:,w,t2]=(wr[k].astype(np.uint32)|(wi[k].astype(np.uint32)<<16)).transpose(2,0,1)
    return out
def q_tok(ab):
    return xt_tok(ab)
def pj_image(P):
    ns=P.shape[0]
    out=np.zeros((ns,20480),np.uint16)
    px=out[:,:16384].reshape(ns,4,2,2,2,64,8); pm=out[:,16384:].reshape(ns,4,2,64,8)
    g=G[:,None]; u=U[None,:]
    for w in range(4):
        for ab in range(2):
            q=q_tok(ab)[N16][:,None]+0*u
            for eta in range(2):
                for io in range(2):
                    key=16*io+8*(u>>2)+4*(g&1)+(u&3); hd=4*w+2*eta+(g>>1)+0*u
                    px[:,w,eta,io,ab]=P[:,hd,q,8+key]
            hd=4*w+2*(u>>2)+(g>>1); key=4*(g&1)+(u&3)
            pm[:,w,ab]=P[:,hd,q,key]
    return out

class WS: pass
ws=WS()
_o=0
def _al(name,n,al=4096):
    global _o
    _o=(_o+al-1)//al*al
    setattr(ws,name,_o); setattr(ws,name+'_N',n); _o+=n
_al('AI',16*4*49*2048)
_al('CI',14*4*56*2048)
_al('XT',64*28672)
_al('XK',64*28672)
_al('DI',64*14*32768)
_al('MR',4*7168)
_al('PR',4*10240)
_al('MA',64*7168)
_al('WI',64*14*8192)
_al('PROF',1<<20)
_al('X1',2048*896)
_al('X2',2048*896)
_al('FT',480*4096)
_al('GT',464*4096)
_al('FW',15*28*1024)
_al('IV',14*29*1024)
_al('WT',225*8*1024)
_al('PJ',64*40960)
_al('FLG',65536)
_al('DUM',131072)
PERL=['XT','XK','DI','MR','PR','MA','WI','X1','FT','GT','PJ','FLG']
_L=[{n:getattr(ws,n) for n in PERL},{}]
for n in PERL:
    _o=(_o+4095)//4096*4096; _L[1][n]=_o; _o+=getattr(ws,n+'_N')
_al('FF',16384)
ws.TF=_L[0]['FLG']+59392
def set_layer(l):
    for n in PERL: setattr(ws,n,_L[l][n])
    ws.layer=l
    ws.DF=ws.FLG; ws.F=ws.FLG+16384; ws.PF=ws.FLG+24576; ws.H=ws.FLG+32768; ws.WF=ws.H+4096
    ws.XF=ws.FLG+51200
    ws.BF=ws.FLG+55296
    ws.GF=ws.FLG+56320
    ws.YF=ws.FLG+57344
    ws.LF=ws.FLG+58368
set_layer(0)
ws.END=_o
if __name__=='__main__':
    for k,v in vars(ws).items(): print(k,hex(v) if isinstance(v,int) else v)
```

```python
from common import *
import rec2 as rec, dk, j1, j2, misc, b1
from rec2 import S_ROLE,S_WAVE,S_MODE,S_T0,S_T1,S_T2,S_T3,S_T4,S_T5,S_T6,S_CNT,NROLE,LS_ROLE
OK_LDS=j1.J1_LDS
NJ1=112; NJ2=114
def election2(a,nrole=NROLE):
    L=a.lab
    l_w, l_nocas, l_poll, l_got, l_glob, l_fin, l_wk, l_c, l_cok, l_rec = [L('el') for _ in range(10)]
    a(f'''s_cmp_lg_u32 s{S_WAVE}, 0
    s_cbranch_scc1 {l_w}
    s_getreg_b32 s{S_T0}, hwreg(HW_REG_XCC_ID,0,4)
    s_mov_b64 exec, 1
    s_lshl_b32 s{S_T1}, s{S_T0}, 2
    v_mov_b32 v2, s{S_T1}
    v_mov_b32 v3, 1
    v_mov_b32 v6, 64
    buffer_atomic_add v3, v2, s[12:15], 0 offen sc0 sc1
    s_add_u32 s{S_T0}, s{S_T0}, 1
    s_waitcnt vmcnt(0)
    v_readfirstlane_b32 s{S_T2}, v3
    s_nop 3
    s_cmp_lg_u32 s{S_T2}, {nrole-1}
    s_cbranch_scc1 {l_nocas}
    v_mov_b32 v4, s{S_T0}
    v_mov_b32 v5, 0
    buffer_atomic_cmpswap v[4:5], v6, s[12:15], 0 offen sc0 sc1
    s_waitcnt vmcnt(0)
    {l_nocas}:
    s_mov_b32 s{S_CNT}, 400
    {l_poll}:
    buffer_load_dword v4, v6, s[12:15], 0 offen sc0 sc1
    s_waitcnt vmcnt(0)
    v_readfirstlane_b32 s{S_T3}, v4
    s_nop 3
    s_cmp_lg_u32 s{S_T3}, 0
    s_cbranch_scc1 {l_got}
    s_sub_u32 s{S_CNT}, s{S_CNT}, 1
    s_cbranch_scc0 {l_poll}
    v_mov_b32 v4, 100
    v_mov_b32 v5, 0
    buffer_atomic_cmpswap v[4:5], v6, s[12:15], 0 offen sc0 sc1
    s_waitcnt vmcnt(0)
    v_readfirstlane_b32 s{S_T3}, v4
    s_nop 3
    s_cmp_lg_u32 s{S_T3}, 0
    s_cbranch_scc1 {l_got}
    s_mov_b32 s{S_T3}, 100
    {l_got}:
    s_cmp_eq_u32 s{S_T3}, 100
    s_cbranch_scc1 {l_glob}
    s_cmp_lg_u32 s{S_T3}, s{S_T0}
    s_cbranch_scc1 {l_wk}
    s_cmp_ge_u32 s{S_T2}, {nrole}
    s_cbranch_scc1 {l_wk}
    s_mov_b32 s{S_T4}, s{S_T2}
    s_branch {l_fin}
    {l_wk}:''')
    a(f'''s_mov_b64 exec, 0xffff
    v_lshlrev_b32 v2, 2, v0
    s_mov_b32 s{S_CNT}, 2000
    {l_c}:
    buffer_load_dword v3, v2, s[12:15], 0 offen sc0 sc1
    s_waitcnt vmcnt(0)
    s_mov_b32 s{S_T5}, 0
    s_mov_b32 s{S_T6}, 0''')
    for x in range(16):
        ls=L('els')
        a(f'''v_readlane_b32 s30, v3, {x}
        s_nop 3
        s_add_u32 s{S_T5}, s{S_T5}, s30
        s_cmp_eq_u32 s{S_T3}, {x+1}
        s_cbranch_scc1 {ls}
        s_cmp_eq_u32 s{S_T0}, s{S_T3}
        s_cselect_b32 s31, 99, s{S_T0}
        s_cmp_gt_u32 s31, {x+1}
        s_cselect_b32 s30, s30, 0
        s_add_u32 s{S_T6}, s{S_T6}, s30
        {ls}:''')
    a(f'''s_cmp_ge_u32 s{S_T5}, 256
    s_cbranch_scc1 {l_cok}
    s_sub_u32 s{S_CNT}, s{S_CNT}, 1
    s_cbranch_scc0 {l_c}
    s_mov_b32 s{S_T6}, 1000
    {l_cok}:
    s_cmp_eq_u32 s{S_T0}, s{S_T3}
    s_cselect_b32 s30, {nrole}, 0
    s_sub_u32 s{S_T4}, s{S_T2}, s30
    s_add_u32 s{S_T4}, s{S_T4}, s{S_T6}
    s_add_u32 s{S_T4}, s{S_T4}, {nrole}
    s_min_u32 s{S_T4}, s{S_T4}, 0x3ff
    s_mov_b64 exec, 1
    s_branch {l_fin}
    {l_glob}:
    v_mov_b32 v3, 1
    v_mov_b32 v6, 68
    buffer_atomic_add v3, v6, s[12:15], 0 offen sc0 sc1
    s_waitcnt vmcnt(0)
    v_readfirstlane_b32 s{S_T4}, v3
    s_nop 3
    s_min_u32 s{S_T4}, s{S_T4}, 0x3ff
    s_or_b32 s{S_T4}, s{S_T4}, 0x400
    {l_fin}:
    v_mov_b32 v2, {LS_ROLE}
    v_mov_b32 v3, s{S_T4}
    ds_write_b32 v2, v3
    s_waitcnt lgkmcnt(0)
    s_mov_b64 exec, -1
    {l_w}:
    s_barrier
    v_mov_b32 v2, {LS_ROLE}
    ds_read_b32 v3, v2
    s_waitcnt lgkmcnt(0)
    v_readfirstlane_b32 s{S_T4}, v3
    s_nop 3
    s_and_b32 s{S_ROLE}, s{S_T4}, 0x3ff
    s_lshr_b32 s{S_MODE}, s{S_T4}, 10
    s_barrier''')

OPT=dict(fill=1,static=1,xkbar=1,vfill=1,dls=['pre']*3+[(0,1),(0,3),(0,5),(1,0),(1,2)],wi_late=2,wsl=['pre','pre'],hlp=2,hslp=4,dfl=8,sp=2,spd=3,vp=2,vpd=2,
         mt6=1,km=1,kb=2,vsl=2)
def tstamp(a,i,tl):
    if tl: a(f's_memrealtime s[{70+2*i}:{71+2*i}]')
def tdump(a,n,tl,wk=False):
    if not tl: return
    if wk: a(f's_add_u32 s{S_ROLE}, s58, {wk}')
    a(f'''s_waitcnt lgkmcnt(0)
    s_lshl_b32 s{S_T0}, s{S_ROLE}, 2
    s_add_u32 s{S_T0}, s{S_T0}, s{S_WAVE}
    s_lshl_b32 s{S_T0}, s{S_T0}, 6
    s_add_u32 s{S_T0}, s{S_T0}, {ws.PROF+0xE0000}
    s_mov_b64 exec, -1
    v_mov_b32 v2, 0''')
    for i in range(n): a(f'v_writelane_b32 v2, s{70+2*i}, {i}')
    a(f'''v_lshlrev_b32 v3, 2, v0
    v_mov_b32 v4, 0x10000000
    v_cmp_gt_u32 vcc, 16, v0
    s_nop 1
    v_cndmask_b32 v3, v4, v3, vcc
    buffer_store_dword v2, v3, s[8:11], s{S_T0} offen
    s_waitcnt vmcnt(0)''')
def o_kernel(name, src, prof=False, clk=False, workers=True, o=None, tl=False, do_misc=False, do_b1=False):
    o=OPT if o is None else o
    a=Asm(); a.l.append(head(name))
    ex=name+'_exit'; lv=name+'_val'; lwk=name+'_wk'; lj2=name+'_j2'; lnd=name+'_nd'
    tstamp(a,0,tl)
    hlp=o.get('hlp',0); NR=32 if hlp else NROLE; NJ2_=112 if hlp else NJ2
    NB1=16 if do_b1 else 0; NJ2X=NJ2_-NB1; lb1=name+'_b1'
    rec.prologue(a,256,ex)
    election2(a,NR)
    tstamp(a,1,tl)
    o=dict(o); o['tl']=(lambda i: tstamp(a,i,tl), lambda n: tdump(a,n,tl))
    a(f'''s_cmp_ge_u32 s{S_ROLE}, {NR}
    s_cbranch_scc1 {lwk}''')
    rec.roles(a,name,prof,clk,63,True,o)
    a(f'{lwk}:')
    a(f'''s_sub_u32 s58, s{S_ROLE}, {NR}
    s_cmp_ge_u32 s58, {NJ1+NJ2_}
    s_cbranch_scc1 {ex}
    s_cmp_ge_u32 s58, 224
    s_cbranch_scc1 {lnd}''')
    a(f'''s_and_b32 s18, s58, 3
    s_lshr_b32 s21, s58, 2
    s_lshr_b32 s16, s21, 2
    s_and_b32 s19, s21, 3''')
    dk.d_body(a,16,19,18,S_WAVE,stflags='sc1',flags=True)
    a(f's_barrier\n{lnd}:')
    tstamp(a,2,tl)
    a(f's_cmp_ge_u32 s58, {NJ1}\ns_cbranch_scc1 {lj2}')
    div_const(a,16,58,7,112)
    a(f'''s_mul_i32 s18, s16, 7
    s_sub_u32 s18, s58, s18
    s_cmp_eq_u32 s18, 0
    s_cselect_b32 s19, 10, 9''')
    j1.j1_body(a,16,18,S_WAVE,None,7,stflags='sc1',om=True,S_N=19)
    tstamp(a,3,tl); tdump(a,4,tl,NR)
    a(f's_endpgm\n{lj2}:')
    if do_b1: a(f's_cmp_ge_u32 s58, {NJ1+NJ2X}\ns_cbranch_scc1 {lb1}')
    if do_misc:
        lm=a.lab('ml'); ln_=a.lab('mn'); ld=a.lab('md')
        a(f's_sub_u32 s59, s58, {NJ1}\n{lm}:\ns_cmp_ge_u32 s59, {misc.N_WT+misc.N_TB}\ns_cbranch_scc1 {ld}')
        misc.misc_body(a,59,ln_,17,24,False,'sc1')
        a(f'''{ln_}:
        s_lshl_b32 s24, s59, 2
        s_add_u32 s24, s24, {ws.TF}
        s_lshl_b32 s25, s17, 6
        v_add_u32 v2, s25, v0
        v_cmp_eq_u32 vcc, 0, v2
        v_mov_b32 v2, 0x10000000
        v_mov_b32 v3, 1
        v_cndmask_b32 v2, v2, 0, vcc
        s_waitcnt vmcnt(0) lgkmcnt(0)
        s_barrier
        buffer_store_dword v3, v2, s[8:11], s24 offen sc1
        s_add_u32 s59, s59, {NJ2X}
        s_branch {lm}
        {ld}:''')
    a(f's_sub_u32 s16, s58, {NJ1}')
    if src=='x':
        a(f"s_load_dwordx2 s[6:7], s[0:1], {KA['x']}\ns_waitcnt lgkmcnt(0)"); srd(a,12,6,1835008); rs,so='s[12:15]','0'
    else: a(f's_mov_b32 s22, {src}'); rs,so='s[8:11]','s22'
    a(f's_mov_b32 s19, {ws.X1}')
    j2.j2_om(a,16,S_WAVE,rs,so,'s19',NJ2X,nx=o.get('nx',0) or hlp,xf=do_b1)
    tstamp(a,3,tl); tdump(a,4,tl,NR)
    if do_b1:
        a(f's_endpgm\n{lb1}:\ns_sub_u32 s16, s58, {NJ1+NJ2X}')
        b1.b1_om(a,16,S_WAVE,NB1//4)
        tstamp(a,3,tl); tdump(a,4,tl,NR)
    a(f'{ex}:\ns_endpgm')
    return a.text()+kd(name,vgpr=256,agpr=256)
if __name__=='__main__':
    t='.amdgcn_target "amdgcn-amd-amdhsa--gfx950"\n'+o_kernel('o_kernel','x')
    open('ok.s','w').write(t); print(len(t))
```

```python
from common import *
import fold, misc
from ln import *
import lay
PRE_LDS=fold.FOLD_LDS
def ln4_body(a, S_K, S_W, src_srd, so):
    S_SEG=18; S_IO=19; S_MASK=20; S_ACT=22; TS=24
    XB=[8+8*i for i in range(8)]
    F=[72,88,104,120]; T=[136,144,152,160]
    a(f'''s_mov_b32 s{S_MASK}, 0xffff0000
    v_and_b32 v2, 31, v0
    v_cmp_gt_u32 s[{S_ACT}:{S_ACT+1}], 28, v2
    s_lshl_b32 s{TS}, s{S_K}, 6
    s_lshl_b32 s{TS+1}, s{S_W}, 2
    s_add_u32 s{TS}, s{TS}, s{TS+1}
    v_lshrrev_b32 v3, 5, v0
    v_add_u32 v4, s{TS}, v3
    v_mul_u32_u24 v4, 896, v4
    v_lshlrev_b32 v5, 5, v2
    v_add_u32 v4, v4, v5
    v_mov_b32 v6, 0x10000000
    v_cndmask_b32 v4, v6, v4, s[{S_ACT}:{S_ACT+1}]
    v_add_u32 v7, s{TS+1}, v3
    v_mul_u32_u24 v7, {RS}, v7
    v_add_u32 v7, v7, v5''')
    for i in range(4):
        a(f's_add_u32 s{TS+2}, {so}, {i*16*896}')
        for it in range(2):
            r=XB[2*i+it]
            a(f'buffer_load_dwordx4 v[{r}:{r+3}], v4, {src_srd}, s{TS+2} offen offset:{it*1792}')
            a(f'buffer_load_dwordx4 v[{r+4}:{r+7}], v4, {src_srd}, s{TS+2} offen offset:{it*1792+16}')
    for half in range(2):
        a(f's_waitcnt vmcnt({8 if half==0 else 0})')
        ln_multi(a,[(XB[4*half+i],F[i],T[i]) for i in range(4)],S_MASK,S_ACT)
        a(f's_mov_b64 s[{TS}:{TS+1}], exec\ns_mov_b64 exec, s[{S_ACT}:{S_ACT+1}]')
        for i in range(4):
            q=4*half+i; item=q>>1; it=q&1; r=XB[q]
            a(f'ds_write_b128 v7, v[{r}:{r+3}] offset:{item*16*RS+it*2*RS}')
            a(f'ds_write_b128 v7, v[{r+4}:{r+7}] offset:{item*16*RS+it*2*RS+16}')
        a(f's_mov_b64 exec, s[{TS}:{TS+1}]')
    a('s_waitcnt lgkmcnt(0)\ns_barrier')
    for i in range(4):
        a(f's_lshl_b32 s{S_SEG}, s{S_K}, 1\ns_add_u32 s{S_SEG}, s{S_SEG}, {i>>1}\ns_mov_b32 s{S_IO}, {i&1}')
        emit_images(a,i*16*RS,S_W,S_SEG,S_IO,8,TS)
def pre_kernel(name, loc=True):
    a=Asm(); a.l.append(head(name)); ex=name+'_exit'; lln=name+'_ln'; lnm=name+'_nm'
    a(f'''s_cmp_ge_u32 s2, 256
    s_cbranch_scc1 {ex}
    s_load_dwordx2 s[4:5], s[0:1], {KA['ws']}
    s_load_dwordx2 s[6:7], s[0:1], {KA['x']}
    v_lshrrev_b32 v1, 6, v0
    v_and_b32 v0, 63, v0
    s_mov_b32 s16, s2
    v_readfirstlane_b32 s17, v1
    s_waitcnt lgkmcnt(0)''')
    srd(a,8,4,0x10000000)
    a(f's_cmp_ge_u32 s16, 224\ns_cbranch_scc1 {lln}')
    for l in (0,1):
        lay.set_layer(l); init_stores(a,'s16',17,24)
    lay.set_layer(0)
    fold.fold_body(a,ex,False,loc,16)
    a(f's_endpgm\n{lln}:')
    srd(a,48,6,1835008)
    a('s_sub_u32 s16, s16, 224')
    ln4_body(a,16,17,'s[48:51]','0')
    for l in (0,1):
        lq=a.lab('m0')
        a(f's_cmp_lg_u32 s16, {31-l}\ns_cbranch_scc1 {lq}')
        lay.set_layer(l); misc.ma0_body(a,17,24)
        a(f'{lq}:')
    lay.set_layer(0)
    a(f's_waitcnt vmcnt(0)\n{ex}:\ns_endpgm')
    return a.text()+kd(name,vgpr=168,agpr=128)
if __name__=='__main__':
    import hz
    t='.amdgcn_target "amdgcn-amd-amdhsa--gfx950"\n'+pre_kernel('pre_kernel'); hz.check(t)
    open('pre.s','w').write(t)
```

```python
import sys, os
sys.path.insert(0,os.path.dirname(os.path.abspath(__file__)))
import fold, misc, ln, dk, rec, j1, j2, b1, fft, b3, hz, ok, pre
from lay import ws
NAME='interleave_layers__memory_aug_recurrent_mem_tr__spectral_gfnet__prompt'
STUB=f'cdna_kernels/{NAME}.s.ref'
def kernels_v1():
    WT='sc1'
    K={}
    K['fold_kernel']=(fold.fold_kernel('fold_kernel'),224,fold.FOLD_LDS)
    K['misc_kernel']=(misc.misc_kernel('misc_kernel'),misc.MISC_WG,misc.MISC_LDS)
    K['ln0_kernel']=(ln.ln_kernel('ln0_kernel','x'),128,ln.LN_LDS)
    K['ln1_kernel']=(ln.ln_kernel('ln1_kernel',ws.X2),128,ln.LN_LDS)
    K['d_kernel']=(dk.d_kernel('d_kernel',stflags=WT),224,dk.D_LDS)
    K['rec_kernel']=(rec.rec_kernel('rec_kernel'),256,rec.REC_LDS)
    K['j1_kernel']=(j1.j1_kernel('j1_kernel'),256,j1.J1_LDS)
    K['j2a_kernel']=(j2.j2_kernel('j2a_kernel','x'),256,j2.J2_LDS)
    K['j2b_kernel']=(j2.j2_kernel('j2b_kernel',ws.X2),256,j2.J2_LDS)
    K['b1_kernel']=(b1.b1_kernel('b1_kernel'),256,b1.B1_LDS)
    K['fft_kernel']=(fft.fft_kernel('fft_kernel'),225,fft.FFT_LDS)
    K['b3a_kernel']=(b3.b3_kernel('b3a_kernel',ws.X2),256,b3.B3_LDS)
    K['b3b_kernel']=(b3.b3_kernel('b3b_kernel','out'),256,b3.B3_LDS)
    order=['fold_kernel','misc_kernel','ln0_kernel','d_kernel','rec_kernel','j1_kernel','j2a_kernel','b1_kernel','fft_kernel','b3a_kernel',
           'ln1_kernel','d_kernel','rec_kernel','j1_kernel','j2b_kernel','b1_kernel','fft_kernel','b3b_kernel']
    return K,order
def kernels_v2():
    K,_=kernels_v1()
    K['oa_kernel']=(ok.o_kernel('oa_kernel','x'),256,ok.OK_LDS)
    K['ob_kernel']=(ok.o_kernel('ob_kernel',ws.X2),256,ok.OK_LDS)
    order=['fold_kernel','misc_kernel','ln0_kernel','oa_kernel','b1_kernel','fft_kernel','b3a_kernel',
           'ln1_kernel','ob_kernel','b1_kernel','fft_kernel','b3b_kernel']
    return K,order
def kernels_v3():
    K,_=kernels_v1()
    K['pre_kernel']=(pre.pre_kernel('pre_kernel'),256,pre.PRE_LDS)
    K['oa_kernel']=(ok.o_kernel('oa_kernel','x',do_misc=True),256,ok.OK_LDS)
    K['ob_kernel']=(ok.o_kernel('ob_kernel',ws.X2),256,ok.OK_LDS)
    order=['pre_kernel','oa_kernel','b1_kernel','fft_kernel','b3a_kernel',
           'ln1_kernel','ob_kernel','b1_kernel','fft_kernel','b3b_kernel']
    return K,order
def kernels_v4():
    import lay
    K={}
    K['pre_kernel']=(pre.pre_kernel('pre_kernel'),256,pre.PRE_LDS)
    for l,x in ((0,'a'),(1,'b')):
        lay.set_layer(l)
        K['o%s_kernel'%x]=(ok.o_kernel('o%s_kernel'%x,'x' if l==0 else ws.X2,do_misc=(l==0)),256,ok.OK_LDS)
        K['b1%s_kernel'%x]=(b1.b1_kernel('b1%s_kernel'%x),256,b1.B1_LDS)
        K['fft%s_kernel'%x]=(fft.fft_kernel('fft%s_kernel'%x),225,fft.FFT_LDS)
        K['b3%s_kernel'%x]=(b3.b3_kernel('b3%s_kernel'%x,ws.X2 if l==0 else 'out'),256,b3.B3_LDS)
    K['ln1_kernel']=(ln.ln_kernel('ln1_kernel',ws.X2,init=False),128,ln.LN_LDS)
    lay.set_layer(0)
    order=['pre_kernel','oa_kernel','b1a_kernel','ffta_kernel','b3a_kernel',
           'ln1_kernel','ob_kernel','b1b_kernel','fftb_kernel','b3b_kernel']
    return K,order
def kernels_v5():
    import lay
    K,order=kernels_v4()
    for l,x in ((0,'a'),(1,'b')):
        lay.set_layer(l)
        K['o%s_kernel'%x]=(ok.o_kernel('o%s_kernel'%x,'x' if l==0 else ws.X2,do_misc=(l==0),do_b1=True),256,ok.OK_LDS)
    lay.set_layer(0)
    order=[k for k in order if not k.startswith('b1')]
    return K,order
def assemble_text(K,order):
    hdr=[l for l in open(STUB).read().split('\n') if l.startswith(';') and 'offset' in l or l.startswith('; Kernarg')]
    t='\n'.join(hdr)+'\n'
    for n in order: t+=f'; @launch kernel={n} grid=({K[n][1]},1,1) block=(256,1,1) lds={K[n][2]}\n'
    t+='.amdgcn_target "amdgcn-amd-amdhsa--gfx950"\n'
    body=''.join(K[n][0] for n in dict.fromkeys(order))
    return t+body, body
if __name__=='__main__':
    ver=sys.argv[2] if len(sys.argv)>2 else 'v2'
    K,order=globals()['kernels_'+ver]()
    t,body=assemble_text(K,order)
    hz.check(body)
    out=sys.argv[1] if len(sys.argv)>1 else f'cdna_kernels/{NAME}.s'
    open(out,'w').write(t); print(out,len(t))
```

```python
from common import *
B3_LDS=29*1024
def b3_kernel(name, dst, stflags=''):
    a=Asm(); a.l.append(head(name)); ex=name+'_exit'
    S_W=17; S_TB=18; S_DT=19; TS=24
    VL=1; VTR=2; VX=3; RES=8; ACC=16; B=32; O=24
    a(f'''s_cmp_ge_u32 s2, 256
    s_cbranch_scc1 {ex}
    s_load_dwordx2 s[4:5], s[0:1], {KA['ws']}
    s_load_dwordx2 s[6:7], s[0:1], {KA['out']}
    v_lshrrev_b32 v1, 6, v0
    v_and_b32 v0, 63, v0
    s_lshr_b32 s{S_TB}, s2, 2
    s_and_b32 s{S_DT}, s2, 3
    v_readfirstlane_b32 s{S_W}, v1
    s_lshl_b32 s{S_DT}, s{S_DT}, 2
    s_waitcnt lgkmcnt(0)
    s_add_u32 s{S_DT}, s{S_DT}, s{S_W}''')
    srd(a,8,4,0x10000000)
    if dst=='out': srd(a,12,6,1835008); osrd,oso='s[12:15]','0'
    else: a(f's_mov_b32 s22, {dst}'); osrd,oso='s[8:11]','s22'
    a(f'''v_lshrrev_b32 v4, 2, v0
    v_lshlrev_b32 v4, 12, v4
    v_and_b32 v5, 3, v0
    v_lshlrev_b32 v5, 4, v5
    v_add_u32 v4, v4, v5
    s_lshl_b32 s{TS}, s{S_TB}, 6
    s_add_u32 s{TS}, s{TS}, {ws.GT}
    s_lshl_b32 s{TS+1}, s{S_W}, 16
    s_add_u32 s{TS}, s{TS}, s{TS+1}
    s_lshl_b32 s{TS+1}, s{S_W}, 10''')
    for n in range(8):
        lsk=a.lab('b3s')
        if n==7: a(f's_cmp_ge_u32 s{S_W}, 1\ns_cbranch_scc1 {lsk}')
        a(f's_add_u32 m0, s{TS+1}, {n*4096}\ns_add_u32 s{TS+2}, s{TS}, {n*4*65536}\nbuffer_load_dwordx4 v4, s[8:11], s{TS+2} offen lds')
        if n==7: a(f'{lsk}:')
    lidle=a.lab('b3idle')
    a(f's_cmp_ge_u32 s{S_DT}, 14\ns_cbranch_scc1 {lidle}')
    a(f'''v_and_b32 v5, 31, v0
    s_lshl_b32 s{TS}, s{S_TB}, 5
    v_add_u32 v6, s{TS}, v5
    v_mul_u32_u24 v6, 896, v6
    v_lshrrev_b32 v7, 5, v0
    v_lshlrev_b32 v7, 4, v7
    s_lshl_b32 s{TS}, s{S_DT}, 6
    v_add3_u32 v{VX}, v6, v7, s{TS}
    s_mov_b32 s{TS+3}, {ws.X1}
    v_lshlrev_b32 v{VL}, 4, v0
    s_mul_i32 s{TS}, s{S_DT}, {29*1024}
    s_add_u32 s{TS}, s{TS}, {ws.IV}''')
    for f in range(29):
        a(f'buffer_load_dwordx4 a[{4*f}:{4*f+3}], v{VL}, s[8:11], s{TS} offen offset:{(f&3)*1024}')
        if (f&3)==3: a(f's_add_u32 s{TS}, s{TS}, 4096')
    a(f'buffer_load_dwordx4 v[{RES}:{RES+3}], v{VX}, s[8:11], s{TS+3} offen')
    a(f'buffer_load_dwordx4 v[{RES+4}:{RES+7}], v{VX}, s[8:11], s{TS+3} offen offset:32')
    a(f'''v_lshrrev_b32 v5, 5, v0
    v_lshlrev_b32 v5, 9, v5
    v_lshrrev_b32 v6, 2, v0
    v_and_b32 v6, 3, v6
    v_lshlrev_b32 v6, 6, v6
    v_add_u32 v5, v5, v6
    v_lshrrev_b32 v6, 4, v0
    v_and_b32 v6, 1, v6
    v_lshlrev_b32 v6, 5, v6
    v_and_b32 v7, 3, v0
    v_lshlrev_b32 v7, 3, v7
    v_add3_u32 v{VTR}, v5, v6, v7
    s_waitcnt vmcnt(31)
    s_barrier''')
    for ks in range(29):
        a(f'ds_read_b64_tr_b16 v[{B+4*ks}:{B+4*ks+1}], v{VTR} offset:{ks*1024}')
        a(f'ds_read_b64_tr_b16 v[{B+4*ks+2}:{B+4*ks+3}], v{VTR} offset:{ks*1024+256}')
    a('s_waitcnt vmcnt(2) lgkmcnt(0)')
    for ks in range(29):
        c='0' if ks==0 else f'v[{ACC}:{ACC+15}]'
        a(f'v_mfma_f32_32x32x16_bf16 v[{ACC}:{ACC+15}], a[{4*ks}:{4*ks+3}], v[{B+4*ks}:{B+4*ks+3}], {c}')
    a('s_waitcnt vmcnt(0)\ns_nop 7\ns_nop 2')
    F=B
    for qp in range(2):
        q0=ACC+8*qp; q1=q0+4; o=B+8+4*qp; r=RES+4*qp
        a(f'''v_cvt_pk_bf16_f32 v{o}, v{q0}, v{q0+1}
        v_cvt_pk_bf16_f32 v{o+1}, v{q0+2}, v{q0+3}
        v_cvt_pk_bf16_f32 v{o+2}, v{q1}, v{q1+1}
        v_cvt_pk_bf16_f32 v{o+3}, v{q1+2}, v{q1+3}
        s_nop 1
        v_permlane32_swap_b32 v{o}, v{o+2}
        v_permlane32_swap_b32 v{o+1}, v{o+3}''')
        for q in range(4):
            a(f'''v_lshlrev_b32 v{F}, 16, v{o+q}
            v_and_b32 v{F+1}, 0xffff0000, v{o+q}
            v_lshlrev_b32 v{F+2}, 16, v{r+q}
            v_and_b32 v{F+3}, 0xffff0000, v{r+q}
            v_pk_add_f32 v[{F}:{F+1}], v[{F}:{F+1}], v[{F+2}:{F+3}]
            v_cvt_pk_bf16_f32 v{o+q}, v{F}, v{F+1}''')
        a(f'buffer_store_dwordx4 v[{o}:{o+3}], v{VX}, {osrd}, {oso} offen offset:{32*qp} {stflags}')
    a(f's_waitcnt vmcnt(0)\ns_endpgm\n{lidle}:\ns_waitcnt vmcnt(0)\ns_barrier\n{ex}:\ns_endpgm')
    return a.text()+kd(name,vgpr=B+116,agpr=116)
S_P=60; S_J=61; S_TB=62; S_DT=63
RES2=200; VX2=208
def b3_pre(a, S_ID, S_W=17):
    TS=24
    div_const(a,S_P,S_ID,7,224)
    a(f'''s_mul_i32 s{TS}, s{S_P}, 7
    s_sub_u32 s{S_J}, s{S_ID}, s{TS}
    s_lshl_b32 s{TS}, s{S_J}, 2
    s_add_u32 s{TS}, s{TS}, s{S_W}
    s_cmp_ge_u32 s{TS}, 14
    s_cselect_b32 s{TS+1}, 1, 0
    s_cselect_b32 s{TS+2}, 14, 0
    s_sub_u32 s{S_DT}, s{TS}, s{TS+2}
    s_lshl_b32 s{S_TB}, s{S_P}, 1
    s_add_u32 s{S_TB}, s{S_TB}, s{TS+1}
    v_lshlrev_b32 v1, 4, v0
    s_mul_i32 s{TS}, s{S_DT}, {29*1024}
    s_add_u32 s{TS}, s{TS}, {ws.IV}''')
    for f in range(29):
        a(f'buffer_load_dwordx4 a[{4*f}:{4*f+3}], v1, s[8:11], s{TS} offen offset:{(f&3)*1024}')
        if (f&3)==3: a(f's_add_u32 s{TS}, s{TS}, 4096')
def b3_res(a):
    TS=24
    a(f'''v_and_b32 v{VX2+1}, 31, v0
    s_lshl_b32 s{TS}, s{S_TB}, 5
    v_add_u32 v{VX2+2}, s{TS}, v{VX2+1}
    v_mul_u32_u24 v{VX2+2}, 896, v{VX2+2}
    v_lshrrev_b32 v{VX2+3}, 5, v0
    v_lshlrev_b32 v{VX2+3}, 4, v{VX2+3}
    s_lshl_b32 s{TS}, s{S_DT}, 6
    v_add3_u32 v{VX2}, v{VX2+2}, v{VX2+3}, s{TS}
    s_mov_b32 s{TS+3}, {ws.X1}
    buffer_load_dwordx4 v[{RES2}:{RES2+3}], v{VX2}, s[8:11], s{TS+3} offen sc1
    buffer_load_dwordx4 v[{RES2+4}:{RES2+7}], v{VX2}, s[8:11], s{TS+3} offen offset:32 sc1''')
def b3_main(a, dst, S_W=17):
    TS=24; VTR=2; ACC=16; B=32; BUF=29696
    if dst=='out': osrd,oso,st='s[12:15]','0',''
    else: a(f's_mov_b32 s22, {dst}'); osrd,oso,st='s[8:11]','s22','sc1'
    a(f'''v_lshrrev_b32 v4, 2, v0
    v_lshlrev_b32 v4, 12, v4
    v_and_b32 v5, 3, v0
    v_lshlrev_b32 v5, 4, v5
    v_add_u32 v4, v4, v5''')
    for half in range(2):
        lq=a.lab('b3h')
        a(f"s_cmp_{'gt' if half==0 else 'lt'}_u32 s{S_J}, 3\ns_cbranch_scc1 {lq}")
        a(f'''s_lshl_b32 s{TS}, s{S_P}, 7
        s_add_u32 s{TS}, s{TS}, {ws.GT+64*half}
        s_lshl_b32 s{TS+1}, s{S_W}, 16
        s_add_u32 s{TS}, s{TS}, s{TS+1}
        s_lshl_b32 s{TS+1}, s{S_W}, 10''')
        for n in range(8):
            lsk=a.lab('b3s')
            if n==7: a(f's_cmp_ge_u32 s{S_W}, 1\ns_cbranch_scc1 {lsk}')
            a(f's_add_u32 m0, s{TS+1}, {half*BUF+n*4096}\ns_add_u32 s{TS+2}, s{TS}, {n*4*65536}\nbuffer_load_dwordx4 v4, s[8:11], s{TS+2} offen lds')
            if n==7: a(f'{lsk}:')
        a(f'{lq}:')
    a(f'''v_lshrrev_b32 v5, 5, v0
    v_lshlrev_b32 v5, 9, v5
    v_lshrrev_b32 v6, 2, v0
    v_and_b32 v6, 3, v6
    v_lshlrev_b32 v6, 6, v6
    v_add_u32 v5, v5, v6
    v_lshrrev_b32 v6, 4, v0
    v_and_b32 v6, 1, v6
    v_lshlrev_b32 v6, 5, v6
    v_and_b32 v7, 3, v0
    v_lshlrev_b32 v7, 3, v7
    v_add3_u32 v{VTR}, v5, v6, v7
    s_and_b32 s{TS}, s{S_TB}, 1
    s_mul_i32 s{TS}, s{TS}, {BUF}
    v_add_u32 v{VTR}, s{TS}, v{VTR}
    s_waitcnt vmcnt(0)
    s_barrier''')
    for ks in range(29):
        a(f'ds_read_b64_tr_b16 v[{B+4*ks}:{B+4*ks+1}], v{VTR} offset:{ks*1024}')
        a(f'ds_read_b64_tr_b16 v[{B+4*ks+2}:{B+4*ks+3}], v{VTR} offset:{ks*1024+256}')
    for ks in range(29):
        if ks in (0,22,25): a({0:'s_waitcnt lgkmcnt(14)',22:'s_waitcnt lgkmcnt(8)',25:'s_waitcnt lgkmcnt(0)'}[ks])
        c='0' if ks==0 else f'v[{ACC}:{ACC+15}]'
        a(f'v_mfma_f32_32x32x16_bf16 v[{ACC}:{ACC+15}], a[{4*ks}:{4*ks+3}], v[{B+4*ks}:{B+4*ks+3}], {c}')
    a('s_nop 7\ns_nop 3')
    F=B
    for qp in range(2):
        q0=ACC+8*qp; q1=q0+4; o=B+8+4*qp; r=RES2+4*qp
        a(f'''v_cvt_pk_bf16_f32 v{o}, v{q0}, v{q0+1}
        v_cvt_pk_bf16_f32 v{o+1}, v{q0+2}, v{q0+3}
        v_cvt_pk_bf16_f32 v{o+2}, v{q1}, v{q1+1}
        v_cvt_pk_bf16_f32 v{o+3}, v{q1+2}, v{q1+3}
        s_nop 1
        v_permlane32_swap_b32 v{o}, v{o+2}
        v_permlane32_swap_b32 v{o+1}, v{o+3}''')
        for q in range(4):
            a(f'''v_lshlrev_b32 v{F}, 16, v{o+q}
            v_and_b32 v{F+1}, 0xffff0000, v{o+q}
            v_lshlrev_b32 v{F+2}, 16, v{r+q}
            v_and_b32 v{F+3}, 0xffff0000, v{r+q}
            v_pk_add_f32 v[{F}:{F+1}], v[{F}:{F+1}], v[{F+2}:{F+3}]
            v_cvt_pk_bf16_f32 v{o+q}, v{F}, v{F+1}''')
        a(f'buffer_store_dwordx4 v[{o}:{o+3}], v{VX2}, {osrd}, {oso} offen offset:{32*qp} {st}')
    if dst!='out':
        a(f'''s_lshl_b32 s{TS}, s{S_P}, 5
        s_lshl_b32 s{TS+1}, s{S_J}, 2
        s_add_u32 s{TS}, s{TS}, s{TS+1}
        s_add_u32 s{TS}, s{TS}, {ws.YF}''')
        wg_flag(a,TS,S_W)
    else: a('s_waitcnt vmcnt(0)')
if __name__=='__main__':
    t='.amdgcn_target "amdgcn-amd-amdhsa--gfx950"\n'+b3_kernel('b3_kernel','out')
    open('b3.s','w').write(t)
```

```python
from asm import *
from lay import ws
KA=dict(x=0,mem0=8,wq=16,wk=24,wv=32,wo=40,wr=64,wi=72,out=80,dbg=88,ws=96)
def srd(a, s, karg_reg, nbytes):
    a(f'''s_mov_b32 s{s}, s{karg_reg}
    s_mov_b32 s{s+1}, s{karg_reg+1}
    s_mov_b32 s{s+2}, {nbytes}
    s_mov_b32 s{s+3}, 0x00020000''')
def div_const(a, dst, src, d, maxv):
    for sh in range(8,28):
        m=((1<<sh)+d-1)//d
        if all((x*m)>>sh==x//d for x in range(maxv)) and m*maxv<(1<<31):
            a(f's_mul_i32 s{dst}, s{src}, {m}\ns_lshr_b32 s{dst}, s{dst}, {sh}'); return
    raise Exception('no magic')

def poll_flags(a, s_addr, vaddr, vtmp, mask, s_cnt, s_lim, s_tmp, sleep=2):
    lr=a.lab('pf'); lo=a.lab('po')
    lo32=mask&0xffffffff; hi32=mask>>32
    a(f'''s_mov_b32 s{s_cnt}, s{s_lim}
    {lr}:
    buffer_load_dword v{vtmp}, v{vaddr}, s[8:11], s{s_addr} offen sc1
    s_waitcnt vmcnt(0)
    v_cmp_eq_u32 vcc, 1, v{vtmp}
    s_nop 1''')
    if hi32==0xffffffff and lo32==0xffffffff:
        a(f's_and_b32 s{s_tmp}, vcc_lo, vcc_hi\ns_cmp_eq_u32 s{s_tmp}, -1')
    elif hi32==0:
        a(f's_and_b32 s{s_tmp}, vcc_lo, {hex(lo32)}\ns_cmp_eq_u32 s{s_tmp}, {hex(lo32)}')
    else:
        assert lo32==0xffffffff
        a(f's_and_b32 s{s_tmp}, vcc_hi, {hex(hi32)}\ns_xor_b32 s{s_tmp}, s{s_tmp}, {hex(hi32)}\ns_andn2_b32 vcc_lo, -1, vcc_lo\ns_or_b32 s{s_tmp}, s{s_tmp}, vcc_lo\ns_cmp_eq_u32 s{s_tmp}, 0')
    a(f'''s_cbranch_scc1 {lo}
    s_sleep {sleep}
    s_sub_u32 s{s_cnt}, s{s_cnt}, 1
    s_cbranch_scc0 {lr}
    s_mov_b32 s{s_lim}, 0
    {lo}:''')
def flag_store(a, s_addr, vaddr, vone, lane_cond_wave=None):
    a(f'buffer_store_dword v{vone}, v{vaddr}, s[8:11], s{s_addr} offen sc1')
def wg_flag(a, s_addr, S_W=17, v0t=4, v1t=5, s_t=None):
    st=s_t if s_t is not None else s_addr+1
    a(f'''s_lshl_b32 s{st}, s{S_W}, 6
    v_add_u32 v{v0t}, s{st}, v0
    v_cmp_eq_u32 vcc, 0, v{v0t}
    v_mov_b32 v{v0t}, 0x10000000
    v_mov_b32 v{v1t}, 1
    v_cndmask_b32 v{v0t}, v{v0t}, 0, vcc
    s_waitcnt vmcnt(0) lgkmcnt(0)
    s_barrier
    buffer_store_dword v{v1t}, v{v0t}, s[8:11], s{s_addr} offen sc1''')
def wg_wait(a, addr, nflags, S_W=17, s_a=24, s_cnt=25, s_t=26, s_lim=39, va=4, vt=8, sleep=2, pre=None):
    lb=a.lab('ww')
    a(f's_cmp_lg_u32 s{S_W}, 0\ns_cbranch_scc1 {lb}')
    for (ad,n,sl) in (pre or [])+[(addr,nflags,sleep)]:
        lr=a.lab('wr'); lo=a.lab('wo')
        a(f's_mov_b32 s{s_a}, {ad}')
        if n<=64:
            a(f'''v_lshlrev_b32 v{va}, 2, v0
            v_mov_b32 v{vt}, 0x10000000
            v_cmp_gt_u32 vcc, {n}, v0
            s_mov_b32 s{s_cnt}, s{s_lim}
            s_nop 0
            v_cndmask_b32 v{va}, v{vt}, v{va}, vcc
            {lr}:
            buffer_load_dword v{vt}, v{va}, s[8:11], s{s_a} offen sc1
            s_waitcnt vmcnt(0)
            v_cmp_eq_u32 vcc, 1, v{vt}
            s_nop 1
            s_bcnt1_i32_b64 s{s_t}, vcc
            s_cmp_eq_u32 s{s_t}, {n}''')
        else:
            a(f'''v_lshlrev_b32 v{va}, 4, v0
            v_mov_b32 v{vt}, 0x10000000
            v_cmp_gt_u32 vcc, {(n+3)//4}, v0
            s_mov_b32 s{s_cnt}, s{s_lim}
            s_nop 0
            v_cndmask_b32 v{va}, v{vt}, v{va}, vcc
            {lr}:
            buffer_load_dwordx4 v[{vt}:{vt+3}], v{va}, s[8:11], s{s_a} offen sc1
            s_waitcnt vmcnt(0)
            s_mov_b32 s{s_t}, 0''')
            for q in range(4):
                cnt=len(range(q,n,4))
                a(f'''v_cmp_eq_u32 vcc, 1, v{vt+q}
                s_nop 1''')
                if cnt<64:
                    m=(1<<cnt)-1
                    a(f's_and_b32 vcc_lo, vcc_lo, {hex(m&0xffffffff)}\ns_and_b32 vcc_hi, vcc_hi, {hex(m>>32)}')
                a(f's_bcnt1_i32_b64 s{s_t+1}, vcc\ns_add_u32 s{s_t}, s{s_t}, s{s_t+1}')
            a(f's_cmp_eq_u32 s{s_t}, {n}')
        a(f'''s_cbranch_scc1 {lo}
        s_sleep {sl}
        s_sub_u32 s{s_cnt}, s{s_cnt}, 1
        s_cbranch_scc0 {lr}
        s_mov_b32 s{s_lim}, 0
        {lo}:''')
    a(f'{lb}:\ns_barrier')
```

```python
from common import *
D_LDS=3*28672
def d_weights(a, S_V, S_W4, S_WAVE, AB):
    TS=24
    a(f'''v_lshlrev_b32 v1, 4, v0
    s_lshl_b32 s{TS}, s{S_V}, 2
    s_add_u32 s{TS}, s{TS}, s{S_W4}
    s_lshl_b32 s{TS+1}, s{TS}, 2
    s_add_u32 s{TS+1}, s{TS+1}, s{S_WAVE}
    s_mul_i32 s{TS+2}, s{TS+1}, 28672
    s_add_u32 s{TS+2}, s{TS+2}, {ws.CI}''')
    for f in range(28):
        a(f'buffer_load_dwordx4 a[{AB+4*f}:{AB+4*f+3}], v1, s[8:11], s{TS+2} offen offset:{(f&3)*1024}')
        if (f&3)==3: a(f's_add_u32 s{TS+2}, s{TS+2}, 4096')
def d_body(a, S_V, S_W4, S_Q, S_WAVE, nseg=16, stride=4, stflags='', nostore=False, flags=False, AB=0, preloaded=False):
    TS=24; S_CI=32; S_XT=33; S_DO=34; S_BUF=35; S_NB=36; S_I=37; S_DL=38; S_DO2=39; S_FL=40
    VL=1; VA=2; VST=3; VN=4; VFL=80; VONE=81
    ST=8
    ACC=[40,56]
    PK=72
    a(f'''v_lshlrev_b32 v{VL}, 4, v0
    s_lshl_b32 s{TS}, s{S_V}, 2
    s_add_u32 s{TS}, s{TS}, s{S_W4}
    s_lshl_b32 s{TS+1}, s{TS}, 2
    s_add_u32 s{TS+1}, s{TS+1}, s{S_WAVE}
    s_mul_i32 s{S_CI}, s{TS+1}, 28672
    s_add_u32 s{S_CI}, s{S_CI}, {ws.CI}
    s_mul_i32 s{S_XT}, s{S_Q}, 28672
    s_mul_i32 s{TS+2}, s{S_WAVE}, 7168
    s_add_u32 s{S_XT}, s{S_XT}, s{TS+2}
    s_add_u32 s{S_XT}, s{S_XT}, {ws.XT}
    s_mov_b32 s{S_DL}, s{TS+2}''')
    def dma(buf_s, extra=0):
        o=[]
        for t in range(7):
            o.append([f's_add_u32 m0, s{buf_s}, {t*1024}', f's_add_u32 s{TS+3}, s{S_XT}, {t*1024}', f'buffer_load_dwordx4 v{VL}, s[8:11], s{TS+3} offen lds'])
        return o
    a(f's_mov_b32 s{S_NB}, s{S_DL}')
    for g in dma(S_NB):
        for x in g: a(x)
    a(f's_add_u32 s{S_XT}, s{S_XT}, {stride*28672}\ns_add_u32 s{S_NB}, s{S_DL}, 28672')
    for f in range(0 if preloaded else 28):
        a(f'buffer_load_dwordx4 a[{AB+4*f}:{AB+4*f+3}], v{VL}, s[8:11], s{S_CI} offen offset:{(f&3)*1024}')
        if (f&3)==3: a(f's_add_u32 s{S_CI}, s{S_CI}, 4096')
    for g in dma(S_NB):
        for x in g: a(x)
    a(f's_add_u32 s{S_XT}, s{S_XT}, {stride*28672}\ns_add_u32 s{S_NB}, s{S_DL}, {2*28672}')
    a(f'''v_lshrrev_b32 v5, 5, v0
    v_lshlrev_b32 v5, 11, v5
    v_and_b32 v6, 15, v0
    v_lshlrev_b32 v6, 4, v6
    v_lshrrev_b32 v7, 4, v0
    v_and_b32 v7, 1, v7
    v_lshlrev_b32 v7, 8, v7
    v_add3_u32 v5, v5, v6, v7
    s_lshr_b32 s{TS+1}, s{S_WAVE}, 1
    s_lshl_b32 s{TS+1}, s{TS+1}, 10
    s_and_b32 s{TS+2}, s{S_WAVE}, 1
    s_lshl_b32 s{TS+2}, s{TS+2}, 9
    s_add_u32 s{TS+1}, s{TS+1}, s{TS+2}
    v_add_u32 v{VST}, s{TS+1}, v5
    s_mul_i32 s{S_DO}, s{S_Q}, {14*32768}
    s_lshl_b32 s{TS}, s{TS}, 13
    s_add_u32 s{S_DO}, s{S_DO}, s{TS}
    s_add_u32 s{S_DO}, s{S_DO}, {ws.DI}
    v_mov_b32 v{VA}, v{VL}
    s_mul_i32 s{S_FL}, s{S_Q}, {14*16}
    s_lshl_b32 s{TS+1}, s{S_V}, 4
    s_add_u32 s{S_FL}, s{S_FL}, s{TS+1}
    s_lshl_b32 s{TS+1}, s{S_W4}, 2
    s_add_u32 s{S_FL}, s{S_FL}, s{TS+1}
    s_add_u32 s{S_FL}, s{S_FL}, {ws.DF}
    s_lshl_b32 s{TS+1}, s{S_WAVE}, 6
    v_add_u32 v6, s{TS+1}, v0
    v_mov_b32 v7, 0x10000000
    v_cmp_eq_u32 vcc, 0, v6
    v_mov_b32 v{VONE}, 1
    s_nop 0
    v_cndmask_b32 v{VFL}, v7, 0, vcc
    {'v_mov_b32 v3, 0x10000000' if nostore else ''}
    v_add_u32 v{VN}, 28672, v{VL}
    s_mov_b32 s{S_BUF}, 28672
    s_mov_b32 s{S_I}, 0
    s_waitcnt vmcnt({7 if preloaded else 35})
    s_barrier''')
    def rd(k, vreg, stage):
        b=ST+8*stage
        return [f'ds_read_b128 v[{b}:{b+3}], v{vreg} offset:{k*1024}', f'ds_read_b128 v[{b+4}:{b+7}], v{vreg} offset:{14336+k*1024}']
    for k in range(2):
        for x in rd(k,VA,k): a(x)
    a('s_waitcnt vmcnt(0)')
    loop=a.lab('dloop');
    a(f'{loop}:')
    for par in range(2):
        acc=ACC[par]; pacc=ACC[par^1]
        epi=[]
        for tau in range(2):
            for ab in range(2):
                q=pacc+8*tau+4*ab; o=PK+4*tau+2*ab
                epi.append(f'v_cvt_pk_bf16_f32 v{o}, v{q}, v{q+1}'); epi.append(f'v_cvt_pk_bf16_f32 v{o+1}, v{q+2}, v{q+3}')
        lns=a.lab('dns')
        st=[f'buffer_store_dwordx4 v[{PK}:{PK+3}], v{VST}, s[8:11], s{S_DO} offen {stflags}',
            f's_add_u32 s{S_DO2}, s{S_DO}, 4096',
            f'buffer_store_dwordx4 v[{PK+4}:{PK+7}], v{VST}, s[8:11], s{S_DO2} offen {stflags}',
            f's_add_u32 s{S_DO}, s{S_DO}, {stride*14*32768}']
        dm=None
        for k in range(14):
            stage=(14*par+k)&3; b=ST+8*stage
            a('s_waitcnt lgkmcnt(2)')
            fl=[]
            k2=k+2
            fl+= rd(k2,VA,(stage+2)&3) if k2<14 else rd(k2-14,VN,(stage+2)&3)
            if k in (1,2): fl+=epi[4*(k-1):4*k]
            mf=[]
            for tau in range(2):
                for ab in range(2):
                    d=acc+8*tau+4*ab; f=tau*14+k
                    c='0' if k==0 else f'v[{d}:{d+3}]'
                    mf.append(f'v_mfma_f32_16x16x32_bf16 v[{d}:{d+3}], v[{b+4*ab}:{b+4*ab+3}], a[{AB+4*f}:{AB+4*f+3}], {c}')
            if k==3:
                a(mf[0]);
                for x in fl[:2]: a(x)
                if par==0: a(f's_cmp_eq_u32 s{S_I}, 0\ns_cbranch_scc1 {lns}')
                for x in st: a(x)
                if par==0: a(f'{lns}:')
                for m in mf[1:]: a(m)
                continue
            if k==7:
                a(mf[0])
                for x in fl[:2]: a(x)
                a('s_waitcnt vmcnt(2)\ns_barrier')
                if flags:
                    lf=a.lab('dfl')
                    a(f's_cmp_eq_u32 s{S_I}, 0\ns_cbranch_scc1 {lf}\nbuffer_store_dword v{VONE}, v{VFL}, s[8:11], s{S_FL} offen sc1\ns_add_u32 s{S_FL}, s{S_FL}, {stride*14*16}\n{lf}:')
                for m in mf[1:]: a(m)
                dm=dma(S_NB)
                ld=a.lab('dnd')
                a(f's_add_u32 s{TS}, s{S_I}, {2+par}\ns_cmp_ge_u32 s{TS}, {nseg}\ns_cselect_b32 s{TS+4}, 0x10000000, 0')
                a(f'v_add_u32 v5, s{TS+4}, v{VL}')
                continue
            if dm is not None and k>=8:
                g=dm.pop(0); g=[g[0],g[1],g[2].replace(f'v{VL},','v5,')]
                fl+=g
                if k==13:
                    g=dm.pop(0); fl+=[g[0],g[1],g[2].replace(f'v{VL},','v5,')]
            q=list(fl)
            for j,m in enumerate(mf):
                a(m)
                n=(len(q)+(3-j))//(4-j) if j<3 else len(q)
                for _ in range(n): a(q.pop(0))
            if k==13:
                a(f'''s_add_u32 s{S_XT}, s{S_XT}, {stride*28672}
                v_mov_b32 v{VA}, v{VN}
                s_add_u32 s{S_BUF}, s{S_BUF}, 28672
                s_cmp_ge_u32 s{S_BUF}, {3*28672}
                s_cselect_b32 s{S_BUF}, 0, s{S_BUF}
                v_add_u32 v{VN}, s{S_BUF}, v{VL}
                s_add_u32 s{TS}, s{S_BUF}, 28672
                s_cmp_ge_u32 s{TS}, {3*28672}
                s_cselect_b32 s{TS}, 0, s{TS}
                s_add_u32 s{S_NB}, s{TS}, s{S_DL}''')
        assert not dm
    a(f's_add_u32 s{S_I}, s{S_I}, 2\ns_cmp_lt_u32 s{S_I}, {nseg}\ns_cbranch_scc1 {loop}')
    a('s_nop 7')
    pacc=ACC[1]
    for tau in range(2):
        for ab in range(2):
            q=pacc+8*tau+4*ab; o=PK+4*tau+2*ab
            a(f'v_cvt_pk_bf16_f32 v{o}, v{q}, v{q+1}\nv_cvt_pk_bf16_f32 v{o+1}, v{q+2}, v{q+3}')
    a(f'''buffer_store_dwordx4 v[{PK}:{PK+3}], v{VST}, s[8:11], s{S_DO} offen {stflags}
    s_add_u32 s{S_DO2}, s{S_DO}, 4096
    buffer_store_dwordx4 v[{PK+4}:{PK+7}], v{VST}, s[8:11], s{S_DO2} offen {stflags}
    s_waitcnt vmcnt(0) lgkmcnt(0)''')
    if flags:
        a(f'''s_barrier
        buffer_store_dword v{VONE}, v{VFL}, s[8:11], s{S_FL} offen sc1
        s_add_u32 s{S_FL}, s{S_FL}, {stride*14*16}
        buffer_store_dword v{VONE}, v{VFL}, s[8:11], s{S_FL} offen sc1''')

def d_kernel(name,stflags='',nostore=False):
    a=Asm(); a.l.append(head(name)); ex=name+'_exit'
    a(f'''s_cmp_ge_u32 s2, 224
    s_cbranch_scc1 {ex}
    s_load_dwordx2 s[4:5], s[0:1], {KA['ws']}
    v_lshrrev_b32 v1, 6, v0
    v_and_b32 v0, 63, v0
    s_and_b32 s20, s2, 7
    s_lshr_b32 s21, s2, 3
    v_readfirstlane_b32 s17, v1
    s_and_b32 s18, s21, 3
    s_lshr_b32 s21, s21, 2
    s_lshl_b32 s21, s21, 3
    s_add_u32 s21, s21, s20
    s_lshr_b32 s16, s21, 2
    s_and_b32 s19, s21, 3
    s_waitcnt lgkmcnt(0)''')
    srd(a,8,4,0x10000000)
    d_body(a,16,19,18,17,stflags=stflags,nostore=nostore)
    a(f'{ex}:\ns_endpgm')
    return a.text()+kd(name,vgpr=84,agpr=112)
if __name__=='__main__':
    t='.amdgcn_target "amdgcn-amd-amdhsa--gfx950"\n'+d_kernel('d_kernel')
    open('d.s','w').write(t)
```

```python
from common import *
from ln import fbits
FFT_LDS=16384
def fft_kernel(name, stflags=''):
    a=Asm(); a.l.append(head(name)); ex=name+'_exit'
    a(f'''s_cmp_ge_u32 s2, 225
    s_cbranch_scc1 {ex}
    s_load_dwordx2 s[4:5], s[0:1], {KA['ws']}
    v_lshrrev_b32 v1, 6, v0
    v_and_b32 v0, 63, v0
    s_mov_b32 s18, s2
    v_readfirstlane_b32 s17, v1
    s_waitcnt lgkmcnt(0)''')
    srd(a,8,4,0x10000000)
    fft_body(a,18,stflags)
    a(f's_waitcnt vmcnt(0)\n{ex}:\ns_endpgm')
    return a.text()+kd(name,vgpr=168)
def fft_body(a, S_F, stflags='', wait=None):
    S_W=17; TS=24
    VL=1; VTR=2; VW=3; VST=4; T=5
    C64=12; S64=20; N64=28; C32=36; S32=44; N32=52; TC=60; TSN=68
    WT=76
    XF=84
    Y=116
    BR=132; BI=136
    Z=140
    R=156
    a(f'v_lshlrev_b32 v{VL}, 4, v0')
    def ft_dma():
        a(f'''s_lshl_b32 s{TS}, s{S_F}, 12
        s_lshl_b32 s{TS+1}, s{S_W}, 10
        s_add_u32 s{TS+2}, s{TS}, s{TS+1}
        s_add_u32 s{TS+2}, s{TS+2}, {ws.FT}
        s_mov_b32 m0, s{TS+1}
        s_add_u32 s{TS+3}, s{TS+2}, {225*4096}
        buffer_load_dwordx4 v{VL}, s[8:11], s{TS+2} offen lds
        s_add_u32 m0, s{TS+1}, 4096
        s_nop 0
        buffer_load_dwordx4 v{VL}, s[8:11], s{TS+3} offen lds''')
    if wait is None: ft_dma()
    a(f'''s_lshl_b32 s{TS+4}, s{S_F}, 13
    s_lshl_b32 s{TS+5}, s{S_W}, 11
    s_add_u32 s{TS+4}, s{TS+4}, s{TS+5}
    s_add_u32 s{TS+4}, s{TS+4}, {ws.WT}
    buffer_load_dwordx4 v[{WT}:{WT+3}], v{VL}, s[8:11], s{TS+4} offen
    buffer_load_dwordx4 v[{WT+4}:{WT+7}], v{VL}, s[8:11], s{TS+4} offen offset:1024''')
    a(f'''v_and_b32 v{T}, 15, v0
    v_lshrrev_b32 v{T+1}, 4, v0
    s_lshl_b32 s{TS+5}, s{S_W}, 4
    v_add_u32 v{T+2}, s{TS+5}, v{T}
    v_cvt_f32_u32 v{T+3}, v{T+2}
    v_cvt_f32_u32 v{T+4}, v{T+1}
    v_cvt_f32_u32 v{T+5}, v{T}''')
    def trig(dstc, dsts, n, revs):
        for i in range(0,n,2):
            for k in range(2):
                for x in revs[i+k]: a(x.replace('@',f'v{R+k}'))
                a(f'v_fract_f32 v{R+k}, v{R+k}')
            a(f'''v_cos_f32 v{R+2}, v{R}
            v_cos_f32 v{R+3}, v{R+1}
            v_sin_f32 v{R+4}, v{R}
            v_sin_f32 v{R+5}, v{R+1}''')
            if dstc is None: continue
            a(f's_nop 0\nv_cvt_pk_bf16_f32 v{dstc+i//2}, v{R+2}, v{R+3}\nv_cvt_pk_bf16_f32 v{dsts+i//2}, v{R+4}, v{R+5}')
    a(f'''v_mul_f32 v{T+6}, {hex(fbits(1/64.))}, v{T+3}
    v_mul_f32 v{R+6}, 8.0, v{T+4}'''.replace('8.0',hex(fbits(8.0))))
    revs=[]
    for kh in range(2):
        for u in range(8):
            revs.append([f'v_add_f32 @, {hex(fbits(float(32*kh+u)))}, v{R+6}', f'v_mul_f32 @, @, v{T+6}'])
    trig(C64,S64,16,revs)
    for i in range(8): a(f'v_xor_b32 v{N64+i}, 0x80008000, v{S64+i}')
    a(f'v_mul_f32 v{R+6}, 4.0, v{T+4}')
    revs=[]
    for t2 in range(2):
        for u in range(8):
            revs.append([f'v_add_f32 @, {hex(fbits(float(16*(u>>2)+(u&3))))}, v{R+6}', f'v_add_f32 v{R+7}, {hex(fbits(float(16*t2)))}, v{T+5}', f'v_mul_f32 @, @, v{R+7}', f'v_mul_f32 @, {hex(fbits(1/32.))}, @'])
    trig(C32,S32,16,revs)
    for i in range(8): a(f'v_xor_b32 v{N32+i}, 0x80008000, v{S32+i}')
    a(f'v_mul_f32 v{T+6}, {hex(fbits(1/2048.))}, v{T+3}')
    for t in range(2):
        for r in range(4):
            i=4*t+r
            a(f'''v_add_f32 v{R}, {hex(fbits(float(16*t+r)))}, v{R+6}
            v_mul_f32 v{R}, v{R}, v{T+6}
            v_cos_f32 v{TC+i}, v{R}
            v_sin_f32 v{TSN+i}, v{R}''')
    a(f'''v_lshlrev_b32 v{VTR}, 9, v{T+1}
    v_lshrrev_b32 v{R}, 2, v{T}
    v_lshlrev_b32 v{R}, 6, v{R}
    v_and_b32 v{R+1}, 3, v0
    v_lshlrev_b32 v{R+1}, 3, v{R+1}
    v_add3_u32 v{VTR}, v{VTR}, v{R}, v{R+1}
    v_lshlrev_b32 v{VW}, 6, v{T+2}
    v_lshlrev_b32 v{R}, 3, v{T+1}
    v_add_u32 v{VW}, v{VW}, v{R}
    v_lshlrev_b32 v{VST}, 6, v{T+2}
    v_and_b32 v{R}, 1, v{T+1}
    v_lshlrev_b32 v{R}, 5, v{R}
    v_lshrrev_b32 v{R+1}, 1, v{T+1}
    v_lshlrev_b32 v{R+1}, 4, v{R+1}
    v_add3_u32 v{VST}, v{VST}, v{R}, v{R+1}''')
    if wait is None: a('s_waitcnt vmcnt(2)\ns_barrier')
    else:
        wait(); ft_dma(); a('s_waitcnt vmcnt(0)\ns_barrier')
    def xf(c,t,kh): return XF+16*c+8*t+4*kh
    def trreads(base):
        for c in range(2):
            for t in range(2):
                for kh in range(2):
                    for h in range(2):
                        r=xf(c,t,kh)+2*h
                        a(f'ds_read_b64_tr_b16 v[{r}:{r+1}], v{VTR} offset:{base+c*4096+kh*2048+h*256+t*32}')
    def y(c,t): return Y+8*c+4*t
    def dft64(Stab_re, Stab_im):
        first=set()
        for kh in range(2):
            for t in range(2):
                for c in range(2):
                    d=y(c,t); cc='0' if kh==0 else f'v[{d}:{d+3}]'
                    a(f'v_mfma_f32_16x16x32_bf16 v[{d}:{d+3}], v[{xf(c,t,kh)}:{xf(c,t,kh)+3}], v[{C64+4*kh}:{C64+4*kh+3}], {cc}')
        for kh in range(2):
            for t in range(2):
                for c in range(2):
                    d=y(c,t); tab=(Stab_re if c==0 else Stab_im)+4*kh
                    a(f'v_mfma_f32_16x16x32_bf16 v[{d}:{d+3}], v[{xf(1-c,t,kh)}:{xf(1-c,t,kh)+3}], v[{tab}:{tab+3}], v[{d}:{d+3}]')
    trreads(0)
    a('s_waitcnt lgkmcnt(0)')
    dft64(S64,N64)
    a('s_nop 7')
    def twiddle(src, sign, outre, outim):
        for t in range(2):
            for r in range(4):
                i=4*t+r; ar_=src+4*t+r; ai=src+8+4*t+r
                a(f'''v_mul_f32 v{R}, v{ar_}, v{TC+i}
                v_mul_f32 v{R+1}, v{ai}, v{TC+i}''')
                if sign<0:
                    a(f'v_fma_f32 v{R}, v{ai}, v{TSN+i}, v{R}\nv_fma_f32 v{ai}, -v{ar_}, v{TSN+i}, v{R+1}\nv_mov_b32 v{ar_}, v{R}')
                else:
                    a(f'v_fma_f32 v{R}, -v{ai}, v{TSN+i}, v{R}\nv_fma_f32 v{ai}, v{ar_}, v{TSN+i}, v{R+1}\nv_mov_b32 v{ar_}, v{R}')
    def pack(src, br, bi):
        for c,b in ((0,br),(1,bi)):
            for t in range(2):
                q=src+8*c+4*t
                a(f'v_cvt_pk_bf16_f32 v{b+2*t}, v{q}, v{q+1}\nv_cvt_pk_bf16_f32 v{b+2*t+1}, v{q+2}, v{q+3}')
    twiddle(Y,-1,None,None)
    pack(Y,BR,BI)
    for i in range(8): a(f'v_mul_f32 v{TC+i}, {hex(fbits(1/2048.))}, v{TC+i}\nv_mul_f32 v{TSN+i}, {hex(fbits(1/2048.))}, v{TSN+i}')
    def dft32(dst, Sre, Sim):
        for t in range(2):
            for c in range(2):
                d=dst+8*c+4*t; b=BR if c==0 else BI
                a(f'v_mfma_f32_16x16x32_bf16 v[{d}:{d+3}], v[{C32+4*t}:{C32+4*t+3}], v[{b}:{b+3}], 0')
        for t in range(2):
            for c in range(2):
                d=dst+8*c+4*t; b=BI if c==0 else BR; tab=(Sre if c==0 else Sim)+4*t
                a(f'v_mfma_f32_16x16x32_bf16 v[{d}:{d+3}], v[{tab}:{tab+3}], v[{b}:{b+3}], v[{d}:{d+3}]')
    dft32(Z,S32,N32)
    a('s_waitcnt vmcnt(0)\ns_nop 6')
    for t in range(2):
        for r in range(4):
            xr=Z+4*t+r; xi=Z+8+4*t+r; w=WT+4*t+r
            a(f'''v_lshlrev_b32 v{R}, 16, v{w}
            v_and_b32 v{R+1}, 0xffff0000, v{w}
            v_mul_f32 v{R+2}, v{xr}, v{R}
            v_mul_f32 v{R+3}, v{xi}, v{R}
            v_fma_f32 v{R+2}, -v{xi}, v{R+1}, v{R+2}
            v_fma_f32 v{xi}, v{xr}, v{R+1}, v{R+3}
            v_mov_b32 v{xr}, v{R+2}''')
    pack(Z,BR,BI)
    a('s_nop 1')
    dft32(Y,N32,S32)
    a('s_nop 7')
    twiddle(Y,+1,None,None)
    pack(Y,BR,BI)
    for c,b in ((0,BR),(1,BI)):
        for t in range(2):
            a(f'ds_write_b64 v{VW}, v[{b+2*t}:{b+2*t+1}] offset:{8192+c*4096+t*32}')
    a('s_waitcnt lgkmcnt(0)\ns_barrier')
    trreads(8192)
    a('s_waitcnt lgkmcnt(0)')
    dft64(N64,S64)
    a(f'''s_lshl_b32 s{TS}, s{S_F}, 12
    s_add_u32 s{TS}, s{TS}, {ws.GT}
    s_add_u32 s{TS+1}, s{TS}, {225*4096}
    s_nop 5''')
    for c in range(2):
        o=BR if c==0 else BI; t0=y(c,0); t1=y(c,1)
        a(f'''v_cvt_pk_bf16_f32 v{o}, v{t0}, v{t0+1}
        v_cvt_pk_bf16_f32 v{o+1}, v{t0+2}, v{t0+3}
        v_cvt_pk_bf16_f32 v{o+2}, v{t1}, v{t1+1}
        v_cvt_pk_bf16_f32 v{o+3}, v{t1+2}, v{t1+3}
        s_nop 1
        v_permlane16_swap_b32 v{o}, v{o+2}
        v_permlane16_swap_b32 v{o+1}, v{o+3}
        buffer_store_dwordx4 v[{o}:{o+3}], v{VST}, s[8:11], s{TS+c} offen {stflags}''')
if __name__=='__main__':
    t='.amdgcn_target "amdgcn-amd-amdhsa--gfx950"\n'+fft_kernel('fft_kernel')
    open('fft.s','w').write(t)
```

```python
from common import *
import struct
def fbits(x): return struct.unpack('<I',struct.pack('<f',x))[0]
def load_ptr_srd(a, karg, s, nbytes, tmp=4):
    a(f's_load_dwordx2 s[{tmp}:{tmp+1}], s[0:1], {KA[karg]}')
    return lambda: srd(a,s,tmp,nbytes)

def reduce32(a, s, t):
    a('s_nop 1')
    for r in (8,4,2,1):
        a(f'v_add_f32_dpp v{s}, v{s}, v{s} row_ror:{r} row_mask:0xf bank_mask:0xf')
        a('s_nop 1')
    a(f'v_mov_b32 v{t}, v{s}\ns_nop 1\nv_permlane16_swap_b32 v{s}, v{t}\nv_add_f32 v{s}, v{s}, v{t}')

def ln_core(a, X, F, T, s_mask, s_act, packed=True):
    if packed:
        for i in range(8):
            a(f'v_lshlrev_b32 v{F+2*i}, 16, v{X+i}\nv_and_b32 v{F+2*i+1}, s{s_mask}, v{X+i}')
    a(f'''v_pk_add_f32 v[{T}:{T+1}], v[{F}:{F+1}], v[{F+2}:{F+3}]
    v_pk_add_f32 v[{T+2}:{T+3}], v[{F+4}:{F+5}], v[{F+6}:{F+7}]
    v_pk_add_f32 v[{T+4}:{T+5}], v[{F+8}:{F+9}], v[{F+10}:{F+11}]
    v_pk_add_f32 v[{T+6}:{T+7}], v[{F+12}:{F+13}], v[{F+14}:{F+15}]
    v_pk_add_f32 v[{T}:{T+1}], v[{T}:{T+1}], v[{T+2}:{T+3}]
    v_pk_add_f32 v[{T+4}:{T+5}], v[{T+4}:{T+5}], v[{T+6}:{T+7}]
    v_pk_add_f32 v[{T}:{T+1}], v[{T}:{T+1}], v[{T+4}:{T+5}]
    v_add_f32 v{T}, v{T}, v{T+1}''')
    reduce32(a,T,T+1)
    a(f'''v_mul_f32 v{T}, {hex(fbits(1/448.0))}, v{T}
    v_cndmask_b32 v{T+2}, 0, v{T}, s[{s_act}:{s_act+1}]''')
    for i in range(8):
        t=X+2*(i&3) if X%2==0 else None
        acc=T+4+2*(i&1)
        a(f'v_pk_add_f32 v[{t}:{t+1}], v[{F+2*i}:{F+2*i+1}], v[{T+2}:{T+3}] op_sel_hi:[1,0] neg_lo:[0,1] neg_hi:[0,1]')
        if i<2: a(f'v_pk_mul_f32 v[{acc}:{acc+1}], v[{t}:{t+1}], v[{t}:{t+1}]')
        else: a(f'v_pk_fma_f32 v[{acc}:{acc+1}], v[{t}:{t+1}], v[{t}:{t+1}], v[{acc}:{acc+1}]')
    a(f'''v_pk_add_f32 v[{T+4}:{T+5}], v[{T+4}:{T+5}], v[{T+6}:{T+7}]
    v_add_f32 v{T+4}, v{T+4}, v{T+5}''')
    reduce32(a,T+4,T+5)
    a(f'''v_mul_f32 v{T+4}, {hex(fbits(1/448.0))}, v{T+4}
    v_cvt_pk_bf16_f32 v{T}, v{T}, v{T}
    v_cvt_pk_bf16_f32 v{T+4}, v{T+4}, v{T+4}
    v_and_b32 v{T}, s{s_mask}, v{T}
    v_and_b32 v{T+4}, s{s_mask}, v{T+4}
    v_add_f32 v{T+4}, {hex(fbits(1e-5))}, v{T+4}
    v_cvt_pk_bf16_f32 v{T+4}, v{T+4}, v{T+4}
    v_and_b32 v{T+4}, s{s_mask}, v{T+4}
    v_sqrt_f32 v{T+4}, v{T+4}
    s_nop 0
    v_cvt_pk_bf16_f32 v{T+4}, v{T+4}, v{T+4}
    v_and_b32 v{T+4}, s{s_mask}, v{T+4}
    v_rcp_f32 v{T+4}, v{T+4}
    s_nop 0''')
    for i in range(8):
        f=F+2*i
        a(f'''v_pk_add_f32 v[{f}:{f+1}], v[{f}:{f+1}], v[{T}:{T+1}] op_sel_hi:[1,0] neg_lo:[0,1] neg_hi:[0,1]
        v_cvt_pk_bf16_f32 v{X+i}, v{f}, v{f+1}''')
    for i in range(8):
        f=F+2*i
        a(f'''v_lshlrev_b32 v{f}, 16, v{X+i}
        v_and_b32 v{f+1}, s{s_mask}, v{X+i}
        v_pk_mul_f32 v[{f}:{f+1}], v[{f}:{f+1}], v[{T+4}:{T+5}] op_sel_hi:[1,0]''')
    for i in range(8):
        f=F+2*i
        a(f'v_cvt_pk_bf16_f32 v{X+i}, v{f}, v{f+1}')

def ln_multi(a, insts, s_mask, s_act):
    ls=[]
    for X,F,T in insts:
        b=Asm(); ln_core(b,X,F,T,s_mask,s_act); ls.append([x for x in b.l if not (len(insts)>=3 and x.startswith('s_nop'))])
    n=max(len(l) for l in ls)
    for i in range(n):
        for l in ls:
            if i<len(l): a(l[i])

RS=912
def emit_images(a, LR, s_wave, s_seg, s_iota, tv, ts, srd_ws=8, st=''):
    V=tv; D=tv+8
    a(f'''v_and_b32 v{V}, 1, v0
    v_lshrrev_b32 v{V+1}, 1, v0
    v_and_b32 v{V+1}, 1, v{V+1}
    v_lshlrev_b32 v{V+1}, 3, v{V+1}
    v_add_u32 v{V}, v{V}, v{V+1}
    v_lshrrev_b32 v{V+1}, 2, v0
    v_and_b32 v{V+1}, 1, v{V+1}
    v_lshlrev_b32 v{V+1}, 2, v{V+1}
    v_add_u32 v{V}, v{V}, v{V+1}
    v_lshrrev_b32 v{V+1}, 3, v0
    v_and_b32 v{V+1}, 1, v{V+1}
    v_lshlrev_b32 v{V+1}, 1, v{V+1}
    v_add_u32 v{V}, v{V}, v{V+1}
    v_mul_u32_u24 v{V}, {RS}, v{V}
    s_mul_i32 s{ts}, s{s_wave}, 224
    s_add_u32 s{ts}, s{ts}, {LR}
    v_lshrrev_b32 v{V+1}, 4, v0
    v_lshlrev_b32 v{V+2}, 4, v{V+1}
    v_add3_u32 v{V+2}, v{V}, v{V+2}, s{ts}
    v_lshlrev_b32 v{V+3}, 3, v{V+1}
    v_add3_u32 v{V+3}, v{V}, v{V+3}, s{ts}''')
    for j in range(3): a(f'ds_read_b128 v[{D+4*j}:{D+4*j+3}], v{V+2} offset:{64*j}')
    a(f'ds_read_b64 v[{D+12}:{D+13}], v{V+3} offset:192')
    a(f'''s_mul_i32 s{ts}, s{s_seg}, 28672
    s_mul_i32 s{ts+1}, s{s_wave}, 7168
    s_add_u32 s{ts}, s{ts}, s{ts+1}
    s_add_u32 s{ts}, s{ts}, {ws.XK}
    s_mul_i32 s{ts+1}, s{s_iota}, 3072
    s_add_u32 s{ts+1}, s{ts+1}, s{ts}
    s_lshl_b32 s{ts+2}, s{s_iota}, 9
    s_add_u32 s{ts+2}, s{ts+2}, s{ts}
    s_add_u32 s{ts+2}, s{ts+2}, 6144
    v_lshlrev_b32 v{V+4}, 4, v0
    v_lshlrev_b32 v{V+5}, 3, v0''')
    for j in range(3):
        a(f's_waitcnt lgkmcnt({3-j})\nbuffer_store_dwordx4 v[{D+4*j}:{D+4*j+3}], v{V+4}, s[{srd_ws}:{srd_ws+3}], s{ts+1} offen offset:{1024*j} {st}')
    a(f's_waitcnt lgkmcnt(0)\nbuffer_store_dwordx2 v[{D+12}:{D+13}], v{V+5}, s[{srd_ws}:{srd_ws+3}], s{ts+2} offen {st}')
    a(f'''v_and_b32 v{V}, 7, v0
    v_lshrrev_b32 v{V+1}, 2, v{V}
    v_lshlrev_b32 v{V+1}, 2, v{V+1}
    v_and_b32 v{V+2}, 3, v0
    v_add_u32 v{V+1}, v{V+1}, v{V+2}
    v_mul_u32_u24 v{V+1}, {RS}, v{V+1}
    v_lshrrev_b32 v{V+2}, 5, v0
    v_lshlrev_b32 v{V+3}, 6, v{V+2}
    v_add_u32 v{V+1}, v{V+1}, v{V+3}
    v_lshrrev_b32 v{V+3}, 4, v0
    v_and_b32 v{V+3}, 1, v{V+3}
    v_lshlrev_b32 v{V+3}, 5, v{V+3}
    v_add_u32 v{V+1}, v{V+1}, v{V+3}
    v_lshrrev_b32 v{V+3}, 3, v0
    v_and_b32 v{V+3}, 1, v{V+3}
    v_lshlrev_b32 v{V+3}, 3, v{V+3}
    v_add3_u32 v{V+1}, v{V+1}, v{V+3}, {LR}''' if LR<=64 else f'''v_and_b32 v{V}, 7, v0
    v_lshrrev_b32 v{V+1}, 2, v{V}
    v_lshlrev_b32 v{V+1}, 2, v{V+1}
    v_and_b32 v{V+2}, 3, v0
    v_add_u32 v{V+1}, v{V+1}, v{V+2}
    v_mul_u32_u24 v{V+1}, {RS}, v{V+1}
    v_lshrrev_b32 v{V+2}, 5, v0
    v_lshlrev_b32 v{V+3}, 6, v{V+2}
    v_add_u32 v{V+1}, v{V+1}, v{V+3}
    v_lshrrev_b32 v{V+3}, 4, v0
    v_and_b32 v{V+3}, 1, v{V+3}
    v_lshlrev_b32 v{V+3}, 5, v{V+3}
    v_add_u32 v{V+1}, v{V+1}, v{V+3}
    v_lshrrev_b32 v{V+3}, 3, v0
    v_and_b32 v{V+3}, 1, v{V+3}
    v_lshlrev_b32 v{V+3}, 3, v{V+3}
    v_add_u32 v{V+1}, v{V+1}, v{V+3}
    v_add_u32 v{V+1}, {LR}, v{V+1}''')
    a(f'''v_lshlrev_b32 v{V+2}, 10, v{V+2}
    v_lshrrev_b32 v{V+3}, 3, v0
    v_and_b32 v{V+3}, 3, v{V+3}
    v_lshlrev_b32 v{V+3}, 8, v{V+3}
    v_lshlrev_b32 v{V}, 4, v{V}
    v_add3_u32 v{V+2}, v{V+2}, v{V+3}, v{V}
    s_lshl_b32 s{ts+1}, s{s_iota}, 7
    v_add_u32 v{V+2}, s{ts+1}, v{V+2}
    s_mul_i32 s{ts}, s{s_seg}, 28672
    s_add_u32 s{ts}, s{ts}, {ws.XT}''')
    for n in range(4):
        lskip=a.lab('xt')
        a(f'''s_add_u32 s{ts+1}, s{s_wave}, {4*n}''')
        if n==3: a(f's_cmp_ge_u32 s{ts+1}, 14\ns_cbranch_scc1 {lskip}')
        a(f'''s_cmp_ge_u32 s{ts+1}, 7
        s_cselect_b32 s{ts+2}, {8*RS-7*128}, 0
        s_lshl_b32 s{ts+3}, s{ts+1}, 7
        s_add_u32 s{ts+2}, s{ts+2}, s{ts+3}
        v_add_u32 v{V+3}, s{ts+2}, v{V+1}
        s_lshl_b32 s{ts+1}, s{ts+1}, 11
        s_add_u32 s{ts+1}, s{ts+1}, s{ts}
        ds_read2_b32 v[{D+16+0}:{D+16+1}], v{V+3} offset0:0 offset1:4
        ds_read2_b32 v[{D+16+2}:{D+16+3}], v{V+3} offset0:1 offset1:5
        s_waitcnt lgkmcnt(0)
        buffer_store_dwordx4 v[{D+16}:{D+19}], v{V+2}, s[{srd_ws}:{srd_ws+3}], s{ts+1} offen {st}
        s_nop 1
        {lskip}:''')

def init_stores(a, sid, S_W, TS):
    lp=a.lab('np')
    a(f'''s_cmp_ge_u32 {sid}, 17
    s_cbranch_scc1 {lp}
    s_lshl_b32 s{TS}, {sid}, 12
    s_lshl_b32 s{TS+1}, s{S_W}, 10
    s_add_u32 s{TS}, s{TS}, s{TS+1}
    s_add_u32 s{TS}, s{TS}, {ws.MR}
    v_lshlrev_b32 v5, 4, v0
    v_mov_b32 v60, -1
    v_mov_b32 v61, -1
    v_mov_b32 v62, -1
    v_mov_b32 v63, -1
    buffer_store_dwordx4 v[60:63], v5, s[8:11], s{TS} offen
    {lp}:''')
    a(f'''s_lshl_b32 s{TS}, {sid}, 8
    s_lshl_b32 s{TS+1}, s{S_W}, 6
    s_add_u32 s{TS}, s{TS}, s{TS+1}
    v_add_u32 v5, s{TS}, v0
    v_mov_b32 v60, {63*448}
    v_cmp_gt_u32 vcc, v60, v5
    v_lshlrev_b32 v5, 4, v5
    v_mov_b32 v61, 0x10000000
    v_mov_b32 v60, -1
    v_cndmask_b32 v5, v61, v5, vcc
    v_mov_b32 v61, -1
    v_mov_b32 v62, -1
    v_mov_b32 v63, -1
    s_mov_b32 s{TS}, {ws.MA+7168}
    buffer_store_dwordx4 v[60:63], v5, s[8:11], s{TS} offen''')
    lz=a.lab('nz')
    a(f'''s_sub_u32 s{TS}, {sid}, 17
    s_cmp_ge_u32 s{TS}, 16
    s_cbranch_scc1 {lz}
    s_lshl_b32 s{TS}, s{TS}, 12
    s_lshl_b32 s{TS+1}, s{S_W}, 10
    s_add_u32 s{TS}, s{TS}, s{TS+1}
    s_add_u32 s{TS}, s{TS}, {ws.FLG}
    v_lshlrev_b32 v5, 4, v0
    v_mov_b32 v60, 0
    v_mov_b32 v61, 0
    v_mov_b32 v62, 0
    v_mov_b32 v63, 0
    buffer_store_dwordx4 v[60:63], v5, s[8:11], s{TS} offen
    {lz}:''')

def ln_om(a, S_SEG, S_IO, src, S_W=17):
    S_MASK=20; S_ACT=22; TS=24
    a(f'''s_mov_b32 s{S_MASK}, 0xffff0000
    v_and_b32 v2, 31, v0
    v_cmp_gt_u32 s[{S_ACT}:{S_ACT+1}], 28, v2
    s_lshl_b32 s{TS}, s{S_SEG}, 5
    s_lshl_b32 s{TS+1}, s{S_IO}, 4
    s_add_u32 s{TS}, s{TS}, s{TS+1}
    s_lshl_b32 s{TS+1}, s{S_W}, 2
    s_add_u32 s{TS}, s{TS}, s{TS+1}
    v_lshrrev_b32 v3, 5, v0
    v_add_u32 v4, s{TS}, v3
    v_mul_u32_u24 v4, 896, v4
    v_lshlrev_b32 v5, 5, v2
    v_add_u32 v4, v4, v5
    v_mov_b32 v6, 0x10000000
    v_cndmask_b32 v4, v6, v4, s[{S_ACT}:{S_ACT+1}]
    v_add_u32 v7, s{TS+1}, v3
    v_mul_u32_u24 v7, {RS}, v7
    v_add_u32 v7, v7, v5
    s_mov_b32 s{TS+3}, {src}''')
    for it in range(2):
        a(f'buffer_load_dwordx4 v[{8+8*it}:{11+8*it}], v4, s[8:11], s{TS+3} offen offset:{it*1792} sc1')
        a(f'buffer_load_dwordx4 v[{12+8*it}:{15+8*it}], v4, s[8:11], s{TS+3} offen offset:{it*1792+16} sc1')
    a('s_waitcnt vmcnt(0)')
    b=Asm()
    ls=[]
    for it in range(2):
        c=Asm(); ln_core(c,8+8*it,24+16*it,56+8*it,S_MASK,S_ACT); ls.append(c.l)
    for i in range(max(len(l) for l in ls)):
        for l in ls:
            if i<len(l): a(l[i])
    a(f's_mov_b64 s[{TS}:{TS+1}], exec\ns_mov_b64 exec, s[{S_ACT}:{S_ACT+1}]')
    for it in range(2):
        a(f'ds_write_b128 v7, v[{8+8*it}:{11+8*it}] offset:{it*2*RS}')
        a(f'ds_write_b128 v7, v[{12+8*it}:{15+8*it}] offset:{it*2*RS+16}')
    a(f's_mov_b64 exec, s[{TS}:{TS+1}]\ns_waitcnt lgkmcnt(0)\ns_barrier')
    emit_images(a,0,S_W,S_SEG,S_IO,8,TS,st='sc1')

LN_LDS=16*RS
def ln_kernel(name, src, init=True):
    a=Asm(); a.l.append(head(name)); ex=name+'_exit'
    S_W=17; S_SEG=18; S_IO=19; S_MASK=20; S_ACT=22; TS=24
    a(f'''s_cmp_ge_u32 s2, 128
    s_cbranch_scc1 {ex}
    s_load_dwordx2 s[4:5], s[0:1], {KA['ws']}
    s_load_dwordx2 s[6:7], s[0:1], {KA['x']}
    v_lshrrev_b32 v1, 6, v0
    v_and_b32 v0, 63, v0
    s_lshr_b32 s{S_SEG}, s2, 1
    s_and_b32 s{S_IO}, s2, 1
    v_readfirstlane_b32 s{S_W}, v1
    s_mov_b32 s{S_MASK}, 0xffff0000
    v_and_b32 v2, 31, v0
    v_cmp_gt_u32 s[{S_ACT}:{S_ACT+1}], 28, v2
    s_waitcnt lgkmcnt(0)''')
    srd(a,8,4,0x10000000)
    if src=='x': srd(a,12,6,1835008); so='0'
    else:
        srd(a,12,4,0x10000000); so=f's{TS+3}'; a(f's_mov_b32 s{TS+3}, {src}')
    a(f'''s_lshl_b32 s{TS}, s2, 4
    s_lshl_b32 s{TS+1}, s{S_W}, 2
    s_add_u32 s{TS}, s{TS}, s{TS+1}
    v_lshrrev_b32 v3, 5, v0
    v_add_u32 v4, s{TS}, v3
    v_mul_u32_u24 v4, 896, v4
    v_lshlrev_b32 v5, 5, v2
    v_add_u32 v4, v4, v5
    v_mov_b32 v6, 0x10000000
    v_cndmask_b32 v4, v6, v4, s[{S_ACT}:{S_ACT+1}]
    v_add_u32 v7, s{TS+1}, v3
    v_mul_u32_u24 v7, {RS}, v7
    v_add_u32 v7, v7, v5''')
    for it in range(2):
        a(f'buffer_load_dwordx4 v[{8+8*it}:{11+8*it}], v4, s[12:15], {so} offen offset:{it*1792}')
        a(f'buffer_load_dwordx4 v[{12+8*it}:{15+8*it}], v4, s[12:15], {so} offen offset:{it*1792+16}')
    if init: init_stores(a,'s2',S_W,TS)
    for it in range(2):
        a(f's_waitcnt vmcnt({2 if it==0 else 0})') if False else None
    a('s_waitcnt vmcnt(0)')
    for it in range(2):
        ln_core(a, 8+8*it, 24, 40, S_MASK, S_ACT)
    a(f's_mov_b64 s[{TS}:{TS+1}], exec\ns_mov_b64 exec, s[{S_ACT}:{S_ACT+1}]')
    for it in range(2):
        a(f'ds_write_b128 v7, v[{8+8*it}:{11+8*it}] offset:{it*2*RS}')
        a(f'ds_write_b128 v7, v[{12+8*it}:{15+8*it}] offset:{it*2*RS+16}')
    a(f's_mov_b64 exec, s[{TS}:{TS+1}]\ns_waitcnt lgkmcnt(0)\ns_barrier')
    emit_images(a,0,S_W,S_SEG,S_IO,8,TS)
    a(f's_waitcnt vmcnt(0)\n{ex}:\ns_endpgm')
    return a.text()+kd(name,vgpr=64)
if __name__=='__main__':
    t='.amdgcn_target "amdgcn-amd-amdhsa--gfx950"\n'+ln_kernel('ln_kernel','x')
    open('ln.s','w').write(t)
```

```python
from asm import *
from lay import ws
NROLE=30
S_WS=8; S_DBG=12
S_ROLE=16; S_WAVE=17; S_STEP=18; S_LIM=19; S_MODE=20
S_T0=21; S_T1=22; S_T2=23; S_T3=24; S_T4=25; S_T5=26; S_T6=27
S_CNT=28
POLL_LIM=20000

def prologue(a, nwg, exitlab):
    a(f'''s_cmp_ge_u32 s2, {nwg}
    s_cbranch_scc1 {exitlab}
    s_load_dwordx2 s[4:5], s[0:1], 96
    s_load_dwordx2 s[6:7], s[0:1], 88
    v_lshrrev_b32 v1, 6, v0
    v_and_b32 v0, 63, v0
    s_waitcnt lgkmcnt(0)
    v_readfirstlane_b32 s{S_WAVE}, v1
    s_mov_b32 s8, s4
    s_mov_b32 s9, s5
    s_mov_b32 s10, 0x10000000
    s_mov_b32 s11, 0x00020000
    s_mov_b32 s12, s6
    s_mov_b32 s13, s7
    s_mov_b32 s14, 256
    s_mov_b32 s15, 0x00020000''')

def election(a, lds_role, nrole=NROLE):
    L=a.lab
    l_w, l_nocas, l_poll, l_got, l_glob, l_fin, l_none, l_wr = [L('el') for _ in range(8)]
    a(f'''s_cmp_lg_u32 s{S_WAVE}, 0
    s_cbranch_scc1 {l_w}
    s_getreg_b32 s{S_T0}, hwreg(HW_REG_XCC_ID,0,4)
    s_mov_b64 exec, 1
    s_lshl_b32 s{S_T1}, s{S_T0}, 2
    v_mov_b32 v2, s{S_T1}
    v_mov_b32 v3, 1
    v_mov_b32 v6, 64
    buffer_atomic_add v3, v2, s[12:15], 0 offen sc0 sc1
    s_add_u32 s{S_T0}, s{S_T0}, 1
    s_waitcnt vmcnt(0)
    v_readfirstlane_b32 s{S_T2}, v3
    s_nop 3
    s_cmp_lg_u32 s{S_T2}, {nrole-1}
    s_cbranch_scc1 {l_nocas}
    v_mov_b32 v4, s{S_T0}
    v_mov_b32 v5, 0
    buffer_atomic_cmpswap v[4:5], v6, s[12:15], 0 offen sc0 sc1
    s_waitcnt vmcnt(0)
    {l_nocas}:
    s_mov_b32 s{S_CNT}, 200
    {l_poll}:
    buffer_load_dword v4, v6, s[12:15], 0 offen sc0 sc1
    s_waitcnt vmcnt(0)
    v_readfirstlane_b32 s{S_T3}, v4
    s_nop 3
    s_cmp_lg_u32 s{S_T3}, 0
    s_cbranch_scc1 {l_got}
    s_sub_u32 s{S_CNT}, s{S_CNT}, 1
    s_cbranch_scc0 {l_poll}
    v_mov_b32 v4, 100
    v_mov_b32 v5, 0
    buffer_atomic_cmpswap v[4:5], v6, s[12:15], 0 offen sc0 sc1
    s_waitcnt vmcnt(0)
    v_readfirstlane_b32 s{S_T3}, v4
    s_nop 3
    s_cmp_lg_u32 s{S_T3}, 0
    s_cbranch_scc1 {l_got}
    s_mov_b32 s{S_T3}, 100
    {l_got}:
    s_cmp_eq_u32 s{S_T3}, 100
    s_cbranch_scc1 {l_glob}
    s_cmp_lg_u32 s{S_T3}, s{S_T0}
    s_cbranch_scc1 {l_none}
    s_mov_b32 s{S_T4}, s{S_T2}
    s_branch {l_fin}
    {l_glob}:
    v_mov_b32 v3, 1
    v_mov_b32 v6, 68
    buffer_atomic_add v3, v6, s[12:15], 0 offen sc0 sc1
    s_waitcnt vmcnt(0)
    v_readfirstlane_b32 s{S_T4}, v3
    s_nop 3
    s_min_u32 s{S_T4}, s{S_T4}, 255
    s_or_b32 s{S_T4}, s{S_T4}, 0x100
    s_branch {l_fin}
    {l_none}:
    s_mov_b32 s{S_T4}, 255
    {l_fin}:
    v_mov_b32 v2, {lds_role}
    v_mov_b32 v3, s{S_T4}
    ds_write_b32 v2, v3
    s_waitcnt lgkmcnt(0)
    s_mov_b64 exec, -1
    {l_w}:
    s_barrier
    v_mov_b32 v2, {lds_role}
    ds_read_b32 v3, v2
    s_waitcnt lgkmcnt(0)
    v_readfirstlane_b32 s{S_T4}, v3
    s_nop 3
    s_and_b32 s{S_ROLE}, s{S_T4}, 0xff
    s_lshr_b32 s{S_MODE}, s{S_T4}, 8''')

class DsTrack:
    def __init__(s,a): s.a=a; s.q=[]; s.done=0
    def note(s,tag): s.q.append(tag)
    def ds(s,ins,tag): s.a(ins); s.q.append(tag)
    def wait(s,tag):
        i=s.q.index(tag)+1
        if i<=s.done: return
        n=len(s.q)-i
        s.a(f's_waitcnt lgkmcnt({min(n,15)})'); s.done=max(i,len(s.q)-min(n,15))
def load_frags(a, nfr, dst, voff, soff, flags='nt'):
    for f in range(nfr):
        k,b=dst(f)
        for eta in range(2):
            r=(ar if k=='a' else vr)(b+4*eta,4)
            off=((2*f+eta)&3)*1024
            a(f'buffer_load_dwordx4 {r}, v{voff}, s[8:11], s{soff} offen offset:{off} {flags}' if off else f'buffer_load_dwordx4 {r}, v{voff}, s[8:11], s{soff} offen {flags}')
            if ((2*f+eta)&3)==3: a(f's_add_u32 s{soff}, s{soff}, 4096')

LITE={'s':(0,5,6),'v':(0,3,5,6)}
CUR=['s']
def stamp(a, prof, idx):
    if prof=='lite':
        if idx in LITE[CUR[0]]: a(f's_memrealtime s[{40+2*idx}:{41+2*idx}]')
        return
    if prof: a(f"{'s_memrealtime' if prof=='rt' else 's_memtime'} s[{40+2*idx}:{41+2*idx}]")
LS_PROF=LS_PROF0=78080
def prof_init(a, prof, vaddr):
    if not prof: return
    a(f'''s_lshl_b32 s{S_T0}, s{S_WAVE}, 11
    s_add_u32 s{S_T0}, s{S_T0}, {LS_PROF}
    v_lshlrev_b32 v2, 2, v0
    v_add_u32 v{vaddr}, s{S_T0}, v2
    v_mov_b32 v3, {LS_PROF+8192}
    v_cmp_gt_u32 vcc, 8, v0
    s_nop 1
    v_cndmask_b32 v{vaddr}, v3, v{vaddr}, vcc''')
def stamp_flush(a, prof, n, vtmp, vaddr=None):
    if not prof: return
    a('s_waitcnt lgkmcnt(0)')
    for i in range(n): a(f'v_writelane_b32 v{vtmp}, s{40+2*i}, {i}')
    a(f'''s_nop 0
    ds_write_b32 v{vaddr}, v{vtmp}
    v_cmp_gt_u32 vcc, 8, v0
    v_add_u32 v{vtmp}, 32, v{vaddr}
    s_nop 0
    v_cndmask_b32 v{vaddr}, v{vaddr}, v{vtmp}, vcc''')
def prof_dump(a, prof):
    if not prof: return
    a(f'''s_waitcnt lgkmcnt(0) vmcnt(0)
    s_lshl_b32 s{S_T0}, s{S_WAVE}, 11
    s_add_u32 s{S_T0}, s{S_T0}, {LS_PROF}
    v_lshlrev_b32 v2, 5, v0
    v_add_u32 v2, s{S_T0}, v2
    ds_read_b128 v[4:7], v2
    ds_read_b128 v[8:11], v2 offset:16
    s_lshl_b32 s{S_T0}, s{S_ROLE}, 2
    s_add_u32 s{S_T0}, s{S_T0}, s{S_WAVE}
    s_lshl_b32 s{S_T0}, s{S_T0}, 12
    s_add_u32 s{S_T0}, s{S_T0}, {ws.PROF}
    v_lshlrev_b32 v3, 6, v0
    s_waitcnt lgkmcnt(0)
    buffer_store_dwordx4 v[4:7], v3, s[8:11], s{S_T0} offen
    buffer_store_dwordx4 v[8:11], v3, s[8:11], s{S_T0} offen offset:16
    s_waitcnt vmcnt(0)''')

def poll_tail(a, lab_retry, lab_ok, vchk):
    a(f'''v_cmp_eq_u32 vcc, -1, v{vchk}
    s_cbranch_vccz {lab_ok}
    s_sub_u32 s{S_CNT}, s{S_CNT}, 1
    s_cbranch_scc0 {lab_retry}
    s_mov_b32 s{S_LIM}, 0
    {lab_ok}:''')

def hint_poll(a, vaddr, soff, regs, pw, sexp, gap='s_sleep 1'):
    lb=a.lab('hb'); lr=a.lab('hr')
    a(f's_cmp_lg_u32 s{S_WAVE}, {pw}\ns_cbranch_scc1 {lb}')
    n=len(regs)
    a(f's_mov_b32 s{S_CNT}, s{S_LIM}')
    for i,r in enumerate(regs):
        a(f'buffer_load_dword v{r}, v{vaddr}, s[8:11], s{soff} offen sc1')
        if i<n-1: a(gap)
    a(f'{lr}:')
    for i,r in enumerate(regs):
        a(f'''s_waitcnt vmcnt({n-1})
        v_cmp_gt_u32 vcc, s{sexp}, v{r}
        s_cbranch_vccz {lb}
        buffer_load_dword v{r}, v{vaddr}, s[8:11], s{soff} offen sc1''')
    a(f'''s_sub_u32 s{S_CNT}, s{S_CNT}, 1
    s_cbranch_scc0 {lr}
    s_mov_b32 s{S_LIM}, 0
    {lb}:
    s_barrier''')

def store2(a, txt, mode=None):
    if mode is not None:
        for t in txt: a(t+(' sc1' if mode else ''))
        return
    return store2_dyn(a,txt)
def store2_dyn(a, txt):
    l1=a.lab('st'); l2=a.lab('st')
    a(f's_cmp_lg_u32 s{S_MODE}, 0\ns_cbranch_scc1 {l1}')
    for t in txt: a(t)
    a(f's_branch {l2}\n{l1}:')
    for t in txt: a(t+' sc1')
    a(f'{l2}:')

LS_MX=0; LS_XK=8192; LS_T2=36864; LS_SB=51200; LS_SD=59392; LS_ROLE=77824
def score_role(a, prof, nsteps=63, clk=False, mode=None, o={}, first=True, last=True):
    CUR[0]='s'
    hint=o.get('hint',0); hint_sm=o.get('hint_sm',hint); hint_vp=o.get('hint_vp',hint)
    fill=o.get('fill',0); tail=o.get('tail',0); hp_pos=o.get('hp_pos',1); SCM=' sc1' if mode else ''
    IDX=1; A0=4
    ACC=[32,36,40]; PK=44
    TF=48
    KD=62
    SC2=86
    VL16=90; VMXW=91; VMK=92; VMKO=93; VXK=94; VXKO=95; VT2W=96; VT2R=97; VSW=98; VSWM=99; VSR=100; VPST=101; VPOLL=102; VDMA=103
    NEG=104
    PL=62
    WV=120
    def wdst(f): return ('a',8*f) if f<32 else ('v',WV+8*(f-32))
    def wreg(f):
        k,b=wdst(f); return (ar if k=='a' else vr)(b,8)
    S_PO=29; S_PO2=30; S_PS=31; S_PP=32; S_XO=33; S_HO=34
    VHP=107; VHS=108; VONE=109; VPA=110
    L=a.lab
    a(f'''v_lshlrev_b32 v{VL16}, 4, v0
    s_mul_i32 s{S_T0}, s{S_ROLE}, {4*49*2048}
    s_mul_i32 s{S_T1}, s{S_WAVE}, {49*2048}
    s_add_u32 s{S_T0}, s{S_T0}, s{S_T1}
    s_add_u32 s{S_T0}, s{S_T0}, {ws.AI}''')
    if first: load_frags(a,49,wdst,VL16,S_T0)
    a(f'''v_and_b32 v2, 8, v0
    v_mov_b32 v{IDX}, 0x44444444
    v_mov_b32 v3, 0xeeeeeeee
    v_cmp_ne_u32 vcc, 0, v2
    v_mov_b32 v{NEG}, -1
    v_mov_b32 v{NEG+1}, -1
    v_cndmask_b32 v{IDX}, v{IDX}, v3, vcc
    s_lshl_b32 s{S_T1}, s{S_WAVE}, 10
    v_add_u32 v{VMXW}, s{S_T1}, v{VL16}
    v_mov_b32 v{VPOLL}, v{VMXW}''')
    a(f'''s_movk_i32 s{S_T2}, 4096
    s_cmp_eq_u32 s{S_WAVE}, 3
    s_cselect_b32 s{S_T2}, 0x10000000, s{S_T2}
    v_add_u32 v{VDMA}, s{S_T2}, v{VPOLL}''')
    VPOLL2=106
    a(f'v_mov_b32 v{VPOLL2}, v{VDMA}')
    a(f'''v_lshrrev_b32 v2, 4, v0
    v_and_b32 v3, 7, v0
    v_lshlrev_b32 v3, 4, v3
    s_mul_i32 s{S_T1}, s{S_WAVE}, {14*128}
    v_lshlrev_b32 v4, 7, v2
    v_add3_u32 v{VMK}, v4, v3, s{S_T1}
    v_lshrrev_b32 v4, 1, v2
    v_lshlrev_b32 v4, 7, v4
    v_and_b32 v5, 1, v2
    v_lshlrev_b32 v5, 3, v5
    s_add_u32 s{S_T1}, s{S_T1}, {12*128}
    v_add3_u32 v{VMKO}, v4, v3, s{S_T1}
    v_add_u32 v{VMKO}, v{VMKO}, v5
    s_mul_i32 s{S_T1}, s{S_WAVE}, 7168
    s_add_u32 s{S_T1}, s{S_T1}, {LS_XK}
    v_add_u32 v{VXK}, s{S_T1}, v{VL16}
    v_lshlrev_b32 v4, 3, v0
    s_add_u32 s{S_T1}, s{S_T1}, 6144
    v_add_u32 v{VXKO}, s{S_T1}, v4''')
    a(f'''s_mul_i32 s{S_T1}, s{S_WAVE}, 3584
    s_add_u32 s{S_T1}, s{S_T1}, {LS_T2}
    v_and_b32 v3, 15, v0
    v_lshrrev_b32 v4, 2, v3
    v_xor_b32 v4, v4, v2
    v_lshlrev_b32 v4, 3, v4
    v_lshlrev_b32 v5, 5, v3
    v_add3_u32 v{VT2W}, v4, v5, s{S_T1}
    v_and_b32 v4, 3, v0
    v_xor_b32 v4, v4, v2
    v_lshlrev_b32 v4, 3, v4
    v_lshrrev_b32 v5, 2, v0
    v_lshlrev_b32 v5, 5, v5
    v_add3_u32 v{VT2R}, v4, v5, s{S_T1}''')
    a(f'''s_lshl_b32 s{S_T1}, s{S_WAVE}, 11
    s_add_u32 s{S_T1}, s{S_T1}, {LS_SB}
    v_and_b32 v4, 7, v0
    v_lshrrev_b32 v5, 3, v3
    v_lshlrev_b32 v6, 2, v5
    v_add_u32 v6, v6, v2
    v_lshrrev_b32 v7, 1, v6
    v_add_u32 v7, v7, v4
    v_and_b32 v7, 7, v7
    v_lshlrev_b32 v7, 4, v7
    v_lshlrev_b32 v6, 7, v6
    v_add3_u32 v{VSW}, v6, v7, s{S_T1}''')
    a(f'''v_add_u32 v6, 8, v2
    v_lshrrev_b32 v7, 1, v6
    v_add_u32 v7, v7, v4
    v_and_b32 v7, 7, v7
    v_lshlrev_b32 v7, 4, v7
    v_lshlrev_b32 v6, 7, v6
    v_add3_u32 v{VSWM}, v6, v7, s{S_T1}
    v_lshrrev_b32 v6, 1, v2
    v_or_b32 v6, v6, v5
    v_add_u32 v7, {LS_SD}, v{VL16}
    v_cmp_ne_u32 vcc, 0, v6
    s_nop 1
    v_cndmask_b32 v{VSWM}, v{VSWM}, v7, vcc''')
    a(f'''s_lshl_b32 s{S_T1}, s{S_WAVE}, 2
    v_add_u32 v4, s{S_T1}, v2
    v_and_b32 v4, 7, v4
    v_lshrrev_b32 v5, 1, v3
    v_add_u32 v5, v5, v4
    v_and_b32 v5, 7, v5
    v_lshlrev_b32 v5, 4, v5
    v_lshlrev_b32 v6, 7, v3
    v_add_u32 v6, {LS_SB}, v6
    v_add_u32 v{VSR}, v6, v5''')
    a(f'''s_lshr_b32 s{S_T1}, s{S_ROLE}, 2
    s_lshl_b32 s{S_T2}, s{S_T1}, 11
    s_and_b32 s{S_T3}, s{S_ROLE}, 3
    s_lshl_b32 s{S_T3}, s{S_T3}, 8
    s_add_u32 s{S_T2}, s{S_T2}, s{S_T3}
    v_lshrrev_b32 v5, 2, v3
    v_lshlrev_b32 v5, 10, v5
    v_lshrrev_b32 v6, 1, v3
    v_and_b32 v6, 1, v6
    v_lshlrev_b32 v6, 7, v6
    v_lshlrev_b32 v7, 4, v4
    v_add3_u32 v5, v5, v6, v7
    v_and_b32 v6, 1, v3
    v_lshlrev_b32 v8, 3, v6
    v_add3_u32 v5, v5, v8, s{S_T2}
    s_lshl_b32 s{S_T2}, s{S_T1}, 9
    s_and_b32 s{S_T3}, s{S_ROLE}, 1
    s_lshl_b32 s{S_T3}, s{S_T3}, 8
    s_add_u32 s{S_T2}, s{S_T2}, s{S_T3}
    s_lshr_b32 s{S_T3}, s{S_ROLE}, 1
    s_and_b32 s{S_T3}, s{S_T3}, 1
    s_lshl_b32 s{S_T3}, s{S_T3}, 3
    s_add_u32 s{S_T2}, s{S_T2}, s{S_T3}
    s_add_u32 s{S_T2}, s{S_T2}, 8192
    v_lshlrev_b32 v8, 7, v6
    v_add3_u32 v8, v8, v7, s{S_T2}
    v_cmp_gt_u32 vcc, 8, v3
    s_nop 1
    v_cndmask_b32 v5, v8, v5, vcc
    v_mov_b32 v8, 0x10000000
    v_cmp_gt_u32 vcc, 10, v3
    s_nop 1
    v_cndmask_b32 v{VPST}, v8, v5, vcc''')
    a(f'''s_lshl_b32 s{S_T1}, s{S_WAVE}, 11
    s_add_u32 s{S_T1}, s{S_T1}, {LS_SB}
    v_lshlrev_b32 v2, 5, v0
    v_add_u32 v2, s{S_T1}, v2
    v_mov_b32 v4, 0xf149f2ca
    v_mov_b32 v5, v4
    v_mov_b32 v6, v4
    v_mov_b32 v7, v4
    ds_write_b128 v2, v[4:7]
    ds_write_b128 v2, v[4:7] offset:16''')
    def xk_dma(nxt):
        for k in range(14):
            a(f's_add_u32 m0, s{S_T5}, {k*1024}' if k else f's_mov_b32 m0, s{S_T5}')
            off=(k&3)*1024
            a(f's_add_u32 s{S_T6}, s{S_XO}, {k*1024}')
            a(f'buffer_load_dwordx4 v{VL16}, s[8:11], s{S_T6} offen lds')
    lx=L('xk')
    if not first: o['wait_lf'](a)
    a(f'''s_sub_u32 s{S_T1}, s{S_WAVE}, 2
    s_mul_i32 s{S_T1}, s{S_T1}, 14336
    s_add_u32 s{S_XO}, s{S_T1}, {ws.XK}
    s_add_u32 s{S_T5}, s{S_T1}, {LS_XK}
    s_cmp_lt_u32 s{S_WAVE}, 2
    s_cbranch_scc1 {lx}''')
    xk_dma(0)
    a(f'''{lx}:
    s_mov_b32 s{S_STEP}, 0
    s_mov_b32 s{S_LIM}, {POLL_LIM}
    s_mov_b32 s{S_PO}, {ws.MA}
    s_mov_b32 s{S_HO}, {ws.H}
    v_min_u32 v{VHP}, 55, v0
    v_lshlrev_b32 v{VHP}, 2, v{VHP}
    s_lshl_b32 s{S_T1}, s{S_ROLE}, 1
    s_add_u32 s{S_T1}, s{S_T1}, s{S_WAVE}
    s_lshl_b32 s{S_T1}, s{S_T1}, 2
    s_add_u32 s{S_T1}, s{S_T1}, 256
    v_mov_b32 v2, s{S_T1}
    v_mov_b32 v3, 0x10000000
    v_cmp_eq_u32 vcc, 0, v0
    v_mov_b32 v{VONE}, 1
    s_nop 0
    v_cndmask_b32 v{VHS}, v3, v2, vcc''')
    loop=L('sloop'); pr=L('spoll'); pok=L('spok')
    prof_init(a,prof,VPA)
    if clk: a('s_waitcnt vmcnt(0)\ns_memtime s[60:61]\ns_memrealtime s[62:63]\ns_waitcnt lgkmcnt(0)')
    if 'tl' in o: o['tl'][0](2)
    a(f'{loop}:')
    stamp(a,prof,0)
    if fill:
        for r in range(0,8,2): a(f'v_mov_b64 v[{ACC[0]+r}:{ACC[0]+r+1}], 0')
    if hint_vp: a(f's_add_u32 s{S_T1}, s{S_STEP}, 1\nv_mov_b32 v{VONE}, s{S_T1}')
    if hint_sm: hint_poll(a,VHP,S_HO,[4,5,6],0,S_STEP)
    stamp(a,prof,6)
    sp=o.get('sp',1)
    if o.get('ssl'):
        s01,s23=o['ssl']; q1=L('ssl'); q2=L('ssl')
        a(f's_cmp_ge_u32 s{S_WAVE}, 2\ns_cbranch_scc1 {q1}\ns_sleep {s01}\ns_branch {q2}\n{q1}:\ns_sleep {s23}\n{q2}:')
    if sp==1:
        a(f'''s_mov_b32 s{S_CNT}, s{S_LIM}
        {pr}:
        buffer_load_dwordx4 v[{PL}:{PL+3}], v{VPOLL}, s[8:11], s{S_PO} offen sc1
        buffer_load_dwordx4 v[{PL+4}:{PL+7}], v{VPOLL2}, s[8:11], s{S_PO} offen sc1
        s_waitcnt vmcnt(1)
        ds_write_b128 v{VMXW}, v[{PL}:{PL+3}]
        v_max3_u32 v2, v{PL}, v{PL+1}, v{PL+2}
        v_max_u32 v2, v2, v{PL+3}
        s_waitcnt vmcnt(0)
        ds_write_b128 v{VMXW}, v[{PL+4}:{PL+7}] offset:4096
        v_max3_u32 v2, v2, v{PL+4}, v{PL+5}
        v_max3_u32 v2, v2, v{PL+6}, v{PL+7}''')
        poll_tail(a,pr,pok,2)
    else:
        def iss(i):
            r=PL+8*i
            a(f'buffer_load_dwordx4 v[{r}:{r+3}], v{VPOLL}, s[8:11], s{S_PO} offen sc1\nbuffer_load_dwordx4 v[{r+4}:{r+7}], v{VPOLL2}, s[8:11], s{S_PO} offen sc1')
        a(f's_mov_b32 s{S_CNT}, s{S_LIM}')
        if o.get('spw',1): a('s_waitcnt vmcnt(0)')
        for i in range(sp):
            iss(i)
            if i<sp-1 and o.get('spd',3): a(f"s_sleep {o.get('spd',3)}")
        a(f'{pr}:')
        for i in range(sp):
            r=PL+8*i
            a(f'''s_waitcnt vmcnt({2*sp-1})
            ds_write_b128 v{VMXW}, v[{r}:{r+3}]
            v_max3_u32 v2, v{r}, v{r+1}, v{r+2}
            v_max_u32 v2, v2, v{r+3}
            s_waitcnt vmcnt({2*sp-2})
            ds_write_b128 v{VMXW}, v[{r+4}:{r+7}] offset:4096
            v_max3_u32 v2, v2, v{r+4}, v{r+5}
            v_max3_u32 v2, v2, v{r+6}, v{r+7}
            v_cmp_eq_u32 vcc, -1, v2
            s_cbranch_vccz {pok}''')
            iss(i)
        a(f'''s_sub_u32 s{S_CNT}, s{S_CNT}, 1
        s_cbranch_scc0 {pr}
        s_mov_b32 s{S_LIM}, 0
        {pok}:''')
    stamp(a,prof,1)
    if prof: a(f's_sub_u32 s54, s{S_LIM}, s{S_CNT}')
    a('s_waitcnt lgkmcnt(0)\ns_barrier')
    for k in range(7): a(f'ds_read_b128 v[{A0+4*k}:{A0+4*k+3}], v{VL16} offset:{k*1024}')
    if not fill:
        for r in range(8): a(f'v_mov_b32 v{ACC[0]+r}, 0')
    stamp(a,prof,2)
    a(f'''s_add_u32 s{S_T0}, s{S_STEP}, 1
    s_and_b32 s{S_T0}, s{S_T0}, 3
    s_mul_i32 s{S_T0}, s{S_T0}, 7168
    s_add_u32 s{S_PO}, s{S_T0}, {ws.MR}
    s_and_b32 s{S_T0}, s{S_STEP}, 3
    s_mul_i32 s{S_T0}, s{S_T0}, 10240
    s_add_u32 s{S_PS}, s{S_T0}, {ws.PR}
    s_add_u32 s{S_T0}, s{S_STEP}, 2
    s_and_b32 s{S_T0}, s{S_T0}, 3
    s_mul_i32 s{S_T0}, s{S_T0}, 10240
    s_add_u32 s{S_PP}, s{S_T0}, {ws.PR}''')
    def keyreg(j,x):
        if j<2: return KD+12*j+4*x
        if j==2: return A0+4*x
        return A0+12+2*x
    def keyread(j,x):
        r=keyreg(j,x)
        if j<3:
            if x==0: return f'ds_read_b128 v[{r}:{r+3}], v{VMK} offset:{j*512}'
            return f'ds_read_b128 v[{r}:{r+3}], v{VXK} offset:{((x-1)*3+j)*1024}'
        if x==0: return f'ds_read_b64 v[{r}:{r+1}], v{VMKO}'
        return f'ds_read_b64 v[{r}:{r+1}], v{VXKO} offset:{(x-1)*512}'
    def tfreg(t): return TF+2*t
    def post(t):
        ac=ACC[t%3]; pk=PK+2*(t&1)
        return ([f'v_cvt_pk_bf16_f32 v{pk}, v{ac}, v{ac+1}', f'v_cvt_pk_bf16_f32 v{pk+1}, v{ac+2}, v{ac+3}'],
                f'ds_write_b64 v{VT2W}, v[{pk}:{pk+1}] offset:{t*512}',
                f'ds_read_b64_tr_b16 v[{tfreg(t)}:{tfreg(t)+1}], v{VT2R} offset:{t*512}')
    SA=[SC2,ACC[1],ACC[2]]
    def smf(j,x):
        c='0' if j==0 else f'v[{SA[x]}:{SA[x]+3}]'
        if j<3: return f'v_mfma_f32_16x16x32_bf16 v[{SA[x]}:{SA[x]+3}], v[{keyreg(j,x)}:{keyreg(j,x)+3}], v[{TF+4*j}:{TF+4*j+3}], {c}'
        return f'v_mfma_f32_16x16x16_bf16 v[{SA[x]}:{SA[x]+3}], v[{keyreg(j,x)}:{keyreg(j,x)+1}], v[{tfreg(6)}:{tfreg(6)+1}], {c}'
    if not fill:
        kq=[keyread(j,x) for j in range(2) for x in range(3)]
        for t in range(7):
            ac=ACC[t%3]
            for k in range(7):
                if t==0: a(f's_waitcnt lgkmcnt({6-k})')
                a(f'v_smfmac_f32_16x16x64_bf16 v[{ac}:{ac+3}], v[{A0+4*k}:{A0+4*k+3}], {wreg(t*7+k)}, v{IDX}')
                fl=[]
                if t>=1:
                    cv,wr,rd=post(t-1)
                    if k==3: fl=cv
                    if k==4: fl=[wr,rd]
                if 1<=t<6 or t==0:
                    nx=ACC[(t+1)%3]
                    if t>=1:
                        if k==0: fl=[f'v_mov_b32 v{nx}, 0',f'v_mov_b32 v{nx+1}, 0']
                        if k==1: fl=[f'v_mov_b32 v{nx+2}, 0',f'v_mov_b32 v{nx+3}, 0']
                if t in (2,3,4) and k in (5,6) and kq: fl=[kq.pop(0)]
                for x in fl: a(x)
        assert not kq
        stamp(a,prof,3)
        cv,wr,rd=post(6)
        a(keyread(2,0)); a(keyread(2,1))
        a('s_waitcnt lgkmcnt(2)')
        a(smf(0,0)); a(keyread(2,2)); a(keyread(3,0))
        a(smf(0,1)); a(keyread(3,1)); a(keyread(3,2))
        a(smf(0,2)); a('s_nop 0')
        a(smf(1,0)); a(cv[0]); a(cv[1])
        a(smf(1,1)); a(wr); a(rd)
        a(smf(1,2))
        a('s_waitcnt lgkmcnt(5)')
        a(smf(2,0)); a(smf(2,1)); a(smf(2,2))
        a('s_waitcnt lgkmcnt(0)')
        a(smf(3,0)); a(smf(3,1)); a(smf(3,2))
        a('s_nop 5')
        for r in range(4): a(f'v_add_f32_dpp v{4+r}, v{SA[0]+r}, v{SA[0]+r} row_ror:8 row_mask:0xf bank_mask:0xf')
        a(f'ds_write_b128 v{VSWM}, v[4:7]')
        for r in range(4): a(f'v_add_f32_dpp v{8+r}, v{SA[1]+r}, v{SA[1]+r} row_ror:8 row_mask:0xf bank_mask:0x3')
        for r in range(4): a(f'v_add_f32_dpp v{8+r}, v{SA[2]+r}, v{SA[2]+r} row_ror:8 row_mask:0xf bank_mask:0xc')
        a(f'ds_write_b128 v{VSW}, v[8:11]')
    else:
        T=DsTrack(a)
        for k in range(7): T.note(('A',k))
        kq=[(('K',j,x),keyread(j,x)) for j in range(2) for x in range(3)]
        def post2(t):
            ac=ACC[t%3]; pk=PK+2*(t&1)
            return ([f'v_cvt_pk_bf16_f32 v{pk}, v{ac}, v{ac+1}', f'v_cvt_pk_bf16_f32 v{pk+1}, v{ac+2}, v{ac+3}'],
                    [f'ds_write_b32 v{VT2W}, v{pk} offset:{t*512}', f'ds_write_b32 v{VT2W}, v{pk+1} offset:{t*512+4}'],
                    f'ds_read_b64_tr_b16 v[{tfreg(t)}:{tfreg(t)+1}], v{VT2R} offset:{t*512}')
        for t in range(7):
            ac=ACC[t%3]
            for k in range(7):
                if t==0: T.wait(('A',k))
                a(f'v_smfmac_f32_16x16x64_bf16 v[{ac}:{ac+3}], v[{A0+4*k}:{A0+4*k+3}], {wreg(t*7+k)}, v{IDX}')
                if t>=1:
                    cv,wr,rd=post2(t-1)
                    nx=ACC[(t+1)%3]
                    if k==0 and t<6: a(f'v_mov_b64 v[{nx}:{nx+1}], 0')
                    if k==1 and t<6: a(f'v_mov_b64 v[{nx+2}:{nx+3}], 0')
                    if k==2: a(cv[0])
                    if k==3: a(cv[1])
                    if k==4: T.ds(wr[0],('W0',t-1))
                    if k==5: T.ds(wr[1],('W1',t-1))
                    if k==6: T.ds(rd,('T',t-1))
                    if t in (2,3,4) and k in (0,1) and kq:
                        if sp>1 and t==2 and k==0: a('s_waitcnt vmcnt(0)')
                        tg,ins=kq.pop(0); T.ds(ins,tg)
                if t==6:
                    if k in (0,1,2): T.ds(keyread(2,k),('K',2,k))
                    if k==4: pass
                    if k==5: T.ds(keyread(3,0),('K',3,0))
                    if k==6: T.ds(keyread(3,1),('K',3,1))
        assert not kq
        stamp(a,prof,3)
        cv,_,_=post2(6); _,wr,rd=post(6)
        def S(j,x):
            T.wait(('K',j,x)); T.wait(('T',min(2*j+1,6))); a(smf(j,x))
        S(0,0); T.ds(keyread(3,2),('K',3,2))
        S(0,1); a(cv[0]); a(cv[1])
        S(0,2); T.ds(wr,('W',6)); T.ds(rd,('T',6))
        for j in range(1,4):
            for x in range(3): S(j,x)
        for r in range(4): a(f'v_add_f32_dpp v{4+r}, v{SA[0]+r}, v{SA[0]+r} row_ror:8 row_mask:0xf bank_mask:0xf')
        a(f'ds_write_b128 v{VSWM}, v[4:7]')
        for r in range(4): a(f'v_add_f32_dpp v{8+r}, v{SA[1]+r}, v{SA[1]+r} row_ror:8 row_mask:0xf bank_mask:0x3')
        for r in range(4): a(f'v_add_f32_dpp v{8+r}, v{SA[2]+r}, v{SA[2]+r} row_ror:8 row_mask:0xf bank_mask:0xc')
        a(f'ds_write_b128 v{VSW}, v[8:11]')
    a('s_waitcnt lgkmcnt(0)\ns_barrier')
    stamp(a,prof,4)
    lx=L('xk'); lnext=L('snext')
    a(f's_cmp_ge_u32 s{S_WAVE}, 2\ns_cbranch_scc1 {lx}')
    HST=f'buffer_store_dword v{VONE}, v{VHS}, s[8:11], s{S_HO} offen{SCM}'
    hp=lambda pos: HST if (hint_vp and hp_pos==pos) else ''
    a(hp(0))
    for w in range(4): a(f'ds_read_b128 v[{4+4*w}:{7+4*w}], v{VSR} offset:{w*2048}')
    a(f'''s_waitcnt lgkmcnt(2)
    v_pk_add_f32 v[4:5], v[4:5], v[8:9]
    v_pk_add_f32 v[6:7], v[6:7], v[10:11]
    s_waitcnt lgkmcnt(0)
    v_pk_add_f32 v[12:13], v[12:13], v[16:17]
    v_pk_add_f32 v[14:15], v[14:15], v[18:19]
    v_pk_add_f32 v[4:5], v[4:5], v[12:13]
    v_pk_add_f32 v[6:7], v[6:7], v[14:15]
    {hp(1)}
    v_max3_f32 v8, v4, v5, v6
    v_max_f32 v8, v8, v7
    s_nop 1
    v_max_f32_dpp v9, v8, v8 row_ror:4 row_mask:0xf bank_mask:0xf
    v_max_f32_dpp v9, v8, v9 row_ror:8 row_mask:0xf bank_mask:0xf
    v_max_f32_dpp v9, v8, v9 row_ror:12 row_mask:0xf bank_mask:0xf
    s_nop 1
    v_max_f32_dpp v10, v9, v9 row_ror:1 row_mask:0xf bank_mask:0xf
    v_max_f32_dpp v10, v9, v10 row_ror:2 row_mask:0xf bank_mask:0xf
    v_max_f32_dpp v10, v9, v10 row_ror:3 row_mask:0xf bank_mask:0xf
    {hp(2)}
    v_pk_add_f32 v[4:5], v[4:5], v[10:11] op_sel_hi:[1,0] neg_lo:[0,1] neg_hi:[0,1]
    v_pk_add_f32 v[6:7], v[6:7], v[10:11] op_sel_hi:[1,0] neg_lo:[0,1] neg_hi:[0,1]
    v_exp_f32 v4, v4
    v_exp_f32 v5, v5
    v_exp_f32 v6, v6
    v_exp_f32 v7, v7
    {hp(3)}
    v_add_f32 v8, v4, v5
    v_add_f32 v9, v6, v7
    v_add_f32 v8, v8, v9
    s_nop 1
    v_add_f32_dpp v9, v8, v8 row_ror:4 row_mask:0xf bank_mask:0xf
    v_add_f32_dpp v9, v8, v9 row_ror:8 row_mask:0xf bank_mask:0xf
    v_add_f32_dpp v9, v8, v9 row_ror:12 row_mask:0xf bank_mask:0xf
    s_nop 1
    v_add_f32_dpp v10, v9, v9 row_ror:1 row_mask:0xf bank_mask:0xf
    v_add_f32_dpp v10, v9, v10 row_ror:2 row_mask:0xf bank_mask:0xf
    v_add_f32_dpp v10, v9, v10 row_ror:3 row_mask:0xf bank_mask:0xf
    v_rcp_f32 v10, v10
    s_nop 0
    v_pk_mul_f32 v[4:5], v[4:5], v[10:11] op_sel_hi:[1,0]
    v_pk_mul_f32 v[6:7], v[6:7], v[10:11] op_sel_hi:[1,0]
    v_cvt_pk_bf16_f32 v4, v4, v5
    v_cvt_pk_bf16_f32 v5, v6, v7''')
    store2(a,[f'buffer_store_dwordx2 v[4:5], v{VPST}, s[8:11], s{S_PS} offen',
              f'buffer_store_dwordx2 v[{NEG}:{NEG+1}], v{VPST}, s[8:11], s{S_PP} offen'],mode)
    stamp(a,prof,5)
    if o.get('xkbar',0): a('s_barrier')
    a(f's_branch {lnext}\n{lx}:')
    if o.get('xkbar',0): a('s_barrier')
    a(f's_add_u32 s{S_XO}, s{S_XO}, 28672')
    xk_dma(1)
    stamp(a,prof,5)
    a(f'{lnext}:')
    stamp_flush(a,prof,8,2,VPA)
    a(f'''s_add_u32 s{S_STEP}, s{S_STEP}, 1
    s_cmp_lt_u32 s{S_STEP}, {nsteps}
    s_cbranch_scc1 {loop}''')
    if clk:
        a(f'''s_memtime s[64:65]
        s_memrealtime s[66:67]
        s_waitcnt lgkmcnt(0)
        s_sub_u32 s64, s64, s60
        s_sub_u32 s66, s66, s62
        s_lshl_b32 s{S_T0}, s{S_ROLE}, 2
        s_add_u32 s{S_T0}, s{S_T0}, s{S_WAVE}
        s_lshl_b32 s{S_T0}, s{S_T0}, 3
        s_add_u32 s{S_T0}, s{S_T0}, {ws.PROF+0xF0000}
        v_mov_b32 v2, s64
        v_mov_b32 v3, s66
        v_mov_b32 v4, 0
        s_nop 4
        buffer_store_dwordx2 v[2:3], v4, s[8:11], s{S_T0} offen''')
    prof_dump(a,prof)
    if 'tl' in o: o['tl'][0](3); o['tl'][1](4)
    a('s_waitcnt vmcnt(0)')
    a('s_endpgm' if last else 's_barrier')

LV_MX=0; LV_W=8192; LV_R=73728
def value_role(a, prof, nsteps=63, om=False, mode=None, o={}, first=True, last=True):
    CUR[0]='v'
    hint=o.get('hint',0); hint_sm=o.get('hint_sm',hint); hint_vp=o.get('hint_vp',hint); hint_vm=o.get('hint_vm',hint); nx=(o.get('nx',0) if om else 0)
    fill=o.get('fill',0); hm_pos=o.get('hm_pos',1); wi_late=o.get('wi_late',0); SCM=' sc1' if mode else ''
    IDX=1; A0=4
    DF=32
    WB=64
    ACC=[72,76,80,84]; XA=88
    ST=92
    VL16=108; VMXW=109; VPOLL=109; VPOLL2=111; VWL=112; VPX=113; VPM=114; VRW=115; VRR=116; VMS=117
    NEG=118
    VFLAG=120; VZERO=121; VONE=122; VF1=123
    VHP=124; VHM=125; VHS=126; VHV=127; S_HO=57; S_HE=59; S_WF=61; S_W1=62; S_M1=63; VMA=3
    S_DFL=39; S_FF=56
    WV=128
    def wdst(f): return ('a',8*f) if f<32 else ('v',WV+8*(f-32))
    def wreg(f):
        k,b=wdst(f); return (ar if k=='a' else vr)(b,8)
    S_V=29; S_PO=30; S_PS=31; S_MS=32; S_MP=33; S_MA=34; S_DO=35; S_WO=38
    L=a.lab
    a(f'''s_sub_u32 s{S_V}, s{S_ROLE}, 16
    v_lshlrev_b32 v{VL16}, 4, v0
    s_lshl_b32 s{S_T0}, s{S_V}, 2
    s_add_u32 s{S_T0}, s{S_T0}, s{S_WAVE}
    s_mul_i32 s{S_T0}, s{S_T0}, {56*2048}
    s_add_u32 s{S_T0}, s{S_T0}, {ws.CI}''')
    if first: load_frags(a,48,wdst,VL16,S_T0)
    a(f'''s_lshl_b32 s{S_T1}, s{S_WAVE}, 14
    s_add_u32 s{S_T1}, s{S_T1}, {LV_W}''')
    for k in range(16 if first else 0):
        a(f's_add_u32 m0, s{S_T1}, {k*1024}\ns_add_u32 s{S_T2}, s{S_T0}, {k*1024}\nbuffer_load_dwordx4 v{VL16}, s[8:11], s{S_T2} offen lds')
    a(f'''v_add_u32 v{VWL}, s{S_T1}, v{VL16}
    v_and_b32 v2, 8, v0
    v_mov_b32 v{IDX}, 0x44444444
    v_mov_b32 v3, 0xeeeeeeee
    v_cmp_ne_u32 vcc, 0, v2
    v_mov_b32 v{NEG}, -1
    v_mov_b32 v{NEG+1}, -1
    v_cndmask_b32 v{IDX}, v{IDX}, v3, vcc
    s_lshl_b32 s{S_T1}, s{S_WAVE}, 10
    v_add_u32 v{VMXW}, s{S_T1}, v{VL16}
    s_movk_i32 s{S_T2}, 4096
    s_cmp_eq_u32 s{S_WAVE}, 3
    s_cselect_b32 s{S_T2}, 0x10000000, s{S_T2}
    v_add_u32 v{VPOLL2}, s{S_T2}, v{VPOLL}''')
    a(f'''s_lshl_b32 s{S_T1}, s{S_WAVE}, 11
    v_add_u32 v{VPX}, s{S_T1}, v{VL16}
    s_lshl_b32 s{S_T1}, s{S_WAVE}, 9
    s_add_u32 s{S_T1}, s{S_T1}, 8192
    v_lshrrev_b32 v2, 4, v0
    v_and_b32 v3, 15, v0
    v_lshlrev_b32 v4, 7, v2
    v_lshlrev_b32 v5, 4, v3
    v_add3_u32 v4, v4, v5, s{S_T1}
    v_mov_b32 v5, 0x10000000
    v_cmp_gt_u32 vcc, 8, v3
    s_nop 1
    v_cndmask_b32 v{VPM}, v5, v4, vcc''')
    a(f'''s_lshl_b32 s{S_T1}, s{S_WAVE}, 10
    s_add_u32 s{S_T1}, s{S_T1}, {LV_R}
    v_lshlrev_b32 v4, 2, v0
    v_add_u32 v{VRW}, s{S_T1}, v4
    v_add_u32 v{VRR}, {LV_R}, v{VL16}''')
    a(f'''v_lshrrev_b32 v2, 4, v0
    v_lshrrev_b32 v3, 2, v0
    v_and_b32 v3, 1, v3
    v_lshlrev_b32 v3, 2, v3
    v_add_u32 v2, v2, v3
    v_lshlrev_b32 v2, 4, v2
    v_lshrrev_b32 v3, 3, v0
    v_and_b32 v3, 1, v3
    v_lshlrev_b32 v3, 1, v3
    v_lshrrev_b32 v4, 1, v0
    v_and_b32 v4, 1, v4
    v_add_u32 v3, v3, v4
    v_lshlrev_b32 v3, 7, v3
    v_and_b32 v4, 1, v0
    v_lshlrev_b32 v4, 3, v4
    v_add3_u32 v2, v2, v3, v4
    s_lshl_b32 s{S_T1}, s{S_V}, 9
    v_add_u32 v{VMS}, s{S_T1}, v2''')
    a(f'''s_lshl_b32 s{S_T1}, s{S_V}, 15
    s_lshl_b32 s{S_T2}, s{S_WAVE}, 13
    s_add_u32 s{S_DO}, s{S_T1}, s{S_T2}
    s_add_u32 s{S_DO}, s{S_DO}, {ws.DI}
    s_lshl_b32 s{S_T1}, s{S_V}, 13
    s_lshl_b32 s{S_T2}, s{S_WAVE}, 11
    s_add_u32 s{S_WO}, s{S_T1}, s{S_T2}
    s_add_u32 s{S_WO}, s{S_WO}, {ws.WI}
    s_mov_b32 s{S_STEP}, 0
    s_mov_b32 s{S_LIM}, {POLL_LIM}
    s_mov_b32 s{S_PO}, {ws.MA}
    s_mov_b32 s{S_MA}, {ws.MA+7168}
    s_mov_b32 s{S_HO}, {ws.H}
    v_min_u32 v{VHM}, 55, v0
    v_lshlrev_b32 v{VHM}, 2, v{VHM}
    v_and_b32 v{VHP}, 31, v0
    v_lshlrev_b32 v{VHP}, 2, v{VHP}
    v_add_u32 v{VHP}, 256, v{VHP}
    s_lshl_b32 s{S_T1}, s{S_V}, 2
    s_add_u32 s{S_T1}, s{S_T1}, s{S_WAVE}
    s_lshl_b32 s{S_T1}, s{S_T1}, 2
    v_mov_b32 v2, s{S_T1}
    v_mov_b32 v3, 0x10000000
    v_cmp_eq_u32 vcc, 0, v0
    v_mov_b32 v{VONE}, 1
    s_nop 0
    v_cndmask_b32 v{VHS}, v3, v2, vcc''')
    SC=' sc1' if om else ''
    def dpoll():
        lr=L('dfp'); lo=L('dfo')
        a(f'''s_mov_b32 s{S_CNT}, s{S_LIM}
        {lr}:
        buffer_load_dword v{VFLAG}, v{VZERO}, s[8:11], s{S_DFL} offen sc1
        s_waitcnt vmcnt(0)
        v_readfirstlane_b32 s{S_T0}, v{VFLAG}
        s_nop 3
        s_cmp_lg_u32 s{S_T0}, 0
        s_cbranch_scc1 {lo}
        s_sub_u32 s{S_CNT}, s{S_CNT}, 1
        s_cbranch_scc0 {lr}
        s_mov_b32 s{S_LIM}, 0
        {lo}:''')
    if om:
        a(f'''v_mov_b32 v{VZERO}, 0
        v_mov_b32 v{VONE}, 1
        s_lshl_b32 s{S_T1}, s{S_V}, 4
        s_lshl_b32 s{S_T2}, s{S_WAVE}, 2
        s_add_u32 s{S_DFL}, s{S_T1}, s{S_T2}
        s_add_u32 s{S_DFL}, s{S_DFL}, {ws.DF}
        s_lshl_b32 s{S_T1}, s{S_V}, 2
        s_add_u32 s{S_FF}, s{S_T1}, {ws.F}
        s_lshl_b32 s{S_T1}, s{S_WAVE}, 6
        v_add_u32 v2, s{S_T1}, v0
        v_mov_b32 v3, {0 if nx else 64}
        v_cmp_eq_u32 vcc, v2, v3
        v_mov_b32 v3, 0x10000000
        s_nop 0
        v_cndmask_b32 v{VF1}, v3, 0, vcc''')
        if nx: a(f's_mov_b32 s{S_MA}, {ws.MA}\ns_mov_b32 s{S_WF}, {ws.WF-448}')
        if nx==2:
            a(f'''s_sub_u32 s{S_FF}, s{S_FF}, 64
            s_cmp_eq_u32 s{S_WAVE}, 0
            s_cselect_b32 s{S_T1}, 0, 0x10000000
            v_add_u32 v{VMA}, s{S_T1}, v{VMS}''')
        dpoll()
    VPA=110
    prof_init(a,prof,VPA)
    dsplit=o.get('dsplit',0)
    loop=L('vloop'); pr=L('vpoll'); pok=L('vpok'); PL=4 if dsplit else DF
    def dload(q,so):
        return f'buffer_load_dwordx4 v[{DF+4*q}:{DF+4*q+3}], v{VL16}, s[8:11], s{so} offen offset:{(q&3)*1024}{SC}'
    if dsplit:
        for q in range(4): a(dload(q,S_DO))
    if 'tl' in o: o['tl'][0](2)
    a(f'{loop}:')
    stamp(a,prof,0)
    vfill=o.get('vfill',0); S_DO2=60
    if vfill:
        for r in (0,2): a(f'v_mov_b64 v[{ACC[0]+r}:{ACC[0]+r+1}], 0\nv_mov_b64 v[{XA+r}:{XA+r+1}], 0')
    a(f's_add_u32 s{S_HE}, s{S_STEP}, 1')
    if hint_sm or hint_vm: a(f'v_mov_b32 v{VHV}, s{S_HE}')
    if hint_vm: hint_poll(a,VHM,S_HO,[16,17,18],1,S_STEP)
    if o.get('vml'): a(f"s_sleep {o['vml']}")
    a(f'''s_mov_b32 s{S_CNT}, s{S_LIM}
    {pr}:
    buffer_load_dwordx4 v[{PL}:{PL+3}], v{VPOLL}, s[8:11], s{S_PO} offen sc1
    buffer_load_dwordx4 v[{PL+4}:{PL+7}], v{VPOLL2}, s[8:11], s{S_PO} offen sc1
    s_waitcnt vmcnt(1)
    ds_write_b128 v{VMXW}, v[{PL}:{PL+3}]
    v_max3_u32 v2, v{PL}, v{PL+1}, v{PL+2}
    v_max_u32 v2, v2, v{PL+3}
    s_waitcnt vmcnt(0)
    ds_write_b128 v{VMXW}, v[{PL+4}:{PL+7}] offset:4096
    v_max3_u32 v2, v2, v{PL+4}, v{PL+5}
    v_max3_u32 v2, v2, v{PL+6}, v{PL+7}''')
    poll_tail(a,pr,pok,2)
    stamp(a,prof,1)
    a('s_waitcnt lgkmcnt(0)\ns_barrier')
    for k in range(7): a(f'ds_read_b128 v[{A0+4*k}:{A0+4*k+3}], v{VL16} offset:{k*1024}')
    def sread(f,buf):
        b=ST+8*buf; o=(f-48)*2048
        return [f'ds_read_b128 v[{b}:{b+3}], v{VWL} offset:{o}', f'ds_read_b128 v[{b+4}:{b+7}], v{VWL} offset:{o+1024}']
    if not vfill:
        for r in range(4): a(f'v_mov_b32 v{ACC[0]+r}, 0')
        for r in range(4): a(f'v_mov_b32 v{XA+r}, 0')
    def dcheck():
        lok=L('dok')
        a(f'v_readfirstlane_b32 s{S_T0}, v{VFLAG}\ns_nop 3\ns_cmp_lg_u32 s{S_T0}, 0\ns_cbranch_scc1 {lok}')
        dpoll()
        a(f'{lok}:')
    SCX='' if o.get('xpl',0) else SC
    hlp=(o.get('hlp',0) if om else 0); dfl=o.get('dfl',0) if om else 0
    if hlp: SCX=SCM
    SCW=' sc1' if hlp==2 else SCM
    def wi_export(sc=None):
        sc=SCX if sc is None else sc
        a(f'buffer_store_dwordx4 v[{WB}:{WB+3}], v{VL16}, s[8:11], s{S_WO} offen{sc}')
        a(f'buffer_store_dwordx4 v[{WB+4}:{WB+7}], v{VL16}, s[8:11], s{S_WO} offen offset:1024{sc}')
        a(f's_add_u32 s{S_WO}, s{S_WO}, {14*8192}')
    FST=f'buffer_store_dword v{VONE}, v{VF1}, s[8:11], s{S_FF} offen'+(' sc1' if o.get('xpl',0)<2 else '')
    ord2=o.get('ord2',0)
    if om and not nx:
        if not ord2 and not hlp: a(f'{FST}\ns_add_u32 s{S_FF}, s{S_FF}, 64')
        if not dsplit:
            if dfl:
                lq=L('dq'); lr=L('dr'); lo=L('do')
                a(f's_cmp_gt_u32 s{S_STEP}, {dfl}\ns_cbranch_scc1 {lq}')
                dcheck()
                a(f'''s_cmp_lg_u32 s{S_STEP}, {dfl}
                s_cbranch_scc1 {lq}
                s_lshl_b32 s{S_T1}, s{S_V}, 4
                s_lshl_b32 s{S_T2}, s{S_WAVE}, 2
                s_add_u32 s{S_T1}, s{S_T1}, s{S_T2}
                s_add_u32 s{S_T1}, s{S_T1}, {ws.DF+60*224}
                v_and_b32 v2, 3, v0
                v_mul_u32_u24 v2, 224, v2
                s_mov_b32 s{S_CNT}, s{S_LIM}
                {lr}:
                buffer_load_dword v{VFLAG}, v2, s[8:11], s{S_T1} offen sc1
                s_waitcnt vmcnt(0)
                v_cmp_eq_u32 vcc, 0, v{VFLAG}
                s_cbranch_vccz {lo}
                s_sub_u32 s{S_CNT}, s{S_CNT}, 1
                s_cbranch_scc0 {lr}
                s_mov_b32 s{S_LIM}, 0
                {lo}:
                {lq}:''')
            else: dcheck()
    if nx==2:
        l63=L('l63')
        a(f'''s_cmp_lg_u32 s{S_STEP}, {nsteps}
        s_cbranch_scc1 {l63}
        s_add_u32 s{S_T0}, s{S_FF}, 64
        buffer_store_dword v{VONE}, v{VF1}, s[8:11], s{S_T0} offen sc1
        {l63}:''')
        dcheck()
        a(f'''s_cmp_eq_u32 s{S_STEP}, 0
        s_cselect_b32 s{S_W1}, {ws.DUM}, s{S_WO}
        s_cselect_b32 s{S_M1}, {ws.DUM+16384}, s{S_MA}
        s_cselect_b32 s{S_T0}, 0, {14*8192}
        s_add_u32 s{S_WO}, s{S_WO}, s{S_T0}''')
    elif nx:
        l63=L('l63'); l0=L('l0')
        a(f's_cmp_lg_u32 s{S_STEP}, {nsteps}\ns_cbranch_scc1 {l63}\n{FST}\n{l63}:')
        dcheck()
        a(f'buffer_store_dword v{VONE}, v{VHS}, s[8:11], s{S_WF} offen sc1\ns_add_u32 s{S_WF}, s{S_WF}, 224')
        a(f's_cmp_eq_u32 s{S_STEP}, 0\ns_cbranch_scc1 {l0}')
        wi_export()
        a(f's_cmp_lg_u32 s{S_WAVE}, 0\ns_cbranch_scc1 {l0}')
        a(f'buffer_store_dwordx2 v[{ST+8}:{ST+9}], v{VMS}, s[8:11], s{S_MA} offen sc1')
        a(f'{l0}:')
    dl=[]
    for q in range(8):
        off=(q&3)*1024
        so=S_DO if q<4 else S_DO2
        dl.append(f'buffer_load_dwordx4 v[{DF+4*q}:{DF+4*q+3}], v{VL16}, s[8:11], s{so} offen offset:{off}{o.get("dsc",SC)}')
    a(f's_add_u32 s{S_DO2}, s{S_DO}, 4096')
    flagld=f's_add_u32 s{S_DFL}, s{S_DFL}, {14*16}\nbuffer_load_dword v{VFLAG}, v{VZERO}, s[8:11], s{S_DFL} offen sc1'
    dls=o.get('dls')
    wie=(wi_late==2 and om)
    if wie:
        a(f'''s_cmp_eq_u32 s{S_STEP}, 0
        s_cselect_b32 s{S_W1}, {ws.DUM}, s{S_WO}
        s_cselect_b32 s{S_T0}, 0, {14*8192}
        s_add_u32 s{S_WO}, s{S_WO}, s{S_T0}''')
        wst=[f'buffer_store_dwordx4 v[{WB}:{WB+3}], v{VL16}, s[8:11], s{S_W1} offen{SCW}',
             f'buffer_store_dwordx4 v[{WB+4}:{WB+7}], v{VL16}, s[8:11], s{S_W1} offen offset:1024{SCW}']
        wsl=o.get('wsl',[(0,3),(1,3)])
        for q,p_ in enumerate(wsl):
            if p_=='pre0': a(wst[q])
    if vfill and dls and nx!=2:
        for q,p in enumerate(dls):
            if p=='pre': a(dl[q])
        if om and ord2:
            a(flagld)
            if not nx: a(f'{FST}\ns_add_u32 s{S_FF}, s{S_FF}, 64')
    if not vfill:
        for x in dl: a(x)
        if om: a(flagld)
        a(f's_add_u32 s{S_DO}, s{S_DO}, {14*32768}')
    a(f'''s_add_u32 s{S_T0}, s{S_STEP}, 1
    s_and_b32 s{S_T0}, s{S_T0}, 3
    s_mul_i32 s{S_T0}, s{S_T0}, 7168
    s_add_u32 s{S_MS}, s{S_T0}, {ws.MR}
    s_add_u32 s{S_T0}, s{S_STEP}, 3
    s_and_b32 s{S_T0}, s{S_T0}, 3
    s_mul_i32 s{S_T0}, s{S_T0}, 7168
    s_add_u32 s{S_MP}, s{S_T0}, {ws.MR}
    s_and_b32 s{S_T0}, s{S_STEP}, 3
    s_mul_i32 s{S_T0}, s{S_T0}, 10240
    s_add_u32 s{S_PS}, s{S_T0}, {ws.PR}
    s_mov_b32 s{S_PO}, s{S_MS}''')
    stamp(a,prof,2)
    chains=[(0,0),(0,1),(0,2),(0,3),(1,0),(1,1),(1,2)]
    def fidx(tau,hh,k): return hh*14+tau*7+k
    def psum(tau,half,ra,rb):
        o=[]
        for r in range(4): o.append(f'v_permlane32_swap_b32 v{ra+r}, v{rb+r}')
        for r in range(4): o.append(f'v_add_f32 v{ra+r}, v{ra+r}, v{rb+r}')
        d=WB+4*tau+2*half
        o.append(f'v_cvt_pk_bf16_f32 v{d}, v{ra}, v{ra+1}'); o.append(f'v_cvt_pk_bf16_f32 v{d+1}, v{ra+2}, v{ra+3}')
        return o
    if not vfill:
        pend=[]
        lg=7
        for c,(tau,hh) in enumerate(chains):
            ac=ACC[c%4]
            for k in range(7):
                f=fidx(tau,hh,k)
                if c==0: a(f's_waitcnt lgkmcnt({6-k})')
                if f>=48:
                    assert f==48
                    a('s_waitcnt lgkmcnt(0)')
                    b=vr(ST+8,8)
                else: b=wreg(f)
                a(f'v_smfmac_f32_16x16x64_bf16 v[{ac}:{ac+3}], v[{A0+4*k}:{A0+4*k+3}], {b}, v{IDX}')
                fl=[]
                if k==0: fl+=sread(49+c,0)
                if c==3 and k==1: fl+=sread(48,1)
                if c<6 and k in (2,3):
                    nx=ACC[(c+1)%4]; fl+=[f'v_mov_b32 v{nx+2*(k-2)}, 0',f'v_mov_b32 v{nx+2*(k-2)+1}, 0']
                if k>=3 and pend:
                    fl+=pend[:2]; pend=pend[2:]
                for x in fl: a(x)
            a('s_waitcnt lgkmcnt(0)')
            a(f'v_smfmac_f32_16x16x64_bf16 v[{XA}:{XA+3}], v[{A0+4*c}:{A0+4*c+3}], {vr(ST,8)}, v{IDX}')
            for x in pend[:2]: a(x)
            pend=pend[2:]
            if c in (1,3,5):
                assert not pend
                pend=psum(0 if c<4 else 1, 0 if c in (1,5) else 1, ACC[(c-1)%4], ACC[c%4])
        for x in pend: a(x)
        a('s_nop 7')
        for x in psum(1,1,ACC[6%4],XA): a(x)
    else:
        T=DsTrack(a)
        for k in range(7): T.note(('A',k))
        z=lambda r:[f'v_mov_b64 v[{r}:{r+1}], 0',f'v_mov_b64 v[{r+2}:{r+3}], 0']
        p01=psum(0,0,ACC[0],ACC[1]); p23=psum(0,1,ACC[2],ACC[3]); p45=psum(1,0,ACC[0],ACC[1])
        V={}
        def put(c,g0,ops):
            for i,x in enumerate(ops): assert (c,g0+i) not in V; V[(c,g0+i)]=x
        put(0,0,z(ACC[1])); put(1,0,z(ACC[2])); put(2,0,z(ACC[3])); put(2,2,p01[:6]); put(3,0,p01[6:]); put(3,4,z(ACC[0]))
        put(4,0,z(ACC[1])); put(4,2,p23[:6]); put(5,0,p23[6:]); put(5,4,z(ACC[2])); put(6,2,p45[:6])
        M={(c,3):dl[c+1] for c in range(7)}; M[(0,1)]=dl[0]
        if dsplit: M={(0,1):dl[4],(0,3):dl[5],(0,5):dl[6],(1,0):dl[7]}
        if dls:
            M={p:dl[q] for q,p in enumerate(dls) if p!='pre'}
        if wie:
            for q,p_ in enumerate(wsl):
                if p_=='pre': a(wst[q])
                elif p_!='pre0': M[p_]=(M[p_]+'\n' if p_ in M else '')+wst[q]
        if nx==2:
            ops=dl+[flagld,
                f'buffer_store_dword v{VONE}, v{VHS}, s[8:11], s{S_WF} offen sc1\ns_add_u32 s{S_WF}, s{S_WF}, 224',
                f'{FST}\ns_add_u32 s{S_FF}, s{S_FF}, 64',
                f'buffer_store_dwordx4 v[{WB}:{WB+3}], v{VL16}, s[8:11], s{S_W1} offen sc1',
                f'buffer_store_dwordx4 v[{WB+4}:{WB+7}], v{VL16}, s[8:11], s{S_W1} offen offset:1024 sc1',
                f'buffer_store_dwordx2 v[{ST+8}:{ST+9}], v{VMA}, s[8:11], s{S_M1} offen sc1']
            slots=o.get('nxslots') or [(c,k) for c in range(3) for k in range(7)]
            npre=o.get('npre',0)
            for x in ops[:npre]: a(x)
            M={slots[i]:x for i,x in enumerate(ops[npre:])}
        for c,(tau,hh) in enumerate(chains):
            ac=ACC[c%4]
            for k in range(7):
                f=fidx(tau,hh,k)
                if c==0: T.wait(('A',k))
                if f>=48:
                    assert f==48
                    T.wait(('S48',1)); b=vr(ST+8,8)
                else: b=wreg(f)
                a(f'v_smfmac_f32_16x16x64_bf16 v[{ac}:{ac+3}], v[{A0+4*k}:{A0+4*k+3}], {b}, v{IDX}')
                if (c,k) in V: a(V[(c,k)])
                if k==0:
                    r=sread(49+c,0); T.ds(r[0],('X',c,0)); T.ds(r[1],('X',c,1))
                if c==3 and k==1:
                    r=sread(48,1); T.ds(r[0],('S48',0)); T.ds(r[1],('S48',1))
                if (c,k) in M: a(M[(c,k)])
            T.wait(('X',c,1))
            a(f'v_smfmac_f32_16x16x64_bf16 v[{XA}:{XA+3}], v[{A0+4*c}:{A0+4*c+3}], {vr(ST,8)}, v{IDX}')
            if (c,7) in V: a(V[(c,7)])
            if nx==1 and c==o.get('fpos',5): a(f's_waitcnt vmcnt({9 if ord2 else 8})\n{FST}\ns_add_u32 s{S_FF}, s{S_FF}, 64')
        if om and not ord2 and nx!=2:
            if dfl:
                lq=L('nf'); a(f"s_cmp_ge_u32 s{S_STEP}, {dfl}\ns_cbranch_scc1 {lq}"); a(flagld); a(f'{lq}:')
            else: a(flagld)
        a(f's_add_u32 s{S_DO}, s{S_DO}, {14*32768}')
        for x in p45[6:]: a(x)
        a('s_nop 3')
        for x in psum(1,1,ACC[6%4],XA): a(x)
    if not wi_late and not nx: wi_export(' sc1' if hlp==2 else None)
    stamp(a,prof,3)
    fin=L('vfin')
    a(f's_cmp_ge_u32 s{S_STEP}, {nsteps}\ns_cbranch_scc1 {fin}')
    if hint_vp: hint_poll(a,VHP,S_HO,[16,17,18],3,S_HE)
    stamp(a,prof,6)
    pr=L('ppoll'); pok=L('ppok')
    O0=ACC[0]; O1=ACC[1]
    vp=o.get('vp',1)
    if o.get('vsl'): a(f"s_sleep {o['vsl']}")
    def piss(b):
        a(f'''buffer_load_dwordx4 v[{b+8}:{b+11}], v{VPM}, s[8:11], s{S_PS} offen sc1
        buffer_load_dwordx4 v[{b}:{b+3}], v{VPX}, s[8:11], s{S_PS} offen sc1
        buffer_load_dwordx4 v[{b+4}:{b+7}], v{VPX}, s[8:11], s{S_PS} offen offset:1024 sc1''')
    def pchk(b,n):
        a(f'''s_waitcnt vmcnt({n+2})
        v_mfma_f32_16x16x32_bf16 v[{O0}:{O0+3}], v[{b+8}:{b+11}], v[{WB}:{WB+3}], 0
        v_max3_u32 v2, v{b+8}, v{b+9}, v{b+10}
        v_mfma_f32_16x16x32_bf16 v[{O1}:{O1+3}], v[{b+8}:{b+11}], v[{WB+4}:{WB+7}], 0
        s_waitcnt vmcnt({n+1})
        v_smfmac_f32_16x16x64_bf16 v[{O0}:{O0+3}], v[{b}:{b+3}], v[{DF}:{DF+7}], v{IDX}
        v_max3_u32 v2, v2, v{b+11}, v{b}
        v_max3_u32 v2, v2, v{b+1}, v{b+2}
        v_smfmac_f32_16x16x64_bf16 v[{O1}:{O1+3}], v[{b}:{b+3}], v[{DF+16}:{DF+23}], v{IDX}
        s_waitcnt vmcnt({n})
        v_smfmac_f32_16x16x64_bf16 v[{O0}:{O0+3}], v[{b+4}:{b+7}], v[{DF+8}:{DF+15}], v{IDX}
        v_max3_u32 v2, v2, v{b+3}, v{b+4}
        v_max3_u32 v2, v2, v{b+5}, v{b+6}
        v_smfmac_f32_16x16x64_bf16 v[{O1}:{O1+3}], v[{b+4}:{b+7}], v[{DF+24}:{DF+31}], v{IDX}
        v_max_u32 v2, v2, v{b+7}''')
    RD=4
    if vp==1:
        a(f's_mov_b32 s{S_CNT}, s{S_LIM}\n{pr}:')
        piss(4); pchk(4,0)
        poll_tail(a,pr,pok,2)
    else:
        RD=DF
        sets=[4,16,ST][:vp]
        a(f's_mov_b32 s{S_CNT}, s{S_LIM}')
        if o.get('vpw',0): a('s_waitcnt vmcnt(0)')
        for i,b in enumerate(sets):
            piss(b)
            if i<vp-1 and o.get('vpd',3): a(f"s_sleep {o.get('vpd',3)}")
        a(f'{pr}:')
        for b in sets:
            pchk(b,3*(vp-1))
            a(f'v_cmp_eq_u32 vcc, -1, v2\ns_cbranch_vccz {pok}')
            piss(b)
        a(f'''s_sub_u32 s{S_CNT}, s{S_CNT}, 1
        s_cbranch_scc0 {pr}
        s_mov_b32 s{S_LIM}, 0
        {pok}:''')
    stamp(a,prof,4)
    if prof: a(f's_sub_u32 s54, s{S_LIM}, s{S_CNT}')
    HST=f'buffer_store_dword v{VHV}, v{VHS}, s[8:11], s{S_HO} offen{SCM}'
    hm=lambda pos: HST if ((hint_sm or hint_vm) and hm_pos==pos) else ''
    a(hm(0)) if hm(0) else None
    a('s_nop 4')
    for r in range(4): a(f'v_permlane32_swap_b32 v{O0+r}, v{O1+r}')
    for r in range(4): a(f'v_add_f32 v{O0+r}, v{O0+r}, v{O1+r}')
    a(f'''ds_write2st64_b32 v{VRW}, v{O0}, v{O0+1} offset0:0 offset1:1
    ds_write2st64_b32 v{VRW}, v{O0+2}, v{O0+3} offset0:2 offset1:3
    {hm(1)}
    s_waitcnt lgkmcnt(0)
    s_barrier
    {hm(2)}''')
    nxt=L('vnext')
    a(f's_cmp_lg_u32 s{S_WAVE}, 0\ns_cbranch_scc1 {nxt}')
    for w in range(4): a(f'ds_read_b128 v[{RD+4*w}:{RD+3+4*w}], v{VRR} offset:{w*1024}')
    a(f'''s_waitcnt lgkmcnt(2)
    v_pk_add_f32 v[{RD}:{RD+1}], v[{RD}:{RD+1}], v[{RD+4}:{RD+5}]
    v_pk_add_f32 v[{RD+2}:{RD+3}], v[{RD+2}:{RD+3}], v[{RD+6}:{RD+7}]
    s_waitcnt lgkmcnt(0)
    v_pk_add_f32 v[{RD+8}:{RD+9}], v[{RD+8}:{RD+9}], v[{RD+12}:{RD+13}]
    v_pk_add_f32 v[{RD+10}:{RD+11}], v[{RD+10}:{RD+11}], v[{RD+14}:{RD+15}]
    v_pk_add_f32 v[{RD}:{RD+1}], v[{RD}:{RD+1}], v[{RD+8}:{RD+9}]
    v_pk_add_f32 v[{RD+2}:{RD+3}], v[{RD+2}:{RD+3}], v[{RD+10}:{RD+11}]
    v_cvt_pk_bf16_f32 v{RD}, v{RD}, v{RD+1}
    v_cvt_pk_bf16_f32 v{RD+1}, v{RD+2}, v{RD+3}''')
    store2(a,[f'buffer_store_dwordx2 v[{RD}:{RD+1}], v{VMS}, s[8:11], s{S_MS} offen',
              f'buffer_store_dwordx2 v[{NEG}:{NEG+1}], v{VMS}, s[8:11], s{S_MP} offen']+([] if om else [
              f'buffer_store_dwordx2 v[{RD}:{RD+1}], v{VMS}, s[8:11], s{S_MA} offen']),mode)
    if om and not nx: a(f'buffer_store_dwordx2 v[{RD}:{RD+1}], v{VMS}, s[8:11], s{S_MA} offen{SCX}')
    if nx:
        lq=L('lq')
        a(f'''v_mov_b64 v[{ST+8}:{ST+9}], v[{RD}:{RD+1}]
        s_cmp_lg_u32 s{S_STEP}, {nsteps-1}
        s_cbranch_scc1 {lq}
        s_add_u32 s{S_T0}, s{S_MA}, 7168
        buffer_store_dwordx2 v[{RD}:{RD+1}], v{VMS}, s[8:11], s{S_T0} offen sc1
        {lq}:''')
    a(f'{nxt}:')
    stamp(a,prof,5)
    if dsplit:
        if o.get('dbar',0): a('s_barrier')
        if om: dcheck()
        for q in range(4): a(dload(q,S_DO))
    if wie:
        if o.get('wbar',1): a('s_barrier')
    elif wi_late:
        if not (dsplit and o.get('dbar',0)): a('s_barrier')
        if hlp:
            lq=L('w62'); lq2=L('w62')
            a(f's_cmp_eq_u32 s{S_STEP}, {nsteps-1}\ns_cbranch_scc1 {lq}')
            t=S_WO; wi_export_n=lambda sc: (a(f'buffer_store_dwordx4 v[{WB}:{WB+3}], v{VL16}, s[8:11], s{S_WO} offen{sc}'), a(f'buffer_store_dwordx4 v[{WB+4}:{WB+7}], v{VL16}, s[8:11], s{S_WO} offen offset:1024{sc}'))
            wi_export_n(SCW); a(f's_branch {lq2}\n{lq}:'); wi_export_n(' sc1'); a(f'{lq2}:\ns_add_u32 s{S_WO}, s{S_WO}, {14*8192}')
        else: wi_export()
    a(f's_add_u32 s{S_MA}, s{S_MA}, 7168')
    stamp_flush(a,prof,8,2,VPA)
    a(f'''s_add_u32 s{S_STEP}, s{S_STEP}, 1
    s_branch {loop}
    {fin}:''')
    if wi_late or nx: wi_export(' sc1' if hlp else None)
    a('s_waitcnt vmcnt(0)')
    if hlp: a(f's_mov_b32 s{S_T0}, {ws.WF+62*224}\nbuffer_store_dword v{VONE}, v{VHS}, s[8:11], s{S_T0} offen sc1\nbuffer_store_dword v{VONE}, v{VHS}, s[8:11], s{S_T0} offen offset:224 sc1\ns_waitcnt vmcnt(0)')
    elif nx: a(f'buffer_store_dword v{VONE}, v{VHS}, s[8:11], s{S_WF} offen sc1\nbuffer_store_dword v{VONE}, v{VHS}, s[8:11], s{S_WF} offen offset:224 sc1\ns_waitcnt vmcnt(0)')
    elif om: a(f's_barrier\nbuffer_store_dword v{VONE}, v{VF1}, s[8:11], s{S_FF} offen sc1\ns_waitcnt vmcnt(0)')
    prof_dump(a,prof)
    if 'tl' in o: o['tl'][0](3); o['tl'][1](4)
    a('s_endpgm' if last else 's_barrier')

def helper_role(a, o, last=True):
    L=a.lab; S_J=29; S_S=30; S_PO=31; S_SRC=32; S_SR2=33; S_FL=34
    VL16=1; VF=2; VONE=3; PL=4; DAT=8
    lma=L('hma')
    a(f'''s_sub_u32 s{S_J}, s{S_ROLE}, 30
    s_lshl_b32 s{S_J}, s{S_J}, 2
    s_add_u32 s{S_J}, s{S_J}, s{S_WAVE}
    v_lshlrev_b32 v{VL16}, 4, v0
    v_mov_b32 v{VONE}, 1
    s_mov_b32 s{S_LIM}, {POLL_LIM}
    s_cmp_eq_u32 s{S_J}, 7
    s_cbranch_scc1 {lma}''')
    hlp=o['hlp']; slp=o.get('hslp',0)
    if hlp>=2: a('s_endpgm')
    loop=L('hl'); pr=L('hp'); pok=L('ho')
    a(f'''s_lshl_b32 s{S_T0}, s{S_J}, 10
    s_add_u32 s{S_PO}, s{S_T0}, {ws.MA+2*7168}
    s_lshl_b32 s{S_T0}, s{S_J}, 14
    s_add_u32 s{S_SRC}, s{S_T0}, {ws.WI}
    s_lshl_b32 s{S_T0}, s{S_J}, 5
    s_add_u32 s{S_FL}, s{S_T0}, {ws.WF}
    v_lshlrev_b32 v{VF}, 2, v0
    v_mov_b32 v4, 0x10000000
    v_cmp_gt_u32 vcc, 8, v0
    s_mov_b32 s{S_S}, 0
    s_nop 0
    v_cndmask_b32 v{VF}, v4, v{VF}, vcc
    {loop}:
    s_mov_b32 s{S_CNT}, s{S_LIM}
    {pr}:
    {f's_sleep {slp}' if slp else ''}
    buffer_load_dwordx4 v[{PL}:{PL+3}], v{VL16}, s[8:11], s{S_PO} offen sc1
    s_waitcnt vmcnt(0)
    v_max3_u32 v{PL}, v{PL}, v{PL+1}, v{PL+2}
    v_max_u32 v{PL}, v{PL}, v{PL+3}''')
    poll_tail(a,pr,pok,PL)
    for k in range(16):
        if k%4==0: a(f's_add_u32 s{S_SR2}, s{S_SRC}, {k*1024}')
        a(f'buffer_load_dwordx4 v[{DAT+4*k}:{DAT+4*k+3}], v{VL16}, s[8:11], s{S_SR2} offen offset:{(k&3)*1024} sc1')
    for k in range(16):
        if k%4==0: a(f's_add_u32 s{S_SR2}, s{S_SRC}, {k*1024}')
        a(f's_waitcnt vmcnt(15)')
        a(f'buffer_store_dwordx4 v[{DAT+4*k}:{DAT+4*k+3}], v{VL16}, s[8:11], s{S_SR2} offen offset:{(k&3)*1024} sc1')
    a(f'''s_waitcnt vmcnt(0)
    buffer_store_dword v{VONE}, v{VF}, s[8:11], s{S_FL} offen sc1
    s_add_u32 s{S_FL}, s{S_FL}, 224
    s_add_u32 s{S_SRC}, s{S_SRC}, {14*8192}
    s_add_u32 s{S_PO}, s{S_PO}, 7168
    s_add_u32 s{S_S}, s{S_S}, 1
    s_cmp_lt_u32 s{S_S}, 62
    s_cbranch_scc1 {loop}
    s_waitcnt vmcnt(0)
    s_endpgm''')
    loop=L('ml'); pr=L('mp'); pok=L('mo')
    a(f'''{lma}:
    v_lshlrev_b32 v{VF}, 2, v0
    v_mov_b32 v4, 0x10000000
    v_cmp_gt_u32 vcc, 14, v0
    s_mov_b32 s{S_FL}, {ws.F}
    s_mov_b32 s{S_PO}, {ws.MA+7168}
    v_cndmask_b32 v{VF}, v4, v{VF}, vcc
    s_mov_b32 s{S_S}, 1
    buffer_store_dword v{VONE}, v{VF}, s[8:11], s{S_FL} offen sc1
    v_lshlrev_b32 v5, 2, v0
    v_cmp_gt_u32 vcc, 56, v0
    s_mov_b32 s{S_SRC}, {ws.WF-224}
    s_nop 0
    v_cndmask_b32 v5, v4, v5, vcc
    {loop}:
    s_add_u32 s{S_FL}, s{S_FL}, 64
    s_add_u32 s{S_SR2}, s{S_PO}, 4096
    s_mov_b32 s{S_CNT}, s{S_LIM}
    {pr}:''')
    if slp: a(f's_sleep {slp}')
    so=lambda k: S_PO if k<4 else S_SR2
    for k in range(7): a(f'buffer_load_dwordx4 v[{DAT+4*k}:{DAT+4*k+3}], v{VL16}, s[8:11], s{so(k)} offen offset:{(k&3)*1024} sc1')
    for k in range(7):
        a(f's_waitcnt vmcnt({6-k})')
        r=DAT+4*k
        if k==0: a(f'v_max3_u32 v{PL}, v{r}, v{r+1}, v{r+2}\nv_max_u32 v{PL}, v{PL}, v{r+3}')
        else: a(f'v_max3_u32 v{PL}, v{PL}, v{r}, v{r+1}\nv_max3_u32 v{PL}, v{PL}, v{r+2}, v{r+3}')
    poll_tail(a,pr,pok,PL)
    for k in range(7): a(f'buffer_store_dwordx4 v[{DAT+4*k}:{DAT+4*k+3}], v{VL16}, s[8:11], s{so(k)} offen offset:{(k&3)*1024} sc1')
    if hlp>=2:
        lq=L('hq'); a(f's_cmp_lt_u32 s{S_S}, 2\ns_cbranch_scc1 {lq}\nbuffer_store_dword v{VONE}, v5, s[8:11], s{S_SRC} offen sc1\n{lq}:\ns_add_u32 s{S_SRC}, s{S_SRC}, 224')
    a(f'''s_waitcnt vmcnt(0)
    buffer_store_dword v{VONE}, v{VF}, s[8:11], s{S_FL} offen sc1
    s_add_u32 s{S_PO}, s{S_PO}, 7168
    s_add_u32 s{S_S}, s{S_S}, 1
    s_cmp_lt_u32 s{S_S}, 64
    s_cbranch_scc1 {loop}
    s_waitcnt vmcnt(0)
    s_endpgm''')

def helper_ma(a, o):
    L=a.lab; S_S=30; S_PO=31; S_SRC=32; S_SR2=33; S_FL=34
    VL16=1; VF=2; VONE=3; PL=4; DAT=8; slp=o.get('hslp',0)
    loop=L('ml'); pr=L('mp'); pok=L('mo')
    a(f'''v_lshlrev_b32 v{VL16}, 4, v0
    v_mov_b32 v{VONE}, 1
    s_mov_b32 s{S_LIM}, {POLL_LIM}
    v_lshlrev_b32 v{VF}, 2, v0
    v_mov_b32 v4, 0x10000000
    v_cmp_gt_u32 vcc, 14, v0
    s_mov_b32 s{S_FL}, {ws.F}
    s_mov_b32 s{S_PO}, {ws.MA+7168}
    v_cndmask_b32 v{VF}, v4, v{VF}, vcc
    s_mov_b32 s{S_S}, 1
    buffer_store_dword v{VONE}, v{VF}, s[8:11], s{S_FL} offen sc1
    v_lshlrev_b32 v5, 2, v0
    v_cmp_gt_u32 vcc, 56, v0
    s_mov_b32 s{S_SRC}, {ws.WF-224}
    s_nop 0
    v_cndmask_b32 v5, v4, v5, vcc
    {loop}:
    s_add_u32 s{S_FL}, s{S_FL}, 64
    s_add_u32 s{S_SR2}, s{S_PO}, 4096
    s_mov_b32 s{S_CNT}, s{S_LIM}
    {pr}:''')
    if slp: a(f's_sleep {slp}')
    so=lambda k: S_PO if k<4 else S_SR2
    for k in range(7): a(f'buffer_load_dwordx4 v[{DAT+4*k}:{DAT+4*k+3}], v{VL16}, s[8:11], s{so(k)} offen offset:{(k&3)*1024} sc1')
    for k in range(7):
        a(f's_waitcnt vmcnt({6-k})')
        r=DAT+4*k
        if k==0: a(f'v_max3_u32 v{PL}, v{r}, v{r+1}, v{r+2}\nv_max_u32 v{PL}, v{PL}, v{r+3}')
        else: a(f'v_max3_u32 v{PL}, v{PL}, v{r}, v{r+1}\nv_max3_u32 v{PL}, v{PL}, v{r+2}, v{r+3}')
    poll_tail(a,pr,pok,PL)
    for k in range(7): a(f'buffer_store_dwordx4 v[{DAT+4*k}:{DAT+4*k+3}], v{VL16}, s[8:11], s{so(k)} offen offset:{(k&3)*1024} sc1')
    lq=L('hq'); a(f's_cmp_lt_u32 s{S_S}, 2\ns_cbranch_scc1 {lq}\nbuffer_store_dword v{VONE}, v5, s[8:11], s{S_SRC} offen sc1\n{lq}:\ns_add_u32 s{S_SRC}, s{S_SRC}, 224')
    a(f'''s_waitcnt vmcnt(0)
    buffer_store_dword v{VONE}, v{VF}, s[8:11], s{S_FL} offen sc1
    s_add_u32 s{S_PO}, s{S_PO}, 7168
    s_add_u32 s{S_S}, s{S_S}, 1
    s_cmp_lt_u32 s{S_S}, 64
    s_cbranch_scc1 {loop}
    s_waitcnt vmcnt(0)''')

def roles(a, name, prof, clk, nsteps, om, o):
    l1=name+'_m1'
    if o.get('hlp',0):
        lh=name+'_nh'
        a(f's_cmp_lt_u32 s{S_ROLE}, 30\ns_cbranch_scc1 {lh}')
        helper_role(a,o)
        a(f'{lh}:')
    if not o.get('static',0):
        lv=name+'_val'
        a(f's_cmp_ge_u32 s{S_ROLE}, 16\ns_cbranch_scc1 {lv}')
        score_role(a,prof,nsteps,clk,None,o); a(f'{lv}:'); value_role(a,prof,nsteps,om,None,o); return
    a(f's_cmp_lg_u32 s{S_MODE}, 0\ns_cbranch_scc1 {l1}')
    for mode in (0,1):
        lv=f'{name}_val{mode}'
        if mode: a(f'{l1}:')
        a(f's_cmp_ge_u32 s{S_ROLE}, 16\ns_cbranch_scc1 {lv}')
        score_role(a,prof if mode==0 else False,nsteps,clk and mode==0,mode,o)
        a(f'{lv}:')
        value_role(a,prof if mode==0 else False,nsteps,om,mode,o)
def rec_kernel(name, prof=False, nsteps=63, clk=False, o={}):
    a=Asm(); a.l.append(head(name))
    ex=name+'_exit'
    prologue(a,256,ex)
    election(a,LS_ROLE)
    a(f'''s_cmp_ge_u32 s{S_ROLE}, {NROLE}
    s_cbranch_scc1 {ex}''')
    roles(a,name,prof,clk,nsteps,False,o)
    a(f'{ex}:\ns_endpgm')
    return a.text()+kd(name,vgpr=256,agpr=256)
REC_LDS=78080+8192+256
if __name__=='__main__':
    n='rec_kernel'
    t=f'; @launch kernel={n} grid=(256,1,1) block=(256,1,1) lds={REC_LDS}\n.amdgcn_target "amdgcn-amd-amdhsa--gfx950"\n'+rec_kernel(n,prof=True)
    open('rec_test.s','w').write(t)
    print(len(t))
SNAMES=['poll','B1+rd','tgemm','scores','softmax/dma']
VNAMES=['poll','B1+rd','wgemm','Ppoll+pz','reduce']
```

```python
from common import *
B3_LDS=29*1024
def b3_kernel(name, dst, stflags=''):
    a=Asm(); a.l.append(head(name)); ex=name+'_exit'
    S_W=17; S_TB=18; S_DT=19; TS=24
    VL=1; VTR=2; VX=3; RES=8; ACC=16; B=32; O=24
    a(f'''s_cmp_ge_u32 s2, 256
    s_cbranch_scc1 {ex}
    s_load_dwordx2 s[4:5], s[0:1], {KA['ws']}
    s_load_dwordx2 s[6:7], s[0:1], {KA['out']}
    v_lshrrev_b32 v1, 6, v0
    v_and_b32 v0, 63, v0
    s_lshr_b32 s{S_TB}, s2, 2
    s_and_b32 s{S_DT}, s2, 3
    v_readfirstlane_b32 s{S_W}, v1
    s_lshl_b32 s{S_DT}, s{S_DT}, 2
    s_waitcnt lgkmcnt(0)
    s_add_u32 s{S_DT}, s{S_DT}, s{S_W}''')
    srd(a,8,4,0x10000000)
    if dst=='out': srd(a,12,6,1835008); osrd,oso='s[12:15]','0'
    else: a(f's_mov_b32 s22, {dst}'); osrd,oso='s[8:11]','s22'
    a(f'''v_lshrrev_b32 v4, 2, v0
    v_lshlrev_b32 v4, 12, v4
    v_and_b32 v5, 3, v0
    v_lshlrev_b32 v5, 4, v5
    v_add_u32 v4, v4, v5
    s_lshl_b32 s{TS}, s{S_TB}, 6
    s_add_u32 s{TS}, s{TS}, {ws.GT}
    s_lshl_b32 s{TS+1}, s{S_W}, 16
    s_add_u32 s{TS}, s{TS}, s{TS+1}
    s_lshl_b32 s{TS+1}, s{S_W}, 10''')
    for n in range(8):
        lsk=a.lab('b3s')
        if n==7: a(f's_cmp_ge_u32 s{S_W}, 1\ns_cbranch_scc1 {lsk}')
        a(f's_add_u32 m0, s{TS+1}, {n*4096}\ns_add_u32 s{TS+2}, s{TS}, {n*4*65536}\nbuffer_load_dwordx4 v4, s[8:11], s{TS+2} offen lds')
        if n==7: a(f'{lsk}:')
    lidle=a.lab('b3idle')
    a(f's_cmp_ge_u32 s{S_DT}, 14\ns_cbranch_scc1 {lidle}')
    a(f'''v_and_b32 v5, 31, v0
    s_lshl_b32 s{TS}, s{S_TB}, 5
    v_add_u32 v6, s{TS}, v5
    v_mul_u32_u24 v6, 896, v6
    v_lshrrev_b32 v7, 5, v0
    v_lshlrev_b32 v7, 4, v7
    s_lshl_b32 s{TS}, s{S_DT}, 6
    v_add3_u32 v{VX}, v6, v7, s{TS}
    s_mov_b32 s{TS+3}, {ws.X1}
    v_lshlrev_b32 v{VL}, 4, v0
    s_mul_i32 s{TS}, s{S_DT}, {29*1024}
    s_add_u32 s{TS}, s{TS}, {ws.IV}''')
    for f in range(29):
        a(f'buffer_load_dwordx4 a[{4*f}:{4*f+3}], v{VL}, s[8:11], s{TS} offen offset:{(f&3)*1024}')
        if (f&3)==3: a(f's_add_u32 s{TS}, s{TS}, 4096')
    a(f'buffer_load_dwordx4 v[{RES}:{RES+3}], v{VX}, s[8:11], s{TS+3} offen')
    a(f'buffer_load_dwordx4 v[{RES+4}:{RES+7}], v{VX}, s[8:11], s{TS+3} offen offset:32')
    a(f'''v_lshrrev_b32 v5, 5, v0
    v_lshlrev_b32 v5, 9, v5
    v_lshrrev_b32 v6, 2, v0
    v_and_b32 v6, 3, v6
    v_lshlrev_b32 v6, 6, v6
    v_add_u32 v5, v5, v6
    v_lshrrev_b32 v6, 4, v0
    v_and_b32 v6, 1, v6
    v_lshlrev_b32 v6, 5, v6
    v_and_b32 v7, 3, v0
    v_lshlrev_b32 v7, 3, v7
    v_add3_u32 v{VTR}, v5, v6, v7
    s_waitcnt vmcnt(31)
    s_barrier''')
    for ks in range(29):
        a(f'ds_read_b64_tr_b16 v[{B+4*ks}:{B+4*ks+1}], v{VTR} offset:{ks*1024}')
        a(f'ds_read_b64_tr_b16 v[{B+4*ks+2}:{B+4*ks+3}], v{VTR} offset:{ks*1024+256}')
    a('s_waitcnt vmcnt(2) lgkmcnt(0)')
    for ks in range(29):
        c='0' if ks==0 else f'v[{ACC}:{ACC+15}]'
        a(f'v_mfma_f32_32x32x16_bf16 v[{ACC}:{ACC+15}], a[{4*ks}:{4*ks+3}], v[{B+4*ks}:{B+4*ks+3}], {c}')
    a('s_waitcnt vmcnt(0)\ns_nop 7\ns_nop 2')
    F=B
    for qp in range(2):
        q0=ACC+8*qp; q1=q0+4; o=B+8+4*qp; r=RES+4*qp
        a(f'''v_cvt_pk_bf16_f32 v{o}, v{q0}, v{q0+1}
        v_cvt_pk_bf16_f32 v{o+1}, v{q0+2}, v{q0+3}
        v_cvt_pk_bf16_f32 v{o+2}, v{q1}, v{q1+1}
        v_cvt_pk_bf16_f32 v{o+3}, v{q1+2}, v{q1+3}
        s_nop 1
        v_permlane32_swap_b32 v{o}, v{o+2}
        v_permlane32_swap_b32 v{o+1}, v{o+3}''')
        for q in range(4):
            a(f'''v_lshlrev_b32 v{F}, 16, v{o+q}
            v_and_b32 v{F+1}, 0xffff0000, v{o+q}
            v_lshlrev_b32 v{F+2}, 16, v{r+q}
            v_and_b32 v{F+3}, 0xffff0000, v{r+q}
            v_pk_add_f32 v[{F}:{F+1}], v[{F}:{F+1}], v[{F+2}:{F+3}]
            v_cvt_pk_bf16_f32 v{o+q}, v{F}, v{F+1}''')
        a(f'buffer_store_dwordx4 v[{o}:{o+3}], v{VX}, {osrd}, {oso} offen offset:{32*qp} {stflags}')
    a(f's_waitcnt vmcnt(0)\ns_endpgm\n{lidle}:\ns_waitcnt vmcnt(0)\ns_barrier\n{ex}:\ns_endpgm')
    return a.text()+kd(name,vgpr=B+116,agpr=116)
S_P=60; S_J=61; S_TB=62; S_DT=63
RES2=8; VX2=148; IVB=128
def b3_dec(a, S_ID, S_W=17):
    TS=24
    div_const(a,S_P,S_ID,7,224)
    a(f'''s_mul_i32 s{TS}, s{S_P}, 7
    s_sub_u32 s{S_J}, s{S_ID}, s{TS}
    s_lshl_b32 s{TS}, s{S_J}, 2
    s_add_u32 s{TS}, s{TS}, s{S_W}
    s_cmp_ge_u32 s{TS}, 14
    s_cselect_b32 s{TS+1}, 1, 0
    s_cselect_b32 s{TS+2}, 14, 0
    s_sub_u32 s{S_DT}, s{TS}, s{TS+2}
    s_lshl_b32 s{S_TB}, s{S_P}, 1
    s_add_u32 s{S_TB}, s{S_TB}, s{TS+1}''')
def b3_iv(a):
    TS=24
    a(f'''v_lshlrev_b32 v1, 4, v0
    s_mul_i32 s{TS}, s{S_DT}, {29*1024}
    s_add_u32 s{TS}, s{TS}, {ws.IV}''')
    for f in range(29):
        a(f'buffer_load_dwordx4 a[{IVB+4*f}:{IVB+4*f+3}], v1, s[8:11], s{TS} offen offset:{(f&3)*1024}')
        if (f&3)==3: a(f's_add_u32 s{TS}, s{TS}, 4096')
def b3_res(a):
    TS=24
    a(f'''v_and_b32 v{VX2+1}, 31, v0
    s_lshl_b32 s{TS}, s{S_TB}, 5
    v_add_u32 v{VX2+2}, s{TS}, v{VX2+1}
    v_mul_u32_u24 v{VX2+2}, 896, v{VX2+2}
    v_lshrrev_b32 v{VX2+3}, 5, v0
    v_lshlrev_b32 v{VX2+3}, 4, v{VX2+3}
    s_lshl_b32 s{TS}, s{S_DT}, 6
    v_add3_u32 v{VX2}, v{VX2+2}, v{VX2+3}, s{TS}
    s_mov_b32 s{TS+3}, {ws.X1}
    buffer_load_dwordx4 v[{RES2}:{RES2+3}], v{VX2}, s[8:11], s{TS+3} offen sc1
    buffer_load_dwordx4 v[{RES2+4}:{RES2+7}], v{VX2}, s[8:11], s{TS+3} offen offset:32 sc1''')
def b3_main(a, dst, S_W=17):
    TS=24; VTR=2; ACC=16; B=32; BUF=29696
    if dst=='out': osrd,oso,st='s[12:15]','0',''
    else: a(f's_mov_b32 s22, {dst}'); osrd,oso,st='s[8:11]','s22','sc1'
    a(f'''v_lshrrev_b32 v4, 2, v0
    v_lshlrev_b32 v4, 12, v4
    v_and_b32 v5, 3, v0
    v_lshlrev_b32 v5, 4, v5
    v_add_u32 v4, v4, v5''')
    for half in range(2):
        lq=a.lab('b3h')
        a(f"s_cmp_{'gt' if half==0 else 'lt'}_u32 s{S_J}, 3\ns_cbranch_scc1 {lq}")
        a(f'''s_lshl_b32 s{TS}, s{S_P}, 7
        s_add_u32 s{TS}, s{TS}, {ws.GT+64*half}
        s_lshl_b32 s{TS+1}, s{S_W}, 16
        s_add_u32 s{TS}, s{TS}, s{TS+1}
        s_lshl_b32 s{TS+1}, s{S_W}, 10''')
        for n in range(8):
            lsk=a.lab('b3s')
            if n==7: a(f's_cmp_ge_u32 s{S_W}, 1\ns_cbranch_scc1 {lsk}')
            a(f's_add_u32 m0, s{TS+1}, {half*BUF+n*4096}\ns_add_u32 s{TS+2}, s{TS}, {n*4*65536}\nbuffer_load_dwordx4 v4, s[8:11], s{TS+2} offen lds')
            if n==7: a(f'{lsk}:')
        a(f'{lq}:')
    b3_res(a)
    a(f'''v_lshrrev_b32 v5, 5, v0
    v_lshlrev_b32 v5, 9, v5
    v_lshrrev_b32 v6, 2, v0
    v_and_b32 v6, 3, v6
    v_lshlrev_b32 v6, 6, v6
    v_add_u32 v5, v5, v6
    v_lshrrev_b32 v6, 4, v0
    v_and_b32 v6, 1, v6
    v_lshlrev_b32 v6, 5, v6
    v_and_b32 v7, 3, v0
    v_lshlrev_b32 v7, 3, v7
    v_add3_u32 v{VTR}, v5, v6, v7
    s_and_b32 s{TS}, s{S_TB}, 1
    s_mul_i32 s{TS}, s{TS}, {BUF}
    v_add_u32 v{VTR}, s{TS}, v{VTR}
    s_waitcnt vmcnt(0)
    s_barrier''')
    for ks in range(29):
        a(f'ds_read_b64_tr_b16 v[{B+4*ks}:{B+4*ks+1}], v{VTR} offset:{ks*1024}')
        a(f'ds_read_b64_tr_b16 v[{B+4*ks+2}:{B+4*ks+3}], v{VTR} offset:{ks*1024+256}')
    for ks in range(29):
        if ks in (0,22,25): a({0:'s_waitcnt lgkmcnt(14)',22:'s_waitcnt lgkmcnt(8)',25:'s_waitcnt lgkmcnt(0)'}[ks])
        c='0' if ks==0 else f'v[{ACC}:{ACC+15}]'
        a(f'v_mfma_f32_32x32x16_bf16 v[{ACC}:{ACC+15}], a[{IVB+4*ks}:{IVB+4*ks+3}], v[{B+4*ks}:{B+4*ks+3}], {c}')
    a('s_nop 7\ns_nop 3')
    F=B
    for qp in range(2):
        q0=ACC+8*qp; q1=q0+4; o=B+8+4*qp; r=RES2+4*qp
        a(f'''v_cvt_pk_bf16_f32 v{o}, v{q0}, v{q0+1}
        v_cvt_pk_bf16_f32 v{o+1}, v{q0+2}, v{q0+3}
        v_cvt_pk_bf16_f32 v{o+2}, v{q1}, v{q1+1}
        v_cvt_pk_bf16_f32 v{o+3}, v{q1+2}, v{q1+3}
        s_nop 1
        v_permlane32_swap_b32 v{o}, v{o+2}
        v_permlane32_swap_b32 v{o+1}, v{o+3}''')
        for q in range(4):
            a(f'''v_lshlrev_b32 v{F}, 16, v{o+q}
            v_and_b32 v{F+1}, 0xffff0000, v{o+q}
            v_lshlrev_b32 v{F+2}, 16, v{r+q}
            v_and_b32 v{F+3}, 0xffff0000, v{r+q}
            v_pk_add_f32 v[{F}:{F+1}], v[{F}:{F+1}], v[{F+2}:{F+3}]
            v_cvt_pk_bf16_f32 v{o+q}, v{F}, v{F+1}''')
        a(f'buffer_store_dwordx4 v[{o}:{o+3}], v{VX2}, {osrd}, {oso} offen offset:{32*qp} {st}')
    if dst!='out':
        a(f'''s_lshl_b32 s{TS}, s{S_P}, 5
        s_lshl_b32 s{TS+1}, s{S_J}, 2
        s_add_u32 s{TS}, s{TS}, s{TS+1}
        s_add_u32 s{TS}, s{TS}, {ws.YF}''')
        wg_flag(a,TS,S_W)
    else: a('s_waitcnt vmcnt(0)')
if __name__=='__main__':
    t='.amdgcn_target "amdgcn-amd-amdhsa--gfx950"\n'+b3_kernel('b3_kernel','out')
    open('b3.s','w').write(t)
```

```python
from common import *
from ln import fbits
FFT_LDS=16384
def fft_kernel(name, stflags=''):
    a=Asm(); a.l.append(head(name)); ex=name+'_exit'
    a(f'''s_cmp_ge_u32 s2, 225
    s_cbranch_scc1 {ex}
    s_load_dwordx2 s[4:5], s[0:1], {KA['ws']}
    v_lshrrev_b32 v1, 6, v0
    v_and_b32 v0, 63, v0
    s_mov_b32 s18, s2
    v_readfirstlane_b32 s17, v1
    s_waitcnt lgkmcnt(0)''')
    srd(a,8,4,0x10000000)
    fft_body(a,18,stflags)
    a(f's_waitcnt vmcnt(0)\n{ex}:\ns_endpgm')
    return a.text()+kd(name,vgpr=168)
class FR: pass
def fmap(hi):
    r=FR(); b=164 if hi else 12
    r.C64=b; r.S64=b+8; r.N64=b+16; r.C32=b+24; r.S32=b+32; r.N32=b+40; r.TC=b+48; r.TSN=b+56
    r.WT=228 if hi else 76
    return r
T=5; R=156
def fft_lanevars(a,S_W,TS=24):
    a(f'''v_and_b32 v{T}, 15, v0
    v_lshrrev_b32 v{T+1}, 4, v0
    s_lshl_b32 s{TS+5}, s{S_W}, 4
    v_add_u32 v{T+2}, s{TS+5}, v{T}''')
def fft_wt(a,S_F,hi,S_W=17,VL=1):
    TS=24; WT=fmap(hi).WT
    a(f'''s_lshl_b32 s{TS+4}, s{S_F}, 13
    s_lshl_b32 s{TS+5}, s{S_W}, 11
    s_add_u32 s{TS+4}, s{TS+4}, s{TS+5}
    s_add_u32 s{TS+4}, s{TS+4}, {ws.WT}
    buffer_load_dwordx4 v[{WT}:{WT+3}], v{VL}, s[8:11], s{TS+4} offen
    buffer_load_dwordx4 v[{WT+4}:{WT+7}], v{VL}, s[8:11], s{TS+4} offen offset:1024''')
def fft_tables(a,hi,S_W=17):
    TS=24; m=fmap(hi); C64,S64,N64,C32,S32,N32,TC,TSN=m.C64,m.S64,m.N64,m.C32,m.S32,m.N32,m.TC,m.TSN
    fft_lanevars(a,S_W)
    a(f'''v_cvt_f32_u32 v{T+3}, v{T+2}
    v_cvt_f32_u32 v{T+4}, v{T+1}
    v_cvt_f32_u32 v{T+5}, v{T}''')
    def trig(dstc, dsts, n, revs):
        for i in range(0,n,2):
            for k in range(2):
                for x in revs[i+k]: a(x.replace('@',f'v{R+k}'))
                a(f'v_fract_f32 v{R+k}, v{R+k}')
            a(f'''v_cos_f32 v{R+2}, v{R}
            v_cos_f32 v{R+3}, v{R+1}
            v_sin_f32 v{R+4}, v{R}
            v_sin_f32 v{R+5}, v{R+1}''')
            if dstc is None: continue
            a(f's_nop 0\nv_cvt_pk_bf16_f32 v{dstc+i//2}, v{R+2}, v{R+3}\nv_cvt_pk_bf16_f32 v{dsts+i//2}, v{R+4}, v{R+5}')
    a(f'''v_mul_f32 v{T+6}, {hex(fbits(1/64.))}, v{T+3}
    v_mul_f32 v{R+6}, 8.0, v{T+4}'''.replace('8.0',hex(fbits(8.0))))
    revs=[]
    for kh in range(2):
        for u in range(8):
            revs.append([f'v_add_f32 @, {hex(fbits(float(32*kh+u)))}, v{R+6}', f'v_mul_f32 @, @, v{T+6}'])
    trig(C64,S64,16,revs)
    for i in range(8): a(f'v_xor_b32 v{N64+i}, 0x80008000, v{S64+i}')
    a(f'v_mul_f32 v{R+6}, 4.0, v{T+4}')
    revs=[]
    for t2 in range(2):
        for u in range(8):
            revs.append([f'v_add_f32 @, {hex(fbits(float(16*(u>>2)+(u&3))))}, v{R+6}', f'v_add_f32 v{R+7}, {hex(fbits(float(16*t2)))}, v{T+5}', f'v_mul_f32 @, @, v{R+7}', f'v_mul_f32 @, {hex(fbits(1/32.))}, @'])
    trig(C32,S32,16,revs)
    for i in range(8): a(f'v_xor_b32 v{N32+i}, 0x80008000, v{S32+i}')
    a(f'v_mul_f32 v{T+6}, {hex(fbits(1/2048.))}, v{T+3}')
    for t in range(2):
        for r in range(4):
            i=4*t+r
            a(f'''v_add_f32 v{R}, {hex(fbits(float(16*t+r)))}, v{R+6}
            v_mul_f32 v{R}, v{R}, v{T+6}
            v_cos_f32 v{TC+i}, v{R}
            v_sin_f32 v{TSN+i}, v{R}''')
def fft_body(a, S_F, stflags='', wait=None):
    fft_main(a,S_F,stflags,hi=False,tables=True)
def fft_main(a, S_F, stflags='', hi=True, tables=False, wait=None):
    S_W=17; TS=24
    VL=1; VTR=2; VW=3; VST=4
    m=fmap(hi); C64,S64,N64,C32,S32,N32,TC,TSN,WT=m.C64,m.S64,m.N64,m.C32,m.S32,m.N32,m.TC,m.TSN,m.WT
    XF=84
    Y=116
    BR=132; BI=136
    Z=140
    a(f'v_lshlrev_b32 v{VL}, 4, v0')
    def ft_dma():
        a(f'''s_lshl_b32 s{TS}, s{S_F}, 12
        s_lshl_b32 s{TS+1}, s{S_W}, 10
        s_add_u32 s{TS+2}, s{TS}, s{TS+1}
        s_add_u32 s{TS+2}, s{TS+2}, {ws.FT}
        s_mov_b32 m0, s{TS+1}
        s_add_u32 s{TS+3}, s{TS+2}, {225*4096}
        buffer_load_dwordx4 v{VL}, s[8:11], s{TS+2} offen lds
        s_add_u32 m0, s{TS+1}, 4096
        s_nop 0
        buffer_load_dwordx4 v{VL}, s[8:11], s{TS+3} offen lds''')
    if tables:
        ft_dma(); fft_wt(a,S_F,hi,S_W,VL); fft_tables(a,hi,S_W)
    else: fft_lanevars(a,S_W)
    a(f'''v_lshlrev_b32 v{VTR}, 9, v{T+1}
    v_lshrrev_b32 v{R}, 2, v{T}
    v_lshlrev_b32 v{R}, 6, v{R}
    v_and_b32 v{R+1}, 3, v0
    v_lshlrev_b32 v{R+1}, 3, v{R+1}
    v_add3_u32 v{VTR}, v{VTR}, v{R}, v{R+1}
    v_lshlrev_b32 v{VW}, 6, v{T+2}
    v_lshlrev_b32 v{R}, 3, v{T+1}
    v_add_u32 v{VW}, v{VW}, v{R}
    v_lshlrev_b32 v{VST}, 6, v{T+2}
    v_and_b32 v{R}, 1, v{T+1}
    v_lshlrev_b32 v{R}, 5, v{R}
    v_lshrrev_b32 v{R+1}, 1, v{T+1}
    v_lshlrev_b32 v{R+1}, 4, v{R+1}
    v_add3_u32 v{VST}, v{VST}, v{R}, v{R+1}''')
    if tables: a('s_waitcnt vmcnt(2)\ns_barrier')
    else:
        wait(); ft_dma(); a('s_waitcnt vmcnt(0)\ns_barrier')
    def xf(c,t,kh): return XF+16*c+8*t+4*kh
    def trreads(base):
        for c in range(2):
            for t in range(2):
                for kh in range(2):
                    for h in range(2):
                        r=xf(c,t,kh)+2*h
                        a(f'ds_read_b64_tr_b16 v[{r}:{r+1}], v{VTR} offset:{base+c*4096+kh*2048+h*256+t*32}')
    def y(c,t): return Y+8*c+4*t
    def dft64(Stab_re, Stab_im):
        first=set()
        for kh in range(2):
            for t in range(2):
                for c in range(2):
                    d=y(c,t); cc='0' if kh==0 else f'v[{d}:{d+3}]'
                    a(f'v_mfma_f32_16x16x32_bf16 v[{d}:{d+3}], v[{xf(c,t,kh)}:{xf(c,t,kh)+3}], v[{C64+4*kh}:{C64+4*kh+3}], {cc}')
        for kh in range(2):
            for t in range(2):
                for c in range(2):
                    d=y(c,t); tab=(Stab_re if c==0 else Stab_im)+4*kh
                    a(f'v_mfma_f32_16x16x32_bf16 v[{d}:{d+3}], v[{xf(1-c,t,kh)}:{xf(1-c,t,kh)+3}], v[{tab}:{tab+3}], v[{d}:{d+3}]')
    trreads(0)
    a('s_waitcnt lgkmcnt(0)')
    dft64(S64,N64)
    a('s_nop 7')
    def twiddle(src, sign, outre, outim):
        for t in range(2):
            for r in range(4):
                i=4*t+r; ar_=src+4*t+r; ai=src+8+4*t+r
                a(f'''v_mul_f32 v{R}, v{ar_}, v{TC+i}
                v_mul_f32 v{R+1}, v{ai}, v{TC+i}''')
                if sign<0:
                    a(f'v_fma_f32 v{R}, v{ai}, v{TSN+i}, v{R}\nv_fma_f32 v{ai}, -v{ar_}, v{TSN+i}, v{R+1}\nv_mov_b32 v{ar_}, v{R}')
                else:
                    a(f'v_fma_f32 v{R}, -v{ai}, v{TSN+i}, v{R}\nv_fma_f32 v{ai}, v{ar_}, v{TSN+i}, v{R+1}\nv_mov_b32 v{ar_}, v{R}')
    def pack(src, br, bi):
        for c,b in ((0,br),(1,bi)):
            for t in range(2):
                q=src+8*c+4*t
                a(f'v_cvt_pk_bf16_f32 v{b+2*t}, v{q}, v{q+1}\nv_cvt_pk_bf16_f32 v{b+2*t+1}, v{q+2}, v{q+3}')
    twiddle(Y,-1,None,None)
    pack(Y,BR,BI)
    for i in range(8): a(f'v_mul_f32 v{TC+i}, {hex(fbits(1/2048.))}, v{TC+i}\nv_mul_f32 v{TSN+i}, {hex(fbits(1/2048.))}, v{TSN+i}')
    def dft32(dst, Sre, Sim):
        for t in range(2):
            for c in range(2):
                d=dst+8*c+4*t; b=BR if c==0 else BI
                a(f'v_mfma_f32_16x16x32_bf16 v[{d}:{d+3}], v[{C32+4*t}:{C32+4*t+3}], v[{b}:{b+3}], 0')
        for t in range(2):
            for c in range(2):
                d=dst+8*c+4*t; b=BI if c==0 else BR; tab=(Sre if c==0 else Sim)+4*t
                a(f'v_mfma_f32_16x16x32_bf16 v[{d}:{d+3}], v[{tab}:{tab+3}], v[{b}:{b+3}], v[{d}:{d+3}]')
    dft32(Z,S32,N32)
    a('s_waitcnt vmcnt(0)\ns_nop 6')
    for t in range(2):
        for r in range(4):
            xr=Z+4*t+r; xi=Z+8+4*t+r; w=WT+4*t+r
            a(f'''v_lshlrev_b32 v{R}, 16, v{w}
            v_and_b32 v{R+1}, 0xffff0000, v{w}
            v_mul_f32 v{R+2}, v{xr}, v{R}
            v_mul_f32 v{R+3}, v{xi}, v{R}
            v_fma_f32 v{R+2}, -v{xi}, v{R+1}, v{R+2}
            v_fma_f32 v{xi}, v{xr}, v{R+1}, v{R+3}
            v_mov_b32 v{xr}, v{R+2}''')
    pack(Z,BR,BI)
    a('s_nop 1')
    dft32(Y,N32,S32)
    a('s_nop 7')
    twiddle(Y,+1,None,None)
    pack(Y,BR,BI)
    for c,b in ((0,BR),(1,BI)):
        for t in range(2):
            a(f'ds_write_b64 v{VW}, v[{b+2*t}:{b+2*t+1}] offset:{8192+c*4096+t*32}')
    a('s_waitcnt lgkmcnt(0)\ns_barrier')
    trreads(8192)
    a('s_waitcnt lgkmcnt(0)')
    dft64(N64,S64)
    a(f'''s_lshl_b32 s{TS}, s{S_F}, 12
    s_add_u32 s{TS}, s{TS}, {ws.GT}
    s_add_u32 s{TS+1}, s{TS}, {225*4096}
    s_nop 5''')
    for c in range(2):
        o=BR if c==0 else BI; t0=y(c,0); t1=y(c,1)
        a(f'''v_cvt_pk_bf16_f32 v{o}, v{t0}, v{t0+1}
        v_cvt_pk_bf16_f32 v{o+1}, v{t0+2}, v{t0+3}
        v_cvt_pk_bf16_f32 v{o+2}, v{t1}, v{t1+1}
        v_cvt_pk_bf16_f32 v{o+3}, v{t1+2}, v{t1+3}
        s_nop 1
        v_permlane16_swap_b32 v{o}, v{o+2}
        v_permlane16_swap_b32 v{o+1}, v{o+3}
        buffer_store_dwordx4 v[{o}:{o+3}], v{VST}, s[8:11], s{TS+c} offen {stflags}''')
if __name__=='__main__':
    t='.amdgcn_target "amdgcn-amd-amdhsa--gfx950"\n'+fft_kernel('fft_kernel')
    open('fft.s','w').write(t)
```

```python
from common import *
import lay
import rec2 as rec, dk, j1, j2, misc, b1, fft, b3, ln, ok
from rec2 import S_ROLE,S_WAVE,S_MODE,S_T0
MEGA_LDS=ok.OK_LDS
NR=32; NJ1=112; NB1=16; NJ2=224-NJ1-NB1
NST=16
VA=248; VT=252
def mega_kernel(name, o=None, tl=False, clk=False):
    o=dict(ok.OPT if o is None else o)
    assert o.get('hlp')==2
    a=Asm(); a.l.append(head(name))
    ex=name+'_exit'; lwk=name+'_wk'; lrec=name+'_rec'
    def ts(i):
        if tl: a(f's_memrealtime s[{70+2*i}:{71+2*i}]')
    def tdump(wk):
        if not tl: return
        if wk: a(f's_add_u32 s{S_ROLE}, s58, {NR}')
        a(f'''s_waitcnt lgkmcnt(0)
        s_lshl_b32 s{S_T0}, s{S_ROLE}, 2
        s_add_u32 s{S_T0}, s{S_T0}, s{S_WAVE}
        s_lshl_b32 s{S_T0}, s{S_T0}, 6
        s_add_u32 s{S_T0}, s{S_T0}, {ws.PROF+0xE0000}
        s_mov_b64 exec, -1
        v_mov_b32 v2, 0''')
        for i in range(NST): a(f'v_writelane_b32 v2, s{70+2*i}, {i}')
        a(f'''v_lshlrev_b32 v3, 2, v0
        v_mov_b32 v4, 0x10000000
        v_cmp_gt_u32 vcc, 16, v0
        s_nop 1
        v_cndmask_b32 v3, v4, v3, vcc
        buffer_store_dword v2, v3, s[8:11], s{S_T0} offen
        s_waitcnt vmcnt(0)''')
    if tl:
        for i in range(NST): a(f's_mov_b32 s{70+2*i}, 0')
    ts(0)
    rec.prologue(a,256,ex)
    ok.election2(a,NR)
    ts(1)
    a(f's_cmp_ge_u32 s{S_ROLE}, {NR}\ns_cbranch_scc1 {lwk}')
    a(f's_cmp_lt_u32 s{S_ROLE}, 30\ns_cbranch_scc1 {lrec}')
    l30=a.lab('r30')
    a(f's_cmp_eq_u32 s{S_ROLE}, 30\ns_cbranch_scc1 {l30}\ns_cmp_lg_u32 s{S_WAVE}, 3\ns_cbranch_scc1 {ex}')
    for l in (0,1):
        lay.set_layer(l); rec.helper_ma(a,o)
    a(f's_endpgm\n{l30}:\ns_mov_b32 s39, 8000\ns_mov_b32 s18, 224')
    wg_wait(a,ws.TF,136,sleep=32,va=VA,vt=VT)
    for l in (0,1):
        lay.set_layer(l)
        fft.fft_tables(a,True)
        a('v_lshlrev_b32 v1, 4, v0'); fft.fft_wt(a,18,True)
        fft.fft_main(a,18,'sc1',wait=lambda: wg_wait(a,ws.BF+240*4,16,va=VA,vt=VT,pre=[(ws.BF+56*16,1,32)]))
        a(f's_mov_b32 s24, {ws.GF+224*4}')
        wg_flag(a,24)
    a('s_waitcnt vmcnt(0)\ns_endpgm')
    a(f'{lrec}:')
    lay.set_layer(1); LF1=ws.LF
    def wait_lf(a):
        a(f's_mov_b32 s19, {rec.POLL_LIM}')
        wg_wait(a,LF1,128,s_lim=19,pre=[(LF1+127*4,1,4)])
    l1=name+'_m1'
    a(f's_cmp_lg_u32 s{S_MODE}, 0\ns_cbranch_scc1 {l1}')
    for mode in (0,1):
        lv=f'{name}_val{mode}'
        if mode: a(f'{l1}:')
        a(f's_cmp_ge_u32 s{S_ROLE}, 16\ns_cbranch_scc1 {lv}')
        for role in ('s','v'):
            if role=='v': a(f'{lv}:')
            for l in (0,1):
                lay.set_layer(l)
                oo=dict(o); oo['wait_lf']=wait_lf
                if tl and mode==0:
                    oo['tl']=((lambda i,l=l: ts(i+2*l) if i in (2,3) else None), (lambda n,l=l: tdump(False) if l==1 else None))
                if role=='s': rec.score_role(a,False,63,clk and mode==0 and l==1,mode,oo,first=(l==0),last=(l==1))
                else: rec.value_role(a,False,63,True,mode,oo,first=(l==0),last=(l==1))
    a(f'{lwk}:\ns_sub_u32 s58, s{S_ROLE}, {NR}\ns_cmp_ge_u32 s58, 224\ns_cbranch_scc1 {ex}')
    b3.b3_dec(a,58)
    def dec_d():
        a('''s_and_b32 s18, s58, 3
        s_lshr_b32 s21, s58, 2
        s_lshr_b32 s16, s21, 2
        s_and_b32 s19, s21, 3''')
    def bpre(l):
        if l==0: wg_wait(a,ws.TF,136,va=VA,vt=VT,sleep=8)
        b3.b3_iv(a)
        fft.fft_wt(a,58,True)
        fft.fft_tables(a,True)
    for l in (0,1):
        lay.set_layer(l)
        lj2=a.lab('j2'); lb1=a.lab('b1'); lj=a.lab('join'); lj3=a.lab('join')
        if l==1:
            lay.set_layer(1)
            wg_wait(a,ws.LF,128,va=VA,vt=VT)
            ts(8)
        dec_d()
        dk.d_body(a,16,19,18,S_WAVE,stflags='sc1',flags=True,AB=0,preloaded=(l==1))
        a('s_barrier\ns_mov_b32 s39, 8000')
        ts(2+7*l)
        a(f's_cmp_ge_u32 s58, {NJ1}\ns_cbranch_scc1 {lj2}')
        div_const(a,16,58,7,112)
        a('''s_mul_i32 s18, s16, 7
        s_sub_u32 s18, s58, s18
        s_cmp_eq_u32 s18, 0
        s_cselect_b32 s19, 10, 9''')
        j1.j1_body(a,16,18,S_WAVE,None,7,stflags='sc1',om=True,S_N=19)
        a(f's_branch {lj}\n{lj2}:\ns_cmp_ge_u32 s58, {NJ1+NJ2}\ns_cbranch_scc1 {lb1}')
        if l==0:
            lm=a.lab('ml'); ln_=a.lab('mn'); ld=a.lab('md')
            a(f's_sub_u32 s59, s58, {NJ1}\n{lm}:\ns_cmp_ge_u32 s59, {misc.N_WT+misc.N_TB}\ns_cbranch_scc1 {ld}')
            misc.misc_body(a,59,ln_,17,24,False,'sc1')
            a(f'{ln_}:\ns_lshl_b32 s24, s59, 2\ns_add_u32 s24, s24, {ws.TF}')
            wg_flag(a,24,v0t=2,v1t=3)
            a(f's_add_u32 s59, s59, {NJ2}\ns_branch {lm}\n{ld}:')
        a(f's_sub_u32 s16, s58, {NJ1}')
        if l==0:
            a(f"s_load_dwordx2 s[6:7], s[0:1], {KA['x']}\ns_waitcnt lgkmcnt(0)"); srd(a,12,6,1835008); rs,so='s[12:15]','0'
        else: a(f's_mov_b32 s22, {ws.X2}'); rs,so='s[8:11]','s22'
        a(f's_mov_b32 s19, {ws.X1}')
        j2.j2_om(a,16,S_WAVE,rs,so,'s19',NJ2,nx=True,xf=True)
        a(f's_branch {lj}\n{lb1}:\ns_mov_b32 s39, 8000')
        bpre(l)
        a(f's_sub_u32 s16, s58, {NJ1+NJ2}')
        b1.b1_om(a,16,S_WAVE,NB1//4)
        a(f's_waitcnt vmcnt(0) lgkmcnt(0)\ns_barrier\ns_mov_b32 s39, 8000')
        ts(3+7*l)
        a(f's_branch {lj3}\n{lj}:\ns_waitcnt vmcnt(0) lgkmcnt(0)\ns_barrier\ns_mov_b32 s39, 8000')
        ts(3+7*l)
        bpre(l)
        a(f'{lj3}:')
        def bfwait():
            wg_wait(a,ws.BF+240*4,16,va=VA,vt=VT)
            ts(4+7*l)
        fft.fft_main(a,58,'sc1',wait=bfwait)
        a(f's_lshl_b32 s24, s58, 2\ns_add_u32 s24, s24, {ws.GF}')
        wg_flag(a,24)
        ts(5+7*l)
        wg_wait(a,ws.GF,225,va=VA,vt=VT)
        ts(14+l)
        if l==0:
            b3.b3_main(a,ws.X2)
            ts(6)
            lq=a.lab('nln')
            a(f'''s_and_b32 s18, s58, 3
            s_lshr_b32 s59, s58, 2
            s_cmp_eq_u32 s18, 0
            s_cbranch_scc1 {lq}
            s_cmp_eq_u32 s18, 3
            s_cselect_b32 s19, 56, 0
            s_cmp_eq_u32 s18, 1
            s_cselect_b32 s19, 112, s19
            s_add_u32 s59, s59, s19
            s_cmp_ge_u32 s59, 128
            s_cbranch_scc1 {lq}
            s_lshr_b32 s30, s59, 2
            s_lshl_b32 s30, s30, 5
            s_add_u32 s30, s30, {ws.YF}''')
            wg_wait(a,'s30',7,va=VA,vt=VT)
            a('s_lshr_b32 s18, s59, 1\ns_and_b32 s19, s59, 1')
            lay.set_layer(1)
            ln.ln_om(a,18,19,ws.X2)
            a(f's_lshl_b32 s24, s59, 2\ns_add_u32 s24, s24, {ws.LF}')
            wg_flag(a,24)
            a(f'{lq}:')
            ts(7)
            dec_d(); dk.d_weights(a,16,19,S_WAVE,0)
        else:
            a(f"s_load_dwordx2 s[6:7], s[0:1], {KA['out']}\ns_waitcnt lgkmcnt(0)"); srd(a,12,6,1835008)
            b3.b3_main(a,'out')
            ts(13)
    tdump(True)
    a(f'{ex}:\ns_endpgm')
    lay.set_layer(0)
    return a.text()+kd(name,vgpr=256,agpr=256)
if __name__=='__main__':
    import hz
    t='.amdgcn_target "amdgcn-amd-amdhsa--gfx950"\n'+mega_kernel('mega_kernel',tl=True); hz.check(t)
    open('mega.s','w').write(t); print(len(t))
```

```python
import sys, os
sys.path.insert(0,os.path.dirname(os.path.abspath(__file__)))
import fold, misc, ln, dk, rec, j1, j2, b1, fft, b3, hz, ok, pre
from lay import ws
NAME='interleave_layers__memory_aug_recurrent_mem_tr__spectral_gfnet__prompt'
STUB=f'cdna_kernels/{NAME}.s.ref'
def kernels_v1():
    WT='sc1'
    K={}
    K['fold_kernel']=(fold.fold_kernel('fold_kernel'),224,fold.FOLD_LDS)
    K['misc_kernel']=(misc.misc_kernel('misc_kernel'),misc.MISC_WG,misc.MISC_LDS)
    K['ln0_kernel']=(ln.ln_kernel('ln0_kernel','x'),128,ln.LN_LDS)
    K['ln1_kernel']=(ln.ln_kernel('ln1_kernel',ws.X2),128,ln.LN_LDS)
    K['d_kernel']=(dk.d_kernel('d_kernel',stflags=WT),224,dk.D_LDS)
    K['rec_kernel']=(rec.rec_kernel('rec_kernel'),256,rec.REC_LDS)
    K['j1_kernel']=(j1.j1_kernel('j1_kernel'),256,j1.J1_LDS)
    K['j2a_kernel']=(j2.j2_kernel('j2a_kernel','x'),256,j2.J2_LDS)
    K['j2b_kernel']=(j2.j2_kernel('j2b_kernel',ws.X2),256,j2.J2_LDS)
    K['b1_kernel']=(b1.b1_kernel('b1_kernel'),256,b1.B1_LDS)
    K['fft_kernel']=(fft.fft_kernel('fft_kernel'),225,fft.FFT_LDS)
    K['b3a_kernel']=(b3.b3_kernel('b3a_kernel',ws.X2),256,b3.B3_LDS)
    K['b3b_kernel']=(b3.b3_kernel('b3b_kernel','out'),256,b3.B3_LDS)
    order=['fold_kernel','misc_kernel','ln0_kernel','d_kernel','rec_kernel','j1_kernel','j2a_kernel','b1_kernel','fft_kernel','b3a_kernel',
           'ln1_kernel','d_kernel','rec_kernel','j1_kernel','j2b_kernel','b1_kernel','fft_kernel','b3b_kernel']
    return K,order
def kernels_v2():
    K,_=kernels_v1()
    K['oa_kernel']=(ok.o_kernel('oa_kernel','x'),256,ok.OK_LDS)
    K['ob_kernel']=(ok.o_kernel('ob_kernel',ws.X2),256,ok.OK_LDS)
    order=['fold_kernel','misc_kernel','ln0_kernel','oa_kernel','b1_kernel','fft_kernel','b3a_kernel',
           'ln1_kernel','ob_kernel','b1_kernel','fft_kernel','b3b_kernel']
    return K,order
def kernels_v3():
    K,_=kernels_v1()
    K['pre_kernel']=(pre.pre_kernel('pre_kernel'),256,pre.PRE_LDS)
    K['oa_kernel']=(ok.o_kernel('oa_kernel','x',do_misc=True),256,ok.OK_LDS)
    K['ob_kernel']=(ok.o_kernel('ob_kernel',ws.X2),256,ok.OK_LDS)
    order=['pre_kernel','oa_kernel','b1_kernel','fft_kernel','b3a_kernel',
           'ln1_kernel','ob_kernel','b1_kernel','fft_kernel','b3b_kernel']
    return K,order
def kernels_v4():
    import lay
    K={}
    K['pre_kernel']=(pre.pre_kernel('pre_kernel'),256,pre.PRE_LDS)
    for l,x in ((0,'a'),(1,'b')):
        lay.set_layer(l)
        K['o%s_kernel'%x]=(ok.o_kernel('o%s_kernel'%x,'x' if l==0 else ws.X2,do_misc=(l==0)),256,ok.OK_LDS)
        K['b1%s_kernel'%x]=(b1.b1_kernel('b1%s_kernel'%x),256,b1.B1_LDS)
        K['fft%s_kernel'%x]=(fft.fft_kernel('fft%s_kernel'%x),225,fft.FFT_LDS)
        K['b3%s_kernel'%x]=(b3.b3_kernel('b3%s_kernel'%x,ws.X2 if l==0 else 'out'),256,b3.B3_LDS)
    K['ln1_kernel']=(ln.ln_kernel('ln1_kernel',ws.X2,init=False),128,ln.LN_LDS)
    lay.set_layer(0)
    order=['pre_kernel','oa_kernel','b1a_kernel','ffta_kernel','b3a_kernel',
           'ln1_kernel','ob_kernel','b1b_kernel','fftb_kernel','b3b_kernel']
    return K,order
def kernels_v5():
    import lay
    K,order=kernels_v4()
    for l,x in ((0,'a'),(1,'b')):
        lay.set_layer(l)
        K['o%s_kernel'%x]=(ok.o_kernel('o%s_kernel'%x,'x' if l==0 else ws.X2,do_misc=(l==0),do_b1=True),256,ok.OK_LDS)
    lay.set_layer(0)
    order=[k for k in order if not k.startswith('b1')]
    return K,order
def kernels_v6(tl=False,o=None):
    import lay, mega
    K={}
    K['pre_kernel']=(pre.pre_kernel('pre_kernel'),256,pre.PRE_LDS)
    K['mega_kernel']=(mega.mega_kernel('mega_kernel',o=o,tl=tl),256,mega.MEGA_LDS)
    lay.set_layer(0)
    return K,['pre_kernel','mega_kernel']
def kernels_v6t(): return kernels_v6(tl=True)
def assemble_text(K,order):
    hdr=[l for l in open(STUB).read().split('\n') if l.startswith(';') and 'offset' in l or l.startswith('; Kernarg')]
    t='\n'.join(hdr)+'\n'
    for n in order: t+=f'; @launch kernel={n} grid=({K[n][1]},1,1) block=(256,1,1) lds={K[n][2]}\n'
    t+='.amdgcn_target "amdgcn-amd-amdhsa--gfx950"\n'
    body=''.join(K[n][0] for n in dict.fromkeys(order))
    return t+body, body
if __name__=='__main__':
    ver=sys.argv[2] if len(sys.argv)>2 else 'v2'
    K,order=globals()['kernels_'+ver]()
    t,body=assemble_text(K,order)
    hz.check(body)
    out=sys.argv[1] if len(sys.argv)>1 else f'cdna_kernels/{NAME}.s'
    open(out,'w').write(t); print(out,len(t))
```

```python
from asm import *
from lay import ws
NROLE=30
S_WS=8; S_DBG=12
S_ROLE=16; S_WAVE=17; S_STEP=18; S_LIM=19; S_MODE=20
S_T0=21; S_T1=22; S_T2=23; S_T3=24; S_T4=25; S_T5=26; S_T6=27
S_CNT=28
POLL_LIM=20000

def prologue(a, nwg, exitlab):
    a(f'''s_cmp_ge_u32 s2, {nwg}
    s_cbranch_scc1 {exitlab}
    s_load_dwordx2 s[4:5], s[0:1], 96
    s_load_dwordx2 s[6:7], s[0:1], 88
    v_lshrrev_b32 v1, 6, v0
    v_and_b32 v0, 63, v0
    s_waitcnt lgkmcnt(0)
    v_readfirstlane_b32 s{S_WAVE}, v1
    s_mov_b32 s8, s4
    s_mov_b32 s9, s5
    s_mov_b32 s10, 0x10000000
    s_mov_b32 s11, 0x00020000
    s_mov_b32 s12, s6
    s_mov_b32 s13, s7
    s_mov_b32 s14, 256
    s_mov_b32 s15, 0x00020000''')

def election(a, lds_role, nrole=NROLE):
    L=a.lab
    l_w, l_nocas, l_poll, l_got, l_glob, l_fin, l_none, l_wr = [L('el') for _ in range(8)]
    a(f'''s_cmp_lg_u32 s{S_WAVE}, 0
    s_cbranch_scc1 {l_w}
    s_getreg_b32 s{S_T0}, hwreg(HW_REG_XCC_ID,0,4)
    s_mov_b64 exec, 1
    s_lshl_b32 s{S_T1}, s{S_T0}, 2
    v_mov_b32 v2, s{S_T1}
    v_mov_b32 v3, 1
    v_mov_b32 v6, 64
    buffer_atomic_add v3, v2, s[12:15], 0 offen sc0 sc1
    s_add_u32 s{S_T0}, s{S_T0}, 1
    s_waitcnt vmcnt(0)
    v_readfirstlane_b32 s{S_T2}, v3
    s_nop 3
    s_cmp_lg_u32 s{S_T2}, {nrole-1}
    s_cbranch_scc1 {l_nocas}
    v_mov_b32 v4, s{S_T0}
    v_mov_b32 v5, 0
    buffer_atomic_cmpswap v[4:5], v6, s[12:15], 0 offen sc0 sc1
    s_waitcnt vmcnt(0)
    {l_nocas}:
    s_mov_b32 s{S_CNT}, 200
    {l_poll}:
    buffer_load_dword v4, v6, s[12:15], 0 offen sc0 sc1
    s_waitcnt vmcnt(0)
    v_readfirstlane_b32 s{S_T3}, v4
    s_nop 3
    s_cmp_lg_u32 s{S_T3}, 0
    s_cbranch_scc1 {l_got}
    s_sub_u32 s{S_CNT}, s{S_CNT}, 1
    s_cbranch_scc0 {l_poll}
    v_mov_b32 v4, 100
    v_mov_b32 v5, 0
    buffer_atomic_cmpswap v[4:5], v6, s[12:15], 0 offen sc0 sc1
    s_waitcnt vmcnt(0)
    v_readfirstlane_b32 s{S_T3}, v4
    s_nop 3
    s_cmp_lg_u32 s{S_T3}, 0
    s_cbranch_scc1 {l_got}
    s_mov_b32 s{S_T3}, 100
    {l_got}:
    s_cmp_eq_u32 s{S_T3}, 100
    s_cbranch_scc1 {l_glob}
    s_cmp_lg_u32 s{S_T3}, s{S_T0}
    s_cbranch_scc1 {l_none}
    s_mov_b32 s{S_T4}, s{S_T2}
    s_branch {l_fin}
    {l_glob}:
    v_mov_b32 v3, 1
    v_mov_b32 v6, 68
    buffer_atomic_add v3, v6, s[12:15], 0 offen sc0 sc1
    s_waitcnt vmcnt(0)
    v_readfirstlane_b32 s{S_T4}, v3
    s_nop 3
    s_min_u32 s{S_T4}, s{S_T4}, 255
    s_or_b32 s{S_T4}, s{S_T4}, 0x100
    s_branch {l_fin}
    {l_none}:
    s_mov_b32 s{S_T4}, 255
    {l_fin}:
    v_mov_b32 v2, {lds_role}
    v_mov_b32 v3, s{S_T4}
    ds_write_b32 v2, v3
    s_waitcnt lgkmcnt(0)
    s_mov_b64 exec, -1
    {l_w}:
    s_barrier
    v_mov_b32 v2, {lds_role}
    ds_read_b32 v3, v2
    s_waitcnt lgkmcnt(0)
    v_readfirstlane_b32 s{S_T4}, v3
    s_nop 3
    s_and_b32 s{S_ROLE}, s{S_T4}, 0xff
    s_lshr_b32 s{S_MODE}, s{S_T4}, 8''')

class DsTrack:
    def __init__(s,a): s.a=a; s.q=[]; s.done=0
    def note(s,tag): s.q.append(tag)
    def ds(s,ins,tag): s.a(ins); s.q.append(tag)
    def wait(s,tag):
        i=s.q.index(tag)+1
        if i<=s.done: return
        n=len(s.q)-i
        s.a(f's_waitcnt lgkmcnt({min(n,15)})'); s.done=max(i,len(s.q)-min(n,15))
def load_frags(a, nfr, dst, voff, soff, flags='nt'):
    for f in range(nfr):
        k,b=dst(f)
        for eta in range(2):
            r=(ar if k=='a' else vr)(b+4*eta,4)
            off=((2*f+eta)&3)*1024
            a(f'buffer_load_dwordx4 {r}, v{voff}, s[8:11], s{soff} offen offset:{off} {flags}' if off else f'buffer_load_dwordx4 {r}, v{voff}, s[8:11], s{soff} offen {flags}')
            if ((2*f+eta)&3)==3: a(f's_add_u32 s{soff}, s{soff}, 4096')

LITE={'s':(0,5,6),'v':(0,3,5,6)}
CUR=['s']
def stamp(a, prof, idx):
    if prof=='lite':
        if idx in LITE[CUR[0]]: a(f's_memrealtime s[{40+2*idx}:{41+2*idx}]')
        return
    if prof: a(f"{'s_memrealtime' if prof=='rt' else 's_memtime'} s[{40+2*idx}:{41+2*idx}]")
LS_PROF=LS_PROF0=78080
def prof_init(a, prof, vaddr):
    if not prof: return
    a(f'''s_lshl_b32 s{S_T0}, s{S_WAVE}, 11
    s_add_u32 s{S_T0}, s{S_T0}, {LS_PROF}
    v_lshlrev_b32 v2, 2, v0
    v_add_u32 v{vaddr}, s{S_T0}, v2
    v_mov_b32 v3, {LS_PROF+8192}
    v_cmp_gt_u32 vcc, 8, v0
    s_nop 1
    v_cndmask_b32 v{vaddr}, v3, v{vaddr}, vcc''')
def stamp_flush(a, prof, n, vtmp, vaddr=None):
    if not prof: return
    a('s_waitcnt lgkmcnt(0)')
    for i in range(n): a(f'v_writelane_b32 v{vtmp}, s{40+2*i}, {i}')
    a(f'''s_nop 0
    ds_write_b32 v{vaddr}, v{vtmp}
    v_cmp_gt_u32 vcc, 8, v0
    v_add_u32 v{vtmp}, 32, v{vaddr}
    s_nop 0
    v_cndmask_b32 v{vaddr}, v{vaddr}, v{vtmp}, vcc''')
def prof_dump(a, prof):
    if not prof: return
    a(f'''s_waitcnt lgkmcnt(0) vmcnt(0)
    s_lshl_b32 s{S_T0}, s{S_WAVE}, 11
    s_add_u32 s{S_T0}, s{S_T0}, {LS_PROF}
    v_lshlrev_b32 v2, 5, v0
    v_add_u32 v2, s{S_T0}, v2
    ds_read_b128 v[4:7], v2
    ds_read_b128 v[8:11], v2 offset:16
    s_lshl_b32 s{S_T0}, s{S_ROLE}, 2
    s_add_u32 s{S_T0}, s{S_T0}, s{S_WAVE}
    s_lshl_b32 s{S_T0}, s{S_T0}, 12
    s_add_u32 s{S_T0}, s{S_T0}, {ws.PROF}
    v_lshlrev_b32 v3, 6, v0
    s_waitcnt lgkmcnt(0)
    buffer_store_dwordx4 v[4:7], v3, s[8:11], s{S_T0} offen
    buffer_store_dwordx4 v[8:11], v3, s[8:11], s{S_T0} offen offset:16
    s_waitcnt vmcnt(0)''')

def poll_tail(a, lab_retry, lab_ok, vchk):
    a(f'''v_cmp_eq_u32 vcc, -1, v{vchk}
    s_cbranch_vccz {lab_ok}
    s_sub_u32 s{S_CNT}, s{S_CNT}, 1
    s_cbranch_scc0 {lab_retry}
    s_mov_b32 s{S_LIM}, 0
    {lab_ok}:''')

def hint_poll(a, vaddr, soff, regs, pw, sexp, gap='s_sleep 1'):
    lb=a.lab('hb'); lr=a.lab('hr')
    a(f's_cmp_lg_u32 s{S_WAVE}, {pw}\ns_cbranch_scc1 {lb}')
    n=len(regs)
    a(f's_mov_b32 s{S_CNT}, s{S_LIM}')
    for i,r in enumerate(regs):
        a(f'buffer_load_dword v{r}, v{vaddr}, s[8:11], s{soff} offen sc1')
        if i<n-1: a(gap)
    a(f'{lr}:')
    for i,r in enumerate(regs):
        a(f'''s_waitcnt vmcnt({n-1})
        v_cmp_gt_u32 vcc, s{sexp}, v{r}
        s_cbranch_vccz {lb}
        buffer_load_dword v{r}, v{vaddr}, s[8:11], s{soff} offen sc1''')
    a(f'''s_sub_u32 s{S_CNT}, s{S_CNT}, 1
    s_cbranch_scc0 {lr}
    s_mov_b32 s{S_LIM}, 0
    {lb}:
    s_barrier''')

def store2(a, txt, mode=None):
    if mode is not None:
        for t in txt: a(t+(' sc1' if mode else ''))
        return
    return store2_dyn(a,txt)
def store2_dyn(a, txt):
    l1=a.lab('st'); l2=a.lab('st')
    a(f's_cmp_lg_u32 s{S_MODE}, 0\ns_cbranch_scc1 {l1}')
    for t in txt: a(t)
    a(f's_branch {l2}\n{l1}:')
    for t in txt: a(t+' sc1')
    a(f'{l2}:')

LS_MX=0; LS_XK=8192; LS_T2=36864; LS_SB=51200; LS_SD=59392; LS_ROLE=77824
def score_role(a, prof, nsteps=63, clk=False, mode=None, o={}, first=True, last=True):
    CUR[0]='s'
    hint=o.get('hint',0); hint_sm=o.get('hint_sm',hint); hint_vp=o.get('hint_vp',hint)
    fill=o.get('fill',0); tail=o.get('tail',0); hp_pos=o.get('hp_pos',1); SCM=' sc1' if mode else ''
    IDX=1; A0=4
    ACC=[32,36,40]; PK=44
    TF=48
    KD=62
    SC2=86
    VL16=90; VMXW=91; VMK=92; VMKO=93; VXK=94; VXKO=95; VT2W=96; VT2R=97; VSW=98; VSWM=99; VSR=100; VPST=101; VPOLL=102; VDMA=103
    NEG=104
    PL=62
    WV=120
    def wdst(f): return ('a',8*f) if f<32 else ('v',WV+8*(f-32))
    def wreg(f):
        k,b=wdst(f); return (ar if k=='a' else vr)(b,8)
    S_PO=29; S_PO2=30; S_PS=31; S_PP=32; S_XO=33; S_HO=34
    VHP=107; VHS=108; VONE=109; VPA=110
    L=a.lab
    a(f'''v_lshlrev_b32 v{VL16}, 4, v0
    s_mul_i32 s{S_T0}, s{S_ROLE}, {4*49*2048}
    s_mul_i32 s{S_T1}, s{S_WAVE}, {49*2048}
    s_add_u32 s{S_T0}, s{S_T0}, s{S_T1}
    s_add_u32 s{S_T0}, s{S_T0}, {ws.AI}''')
    km=o.get('km',0)
    KO=list(range(40,47))
    def slot_offsets(sh):
        a(f's_mov_b32 s{S_T1}, s{S_WAVE}')
        for j in range(7):
            a(f's_lshl_b32 s{KO[j]}, s{S_T1}, {sh}')
            if j<6: a(f's_add_u32 s{S_T1}, s{S_T1}, 4\ns_sub_u32 s{S_T2}, s{S_T1}, 7\ns_cselect_b32 s{S_T1}, s{S_T1}, s{S_T2}')
    if first and not km: load_frags(a,49,wdst,VL16,S_T0)
    if first and km:
        slot_offsets(11)
        for t in range(7):
            for j in range(7):
                k_,b=wdst(t*7+j)
                a(f's_add_u32 s{S_T1}, s{S_T0}, s{KO[j]}')
                for eta in range(2):
                    r=(ar if k_=='a' else vr)(b+4*eta,4)
                    a(f'buffer_load_dwordx4 {r}, v{VL16}, s[8:11], s{S_T1} offen'+(f' offset:{eta*1024}' if eta else '')+' nt')
            a(f's_add_u32 s{S_T0}, s{S_T0}, {7*2048}')
    a(f'''v_and_b32 v2, 8, v0
    v_mov_b32 v{IDX}, 0x44444444
    v_mov_b32 v3, 0xeeeeeeee
    v_cmp_ne_u32 vcc, 0, v2
    v_mov_b32 v{NEG}, -1
    v_mov_b32 v{NEG+1}, -1
    v_cndmask_b32 v{IDX}, v{IDX}, v3, vcc
    s_lshl_b32 s{S_T1}, s{S_WAVE}, 10
    v_add_u32 v{VMXW}, s{S_T1}, v{VL16}
    v_mov_b32 v{VPOLL}, v{VMXW}''')
    VID=112
    if o.get('mt6',0):
        a(f'''v_lshrrev_b32 v2, 4, v0
        v_and_b32 v3, 15, v0
        v_lshlrev_b32 v2, 2, v2
        v_sub_u32 v3, v3, v2
        v_mov_b32 v4, 0x3f80
        v_mov_b32 v5, 0x3f800000
        v_mov_b32 v{VID}, 0
        v_mov_b32 v{VID+1}, 0
        v_cmp_eq_u32 vcc, 0, v3
        s_nop 1
        v_cndmask_b32 v{VID}, v{VID}, v4, vcc
        v_cmp_eq_u32 vcc, 1, v3
        s_nop 1
        v_cndmask_b32 v{VID}, v{VID}, v5, vcc
        v_cmp_eq_u32 vcc, 2, v3
        s_nop 1
        v_cndmask_b32 v{VID+1}, v{VID+1}, v4, vcc
        v_cmp_eq_u32 vcc, 3, v3
        s_nop 1
        v_cndmask_b32 v{VID+1}, v{VID+1}, v5, vcc''')
    a(f'''s_movk_i32 s{S_T2}, 4096
    s_cmp_eq_u32 s{S_WAVE}, 3
    s_cselect_b32 s{S_T2}, 0x10000000, s{S_T2}
    v_add_u32 v{VDMA}, s{S_T2}, v{VPOLL}''')
    VPOLL2=106
    a(f'v_mov_b32 v{VPOLL2}, v{VDMA}')
    if km:
        a(f'''s_cmp_eq_u32 s{S_WAVE}, 3
        s_cselect_b32 s{S_T2}, 0, 4096
        s_cselect_b32 s{S_T3}, 0, s{S_WAVE}
        s_lshl_b32 s{S_T3}, s{S_T3}, 10
        s_add_u32 s{S_T2}, s{S_T2}, s{S_T3}
        v_add_u32 v{VPOLL2}, s{S_T2}, v{VL16}''')
    a(f'''v_lshrrev_b32 v2, 4, v0
    v_and_b32 v3, 7, v0
    v_lshlrev_b32 v3, 4, v3
    s_mul_i32 s{S_T1}, s{S_WAVE}, {14*128}
    v_lshlrev_b32 v4, 7, v2
    v_add3_u32 v{VMK}, v4, v3, s{S_T1}
    v_lshrrev_b32 v4, 1, v2
    v_lshlrev_b32 v4, 7, v4
    v_and_b32 v5, 1, v2
    v_lshlrev_b32 v5, 3, v5
    s_add_u32 s{S_T1}, s{S_T1}, {12*128}
    v_add3_u32 v{VMKO}, v4, v3, s{S_T1}
    v_add_u32 v{VMKO}, v{VMKO}, v5
    s_mul_i32 s{S_T1}, s{S_WAVE}, 7168
    s_add_u32 s{S_T1}, s{S_T1}, {LS_XK}
    v_add_u32 v{VXK}, s{S_T1}, v{VL16}
    v_lshlrev_b32 v4, 3, v0
    s_add_u32 s{S_T1}, s{S_T1}, 6144
    v_add_u32 v{VXKO}, s{S_T1}, v4''')
    a(f'''s_mul_i32 s{S_T1}, s{S_WAVE}, 3584
    s_add_u32 s{S_T1}, s{S_T1}, {LS_T2}
    v_and_b32 v3, 15, v0
    v_lshrrev_b32 v4, 2, v3
    v_xor_b32 v4, v4, v2
    v_lshlrev_b32 v4, 3, v4
    v_lshlrev_b32 v5, 5, v3
    v_add3_u32 v{VT2W}, v4, v5, s{S_T1}
    v_and_b32 v4, 3, v0
    v_xor_b32 v4, v4, v2
    v_lshlrev_b32 v4, 3, v4
    v_lshrrev_b32 v5, 2, v0
    v_lshlrev_b32 v5, 5, v5
    v_add3_u32 v{VT2R}, v4, v5, s{S_T1}''')
    a(f'''s_lshl_b32 s{S_T1}, s{S_WAVE}, 11
    s_add_u32 s{S_T1}, s{S_T1}, {LS_SB}
    v_and_b32 v4, 7, v0
    v_lshrrev_b32 v5, 3, v3
    v_lshlrev_b32 v6, 2, v5
    v_add_u32 v6, v6, v2
    v_lshrrev_b32 v7, 1, v6
    v_add_u32 v7, v7, v4
    v_and_b32 v7, 7, v7
    v_lshlrev_b32 v7, 4, v7
    v_lshlrev_b32 v6, 7, v6
    v_add3_u32 v{VSW}, v6, v7, s{S_T1}''')
    a(f'''v_add_u32 v6, 8, v2
    v_lshrrev_b32 v7, 1, v6
    v_add_u32 v7, v7, v4
    v_and_b32 v7, 7, v7
    v_lshlrev_b32 v7, 4, v7
    v_lshlrev_b32 v6, 7, v6
    v_add3_u32 v{VSWM}, v6, v7, s{S_T1}
    v_lshrrev_b32 v6, 1, v2
    v_or_b32 v6, v6, v5
    v_add_u32 v7, {LS_SD}, v{VL16}
    v_cmp_ne_u32 vcc, 0, v6
    s_nop 1
    v_cndmask_b32 v{VSWM}, v{VSWM}, v7, vcc''')
    a(f'''s_lshl_b32 s{S_T1}, s{S_WAVE}, 2
    v_add_u32 v4, s{S_T1}, v2
    v_and_b32 v4, 7, v4
    v_lshrrev_b32 v5, 1, v3
    v_add_u32 v5, v5, v4
    v_and_b32 v5, 7, v5
    v_lshlrev_b32 v5, 4, v5
    v_lshlrev_b32 v6, 7, v3
    v_add_u32 v6, {LS_SB}, v6
    v_add_u32 v{VSR}, v6, v5''')
    a(f'''s_lshr_b32 s{S_T1}, s{S_ROLE}, 2
    s_lshl_b32 s{S_T2}, s{S_T1}, 11
    s_and_b32 s{S_T3}, s{S_ROLE}, 3
    s_lshl_b32 s{S_T3}, s{S_T3}, 8
    s_add_u32 s{S_T2}, s{S_T2}, s{S_T3}
    v_lshrrev_b32 v5, 2, v3
    v_lshlrev_b32 v5, 10, v5
    v_lshrrev_b32 v6, 1, v3
    v_and_b32 v6, 1, v6
    v_lshlrev_b32 v6, 7, v6
    v_lshlrev_b32 v7, 4, v4
    v_add3_u32 v5, v5, v6, v7
    v_and_b32 v6, 1, v3
    v_lshlrev_b32 v8, 3, v6
    v_add3_u32 v5, v5, v8, s{S_T2}
    s_lshl_b32 s{S_T2}, s{S_T1}, 9
    s_and_b32 s{S_T3}, s{S_ROLE}, 1
    s_lshl_b32 s{S_T3}, s{S_T3}, 8
    s_add_u32 s{S_T2}, s{S_T2}, s{S_T3}
    s_lshr_b32 s{S_T3}, s{S_ROLE}, 1
    s_and_b32 s{S_T3}, s{S_T3}, 1
    s_lshl_b32 s{S_T3}, s{S_T3}, 3
    s_add_u32 s{S_T2}, s{S_T2}, s{S_T3}
    s_add_u32 s{S_T2}, s{S_T2}, 8192
    v_lshlrev_b32 v8, 7, v6
    v_add3_u32 v8, v8, v7, s{S_T2}
    v_cmp_gt_u32 vcc, 8, v3
    s_nop 1
    v_cndmask_b32 v5, v8, v5, vcc
    v_mov_b32 v8, 0x10000000
    v_cmp_gt_u32 vcc, 10, v3
    s_nop 1
    v_cndmask_b32 v{VPST}, v8, v5, vcc''')
    a(f'''s_lshl_b32 s{S_T1}, s{S_WAVE}, 11
    s_add_u32 s{S_T1}, s{S_T1}, {LS_SB}
    v_lshlrev_b32 v2, 5, v0
    v_add_u32 v2, s{S_T1}, v2
    v_mov_b32 v4, 0xf149f2ca
    v_mov_b32 v5, v4
    v_mov_b32 v6, v4
    v_mov_b32 v7, v4
    ds_write_b128 v2, v[4:7]
    ds_write_b128 v2, v[4:7] offset:16''')
    def xk_dma(nxt):
        for k in range(14):
            a(f's_add_u32 m0, s{S_T5}, {k*1024}' if k else f's_mov_b32 m0, s{S_T5}')
            off=(k&3)*1024
            a(f's_add_u32 s{S_T6}, s{S_XO}, {k*1024}')
            a(f'buffer_load_dwordx4 v{VL16}, s[8:11], s{S_T6} offen lds')
    lx=L('xk')
    if not first: o['wait_lf'](a)
    a(f'''s_sub_u32 s{S_T1}, s{S_WAVE}, 2
    s_mul_i32 s{S_T1}, s{S_T1}, 14336
    s_add_u32 s{S_XO}, s{S_T1}, {ws.XK}
    s_add_u32 s{S_T5}, s{S_T1}, {LS_XK}
    s_cmp_lt_u32 s{S_WAVE}, 2
    s_cbranch_scc1 {lx}''')
    xk_dma(0)
    a(f'''{lx}:
    s_mov_b32 s{S_STEP}, 0
    s_mov_b32 s{S_LIM}, {POLL_LIM}
    s_mov_b32 s{S_PO}, {ws.MA}
    s_mov_b32 s{S_HO}, {ws.H}
    v_min_u32 v{VHP}, 55, v0
    v_lshlrev_b32 v{VHP}, 2, v{VHP}
    s_lshl_b32 s{S_T1}, s{S_ROLE}, 1
    s_add_u32 s{S_T1}, s{S_T1}, s{S_WAVE}
    s_lshl_b32 s{S_T1}, s{S_T1}, 2
    s_add_u32 s{S_T1}, s{S_T1}, 256
    v_mov_b32 v2, s{S_T1}
    v_mov_b32 v3, 0x10000000
    v_cmp_eq_u32 vcc, 0, v0
    v_mov_b32 v{VONE}, 1
    s_nop 0
    v_cndmask_b32 v{VHS}, v3, v2, vcc''')
    VA={2:107,3:108,4:109,5:118,6:119}; VPF=103; VDUM=111; S_PF=35
    if km:
        assert not (hint or hint_sm or hint_vp) and fill and o.get('mt6') and o.get('sp',1)==2
        slot_offsets(10)
        for j in range(2,7): a(f'v_add_u32 v{VA[j]}, s{KO[j]}, v{VL16}')
    dpf=o.get('dpf',0); xpf=o.get('xpf',0)
    if xpf:
        a(f'''s_lshl_b32 s{S_T1}, s{S_ROLE}, 2
        s_add_u32 s{S_T1}, s{S_T1}, s{S_WAVE}
        s_mul_i32 s{S_T1}, s{S_T1}, {7*64}
        v_lshlrev_b32 v2, 6, v0
        v_add_u32 v2, s{S_T1}, v2
        v_mov_b32 v3, 0x10000000
        v_cmp_gt_u32 vcc, 7, v0
        s_mov_b32 s{S_PF}, {ws.XK+xpf*28672}
        s_nop 0
        v_cndmask_b32 v{VPF}, v3, v2, vcc''')
    if dpf:
        a(f'''s_lshl_b32 s{S_T1}, s{S_ROLE}, 2
        s_add_u32 s{S_T1}, s{S_T1}, s{S_WAVE}
        s_mul_i32 s{S_T1}, s{S_T1}, {56*128}
        v_lshlrev_b32 v2, 7, v0
        v_add_u32 v2, s{S_T1}, v2
        v_mov_b32 v3, 0x10000000
        v_cmp_gt_u32 vcc, 56, v0
        s_mov_b32 s{S_PF}, {ws.DI+dpf*14*32768}
        s_nop 0
        v_cndmask_b32 v{VPF}, v3, v2, vcc''')
    loop=L('sloop'); pr=L('spoll'); pok=L('spok')
    prof_init(a,prof,VPA)
    if clk: a('s_waitcnt vmcnt(0)\ns_memtime s[60:61]\ns_memrealtime s[62:63]\ns_waitcnt lgkmcnt(0)')
    if 'tl' in o: o['tl'][0](2)
    a(f'{loop}:')
    stamp(a,prof,0)
    AC=[32,36,40,86,4,8,114]
    if km:
        if not o.get('kz',0):
            for t in range(7): a(f'v_mov_b64 v[{AC[t]}:{AC[t]+1}], 0\nv_mov_b64 v[{AC[t]+2}:{AC[t]+3}], 0')
    elif fill:
        for r in range(0,8,2): a(f'v_mov_b64 v[{ACC[0]+r}:{ACC[0]+r+1}], 0')
    if hint_vp: a(f's_add_u32 s{S_T1}, s{S_STEP}, 1\nv_mov_b32 v{VONE}, s{S_T1}')
    if hint_sm: hint_poll(a,VHP,S_HO,[4,5,6],0,S_STEP)
    if o.get('sst') is None: stamp(a,prof,6)
    sp=o.get('sp',1)
    if o.get('ssl'):
        s01,s23=o['ssl']; q1=L('ssl'); q2=L('ssl')
        a(f's_cmp_ge_u32 s{S_WAVE}, 2\ns_cbranch_scc1 {q1}\ns_sleep {s01}\ns_branch {q2}\n{q1}:\ns_sleep {s23}\n{q2}:')
    if sp==1:
        a(f'''s_mov_b32 s{S_CNT}, s{S_LIM}
        {pr}:
        buffer_load_dwordx4 v[{PL}:{PL+3}], v{VPOLL}, s[8:11], s{S_PO} offen sc1
        buffer_load_dwordx4 v[{PL+4}:{PL+7}], v{VPOLL2}, s[8:11], s{S_PO} offen sc1
        s_waitcnt vmcnt(1)
        ds_write_b128 v{VMXW}, v[{PL}:{PL+3}]
        v_max3_u32 v2, v{PL}, v{PL+1}, v{PL+2}
        v_max_u32 v2, v2, v{PL+3}
        s_waitcnt vmcnt(0)
        ds_write_b128 v{VMXW}, v[{PL+4}:{PL+7}] offset:4096
        v_max3_u32 v2, v2, v{PL+4}, v{PL+5}
        v_max3_u32 v2, v2, v{PL+6}, v{PL+7}''')
        poll_tail(a,pr,pok,2)
    else:
        def iss(i):
            r=PL+8*i
            a(f'buffer_load_dwordx4 v[{r}:{r+3}], v{VPOLL}, s[8:11], s{S_PO} offen sc1\nbuffer_load_dwordx4 v[{r+4}:{r+7}], v{VPOLL2}, s[8:11], s{S_PO} offen sc1')
        a(f's_mov_b32 s{S_CNT}, s{S_LIM}')
        if prof: a('s_mov_b32 s55, 0')
        if o.get('spw',1): a('s_waitcnt vmcnt(0)')
        for i in range(sp):
            iss(i)
            if i<sp-1 and o.get('spd',3): a(f"s_sleep {o.get('spd',3)}")
        if km and o.get('kz',0):
            for t in range(7): a(f'v_mov_b64 v[{AC[t]}:{AC[t]+1}], 0\nv_mov_b64 v[{AC[t]+2}:{AC[t]+3}], 0')
        a(f'{pr}:')
        poks=[L('spok') for i in range(sp)] if km else [pok]*sp
        for i in range(sp):
            r=PL+8*i
            a(f'''s_waitcnt vmcnt({2*sp-1})
            ds_write_b128 v{VMXW}, v[{r}:{r+3}]
            v_max3_u32 v2, v{r}, v{r+1}, v{r+2}
            v_max_u32 v2, v2, v{r+3}
            s_waitcnt vmcnt({2*sp-2})
            ds_write_b128 v{VMXW}, v[{r+4}:{r+7}] offset:4096
            v_max3_u32 v2, v2, v{r+4}, v{r+5}
            v_max3_u32 v2, v2, v{r+6}, v{r+7}
            v_cmp_eq_u32 vcc, -1, v2
            s_cbranch_vccz {poks[i]}''')
            if prof: a('s_add_u32 s55, s55, 1')
            iss(i)
        a(f'''s_sub_u32 s{S_CNT}, s{S_CNT}, 1
        s_cbranch_scc0 {pr}
        s_mov_b32 s{S_LIM}, 0''')
        if not km: a(f'{pok}:')
    def km_mm(t,j,r): a(f'v_smfmac_f32_16x16x64_bf16 v[{AC[t]}:{AC[t]+3}], v[{r}:{r+3}], {wreg(t*7+j)}, v{IDX}')
    AK=lambda j: A0+4*j
    if km:
        n1=o.get('kn1',5); cont=L('kc')
        for i in range(sp):
            r=PL+8*i
            a(f'{poks[i]}:')
            stamp(a,prof,1)
            if prof: a(f's_mov_b32 s54, s55')
            seq=[(t,j) for j in (0,1) for t in range(7)]
            for (t,j) in seq[:n1]: km_mm(t,j,r+4*j)
            a('s_waitcnt lgkmcnt(0)\ns_barrier')
            for j in range(2,7): a(f'ds_read_b128 v[{AK(j)}:{AK(j)+3}], v{VA[j]}')
            stamp(a,prof,2)
            for (t,j) in seq[n1:]: km_mm(t,j,r+4*j)
            if i<sp-1: a(f's_branch {cont}')
        a(f'{cont}:')
        if o.get('sst')==-1: stamp(a,prof,6)
    else:
        stamp(a,prof,1)
        if prof: a(f's_sub_u32 s54, s{S_LIM}, s{S_CNT}')
        a('s_waitcnt lgkmcnt(0)\ns_barrier')
        for k in range(7): a(f'ds_read_b128 v[{A0+4*k}:{A0+4*k+3}], v{VL16} offset:{k*1024}')
        if not fill:
            for r in range(8): a(f'v_mov_b32 v{ACC[0]+r}, 0')
        stamp(a,prof,2)
    a(f'''s_add_u32 s{S_T0}, s{S_STEP}, 1
    s_and_b32 s{S_T0}, s{S_T0}, 3
    s_mul_i32 s{S_T0}, s{S_T0}, 7168
    s_add_u32 s{S_PO}, s{S_T0}, {ws.MR}
    s_and_b32 s{S_T0}, s{S_STEP}, 3
    s_mul_i32 s{S_T0}, s{S_T0}, 10240
    s_add_u32 s{S_PS}, s{S_T0}, {ws.PR}
    s_add_u32 s{S_T0}, s{S_STEP}, 2
    s_and_b32 s{S_T0}, s{S_T0}, 3
    s_mul_i32 s{S_T0}, s{S_T0}, 10240
    s_add_u32 s{S_PP}, s{S_T0}, {ws.PR}''')
    def keyreg(j,x):
        if j<2: return KD+12*j+4*x
        if km: return 12+4*x if j==2 else 24+2*x
        if j==2: return A0+4*x
        return A0+12+2*x
    def keyread(j,x):
        r=keyreg(j,x)
        if j<3:
            if x==0: return f'ds_read_b128 v[{r}:{r+3}], v{VMK} offset:{j*512}'
            return f'ds_read_b128 v[{r}:{r+3}], v{VXK} offset:{((x-1)*3+j)*1024}'
        if x==0: return f'ds_read_b64 v[{r}:{r+1}], v{VMKO}'
        return f'ds_read_b64 v[{r}:{r+1}], v{VXKO} offset:{(x-1)*512}'
    def tfreg(t): return TF+2*t
    def post(t):
        ac=ACC[t%3]; pk=PK+2*(t&1)
        return ([f'v_cvt_pk_bf16_f32 v{pk}, v{ac}, v{ac+1}', f'v_cvt_pk_bf16_f32 v{pk+1}, v{ac+2}, v{ac+3}'],
                f'ds_write_b64 v{VT2W}, v[{pk}:{pk+1}] offset:{t*512}',
                f'ds_read_b64_tr_b16 v[{tfreg(t)}:{tfreg(t)+1}], v{VT2R} offset:{t*512}')
    SA=[SC2,ACC[1],ACC[2]] if not km else AC[:3]
    npf=o.get('npf',1)
    PFL='\n'.join(f'buffer_load_dword v{VDUM}, v{VPF}, s[8:11], s{S_PF} offen offset:{i*128//npf}' for i in range(npf))+f'\ns_add_u32 s{S_PF}, s{S_PF}, {28672 if xpf else 14*32768}'
    dpf=dpf or xpf
    def smf(j,x):
        c='0' if j==0 else f'v[{SA[x]}:{SA[x]+3}]'
        if j<3: return f'v_mfma_f32_16x16x32_bf16 v[{SA[x]}:{SA[x]+3}], v[{keyreg(j,x)}:{keyreg(j,x)+3}], v[{TF+4*j}:{TF+4*j+3}], {c}'
        return f'v_mfma_f32_16x16x16_bf16 v[{SA[x]}:{SA[x]+3}], v[{keyreg(j,x)}:{keyreg(j,x)+1}], v[{tfreg(6)}:{tfreg(6)+1}], {c}'
    if not fill:
        kq=[keyread(j,x) for j in range(2) for x in range(3)]
        for t in range(7):
            ac=ACC[t%3]
            for k in range(7):
                if t==0: a(f's_waitcnt lgkmcnt({6-k})')
                a(f'v_smfmac_f32_16x16x64_bf16 v[{ac}:{ac+3}], v[{A0+4*k}:{A0+4*k+3}], {wreg(t*7+k)}, v{IDX}')
                fl=[]
                if t>=1:
                    cv,wr,rd=post(t-1)
                    if k==3: fl=cv
                    if k==4: fl=[wr,rd]
                if 1<=t<6 or t==0:
                    nx=ACC[(t+1)%3]
                    if t>=1:
                        if k==0: fl=[f'v_mov_b32 v{nx}, 0',f'v_mov_b32 v{nx+1}, 0']
                        if k==1: fl=[f'v_mov_b32 v{nx+2}, 0',f'v_mov_b32 v{nx+3}, 0']
                if t in (2,3,4) and k in (5,6) and kq: fl=[kq.pop(0)]
                for x in fl: a(x)
        assert not kq
        stamp(a,prof,3)
        cv,wr,rd=post(6)
        a(keyread(2,0)); a(keyread(2,1))
        a('s_waitcnt lgkmcnt(2)')
        a(smf(0,0)); a(keyread(2,2)); a(keyread(3,0))
        a(smf(0,1)); a(keyread(3,1)); a(keyread(3,2))
        a(smf(0,2)); a('s_nop 0')
        a(smf(1,0)); a(cv[0]); a(cv[1])
        a(smf(1,1)); a(wr); a(rd)
        a(smf(1,2))
        a('s_waitcnt lgkmcnt(5)')
        a(smf(2,0)); a(smf(2,1)); a(smf(2,2))
        a('s_waitcnt lgkmcnt(0)')
        a(smf(3,0)); a(smf(3,1)); a(smf(3,2))
        a('s_nop 5')
        for r in range(4): a(f'v_add_f32_dpp v{4+r}, v{SA[0]+r}, v{SA[0]+r} row_ror:8 row_mask:0xf bank_mask:0xf')
        a(f'ds_write_b128 v{VSWM}, v[4:7]')
        for r in range(4): a(f'v_add_f32_dpp v{8+r}, v{SA[1]+r}, v{SA[1]+r} row_ror:8 row_mask:0xf bank_mask:0x3')
        for r in range(4): a(f'v_add_f32_dpp v{8+r}, v{SA[2]+r}, v{SA[2]+r} row_ror:8 row_mask:0xf bank_mask:0xc')
        a(f'ds_write_b128 v{VSW}, v[8:11]')
    elif km:
        T=DsTrack(a)
        for j in range(2,7): T.note(('A',j))
        kq=[(('K',j,x),keyread(j,x)) for j in range(2) for x in range(3)]
        def postk(t):
            ac=AC[t]; pk=PK+2*(t&1)
            return ([f'v_cvt_pk_bf16_f32 v{pk}, v{ac}, v{ac+1}', f'v_cvt_pk_bf16_f32 v{pk+1}, v{ac+2}, v{ac+3}'],
                    f'ds_write_b64 v{VT2W}, v[{pk}:{pk+1}] offset:{t*512}',
                    f'ds_read_b64_tr_b16 v[{tfreg(t)}:{tfreg(t)+1}], v{VT2R} offset:{t*512}')
        kt0=o.get('kt0',1); kb=o.get('kb',0)
        if kb:
            G={}
            def put(t,j,tag,ins): G.setdefault((t,j),[]).append((tag,ins))
            for t in range(1,7):
                cv,wr,rd=postk(t-1); pk=PK+2*((t-1)&1)
                put(t,3,None,cv[0]); put(t,4,None,cv[1])
                put(t,5,('W0',t-1),f'ds_write_b32 v{VT2W}, v{pk} offset:{(t-1)*512}')
                put(t,6,('W1',t-1),f'ds_write_b32 v{VT2W}, v{pk+1} offset:{(t-1)*512+4}')
                if t<6: put(t+1,2,('T',t-1),rd)
            ko=[(1,1),(1,2),(0,0),(0,1),(0,2),(1,0)]
            kp=o.get('kp',[(0,2),(0,3),(0,4),(0,5),(0,6),(1,2)])
            for (jj,x),(t,j) in zip(ko,kp):
                if (jj,x)==(0,0): put(t,j,None,'s_waitcnt vmcnt(0)'+('\n'+PFL if dpf else ''))
                put(t,j,('K',jj,x),keyread(jj,x))
            kq=[]
            if kb==1:
                for j in (2,3,4): put(6,j,('K',2,j-2),keyread(2,j-2))
                put(6,5,('K',3,0),keyread(3,0)); put(6,6,('K',3,1),keyread(3,1))
            if kb==3:
                put(6,3,('K',2,0),keyread(2,0)); put(6,4,('K',2,1),keyread(2,1))
            for t in range(7):
                for j in range(2,7):
                    if t==0: T.wait(('A',j))
                    km_mm(t,j,AK(j))
                    for tag,ins in G.get((t,j),[]):
                        if tag: T.ds(ins,tag)
                        else: a(ins)
                if o.get('sst')==t: stamp(a,prof,6)
        for t in range(7 if not kb else 0):
            for j in range(2,7):
                if t==0: T.wait(('A',j))
                km_mm(t,j,AK(j))
                if t>=1:
                    cv,wr,rd=postk(t-1)
                    if j==3: a(cv[0])
                    if j==4: a(cv[1])
                    if j==5: T.ds(wr,('W',t-1))
                    if j==6: T.ds(rd,('T',t-1))
                if t in (kt0,kt0+1,kt0+2) and j in (2,3) and kq:
                    if t==kt0 and j==2:
                        a('s_waitcnt vmcnt(0)')
                        if dpf: a(PFL)
                    tg,ins=kq.pop(0); T.ds(ins,tg)
                if t==6:
                    if j in (2,3,4): T.ds(keyread(2,j-2),('K',2,j-2))
                    if j==5: T.ds(keyread(3,0),('K',3,0)); T.ds(keyread(3,1),('K',3,1))
            if o.get('sst')==t: stamp(a,prof,6)
        assert not kq
        stamp(a,prof,3)
        cv,_,_=postk(6)
        def S2(j,x):
            T.wait(('K',j,x))
            if j<3: T.wait(('T',2*j+1))
            a(smf(j,x))
        t6=tfreg(6); q0=AC[3]
        KR=lambda j,x: T.ds(keyread(j,x),('K',j,x))
        S2(0,0)
        if kb: T.ds(postk(5)[2],('T',5))
        if kb==2: KR(2,0)
        elif kb==3: KR(2,2)
        else: KR(3,2)
        S2(0,1); a(cv[0]); a(cv[1])
        S2(0,2)
        if kb==2: KR(2,1); a('s_nop 0') if 0 else None
        elif kb==3: KR(3,0)
        else: a('s_nop 0')
        a(f'v_mfma_f32_16x16x16_bf16 v[{q0}:{q0+3}], v[{PK}:{PK+1}], v[{VID}:{VID+1}], 0')
        if kb==2: KR(2,2)
        if kb==3: KR(3,1)
        S2(1,0)
        if kb==2: KR(3,0)
        if kb==3: KR(3,2)
        S2(1,1)
        if kb==2: KR(3,1)
        S2(1,2); a(f'v_cvt_pk_bf16_f32 v{t6}, v{q0}, v{q0+1}')
        if kb==2: KR(3,2)
        S2(2,0); a(f'v_cvt_pk_bf16_f32 v{t6+1}, v{q0+2}, v{q0+3}')
        S2(2,1)
        S2(2,2)
        for x in range(3): S2(3,x)
        for r in range(4): a(f'v_add_f32_dpp v{4+r}, v{SA[0]+r}, v{SA[0]+r} row_ror:8 row_mask:0xf bank_mask:0xf')
        a(f'ds_write_b128 v{VSWM}, v[4:7]')
        for r in range(4): a(f'v_add_f32_dpp v{8+r}, v{SA[1]+r}, v{SA[1]+r} row_ror:8 row_mask:0xf bank_mask:0x3')
        for r in range(4): a(f'v_add_f32_dpp v{8+r}, v{SA[2]+r}, v{SA[2]+r} row_ror:8 row_mask:0xf bank_mask:0xc')
        a(f'ds_write_b128 v{VSW}, v[8:11]')
    else:
        T=DsTrack(a)
        for k in range(7): T.note(('A',k))
        kq=[(('K',j,x),keyread(j,x)) for j in range(2) for x in range(3)]
        def post2(t):
            ac=ACC[t%3]; pk=PK+2*(t&1)
            return ([f'v_cvt_pk_bf16_f32 v{pk}, v{ac}, v{ac+1}', f'v_cvt_pk_bf16_f32 v{pk+1}, v{ac+2}, v{ac+3}'],
                    [f'ds_write_b32 v{VT2W}, v{pk} offset:{t*512}', f'ds_write_b32 v{VT2W}, v{pk+1} offset:{t*512+4}'],
                    f'ds_read_b64_tr_b16 v[{tfreg(t)}:{tfreg(t)+1}], v{VT2R} offset:{t*512}')
        for t in range(7):
            ac=ACC[t%3]
            for k in range(7):
                if t==0: T.wait(('A',k))
                a(f'v_smfmac_f32_16x16x64_bf16 v[{ac}:{ac+3}], v[{A0+4*k}:{A0+4*k+3}], {wreg(t*7+k)}, v{IDX}')
                if t>=1:
                    cv,wr,rd=post2(t-1)
                    nx=ACC[(t+1)%3]
                    if k==0 and t<6: a(f'v_mov_b64 v[{nx}:{nx+1}], 0')
                    if k==1 and t<6: a(f'v_mov_b64 v[{nx+2}:{nx+3}], 0')
                    if k==2: a(cv[0])
                    if k==3: a(cv[1])
                    if k==4: T.ds(wr[0],('W0',t-1))
                    if k==5: T.ds(wr[1],('W1',t-1))
                    if k==6: T.ds(rd,('T',t-1))
                    if t in (2,3,4) and k in (0,1) and kq:
                        if sp>1 and t==2 and k==0:
                            a('s_waitcnt vmcnt(0)')
                            if dpf: a(PFL)
                        tg,ins=kq.pop(0); T.ds(ins,tg)
                if t==6:
                    if k in (0,1,2): T.ds(keyread(2,k),('K',2,k))
                    if k==4: pass
                    if k==5: T.ds(keyread(3,0),('K',3,0))
                    if k==6: T.ds(keyread(3,1),('K',3,1))
        assert not kq
        stamp(a,prof,3)
        cv,_,_=post2(6); _,wr,rd=post(6)
        def S(j,x):
            T.wait(('K',j,x)); T.wait(('T',min(2*j+1,6))); a(smf(j,x))
        if not o.get('mt6',0):
            S(0,0); T.ds(keyread(3,2),('K',3,2))
            S(0,1); a(cv[0]); a(cv[1])
            S(0,2); T.ds(wr,('W',6)); T.ds(rd,('T',6))
            for j in range(1,4):
                for x in range(3): S(j,x)
        else:
            def S2(j,x):
                T.wait(('K',j,x))
                if j<3: T.wait(('T',2*j+1))
                a(smf(j,x))
            t6=tfreg(6); q0=ACC[0]
            S2(0,0); T.ds(keyread(3,2),('K',3,2))
            S2(0,1); a(cv[0]); a(cv[1])
            S2(0,2); a('s_nop 0')
            a(f'v_mfma_f32_16x16x16_bf16 v[{q0}:{q0+3}], v[{PK}:{PK+1}], v[{VID}:{VID+1}], 0')
            S2(1,0); S2(1,1); S2(1,2); a(f'v_cvt_pk_bf16_f32 v{t6}, v{q0}, v{q0+1}')
            S2(2,0); a(f'v_cvt_pk_bf16_f32 v{t6+1}, v{q0+2}, v{q0+3}')
            S2(2,1)
            S2(2,2)
            for x in range(3): S2(3,x)
        for r in range(4): a(f'v_add_f32_dpp v{4+r}, v{SA[0]+r}, v{SA[0]+r} row_ror:8 row_mask:0xf bank_mask:0xf')
        a(f'ds_write_b128 v{VSWM}, v[4:7]')
        for r in range(4): a(f'v_add_f32_dpp v{8+r}, v{SA[1]+r}, v{SA[1]+r} row_ror:8 row_mask:0xf bank_mask:0x3')
        for r in range(4): a(f'v_add_f32_dpp v{8+r}, v{SA[2]+r}, v{SA[2]+r} row_ror:8 row_mask:0xf bank_mask:0xc')
        a(f'ds_write_b128 v{VSW}, v[8:11]')
    a('s_waitcnt lgkmcnt(0)\ns_barrier')
    stamp(a,prof,4)
    lx=L('xk'); lnext=L('snext')
    a(f's_cmp_ge_u32 s{S_WAVE}, 2\ns_cbranch_scc1 {lx}')
    HST=f'buffer_store_dword v{VONE}, v{VHS}, s[8:11], s{S_HO} offen{SCM}'
    hp=lambda pos: HST if (hint_vp and hp_pos==pos) else ''
    a(hp(0))
    for w in range(4): a(f'ds_read_b128 v[{4+4*w}:{7+4*w}], v{VSR} offset:{w*2048}')
    a(f'''s_waitcnt lgkmcnt(2)
    v_pk_add_f32 v[4:5], v[4:5], v[8:9]
    v_pk_add_f32 v[6:7], v[6:7], v[10:11]
    s_waitcnt lgkmcnt(0)
    v_pk_add_f32 v[12:13], v[12:13], v[16:17]
    v_pk_add_f32 v[14:15], v[14:15], v[18:19]
    v_pk_add_f32 v[4:5], v[4:5], v[12:13]
    v_pk_add_f32 v[6:7], v[6:7], v[14:15]
    {hp(1)}
    v_max3_f32 v8, v4, v5, v6
    v_max_f32 v8, v8, v7
    s_nop 1
    v_max_f32_dpp v9, v8, v8 row_ror:4 row_mask:0xf bank_mask:0xf
    v_max_f32_dpp v9, v8, v9 row_ror:8 row_mask:0xf bank_mask:0xf
    v_max_f32_dpp v9, v8, v9 row_ror:12 row_mask:0xf bank_mask:0xf
    s_nop 1
    v_max_f32_dpp v10, v9, v9 row_ror:1 row_mask:0xf bank_mask:0xf
    v_max_f32_dpp v10, v9, v10 row_ror:2 row_mask:0xf bank_mask:0xf
    v_max_f32_dpp v10, v9, v10 row_ror:3 row_mask:0xf bank_mask:0xf
    {hp(2)}
    v_pk_add_f32 v[4:5], v[4:5], v[10:11] op_sel_hi:[1,0] neg_lo:[0,1] neg_hi:[0,1]
    v_pk_add_f32 v[6:7], v[6:7], v[10:11] op_sel_hi:[1,0] neg_lo:[0,1] neg_hi:[0,1]
    v_exp_f32 v4, v4
    v_exp_f32 v5, v5
    v_exp_f32 v6, v6
    v_exp_f32 v7, v7
    {hp(3)}
    v_add_f32 v8, v4, v5
    v_add_f32 v9, v6, v7
    v_add_f32 v8, v8, v9
    s_nop 1
    v_add_f32_dpp v9, v8, v8 row_ror:4 row_mask:0xf bank_mask:0xf
    v_add_f32_dpp v9, v8, v9 row_ror:8 row_mask:0xf bank_mask:0xf
    v_add_f32_dpp v9, v8, v9 row_ror:12 row_mask:0xf bank_mask:0xf
    s_nop 1
    v_add_f32_dpp v10, v9, v9 row_ror:1 row_mask:0xf bank_mask:0xf
    v_add_f32_dpp v10, v9, v10 row_ror:2 row_mask:0xf bank_mask:0xf
    v_add_f32_dpp v10, v9, v10 row_ror:3 row_mask:0xf bank_mask:0xf
    v_rcp_f32 v10, v10
    s_nop 0
    v_pk_mul_f32 v[4:5], v[4:5], v[10:11] op_sel_hi:[1,0]
    v_pk_mul_f32 v[6:7], v[6:7], v[10:11] op_sel_hi:[1,0]
    v_cvt_pk_bf16_f32 v4, v4, v5
    v_cvt_pk_bf16_f32 v5, v6, v7''')
    store2(a,[f'buffer_store_dwordx2 v[4:5], v{VPST}, s[8:11], s{S_PS} offen',
              f'buffer_store_dwordx2 v[{NEG}:{NEG+1}], v{VPST}, s[8:11], s{S_PP} offen'],mode)
    stamp(a,prof,5)
    if o.get('xkbar',0): a('s_barrier')
    a(f's_branch {lnext}\n{lx}:')
    if o.get('xkbar',0): a('s_barrier')
    a(f's_add_u32 s{S_XO}, s{S_XO}, 28672')
    xk_dma(1)
    stamp(a,prof,5)
    a(f'{lnext}:')
    stamp_flush(a,prof,8,2,VPA)
    a(f'''s_add_u32 s{S_STEP}, s{S_STEP}, 1
    s_cmp_lt_u32 s{S_STEP}, {nsteps}
    s_cbranch_scc1 {loop}''')
    if clk:
        a(f'''s_memtime s[64:65]
        s_memrealtime s[66:67]
        s_waitcnt lgkmcnt(0)
        s_sub_u32 s64, s64, s60
        s_sub_u32 s66, s66, s62
        s_lshl_b32 s{S_T0}, s{S_ROLE}, 2
        s_add_u32 s{S_T0}, s{S_T0}, s{S_WAVE}
        s_lshl_b32 s{S_T0}, s{S_T0}, 3
        s_add_u32 s{S_T0}, s{S_T0}, {ws.PROF+0xF0000}
        v_mov_b32 v2, s64
        v_mov_b32 v3, s66
        v_mov_b32 v4, 0
        s_nop 4
        buffer_store_dwordx2 v[2:3], v4, s[8:11], s{S_T0} offen''')
    prof_dump(a,prof)
    if 'tl' in o: o['tl'][0](3); o['tl'][1](4)
    a('s_waitcnt vmcnt(0)')
    a('s_endpgm' if last else 's_barrier')

LV_MX=0; LV_W=8192; LV_R=73728
def value_role(a, prof, nsteps=63, om=False, mode=None, o={}, first=True, last=True):
    CUR[0]='v'
    hint=o.get('hint',0); hint_sm=o.get('hint_sm',hint); hint_vp=o.get('hint_vp',hint); hint_vm=o.get('hint_vm',hint); nx=(o.get('nx',0) if om else 0)
    fill=o.get('fill',0); hm_pos=o.get('hm_pos',1); wi_late=o.get('wi_late',0); SCM=' sc1' if mode else ''
    IDX=1; A0=4
    DF=32
    WB=64
    ACC=[72,76,80,84]; XA=88
    ST=92
    VL16=108; VMXW=109; VPOLL=109; VPOLL2=111; VWL=112; VPX=113; VPM=114; VRW=115; VRR=116; VMS=117
    NEG=118
    VFLAG=120; VZERO=121; VONE=122; VF1=123
    VHP=124; VHM=125; VHS=126; VHV=127; S_HO=57; S_HE=59; S_WF=61; S_W1=62; S_M1=63; VMA=3
    S_DFL=39; S_FF=56
    WV=128
    def wdst(f): return ('a',8*f) if f<32 else ('v',WV+8*(f-32))
    def wreg(f):
        k,b=wdst(f); return (ar if k=='a' else vr)(b,8)
    S_V=29; S_PO=30; S_PS=31; S_MS=32; S_MP=33; S_MA=34; S_DO=35; S_WO=38
    L=a.lab
    a(f'''s_sub_u32 s{S_V}, s{S_ROLE}, 16
    v_lshlrev_b32 v{VL16}, 4, v0
    s_lshl_b32 s{S_T0}, s{S_V}, 2
    s_add_u32 s{S_T0}, s{S_T0}, s{S_WAVE}
    s_mul_i32 s{S_T0}, s{S_T0}, {56*2048}
    s_add_u32 s{S_T0}, s{S_T0}, {ws.CI}''')
    if first: load_frags(a,48,wdst,VL16,S_T0)
    a(f'''s_lshl_b32 s{S_T1}, s{S_WAVE}, 14
    s_add_u32 s{S_T1}, s{S_T1}, {LV_W}''')
    for k in range(16 if first else 0):
        a(f's_add_u32 m0, s{S_T1}, {k*1024}\ns_add_u32 s{S_T2}, s{S_T0}, {k*1024}\nbuffer_load_dwordx4 v{VL16}, s[8:11], s{S_T2} offen lds')
    a(f'''v_add_u32 v{VWL}, s{S_T1}, v{VL16}
    v_and_b32 v2, 8, v0
    v_mov_b32 v{IDX}, 0x44444444
    v_mov_b32 v3, 0xeeeeeeee
    v_cmp_ne_u32 vcc, 0, v2
    v_mov_b32 v{NEG}, -1
    v_mov_b32 v{NEG+1}, -1
    v_cndmask_b32 v{IDX}, v{IDX}, v3, vcc
    s_lshl_b32 s{S_T1}, s{S_WAVE}, 10
    v_add_u32 v{VMXW}, s{S_T1}, v{VL16}
    s_movk_i32 s{S_T2}, 4096
    s_cmp_eq_u32 s{S_WAVE}, 3
    s_cselect_b32 s{S_T2}, 0x10000000, s{S_T2}
    v_add_u32 v{VPOLL2}, s{S_T2}, v{VPOLL}''')
    a(f'''s_lshl_b32 s{S_T1}, s{S_WAVE}, 11
    v_add_u32 v{VPX}, s{S_T1}, v{VL16}
    s_lshl_b32 s{S_T1}, s{S_WAVE}, 9
    s_add_u32 s{S_T1}, s{S_T1}, 8192
    v_lshrrev_b32 v2, 4, v0
    v_and_b32 v3, 15, v0
    v_lshlrev_b32 v4, 7, v2
    v_lshlrev_b32 v5, 4, v3
    v_add3_u32 v4, v4, v5, s{S_T1}
    v_mov_b32 v5, 0x10000000
    v_cmp_gt_u32 vcc, 8, v3
    s_nop 1
    v_cndmask_b32 v{VPM}, v5, v4, vcc''')
    a(f'''s_lshl_b32 s{S_T1}, s{S_WAVE}, 10
    s_add_u32 s{S_T1}, s{S_T1}, {LV_R}
    v_lshlrev_b32 v4, 2, v0
    v_add_u32 v{VRW}, s{S_T1}, v4
    v_add_u32 v{VRR}, {LV_R}, v{VL16}''')
    a(f'''v_lshrrev_b32 v2, 4, v0
    v_lshrrev_b32 v3, 2, v0
    v_and_b32 v3, 1, v3
    v_lshlrev_b32 v3, 2, v3
    v_add_u32 v2, v2, v3
    v_lshlrev_b32 v2, 4, v2
    v_lshrrev_b32 v3, 3, v0
    v_and_b32 v3, 1, v3
    v_lshlrev_b32 v3, 1, v3
    v_lshrrev_b32 v4, 1, v0
    v_and_b32 v4, 1, v4
    v_add_u32 v3, v3, v4
    v_lshlrev_b32 v3, 7, v3
    v_and_b32 v4, 1, v0
    v_lshlrev_b32 v4, 3, v4
    v_add3_u32 v2, v2, v3, v4
    s_lshl_b32 s{S_T1}, s{S_V}, 9
    v_add_u32 v{VMS}, s{S_T1}, v2''')
    a(f'''s_lshl_b32 s{S_T1}, s{S_V}, 15
    s_lshl_b32 s{S_T2}, s{S_WAVE}, 13
    s_add_u32 s{S_DO}, s{S_T1}, s{S_T2}
    s_add_u32 s{S_DO}, s{S_DO}, {ws.DI}
    s_lshl_b32 s{S_T1}, s{S_V}, 13
    s_lshl_b32 s{S_T2}, s{S_WAVE}, 11
    s_add_u32 s{S_WO}, s{S_T1}, s{S_T2}
    s_add_u32 s{S_WO}, s{S_WO}, {ws.WI}
    s_mov_b32 s{S_STEP}, 0
    s_mov_b32 s{S_LIM}, {POLL_LIM}
    s_mov_b32 s{S_PO}, {ws.MA}
    s_mov_b32 s{S_MA}, {ws.MA+7168}
    s_mov_b32 s{S_HO}, {ws.H}
    v_min_u32 v{VHM}, 55, v0
    v_lshlrev_b32 v{VHM}, 2, v{VHM}
    v_and_b32 v{VHP}, 31, v0
    v_lshlrev_b32 v{VHP}, 2, v{VHP}
    v_add_u32 v{VHP}, 256, v{VHP}
    s_lshl_b32 s{S_T1}, s{S_V}, 2
    s_add_u32 s{S_T1}, s{S_T1}, s{S_WAVE}
    s_lshl_b32 s{S_T1}, s{S_T1}, 2
    v_mov_b32 v2, s{S_T1}
    v_mov_b32 v3, 0x10000000
    v_cmp_eq_u32 vcc, 0, v0
    v_mov_b32 v{VONE}, 1
    s_nop 0
    v_cndmask_b32 v{VHS}, v3, v2, vcc''')
    SC=' sc1' if om else ''
    def dpoll():
        lr=L('dfp'); lo=L('dfo')
        a(f'''s_mov_b32 s{S_CNT}, s{S_LIM}
        {lr}:
        buffer_load_dword v{VFLAG}, v{VZERO}, s[8:11], s{S_DFL} offen sc1
        s_waitcnt vmcnt(0)
        v_readfirstlane_b32 s{S_T0}, v{VFLAG}
        s_nop 3
        s_cmp_lg_u32 s{S_T0}, 0
        s_cbranch_scc1 {lo}
        s_sub_u32 s{S_CNT}, s{S_CNT}, 1
        s_cbranch_scc0 {lr}
        s_mov_b32 s{S_LIM}, 0
        {lo}:''')
    if om:
        a(f'''v_mov_b32 v{VZERO}, 0
        v_mov_b32 v{VONE}, 1
        s_lshl_b32 s{S_T1}, s{S_V}, 4
        s_lshl_b32 s{S_T2}, s{S_WAVE}, 2
        s_add_u32 s{S_DFL}, s{S_T1}, s{S_T2}
        s_add_u32 s{S_DFL}, s{S_DFL}, {ws.DF}
        s_lshl_b32 s{S_T1}, s{S_V}, 2
        s_add_u32 s{S_FF}, s{S_T1}, {ws.F}
        s_lshl_b32 s{S_T1}, s{S_WAVE}, 6
        v_add_u32 v2, s{S_T1}, v0
        v_mov_b32 v3, {0 if nx else 64}
        v_cmp_eq_u32 vcc, v2, v3
        v_mov_b32 v3, 0x10000000
        s_nop 0
        v_cndmask_b32 v{VF1}, v3, 0, vcc''')
        if nx: a(f's_mov_b32 s{S_MA}, {ws.MA}\ns_mov_b32 s{S_WF}, {ws.WF-448}')
        if nx==2:
            a(f'''s_sub_u32 s{S_FF}, s{S_FF}, 64
            s_cmp_eq_u32 s{S_WAVE}, 0
            s_cselect_b32 s{S_T1}, 0, 0x10000000
            v_add_u32 v{VMA}, s{S_T1}, v{VMS}''')
        dpoll()
    VPA=110
    prof_init(a,prof,VPA)
    dsplit=o.get('dsplit',0)
    loop=L('vloop'); pr=L('vpoll'); pok=L('vpok'); PL=4 if dsplit else DF
    def dload(q,so):
        return f'buffer_load_dwordx4 v[{DF+4*q}:{DF+4*q+3}], v{VL16}, s[8:11], s{so} offen offset:{(q&3)*1024}{SC}'
    if dsplit:
        for q in range(4): a(dload(q,S_DO))
    if 'tl' in o: o['tl'][0](2)
    a(f'{loop}:')
    stamp(a,prof,0)
    vfill=o.get('vfill',0); S_DO2=60
    if vfill:
        for r in (0,2): a(f'v_mov_b64 v[{ACC[0]+r}:{ACC[0]+r+1}], 0\nv_mov_b64 v[{XA+r}:{XA+r+1}], 0')
    a(f's_add_u32 s{S_HE}, s{S_STEP}, 1')
    if hint_sm or hint_vm: a(f'v_mov_b32 v{VHV}, s{S_HE}')
    if hint_vm: hint_poll(a,VHM,S_HO,[16,17,18],1,S_STEP)
    if o.get('vml'): a(f"s_sleep {o['vml']}")
    a(f'''s_mov_b32 s{S_CNT}, s{S_LIM}
    {pr}:
    buffer_load_dwordx4 v[{PL}:{PL+3}], v{VPOLL}, s[8:11], s{S_PO} offen sc1
    buffer_load_dwordx4 v[{PL+4}:{PL+7}], v{VPOLL2}, s[8:11], s{S_PO} offen sc1
    s_waitcnt vmcnt(1)
    ds_write_b128 v{VMXW}, v[{PL}:{PL+3}]
    v_max3_u32 v2, v{PL}, v{PL+1}, v{PL+2}
    v_max_u32 v2, v2, v{PL+3}
    s_waitcnt vmcnt(0)
    ds_write_b128 v{VMXW}, v[{PL+4}:{PL+7}] offset:4096
    v_max3_u32 v2, v2, v{PL+4}, v{PL+5}
    v_max3_u32 v2, v2, v{PL+6}, v{PL+7}''')
    poll_tail(a,pr,pok,2)
    stamp(a,prof,1)
    a('s_waitcnt lgkmcnt(0)\ns_barrier')
    for k in range(7): a(f'ds_read_b128 v[{A0+4*k}:{A0+4*k+3}], v{VL16} offset:{k*1024}')
    def sread(f,buf):
        b=ST+8*buf; o=(f-48)*2048
        return [f'ds_read_b128 v[{b}:{b+3}], v{VWL} offset:{o}', f'ds_read_b128 v[{b+4}:{b+7}], v{VWL} offset:{o+1024}']
    if not vfill:
        for r in range(4): a(f'v_mov_b32 v{ACC[0]+r}, 0')
        for r in range(4): a(f'v_mov_b32 v{XA+r}, 0')
    def dcheck():
        lok=L('dok')
        a(f'v_readfirstlane_b32 s{S_T0}, v{VFLAG}\ns_nop 3\ns_cmp_lg_u32 s{S_T0}, 0\ns_cbranch_scc1 {lok}')
        dpoll()
        a(f'{lok}:')
    SCX='' if o.get('xpl',0) else SC
    hlp=(o.get('hlp',0) if om else 0); dfl=o.get('dfl',0) if om else 0
    if hlp: SCX=SCM
    SCW=' sc1' if hlp==2 else SCM
    def wi_export(sc=None):
        sc=SCX if sc is None else sc
        a(f'buffer_store_dwordx4 v[{WB}:{WB+3}], v{VL16}, s[8:11], s{S_WO} offen{sc}')
        a(f'buffer_store_dwordx4 v[{WB+4}:{WB+7}], v{VL16}, s[8:11], s{S_WO} offen offset:1024{sc}')
        a(f's_add_u32 s{S_WO}, s{S_WO}, {14*8192}')
    FST=f'buffer_store_dword v{VONE}, v{VF1}, s[8:11], s{S_FF} offen'+(' sc1' if o.get('xpl',0)<2 else '')
    ord2=o.get('ord2',0)
    if om and not nx:
        if not ord2 and not hlp: a(f'{FST}\ns_add_u32 s{S_FF}, s{S_FF}, 64')
        if not dsplit:
            if dfl:
                lq=L('dq'); lr=L('dr'); lo=L('do')
                a(f's_cmp_gt_u32 s{S_STEP}, {dfl}\ns_cbranch_scc1 {lq}')
                dcheck()
                a(f'''s_cmp_lg_u32 s{S_STEP}, {dfl}
                s_cbranch_scc1 {lq}
                s_lshl_b32 s{S_T1}, s{S_V}, 4
                s_lshl_b32 s{S_T2}, s{S_WAVE}, 2
                s_add_u32 s{S_T1}, s{S_T1}, s{S_T2}
                s_add_u32 s{S_T1}, s{S_T1}, {ws.DF+60*224}
                v_and_b32 v2, 3, v0
                v_mul_u32_u24 v2, 224, v2
                s_mov_b32 s{S_CNT}, s{S_LIM}
                {lr}:
                buffer_load_dword v{VFLAG}, v2, s[8:11], s{S_T1} offen sc1
                s_waitcnt vmcnt(0)
                v_cmp_eq_u32 vcc, 0, v{VFLAG}
                s_cbranch_vccz {lo}
                s_sub_u32 s{S_CNT}, s{S_CNT}, 1
                s_cbranch_scc0 {lr}
                s_mov_b32 s{S_LIM}, 0
                {lo}:
                {lq}:''')
            else: dcheck()
    if nx==2:
        l63=L('l63')
        a(f'''s_cmp_lg_u32 s{S_STEP}, {nsteps}
        s_cbranch_scc1 {l63}
        s_add_u32 s{S_T0}, s{S_FF}, 64
        buffer_store_dword v{VONE}, v{VF1}, s[8:11], s{S_T0} offen sc1
        {l63}:''')
        dcheck()
        a(f'''s_cmp_eq_u32 s{S_STEP}, 0
        s_cselect_b32 s{S_W1}, {ws.DUM}, s{S_WO}
        s_cselect_b32 s{S_M1}, {ws.DUM+16384}, s{S_MA}
        s_cselect_b32 s{S_T0}, 0, {14*8192}
        s_add_u32 s{S_WO}, s{S_WO}, s{S_T0}''')
    elif nx:
        l63=L('l63'); l0=L('l0')
        a(f's_cmp_lg_u32 s{S_STEP}, {nsteps}\ns_cbranch_scc1 {l63}\n{FST}\n{l63}:')
        dcheck()
        a(f'buffer_store_dword v{VONE}, v{VHS}, s[8:11], s{S_WF} offen sc1\ns_add_u32 s{S_WF}, s{S_WF}, 224')
        a(f's_cmp_eq_u32 s{S_STEP}, 0\ns_cbranch_scc1 {l0}')
        wi_export()
        a(f's_cmp_lg_u32 s{S_WAVE}, 0\ns_cbranch_scc1 {l0}')
        a(f'buffer_store_dwordx2 v[{ST+8}:{ST+9}], v{VMS}, s[8:11], s{S_MA} offen sc1')
        a(f'{l0}:')
    dl=[]
    for q in range(8):
        off=(q&3)*1024
        so=S_DO if q<4 else S_DO2
        dl.append(f'buffer_load_dwordx4 v[{DF+4*q}:{DF+4*q+3}], v{VL16}, s[8:11], s{so} offen offset:{off}{o.get("dsc",SC)}')
    a(f's_add_u32 s{S_DO2}, s{S_DO}, 4096')
    flagld=f's_add_u32 s{S_DFL}, s{S_DFL}, {14*16}\nbuffer_load_dword v{VFLAG}, v{VZERO}, s[8:11], s{S_DFL} offen sc1'
    dls=o.get('dls')
    wie=(wi_late==2 and om)
    if wie:
        a(f'''s_cmp_eq_u32 s{S_STEP}, 0
        s_cselect_b32 s{S_W1}, {ws.DUM}, s{S_WO}
        s_cselect_b32 s{S_T0}, 0, {14*8192}
        s_add_u32 s{S_WO}, s{S_WO}, s{S_T0}''')
        wst=[f'buffer_store_dwordx4 v[{WB}:{WB+3}], v{VL16}, s[8:11], s{S_W1} offen{SCW}',
             f'buffer_store_dwordx4 v[{WB+4}:{WB+7}], v{VL16}, s[8:11], s{S_W1} offen offset:1024{SCW}']
        wsl=o.get('wsl',[(0,3),(1,3)])
        for q,p_ in enumerate(wsl):
            if p_=='pre0': a(wst[q])
    if vfill and dls and nx!=2:
        for q,p in enumerate(dls):
            if p=='pre': a(dl[q])
        if om and ord2:
            a(flagld)
            if not nx: a(f'{FST}\ns_add_u32 s{S_FF}, s{S_FF}, 64')
    if not vfill:
        for x in dl: a(x)
        if om: a(flagld)
        a(f's_add_u32 s{S_DO}, s{S_DO}, {14*32768}')
    a(f'''s_add_u32 s{S_T0}, s{S_STEP}, 1
    s_and_b32 s{S_T0}, s{S_T0}, 3
    s_mul_i32 s{S_T0}, s{S_T0}, 7168
    s_add_u32 s{S_MS}, s{S_T0}, {ws.MR}
    s_add_u32 s{S_T0}, s{S_STEP}, 3
    s_and_b32 s{S_T0}, s{S_T0}, 3
    s_mul_i32 s{S_T0}, s{S_T0}, 7168
    s_add_u32 s{S_MP}, s{S_T0}, {ws.MR}
    s_and_b32 s{S_T0}, s{S_STEP}, 3
    s_mul_i32 s{S_T0}, s{S_T0}, 10240
    s_add_u32 s{S_PS}, s{S_T0}, {ws.PR}
    s_mov_b32 s{S_PO}, s{S_MS}''')
    stamp(a,prof,2)
    chains=[(0,0),(0,1),(0,2),(0,3),(1,0),(1,1),(1,2)]
    def fidx(tau,hh,k): return hh*14+tau*7+k
    def psum(tau,half,ra,rb):
        o=[]
        for r in range(4): o.append(f'v_permlane32_swap_b32 v{ra+r}, v{rb+r}')
        for r in range(4): o.append(f'v_add_f32 v{ra+r}, v{ra+r}, v{rb+r}')
        d=WB+4*tau+2*half
        o.append(f'v_cvt_pk_bf16_f32 v{d}, v{ra}, v{ra+1}'); o.append(f'v_cvt_pk_bf16_f32 v{d+1}, v{ra+2}, v{ra+3}')
        return o
    if not vfill:
        pend=[]
        lg=7
        for c,(tau,hh) in enumerate(chains):
            ac=ACC[c%4]
            for k in range(7):
                f=fidx(tau,hh,k)
                if c==0: a(f's_waitcnt lgkmcnt({6-k})')
                if f>=48:
                    assert f==48
                    a('s_waitcnt lgkmcnt(0)')
                    b=vr(ST+8,8)
                else: b=wreg(f)
                a(f'v_smfmac_f32_16x16x64_bf16 v[{ac}:{ac+3}], v[{A0+4*k}:{A0+4*k+3}], {b}, v{IDX}')
                fl=[]
                if k==0: fl+=sread(49+c,0)
                if c==3 and k==1: fl+=sread(48,1)
                if c<6 and k in (2,3):
                    nx=ACC[(c+1)%4]; fl+=[f'v_mov_b32 v{nx+2*(k-2)}, 0',f'v_mov_b32 v{nx+2*(k-2)+1}, 0']
                if k>=3 and pend:
                    fl+=pend[:2]; pend=pend[2:]
                for x in fl: a(x)
            a('s_waitcnt lgkmcnt(0)')
            a(f'v_smfmac_f32_16x16x64_bf16 v[{XA}:{XA+3}], v[{A0+4*c}:{A0+4*c+3}], {vr(ST,8)}, v{IDX}')
            for x in pend[:2]: a(x)
            pend=pend[2:]
            if c in (1,3,5):
                assert not pend
                pend=psum(0 if c<4 else 1, 0 if c in (1,5) else 1, ACC[(c-1)%4], ACC[c%4])
        for x in pend: a(x)
        a('s_nop 7')
        for x in psum(1,1,ACC[6%4],XA): a(x)
    else:
        T=DsTrack(a)
        for k in range(7): T.note(('A',k))
        z=lambda r:[f'v_mov_b64 v[{r}:{r+1}], 0',f'v_mov_b64 v[{r+2}:{r+3}], 0']
        p01=psum(0,0,ACC[0],ACC[1]); p23=psum(0,1,ACC[2],ACC[3]); p45=psum(1,0,ACC[0],ACC[1])
        V={}
        def put(c,g0,ops):
            for i,x in enumerate(ops): assert (c,g0+i) not in V; V[(c,g0+i)]=x
        put(0,0,z(ACC[1])); put(1,0,z(ACC[2])); put(2,0,z(ACC[3])); put(2,2,p01[:6]); put(3,0,p01[6:]); put(3,4,z(ACC[0]))
        put(4,0,z(ACC[1])); put(4,2,p23[:6]); put(5,0,p23[6:]); put(5,4,z(ACC[2])); put(6,2,p45[:6])
        M={(c,3):dl[c+1] for c in range(7)}; M[(0,1)]=dl[0]
        if dsplit: M={(0,1):dl[4],(0,3):dl[5],(0,5):dl[6],(1,0):dl[7]}
        if dls:
            M={p:dl[q] for q,p in enumerate(dls) if p!='pre'}
        if wie:
            for q,p_ in enumerate(wsl):
                if p_=='pre': a(wst[q])
                elif p_!='pre0': M[p_]=(M[p_]+'\n' if p_ in M else '')+wst[q]
        if nx==2:
            ops=dl+[flagld,
                f'buffer_store_dword v{VONE}, v{VHS}, s[8:11], s{S_WF} offen sc1\ns_add_u32 s{S_WF}, s{S_WF}, 224',
                f'{FST}\ns_add_u32 s{S_FF}, s{S_FF}, 64',
                f'buffer_store_dwordx4 v[{WB}:{WB+3}], v{VL16}, s[8:11], s{S_W1} offen sc1',
                f'buffer_store_dwordx4 v[{WB+4}:{WB+7}], v{VL16}, s[8:11], s{S_W1} offen offset:1024 sc1',
                f'buffer_store_dwordx2 v[{ST+8}:{ST+9}], v{VMA}, s[8:11], s{S_M1} offen sc1']
            slots=o.get('nxslots') or [(c,k) for c in range(3) for k in range(7)]
            npre=o.get('npre',0)
            for x in ops[:npre]: a(x)
            M={slots[i]:x for i,x in enumerate(ops[npre:])}
        for c,(tau,hh) in enumerate(chains):
            ac=ACC[c%4]
            for k in range(7):
                f=fidx(tau,hh,k)
                if c==0: T.wait(('A',k))
                if f>=48:
                    assert f==48
                    T.wait(('S48',1)); b=vr(ST+8,8)
                else: b=wreg(f)
                a(f'v_smfmac_f32_16x16x64_bf16 v[{ac}:{ac+3}], v[{A0+4*k}:{A0+4*k+3}], {b}, v{IDX}')
                if (c,k) in V: a(V[(c,k)])
                if k==0:
                    r=sread(49+c,0); T.ds(r[0],('X',c,0)); T.ds(r[1],('X',c,1))
                if c==3 and k==1:
                    r=sread(48,1); T.ds(r[0],('S48',0)); T.ds(r[1],('S48',1))
                if (c,k) in M: a(M[(c,k)])
            T.wait(('X',c,1))
            a(f'v_smfmac_f32_16x16x64_bf16 v[{XA}:{XA+3}], v[{A0+4*c}:{A0+4*c+3}], {vr(ST,8)}, v{IDX}')
            if (c,7) in V: a(V[(c,7)])
            if o.get('vst')==c: stamp(a,prof,6)
            if nx==1 and c==o.get('fpos',5): a(f's_waitcnt vmcnt({9 if ord2 else 8})\n{FST}\ns_add_u32 s{S_FF}, s{S_FF}, 64')
        if om and not ord2 and nx!=2:
            if dfl:
                lq=L('nf'); a(f"s_cmp_ge_u32 s{S_STEP}, {dfl}\ns_cbranch_scc1 {lq}"); a(flagld); a(f'{lq}:')
            else: a(flagld)
        a(f's_add_u32 s{S_DO}, s{S_DO}, {14*32768}')
        for x in p45[6:]: a(x)
        a('s_nop 3')
        for x in psum(1,1,ACC[6%4],XA): a(x)
    if not wi_late and not nx: wi_export(' sc1' if hlp==2 else None)
    stamp(a,prof,3)
    fin=L('vfin')
    a(f's_cmp_ge_u32 s{S_STEP}, {nsteps}\ns_cbranch_scc1 {fin}')
    if hint_vp: hint_poll(a,VHP,S_HO,[16,17,18],3,S_HE)
    if o.get('vst') is None: stamp(a,prof,6)
    pr=L('ppoll'); pok=L('ppok')
    O0=ACC[0]; O1=ACC[1]
    vp=o.get('vp',1)
    if o.get('vsl'): a(f"s_sleep {o['vsl']}")
    def piss(b):
        a(f'''buffer_load_dwordx4 v[{b+8}:{b+11}], v{VPM}, s[8:11], s{S_PS} offen sc1
        buffer_load_dwordx4 v[{b}:{b+3}], v{VPX}, s[8:11], s{S_PS} offen sc1
        buffer_load_dwordx4 v[{b+4}:{b+7}], v{VPX}, s[8:11], s{S_PS} offen offset:1024 sc1''')
    def pchk(b,n):
        a(f'''s_waitcnt vmcnt({n+2})
        v_mfma_f32_16x16x32_bf16 v[{O0}:{O0+3}], v[{b+8}:{b+11}], v[{WB}:{WB+3}], 0
        v_max3_u32 v2, v{b+8}, v{b+9}, v{b+10}
        v_mfma_f32_16x16x32_bf16 v[{O1}:{O1+3}], v[{b+8}:{b+11}], v[{WB+4}:{WB+7}], 0
        s_waitcnt vmcnt({n+1})
        v_smfmac_f32_16x16x64_bf16 v[{O0}:{O0+3}], v[{b}:{b+3}], v[{DF}:{DF+7}], v{IDX}
        v_max3_u32 v2, v2, v{b+11}, v{b}
        v_max3_u32 v2, v2, v{b+1}, v{b+2}
        v_smfmac_f32_16x16x64_bf16 v[{O1}:{O1+3}], v[{b}:{b+3}], v[{DF+16}:{DF+23}], v{IDX}
        s_waitcnt vmcnt({n})
        v_smfmac_f32_16x16x64_bf16 v[{O0}:{O0+3}], v[{b+4}:{b+7}], v[{DF+8}:{DF+15}], v{IDX}
        v_max3_u32 v2, v2, v{b+3}, v{b+4}
        v_max3_u32 v2, v2, v{b+5}, v{b+6}
        v_smfmac_f32_16x16x64_bf16 v[{O1}:{O1+3}], v[{b+4}:{b+7}], v[{DF+24}:{DF+31}], v{IDX}
        v_max_u32 v2, v2, v{b+7}''')
    RD=4
    if vp==1:
        a(f's_mov_b32 s{S_CNT}, s{S_LIM}\n{pr}:')
        piss(4); pchk(4,0)
        poll_tail(a,pr,pok,2)
    else:
        RD=DF
        sets=[4,16,ST][:vp]
        a(f's_mov_b32 s{S_CNT}, s{S_LIM}')
        if prof: a('s_mov_b32 s55, 0')
        if o.get('vpw',0): a('s_waitcnt vmcnt(0)')
        for i,b in enumerate(sets):
            piss(b)
            if i<vp-1 and o.get('vpd',3): a(f"s_sleep {o.get('vpd',3)}")
        a(f'{pr}:')
        for b in sets:
            pchk(b,3*(vp-1))
            a(f'v_cmp_eq_u32 vcc, -1, v2\ns_cbranch_vccz {pok}')
            if prof: a('s_add_u32 s55, s55, 1')
            piss(b)
        a(f'''s_sub_u32 s{S_CNT}, s{S_CNT}, 1
        s_cbranch_scc0 {pr}
        s_mov_b32 s{S_LIM}, 0
        {pok}:''')
    stamp(a,prof,4)
    if prof: a(f's_sub_u32 s54, s{S_LIM}, s{S_CNT}' if vp==1 else 's_mov_b32 s54, s55')
    HST=f'buffer_store_dword v{VHV}, v{VHS}, s[8:11], s{S_HO} offen{SCM}'
    hm=lambda pos: HST if ((hint_sm or hint_vm) and hm_pos==pos) else ''
    a(hm(0)) if hm(0) else None
    a('s_nop 4')
    for r in range(4): a(f'v_permlane32_swap_b32 v{O0+r}, v{O1+r}')
    for r in range(4): a(f'v_add_f32 v{O0+r}, v{O0+r}, v{O1+r}')
    a(f'''ds_write2st64_b32 v{VRW}, v{O0}, v{O0+1} offset0:0 offset1:1
    ds_write2st64_b32 v{VRW}, v{O0+2}, v{O0+3} offset0:2 offset1:3
    {hm(1)}
    s_waitcnt lgkmcnt(0)
    s_barrier
    {hm(2)}''')
    nxt=L('vnext')
    a(f's_cmp_lg_u32 s{S_WAVE}, 0\ns_cbranch_scc1 {nxt}')
    for w in range(4): a(f'ds_read_b128 v[{RD+4*w}:{RD+3+4*w}], v{VRR} offset:{w*1024}')
    a(f'''s_waitcnt lgkmcnt(2)
    v_pk_add_f32 v[{RD}:{RD+1}], v[{RD}:{RD+1}], v[{RD+4}:{RD+5}]
    v_pk_add_f32 v[{RD+2}:{RD+3}], v[{RD+2}:{RD+3}], v[{RD+6}:{RD+7}]
    s_waitcnt lgkmcnt(0)
    v_pk_add_f32 v[{RD+8}:{RD+9}], v[{RD+8}:{RD+9}], v[{RD+12}:{RD+13}]
    v_pk_add_f32 v[{RD+10}:{RD+11}], v[{RD+10}:{RD+11}], v[{RD+14}:{RD+15}]
    v_pk_add_f32 v[{RD}:{RD+1}], v[{RD}:{RD+1}], v[{RD+8}:{RD+9}]
    v_pk_add_f32 v[{RD+2}:{RD+3}], v[{RD+2}:{RD+3}], v[{RD+10}:{RD+11}]
    v_cvt_pk_bf16_f32 v{RD}, v{RD}, v{RD+1}
    v_cvt_pk_bf16_f32 v{RD+1}, v{RD+2}, v{RD+3}''')
    store2(a,[f'buffer_store_dwordx2 v[{RD}:{RD+1}], v{VMS}, s[8:11], s{S_MS} offen',
              f'buffer_store_dwordx2 v[{NEG}:{NEG+1}], v{VMS}, s[8:11], s{S_MP} offen']+([] if om else [
              f'buffer_store_dwordx2 v[{RD}:{RD+1}], v{VMS}, s[8:11], s{S_MA} offen']),mode)
    if om and not nx: a(f'buffer_store_dwordx2 v[{RD}:{RD+1}], v{VMS}, s[8:11], s{S_MA} offen{SCX}')
    if nx:
        lq=L('lq')
        a(f'''v_mov_b64 v[{ST+8}:{ST+9}], v[{RD}:{RD+1}]
        s_cmp_lg_u32 s{S_STEP}, {nsteps-1}
        s_cbranch_scc1 {lq}
        s_add_u32 s{S_T0}, s{S_MA}, 7168
        buffer_store_dwordx2 v[{RD}:{RD+1}], v{VMS}, s[8:11], s{S_T0} offen sc1
        {lq}:''')
    a(f'{nxt}:')
    stamp(a,prof,5)
    if dsplit:
        if o.get('dbar',0): a('s_barrier')
        if om: dcheck()
        for q in range(4): a(dload(q,S_DO))
    if wie:
        if o.get('wbar',1): a('s_barrier')
    elif wi_late:
        if not (dsplit and o.get('dbar',0)): a('s_barrier')
        if hlp:
            lq=L('w62'); lq2=L('w62')
            a(f's_cmp_eq_u32 s{S_STEP}, {nsteps-1}\ns_cbranch_scc1 {lq}')
            t=S_WO; wi_export_n=lambda sc: (a(f'buffer_store_dwordx4 v[{WB}:{WB+3}], v{VL16}, s[8:11], s{S_WO} offen{sc}'), a(f'buffer_store_dwordx4 v[{WB+4}:{WB+7}], v{VL16}, s[8:11], s{S_WO} offen offset:1024{sc}'))
            wi_export_n(SCW); a(f's_branch {lq2}\n{lq}:'); wi_export_n(' sc1'); a(f'{lq2}:\ns_add_u32 s{S_WO}, s{S_WO}, {14*8192}')
        else: wi_export()
    a(f's_add_u32 s{S_MA}, s{S_MA}, 7168')
    stamp_flush(a,prof,8,2,VPA)
    a(f'''s_add_u32 s{S_STEP}, s{S_STEP}, 1
    s_branch {loop}
    {fin}:''')
    if wi_late or nx: wi_export(' sc1' if hlp else None)
    a('s_waitcnt vmcnt(0)')
    if hlp: a(f's_mov_b32 s{S_T0}, {ws.WF+62*224}\nbuffer_store_dword v{VONE}, v{VHS}, s[8:11], s{S_T0} offen sc1\nbuffer_store_dword v{VONE}, v{VHS}, s[8:11], s{S_T0} offen offset:224 sc1\ns_waitcnt vmcnt(0)')
    elif nx: a(f'buffer_store_dword v{VONE}, v{VHS}, s[8:11], s{S_WF} offen sc1\nbuffer_store_dword v{VONE}, v{VHS}, s[8:11], s{S_WF} offen offset:224 sc1\ns_waitcnt vmcnt(0)')
    elif om: a(f's_barrier\nbuffer_store_dword v{VONE}, v{VF1}, s[8:11], s{S_FF} offen sc1\ns_waitcnt vmcnt(0)')
    prof_dump(a,prof)
    if 'tl' in o: o['tl'][0](3); o['tl'][1](4)
    a('s_endpgm' if last else 's_barrier')

def helper_role(a, o, last=True):
    L=a.lab; S_J=29; S_S=30; S_PO=31; S_SRC=32; S_SR2=33; S_FL=34
    VL16=1; VF=2; VONE=3; PL=4; DAT=8
    lma=L('hma')
    a(f'''s_sub_u32 s{S_J}, s{S_ROLE}, 30
    s_lshl_b32 s{S_J}, s{S_J}, 2
    s_add_u32 s{S_J}, s{S_J}, s{S_WAVE}
    v_lshlrev_b32 v{VL16}, 4, v0
    v_mov_b32 v{VONE}, 1
    s_mov_b32 s{S_LIM}, {POLL_LIM}
    s_cmp_eq_u32 s{S_J}, 7
    s_cbranch_scc1 {lma}''')
    hlp=o['hlp']; slp=o.get('hslp',0)
    if hlp>=2: a('s_endpgm')
    loop=L('hl'); pr=L('hp'); pok=L('ho')
    a(f'''s_lshl_b32 s{S_T0}, s{S_J}, 10
    s_add_u32 s{S_PO}, s{S_T0}, {ws.MA+2*7168}
    s_lshl_b32 s{S_T0}, s{S_J}, 14
    s_add_u32 s{S_SRC}, s{S_T0}, {ws.WI}
    s_lshl_b32 s{S_T0}, s{S_J}, 5
    s_add_u32 s{S_FL}, s{S_T0}, {ws.WF}
    v_lshlrev_b32 v{VF}, 2, v0
    v_mov_b32 v4, 0x10000000
    v_cmp_gt_u32 vcc, 8, v0
    s_mov_b32 s{S_S}, 0
    s_nop 0
    v_cndmask_b32 v{VF}, v4, v{VF}, vcc
    {loop}:
    s_mov_b32 s{S_CNT}, s{S_LIM}
    {pr}:
    {f's_sleep {slp}' if slp else ''}
    buffer_load_dwordx4 v[{PL}:{PL+3}], v{VL16}, s[8:11], s{S_PO} offen sc1
    s_waitcnt vmcnt(0)
    v_max3_u32 v{PL}, v{PL}, v{PL+1}, v{PL+2}
    v_max_u32 v{PL}, v{PL}, v{PL+3}''')
    poll_tail(a,pr,pok,PL)
    for k in range(16):
        if k%4==0: a(f's_add_u32 s{S_SR2}, s{S_SRC}, {k*1024}')
        a(f'buffer_load_dwordx4 v[{DAT+4*k}:{DAT+4*k+3}], v{VL16}, s[8:11], s{S_SR2} offen offset:{(k&3)*1024} sc1')
    for k in range(16):
        if k%4==0: a(f's_add_u32 s{S_SR2}, s{S_SRC}, {k*1024}')
        a(f's_waitcnt vmcnt(15)')
        a(f'buffer_store_dwordx4 v[{DAT+4*k}:{DAT+4*k+3}], v{VL16}, s[8:11], s{S_SR2} offen offset:{(k&3)*1024} sc1')
    a(f'''s_waitcnt vmcnt(0)
    buffer_store_dword v{VONE}, v{VF}, s[8:11], s{S_FL} offen sc1
    s_add_u32 s{S_FL}, s{S_FL}, 224
    s_add_u32 s{S_SRC}, s{S_SRC}, {14*8192}
    s_add_u32 s{S_PO}, s{S_PO}, 7168
    s_add_u32 s{S_S}, s{S_S}, 1
    s_cmp_lt_u32 s{S_S}, 62
    s_cbranch_scc1 {loop}
    s_waitcnt vmcnt(0)
    s_endpgm''')
    loop=L('ml'); pr=L('mp'); pok=L('mo')
    a(f'''{lma}:
    v_lshlrev_b32 v{VF}, 2, v0
    v_mov_b32 v4, 0x10000000
    v_cmp_gt_u32 vcc, 14, v0
    s_mov_b32 s{S_FL}, {ws.F}
    s_mov_b32 s{S_PO}, {ws.MA+7168}
    v_cndmask_b32 v{VF}, v4, v{VF}, vcc
    s_mov_b32 s{S_S}, 1
    buffer_store_dword v{VONE}, v{VF}, s[8:11], s{S_FL} offen sc1
    v_lshlrev_b32 v5, 2, v0
    v_cmp_gt_u32 vcc, 56, v0
    s_mov_b32 s{S_SRC}, {ws.WF-224}
    s_nop 0
    v_cndmask_b32 v5, v4, v5, vcc
    {loop}:
    s_add_u32 s{S_FL}, s{S_FL}, 64
    s_add_u32 s{S_SR2}, s{S_PO}, 4096
    s_mov_b32 s{S_CNT}, s{S_LIM}
    {pr}:''')
    if slp: a(f's_sleep {slp}')
    so=lambda k: S_PO if k<4 else S_SR2
    for k in range(7): a(f'buffer_load_dwordx4 v[{DAT+4*k}:{DAT+4*k+3}], v{VL16}, s[8:11], s{so(k)} offen offset:{(k&3)*1024} sc1')
    for k in range(7):
        a(f's_waitcnt vmcnt({6-k})')
        r=DAT+4*k
        if k==0: a(f'v_max3_u32 v{PL}, v{r}, v{r+1}, v{r+2}\nv_max_u32 v{PL}, v{PL}, v{r+3}')
        else: a(f'v_max3_u32 v{PL}, v{PL}, v{r}, v{r+1}\nv_max3_u32 v{PL}, v{PL}, v{r+2}, v{r+3}')
    poll_tail(a,pr,pok,PL)
    for k in range(7): a(f'buffer_store_dwordx4 v[{DAT+4*k}:{DAT+4*k+3}], v{VL16}, s[8:11], s{so(k)} offen offset:{(k&3)*1024} sc1')
    if hlp>=2:
        lq=L('hq'); a(f's_cmp_lt_u32 s{S_S}, 2\ns_cbranch_scc1 {lq}\nbuffer_store_dword v{VONE}, v5, s[8:11], s{S_SRC} offen sc1\n{lq}:\ns_add_u32 s{S_SRC}, s{S_SRC}, 224')
    a(f'''s_waitcnt vmcnt(0)
    buffer_store_dword v{VONE}, v{VF}, s[8:11], s{S_FL} offen sc1
    s_add_u32 s{S_PO}, s{S_PO}, 7168
    s_add_u32 s{S_S}, s{S_S}, 1
    s_cmp_lt_u32 s{S_S}, 64
    s_cbranch_scc1 {loop}
    s_waitcnt vmcnt(0)
    s_endpgm''')

def helper_ma(a, o):
    L=a.lab; S_S=30; S_PO=31; S_SRC=32; S_SR2=33; S_FL=34
    VL16=1; VF=2; VONE=3; PL=4; DAT=8; slp=o.get('hslp',0)
    loop=L('ml'); pr=L('mp'); pok=L('mo')
    a(f'''v_lshlrev_b32 v{VL16}, 4, v0
    v_mov_b32 v{VONE}, 1
    s_mov_b32 s{S_LIM}, {POLL_LIM}
    v_lshlrev_b32 v{VF}, 2, v0
    v_mov_b32 v4, 0x10000000
    v_cmp_gt_u32 vcc, 14, v0
    s_mov_b32 s{S_FL}, {ws.F}
    s_mov_b32 s{S_PO}, {ws.MA+7168}
    v_cndmask_b32 v{VF}, v4, v{VF}, vcc
    s_mov_b32 s{S_S}, 1
    buffer_store_dword v{VONE}, v{VF}, s[8:11], s{S_FL} offen sc1
    v_lshlrev_b32 v5, 2, v0
    v_cmp_gt_u32 vcc, 56, v0
    s_mov_b32 s{S_SRC}, {ws.WF-224}
    s_nop 0
    v_cndmask_b32 v5, v4, v5, vcc
    {loop}:
    s_add_u32 s{S_FL}, s{S_FL}, 64
    s_add_u32 s{S_SR2}, s{S_PO}, 4096
    s_mov_b32 s{S_CNT}, s{S_LIM}
    {pr}:''')
    if slp: a(f's_sleep {slp}')
    so=lambda k: S_PO if k<4 else S_SR2
    for k in range(7): a(f'buffer_load_dwordx4 v[{DAT+4*k}:{DAT+4*k+3}], v{VL16}, s[8:11], s{so(k)} offen offset:{(k&3)*1024} sc1')
    for k in range(7):
        a(f's_waitcnt vmcnt({6-k})')
        r=DAT+4*k
        if k==0: a(f'v_max3_u32 v{PL}, v{r}, v{r+1}, v{r+2}\nv_max_u32 v{PL}, v{PL}, v{r+3}')
        else: a(f'v_max3_u32 v{PL}, v{PL}, v{r}, v{r+1}\nv_max3_u32 v{PL}, v{PL}, v{r+2}, v{r+3}')
    poll_tail(a,pr,pok,PL)
    for k in range(7): a(f'buffer_store_dwordx4 v[{DAT+4*k}:{DAT+4*k+3}], v{VL16}, s[8:11], s{so(k)} offen offset:{(k&3)*1024} sc1')
    lq=L('hq'); a(f's_cmp_lt_u32 s{S_S}, 2\ns_cbranch_scc1 {lq}\nbuffer_store_dword v{VONE}, v5, s[8:11], s{S_SRC} offen sc1\n{lq}:\ns_add_u32 s{S_SRC}, s{S_SRC}, 224')
    a(f'''s_waitcnt vmcnt(0)
    buffer_store_dword v{VONE}, v{VF}, s[8:11], s{S_FL} offen sc1
    s_add_u32 s{S_PO}, s{S_PO}, 7168
    s_add_u32 s{S_S}, s{S_S}, 1
    s_cmp_lt_u32 s{S_S}, 64
    s_cbranch_scc1 {loop}
    s_waitcnt vmcnt(0)''')

def roles(a, name, prof, clk, nsteps, om, o):
    l1=name+'_m1'
    if o.get('hlp',0):
        lh=name+'_nh'
        a(f's_cmp_lt_u32 s{S_ROLE}, 30\ns_cbranch_scc1 {lh}')
        helper_role(a,o)
        a(f'{lh}:')
    if not o.get('static',0):
        lv=name+'_val'
        a(f's_cmp_ge_u32 s{S_ROLE}, 16\ns_cbranch_scc1 {lv}')
        score_role(a,prof,nsteps,clk,None,o); a(f'{lv}:'); value_role(a,prof,nsteps,om,None,o); return
    a(f's_cmp_lg_u32 s{S_MODE}, 0\ns_cbranch_scc1 {l1}')
    for mode in (0,1):
        lv=f'{name}_val{mode}'
        if mode: a(f'{l1}:')
        a(f's_cmp_ge_u32 s{S_ROLE}, 16\ns_cbranch_scc1 {lv}')
        score_role(a,prof if mode==0 else False,nsteps,clk and mode==0,mode,o)
        a(f'{lv}:')
        value_role(a,prof if mode==0 else False,nsteps,om,mode,o)
def rec_kernel(name, prof=False, nsteps=63, clk=False, o={}):
    a=Asm(); a.l.append(head(name))
    ex=name+'_exit'
    prologue(a,256,ex)
    election(a,LS_ROLE)
    a(f'''s_cmp_ge_u32 s{S_ROLE}, {NROLE}
    s_cbranch_scc1 {ex}''')
    roles(a,name,prof,clk,nsteps,False,o)
    a(f'{ex}:\ns_endpgm')
    return a.text()+kd(name,vgpr=256,agpr=256)
REC_LDS=78080+8192+256
if __name__=='__main__':
    n='rec_kernel'
    t=f'; @launch kernel={n} grid=(256,1,1) block=(256,1,1) lds={REC_LDS}\n.amdgcn_target "amdgcn-amd-amdhsa--gfx950"\n'+rec_kernel(n,prof=True)
    open('rec_test.s','w').write(t)
    print(len(t))
SNAMES=['poll','B1+rd','tgemm','scores','softmax/dma']
VNAMES=['poll','B1+rd','wgemm','Ppoll+pz','reduce']
```

```python
from asm import *
from lay import ws
KA=dict(x=0,mem0=8,wq=16,wk=24,wv=32,wo=40,wr=64,wi=72,out=80,dbg=88,ws=96)
def srd(a, s, karg_reg, nbytes):
    a(f'''s_mov_b32 s{s}, s{karg_reg}
    s_mov_b32 s{s+1}, s{karg_reg+1}
    s_mov_b32 s{s+2}, {nbytes}
    s_mov_b32 s{s+3}, 0x00020000''')
def div_const(a, dst, src, d, maxv):
    for sh in range(8,28):
        m=((1<<sh)+d-1)//d
        if all((x*m)>>sh==x//d for x in range(maxv)) and m*maxv<(1<<31):
            a(f's_mul_i32 s{dst}, s{src}, {m}\ns_lshr_b32 s{dst}, s{dst}, {sh}'); return
    raise Exception('no magic')

def poll_flags(a, s_addr, vaddr, vtmp, mask, s_cnt, s_lim, s_tmp, sleep=2):
    lr=a.lab('pf'); lo=a.lab('po')
    lo32=mask&0xffffffff; hi32=mask>>32
    a(f'''s_mov_b32 s{s_cnt}, s{s_lim}
    {lr}:
    buffer_load_dword v{vtmp}, v{vaddr}, s[8:11], s{s_addr} offen sc1
    s_waitcnt vmcnt(0)
    v_cmp_eq_u32 vcc, 1, v{vtmp}
    s_nop 1''')
    if hi32==0xffffffff and lo32==0xffffffff:
        a(f's_and_b32 s{s_tmp}, vcc_lo, vcc_hi\ns_cmp_eq_u32 s{s_tmp}, -1')
    elif hi32==0:
        a(f's_and_b32 s{s_tmp}, vcc_lo, {hex(lo32)}\ns_cmp_eq_u32 s{s_tmp}, {hex(lo32)}')
    else:
        assert lo32==0xffffffff
        a(f's_and_b32 s{s_tmp}, vcc_hi, {hex(hi32)}\ns_xor_b32 s{s_tmp}, s{s_tmp}, {hex(hi32)}\ns_andn2_b32 vcc_lo, -1, vcc_lo\ns_or_b32 s{s_tmp}, s{s_tmp}, vcc_lo\ns_cmp_eq_u32 s{s_tmp}, 0')
    a(f'''s_cbranch_scc1 {lo}
    s_sleep {sleep}
    s_sub_u32 s{s_cnt}, s{s_cnt}, 1
    s_cbranch_scc0 {lr}
    s_mov_b32 s{s_lim}, 0
    {lo}:''')
def flag_store(a, s_addr, vaddr, vone, lane_cond_wave=None):
    a(f'buffer_store_dword v{vone}, v{vaddr}, s[8:11], s{s_addr} offen sc1')
def wg_flag(a, s_addr, S_W=17, v0t=4, v1t=5, s_t=None):
    st=s_t if s_t is not None else s_addr+1
    a(f'''s_lshl_b32 s{st}, s{S_W}, 6
    v_add_u32 v{v0t}, s{st}, v0
    v_cmp_eq_u32 vcc, 0, v{v0t}
    v_mov_b32 v{v0t}, 0x10000000
    v_mov_b32 v{v1t}, 1
    v_cndmask_b32 v{v0t}, v{v0t}, 0, vcc
    s_waitcnt vmcnt(0) lgkmcnt(0)
    s_barrier
    buffer_store_dword v{v1t}, v{v0t}, s[8:11], s{s_addr} offen sc1''')
def wg_wait(a, addr, nflags, S_W=17, s_a=24, s_cnt=25, s_t=26, s_lim=39, va=4, vt=8, sleep=2, pre=None, wave=False):
    lb=a.lab('ww')
    if not wave: a(f's_cmp_lg_u32 s{S_W}, 0\ns_cbranch_scc1 {lb}')
    for (ad,n,sl) in (pre or [])+[(addr,nflags,sleep)]:
        lr=a.lab('wr'); lo=a.lab('wo')
        a(f's_mov_b32 s{s_a}, {ad}')
        if n<=64:
            a(f'''v_lshlrev_b32 v{va}, 2, v0
            v_mov_b32 v{vt}, 0x10000000
            v_cmp_gt_u32 vcc, {n}, v0
            s_mov_b32 s{s_cnt}, s{s_lim}
            s_nop 0
            v_cndmask_b32 v{va}, v{vt}, v{va}, vcc
            {lr}:
            buffer_load_dword v{vt}, v{va}, s[8:11], s{s_a} offen sc1
            s_waitcnt vmcnt(0)
            v_cmp_eq_u32 vcc, 1, v{vt}
            s_nop 1
            s_bcnt1_i32_b64 s{s_t}, vcc
            s_cmp_eq_u32 s{s_t}, {n}''')
        else:
            a(f'''v_lshlrev_b32 v{va}, 4, v0
            v_mov_b32 v{vt}, 0x10000000
            v_cmp_gt_u32 vcc, {(n+3)//4}, v0
            s_mov_b32 s{s_cnt}, s{s_lim}
            s_nop 0
            v_cndmask_b32 v{va}, v{vt}, v{va}, vcc
            {lr}:
            buffer_load_dwordx4 v[{vt}:{vt+3}], v{va}, s[8:11], s{s_a} offen sc1
            s_waitcnt vmcnt(0)
            s_mov_b32 s{s_t}, 0''')
            for q in range(4):
                cnt=len(range(q,n,4))
                a(f'''v_cmp_eq_u32 vcc, 1, v{vt+q}
                s_nop 1''')
                if cnt<64:
                    m=(1<<cnt)-1
                    a(f's_and_b32 vcc_lo, vcc_lo, {hex(m&0xffffffff)}\ns_and_b32 vcc_hi, vcc_hi, {hex(m>>32)}')
                a(f's_bcnt1_i32_b64 s{s_t+1}, vcc\ns_add_u32 s{s_t}, s{s_t}, s{s_t+1}')
            a(f's_cmp_eq_u32 s{s_t}, {n}')
        a(f'''s_cbranch_scc1 {lo}
        s_sleep {sl}
        s_sub_u32 s{s_cnt}, s{s_cnt}, 1
        s_cbranch_scc0 {lr}
        s_mov_b32 s{s_lim}, 0
        {lo}:''')
    if not wave: a(f'{lb}:\ns_barrier')
```

```python
from common import *
import math
def fold_kernel(name,loc=True):
    a=Asm(); a.l.append(head(name))
    ex=name+'_exit'
    fold_body(a,ex,True,loc)
    a(f'{ex}:\ns_endpgm')
    return a.text()+kd(name,vgpr=160,agpr=128)
def fold_body(a,ex,pro,loc=True,S_ID=16,stflags='',flags=False):
    LA=0; LB=32768
    S_W=17; S_MAT=18; S_H=19; S_J=20; T0=21;T1=22;T2=23;T3=24; S_G=25; S_LB=26; S_RB=27; S_OB=28; S_IT=29; S_DL=30; S_SC=31
    if pro:
        a(f'''s_cmp_ge_u32 s2, 224
        s_cbranch_scc1 {ex}
        s_load_dwordx2 s[4:5], s[0:1], 96
        v_lshrrev_b32 v1, 6, v0
        v_and_b32 v0, 63, v0
        s_mov_b32 s{S_ID}, s2
        v_readfirstlane_b32 s{S_W}, v1''')
    a(f'''s_load_dwordx4 s[36:39], s[0:1], 16
    s_load_dwordx4 s[40:43], s[0:1], 32''')
    if loc==2:
        l28=a.lab('f28'); l29=a.lab('f29')
        a(f'''s_lshr_b32 s{T0}, s{S_ID}, 5
        s_and_b32 s{T1}, s{S_ID}, 31
        s_lshl_b32 s{T0}, s{T0}, 2
        s_cmp_ge_u32 s{T1}, 28
        s_cbranch_scc1 {l28}''')
        div_const(a,T2,T1,7,32)
        a(f'''s_mul_i32 s{T3}, s{T2}, 7
        s_sub_u32 s{S_J}, s{T1}, s{T3}
        s_add_u32 s{T2}, s{T2}, s{T0}
        s_branch {l29}
        {l28}:
        s_sub_u32 s{T1}, s{T1}, 28
        s_add_u32 s{T1}, s{T1}, s{T0}''')
        div_const(a,T2,T1,7,32)
        a(f'''s_mul_i32 s{T3}, s{T2}, 7
        s_sub_u32 s{S_J}, s{T1}, s{T3}
        s_add_u32 s{T2}, s{T2}, 28
        {l29}:
        s_lshr_b32 s{S_MAT}, s{T2}, 4
        s_and_b32 s{S_H}, s{T2}, 15
        s_waitcnt lgkmcnt(0)''')
    elif loc:
        a(f's_lshr_b32 s{T0}, s{S_ID}, 3')
        div_const(a,T1,T0,7,32)
        a(f'''s_mul_i32 s{T2}, s{T1}, 7
        s_sub_u32 s{S_J}, s{T0}, s{T2}
        s_and_b32 s{T2}, s{S_ID}, 7
        s_lshl_b32 s{T2}, s{T2}, 2
        s_add_u32 s{T2}, s{T2}, s{T1}
        s_lshr_b32 s{S_MAT}, s{T2}, 4
        s_and_b32 s{S_H}, s{T2}, 15
        s_waitcnt lgkmcnt(0)''')
    else:
        a(f'''s_cmp_ge_u32 s{S_ID}, 112
        s_cselect_b32 s{S_MAT}, 1, 0
        s_mul_i32 s{T0}, s{S_MAT}, 112
        s_sub_u32 s{T0}, s{S_ID}, s{T0}''')
        div_const(a,S_H,T0,7,112)
        a(f'''s_mul_i32 s{T1}, s{S_H}, 7
        s_sub_u32 s{S_J}, s{T0}, s{T1}
        s_waitcnt lgkmcnt(0)''')
    if not flags: srd(a,8,4,0x10000000)
    a(f'''s_cmp_eq_u32 s{S_MAT}, 0
    s_cselect_b32 s12, s36, s40
    s_cselect_b32 s13, s37, s41
    s_mov_b32 s14, 3670016
    s_mov_b32 s15, 0x00020000
    s_cselect_b32 s44, s38, s42
    s_cselect_b32 s45, s39, s43
    s_mov_b32 s46, 3670016
    s_mov_b32 s47, 0x00020000''')
    a('''v_lshrrev_b32 v10, 5, v0
    v_and_b32 v11, 31, v0
    v_lshlrev_b32 v12, 13, v10''')
    for t in range(8):
        a(f'''v_add_u32 v13, {2*t}, v10
        v_xor_b32 v13, v13, v11
        v_lshlrev_b32 v13, 4, v13
        v_add_u32 v{2+t}, v13, v12''')
    a(f'''s_lshl_b32 s{T0}, s{S_J}, 6
    s_lshl_b32 s{T1}, s{S_W}, 4
    s_add_u32 s{T0}, s{T0}, s{T1}
    s_lshl_b32 s{T0}, s{T0}, 13
    s_lshl_b32 s{T1}, s{S_H}, 9
    s_add_u32 s{T0}, s{T0}, s{T1}
    s_lshl_b32 s{T2}, s{S_W}, 13''')
    for t in range(8):
        a(f'''s_add_u32 m0, s{T2}, {LA+t*1024}
        s_add_u32 s{T1}, s{T0}, {t*2*8192}
        buffer_load_dwordx4 v{2+t}, s[12:15], s{T1} offen lds''')
    a(f'''s_lshl_b32 s{S_LB}, s{S_W}, 14
    s_add_u32 s{S_LB}, s{S_LB}, {LB}''')
    S_FB=32; S_FL=33; VDB=21; VDA=22; VFA=40; VONE=41
    if flags:
        a(f'''s_mov_b32 s12, s6
        s_mov_b32 s13, s7
        s_mov_b32 s14, 256
        s_mov_b32 s15, 0x00020000
        s_lshl_b32 s{T0}, s{S_MAT}, 4
        s_add_u32 s{T0}, s{T0}, s{S_H}
        s_mul_i32 s{T0}, s{T0}, {14*8}
        s_add_u32 s{T0}, s{T0}, s{S_J}
        s_lshl_b32 s{T0}, s{T0}, 2
        s_add_u32 s{S_FB}, s{T0}, {ws.FF}
        v_lshlrev_b32 v{VDA}, 2, v0
        v_mov_b32 v{VFA}, 0x10000000
        v_cmp_gt_u32 vcc, 32, v0
        v_mov_b32 v{VONE}, 1
        s_nop 0
        v_cndmask_b32 v{VDA}, v{VFA}, v{VDA}, vcc
        v_cmp_eq_u32 vcc, 0, v0
        s_nop 1
        v_cndmask_b32 v{VFA}, v{VFA}, 0, vcc''')
    a(f'''v_and_b32 v13, 15, v0
    v_xor_b32 v13, v13, v10
    v_lshlrev_b32 v13, 4, v13
    v_lshlrev_b32 v14, 9, v11
    v_add_u32 v14, v14, v13
    v_add_u32 v15, s{S_LB}, v14''')
    a(f'''v_lshrrev_b32 v13, 5, v0
    v_lshlrev_b32 v13, 9, v13
    v_lshrrev_b32 v17, 2, v0
    v_and_b32 v17, 3, v17
    v_lshlrev_b32 v17, 6, v17
    v_add_u32 v13, v13, v17
    v_lshrrev_b32 v17, 4, v0
    v_and_b32 v17, 1, v17
    v_lshlrev_b32 v17, 5, v17
    v_add_u32 v13, v13, v17
    v_and_b32 v17, 3, v0
    v_lshlrev_b32 v17, 3, v17
    v_add3_u32 v16, v13, v17, s{S_LB}''')
    a('''v_lshrrev_b32 v13, 2, v0
    v_mul_u32_u24 v13, 896, v13
    v_and_b32 v17, 3, v0
    v_lshlrev_b32 v17, 4, v17
    v_add_u32 v17, v17, v13''')
    a('''v_and_b32 v13, 15, v0
    v_lshlrev_b32 v18, 4, v10
    v_add_u32 v13, v13, v18
    v_lshlrev_b32 v13, 4, v13
    v_lshrrev_b32 v18, 4, v11
    v_mul_u32_u24 v19, 0x18800, v18
    v_mul_u32_u24 v18, 0x3800, v18
    v_add_u32 v18, v18, v13
    v_add_u32 v19, v19, v13''')
    eoff_pair=lambda c: 8*((c&15)>>2)+4*(c>>4)+(c&3)
    eoff_odd=lambda c: 112*(c>>4)+(c&15)
    def dmaB(kind):
        for t in range(16):
            if kind=='C':
                a(f's_add_u32 m0, s{S_LB}, {t*1024}\ns_add_u32 s{T1}, s{S_RB}, {t*16*896}\nbuffer_load_dwordx4 v17, s[44:47], s{T1} offen lds')
            else:
                eo=(eoff_pair if kind=='P' else eoff_odd)(2*t)
                a(f's_add_u32 m0, s{S_LB}, {t*1024}\ns_add_u32 s{T1}, s{S_RB}, {eo*8192}\nbuffer_load_dwordx4 v{2+(t&7)}, s[44:47], s{T1} offen lds')
    def setup_and_dma(tag):
        lC=a.lab('fC'); lO=a.lab('fO'); lE=a.lab('fE')
        a(f's_cmp_lg_u32 s{S_MAT}, 0\ns_cbranch_scc1 {lC}\ns_cmp_ge_u32 s{S_G}, 12\ns_cbranch_scc1 {lO}')
        div_const(a,T0,S_G,3,16)
        a(f'''s_mul_i32 s{T1}, s{T0}, 3
        s_sub_u32 s{T1}, s{S_G}, s{T1}
        s_mul_i32 s{T2}, s{T0}, 112
        s_lshl_b32 s{T3}, s{T1}, 5
        s_add_u32 s{T2}, s{T2}, s{T3}
        s_lshl_b32 s{T2}, s{T2}, 13
        s_lshl_b32 s{T3}, s{S_H}, 9
        s_add_u32 s{S_RB}, s{T2}, s{T3}''')
        dmaB('P')
        a(f's_branch {lE}\n{lO}:')
        a(f'''s_sub_u32 s{T0}, s{S_G}, 12
        s_mul_i32 s{T2}, s{T0}, 224
        s_add_u32 s{T2}, s{T2}, 96
        s_lshl_b32 s{T2}, s{T2}, 13
        s_lshl_b32 s{T3}, s{S_H}, 9
        s_add_u32 s{S_RB}, s{T2}, s{T3}''')
        dmaB('O')
        a(f's_branch {lE}\n{lC}:')
        a(f'''s_mul_i32 s{T2}, s{S_H}, 229376
        s_lshl_b32 s{T3}, s{S_G}, 6
        s_add_u32 s{S_RB}, s{T2}, s{T3}''')
        dmaB('C')
        a(f'{lE}:')
    a(f's_mov_b32 s{S_G}, s{S_W}')
    setup_and_dma(0)
    a(f's_waitcnt vmcnt(16)\ns_barrier')
    for ks in range(16):
        a(f'v_xor_b32 v13, {ks<<5}, v14')
        a(f'ds_read_b128 a[{4*ks}:{4*ks+3}], v13')
        a(f'ds_read_b128 a[{64+4*ks}:{64+4*ks+3}], v13 offset:16384')
    sc=math.log2(math.e)/16.0
    import struct
    scb=struct.unpack('<I',struct.pack('<f',sc))[0]
    a(f's_cmp_eq_u32 s{S_MAT}, 0\ns_cselect_b32 s{S_SC}, {hex(scb)}, 1.0')
    loop=a.lab('floop'); last=a.lab('flast'); l1=a.lab('fr'); l2=a.lab('fr')
    a(f'{loop}:')
    a('s_waitcnt vmcnt(0) lgkmcnt(0)')
    def gflag():
        a(f's_lshl_b32 s{S_FL}, s{S_G}, 5\ns_add_u32 s{S_FL}, s{S_FL}, s{S_FB}\ns_sub_u32 s{S_FL}, s{S_FL}, 128')
        a(f'buffer_store_dword v{VONE}, v{VFA}, s[8:11], s{S_FL} offen sc1')
    if flags:
        lf=a.lab('ffl'); lk=a.lab('ffk'); lr=a.lab('ffr')
        a(f'''s_cmp_lt_u32 s{S_G}, 4
        s_cbranch_scc1 {lf}
        s_cmp_ge_u32 s{S_G}, 8
        s_cbranch_scc1 {lk}
        s_mov_b32 s{T0}, 4000
        {lr}:
        v_cmp_ne_u32 vcc, 0, v{VDB}
        s_nop 1
        s_cmp_eq_u32 vcc_lo, -1
        s_cbranch_scc1 {lk}
        buffer_load_dword v{VDB}, v{VDA}, s[12:15], 0 offen sc0 sc1
        s_waitcnt vmcnt(0)
        s_sub_u32 s{T0}, s{T0}, 1
        s_cbranch_scc0 {lr}
        {lk}:''')
        gflag()
        a(f'{lf}:')
    a(f's_cmp_lg_u32 s{S_MAT}, 0\ns_cbranch_scc1 {l1}')
    for ks in range(16):
        a(f'v_xor_b32 v13, {ks<<5}, v15\nds_read_b128 v[{64+4*ks}:{64+4*ks+3}], v13')
    a(f's_branch {l2}\n{l1}:')
    for ks in range(16):
        a(f'ds_read_b64_tr_b16 v[{64+4*ks}:{64+4*ks+1}], v16 offset:{ks*1024}')
        a(f'ds_read_b64_tr_b16 v[{64+4*ks+2}:{64+4*ks+3}], v16 offset:{ks*1024+256}')
    a(f'{l2}:')
    lC=a.lab('oC'); lO=a.lab('oO'); lE=a.lab('oE')
    a(f's_cmp_lg_u32 s{S_MAT}, 0\ns_cbranch_scc1 {lC}\ns_cmp_ge_u32 s{S_G}, 12\ns_cbranch_scc1 {lO}')
    div_const(a,T0,S_G,3,16)
    a(f'''s_mul_i32 s{T1}, s{T0}, 3
    s_sub_u32 s{T1}, s{S_G}, s{T1}
    s_lshl_b32 s{T2}, s{S_H}, 2
    s_add_u32 s{T2}, s{T2}, s{T0}
    s_mul_i32 s{T2}, s{T2}, 49
    s_mul_i32 s{T1}, s{T1}, 14
    s_add_u32 s{T2}, s{T2}, s{T1}
    s_add_u32 s{T2}, s{T2}, s{S_J}
    s_lshl_b32 s{T2}, s{T2}, 11
    s_add_u32 s{S_OB}, s{T2}, {ws.AI}
    v_mov_b32 v20, v18
    s_branch {lE}
    {lO}:
    s_sub_u32 s{T0}, s{S_G}, 12
    s_lshl_b32 s{T0}, s{T0}, 1
    s_lshl_b32 s{T2}, s{S_H}, 2
    s_add_u32 s{T2}, s{T2}, s{T0}
    s_mul_i32 s{T2}, s{T2}, 49
    s_add_u32 s{T2}, s{T2}, 42
    s_add_u32 s{T2}, s{T2}, s{S_J}
    s_lshl_b32 s{T2}, s{T2}, 11
    s_add_u32 s{S_OB}, s{T2}, {ws.AI}
    v_mov_b32 v20, v19
    s_branch {lE}
    {lC}:
    s_lshl_b32 s{T2}, s{S_G}, 4
    s_add_u32 s{T2}, s{T2}, s{S_H}
    s_mul_i32 s{T2}, s{T2}, 14
    s_add_u32 s{T2}, s{T2}, s{S_J}
    s_lshl_b32 s{T2}, s{T2}, 11
    s_add_u32 s{S_OB}, s{T2}, {ws.CI}
    v_mov_b32 v20, v18
    {lE}:''')
    a(f's_waitcnt lgkmcnt(0)\ns_add_u32 s{S_G}, s{S_G}, 4\ns_cmp_ge_u32 s{S_G}, 14\ns_cbranch_scc1 {last}')
    setup_and_dma(1)
    if flags: a(f'buffer_load_dword v{VDB}, v{VDA}, s[12:15], 0 offen sc0 sc1')
    a(f'{last}:')
    for ks in range(16):
        for eta in range(2):
            c='0' if ks==0 else f'v[{128+16*eta}:{128+16*eta+15}]'
            a(f'v_mfma_f32_32x32x16_bf16 v[{128+16*eta}:{128+16*eta+15}], a[{64*eta+4*ks}:{64*eta+4*ks+3}], v[{64+4*ks}:{64+4*ks+3}], {c}')
    a('s_nop 7\ns_nop 3')
    for eta in range(2):
        b=128+16*eta
        if eta==1: a('s_nop 0')
        for r in range(16): a(f'v_mul_f32 v{b+r}, s{S_SC}, v{b+r}')
        for aa in range(2):
            o=24+4*aa+8*eta; q=b+8*aa
            a(f'''v_cvt_pk_bf16_f32 v{o}, v{q}, v{q+1}
            v_cvt_pk_bf16_f32 v{o+1}, v{q+4}, v{q+5}
            v_cvt_pk_bf16_f32 v{o+2}, v{q+2}, v{q+3}
            v_cvt_pk_bf16_f32 v{o+3}, v{q+6}, v{q+7}
            buffer_store_dwordx4 v[{o}:{o+3}], v20, s[8:11], s{S_OB} offen offset:{eta*1024+aa*512} {stflags}''')
    a(f's_cmp_lt_u32 s{S_G}, 14\ns_cbranch_scc1 {loop}')
    a(f's_waitcnt vmcnt(0)')
    if flags: gflag()
FOLD_LDS=32768+4*16384
```

```python
from common import *
import lay
import rec2 as rec, dk, j1, j2, misc, b1, fft, b3, ln, ok, start, fold
from rec2 import S_ROLE,S_WAVE,S_MODE,S_T0
MEGA_LDS=ok.OK_LDS
NR=32; NJ1=112; NB1=16; NJ2=224-NJ1-NB1
NST=16
VA=248; VT=252
def mega_kernel(name, o=None, tl=False, clk=False, merged=False):
    o=dict(ok.OPT if o is None else o)
    if merged: o['merged']=1
    assert o.get('hlp')==2
    a=Asm(); a.l.append(head(name))
    ex=name+'_exit'; lwk=name+'_wk'; lrec=name+'_rec'
    def ts(i):
        if tl: a(f's_memrealtime s[{70+2*i}:{71+2*i}]')
    def tdump(wk):
        if not tl: return
        if wk: a(f's_add_u32 s{S_ROLE}, s58, {NR}')
        a(f'''s_waitcnt lgkmcnt(0)
        s_lshl_b32 s{S_T0}, s{S_ROLE}, 2
        s_add_u32 s{S_T0}, s{S_T0}, s{S_WAVE}
        s_lshl_b32 s{S_T0}, s{S_T0}, 6
        s_add_u32 s{S_T0}, s{S_T0}, {ws.PROF+0xE0000}
        s_mov_b64 exec, -1
        v_mov_b32 v2, 0''')
        for i in range(NST): a(f'v_writelane_b32 v2, s{70+2*i}, {i}')
        a(f'''v_lshlrev_b32 v3, 2, v0
        v_mov_b32 v4, 0x10000000
        v_cmp_gt_u32 vcc, 16, v0
        s_nop 1
        v_cndmask_b32 v3, v4, v3, vcc
        buffer_store_dword v2, v3, s[8:11], s{S_T0} offen
        s_waitcnt vmcnt(0)''')
    if tl:
        for i in range(NST): a(f's_mov_b32 s{70+2*i}, 0')
    ts(0)
    rec.prologue(a,256,ex)
    if merged: start.static_role(a)
    else:
        ok.election2(a,NR)
        ts(1)
    a(f's_cmp_ge_u32 s{S_ROLE}, {NR}\ns_cbranch_scc1 {lwk}')
    if merged:
        start.rec_start(a,ts=lambda: ts(14))
        ts(1)
    a(f's_cmp_lt_u32 s{S_ROLE}, 30\ns_cbranch_scc1 {lrec}')
    l30=a.lab('r30')
    a(f's_cmp_eq_u32 s{S_ROLE}, 30\ns_cbranch_scc1 {l30}\ns_cmp_lg_u32 s{S_WAVE}, 3\ns_cbranch_scc1 {ex}')
    for l in (0,1):
        lay.set_layer(l); rec.helper_ma(a,o)
    a(f's_endpgm\n{l30}:\ns_mov_b32 s39, 8000\ns_mov_b32 s18, 224')
    wg_wait(a,ws.TF,136,sleep=32,va=VA,vt=VT)
    for l in (0,1):
        lay.set_layer(l)
        fft.fft_tables(a,True)
        a('v_lshlrev_b32 v1, 4, v0'); fft.fft_wt(a,18,True)
        fft.fft_main(a,18,'sc1',wait=lambda: wg_wait(a,ws.BF+240*4,16,va=VA,vt=VT,pre=[(ws.BF+56*16,1,32)]))
        a(f's_mov_b32 s24, {ws.GF+224*4}')
        wg_flag(a,24)
    a('s_waitcnt vmcnt(0)\ns_endpgm')
    a(f'{lrec}:')
    lay.set_layer(1); LF1=ws.LF
    def wait_lf(a):
        a(f's_mov_b32 s19, {rec.POLL_LIM}')
        wg_wait(a,LF1,128,s_lim=19,pre=[(LF1+127*4,1,4)])
    lay.set_layer(0); LF0=ws.LF
    def wait_lf0(a):
        a(f's_mov_b32 s19, {rec.POLL_LIM}')
        wg_wait(a,LF0,128,s_lim=19,wave=True,s_a=47,s_cnt=48,s_t=49)
    o['wait_lf0']=wait_lf0
    l1=name+'_m1'
    a(f's_cmp_lg_u32 s{S_MODE}, 0\ns_cbranch_scc1 {l1}')
    for mode in (0,1):
        lv=f'{name}_val{mode}'
        if mode: a(f'{l1}:')
        a(f's_cmp_ge_u32 s{S_ROLE}, 16\ns_cbranch_scc1 {lv}')
        for role in ('s','v'):
            if role=='v': a(f'{lv}:')
            for l in (0,1):
                lay.set_layer(l)
                oo=dict(o); oo['wait_lf']=wait_lf
                if tl and mode==0:
                    oo['tl']=((lambda i,l=l: ts(i+2*l) if i in (2,3) else None), (lambda n,l=l: tdump(False) if l==1 else None))
                if role=='s': rec.score_role(a,False,63,clk and mode==0 and l==1,mode,oo,first=(l==0),last=(l==1))
                else: rec.value_role(a,False,63,True,mode,oo,first=(l==0),last=(l==1))
    a(f'{lwk}:\ns_sub_u32 s58, s{S_ROLE}, {NR}\ns_cmp_ge_u32 s58, 224\ns_cbranch_scc1 {ex}')
    if merged:
        lay.set_layer(0)
        fold.fold_body(a,ex,False,2,58,stflags='sc1',flags=True)
        ts(1)
        a('s_barrier')
    b3.b3_dec(a,58)
    def dec_d():
        a('''s_and_b32 s18, s58, 3
        s_lshr_b32 s21, s58, 2
        s_lshr_b32 s16, s21, 2
        s_and_b32 s19, s21, 3''')
    def bpre(l):
        if l==0: wg_wait(a,ws.TF,136,va=VA,vt=VT,sleep=8)
        b3.b3_iv(a)
        fft.fft_wt(a,58,True)
        fft.fft_tables(a,True)
    for l in (0,1):
        lay.set_layer(l)
        lj2=a.lab('j2'); lb1=a.lab('b1'); lj=a.lab('join'); lj3=a.lab('join')
        if l==1:
            lay.set_layer(1)
            wg_wait(a,ws.LF,128,va=VA,vt=VT)
            ts(8)
        dec_d()
        if l==0 and merged:
            a('s_mov_b32 s39, 8000')
            wg_wait(a,ws.LF,128,va=VA,vt=VT)
            a(f'''s_lshl_b32 s30, s19, 2
            s_add_u32 s30, s30, s{S_WAVE}
            s_add_u32 s30, s30, 16
            s_mul_i32 s30, s30, 14
            s_add_u32 s30, s30, s16
            s_lshl_b32 s30, s30, 5
            s_add_u32 s30, s30, {ws.FF}''')
            wg_wait(a,'s30',8,va=VA,vt=VT,wave=True)
        dk.d_body(a,16,19,18,S_WAVE,stflags='sc1',flags=True,AB=0,preloaded=(l==1))
        a('s_barrier\ns_mov_b32 s39, 8000')
        ts(2+7*l)
        a(f's_cmp_ge_u32 s58, {NJ1}\ns_cbranch_scc1 {lj2}')
        div_const(a,16,58,7,112)
        a('''s_mul_i32 s18, s16, 7
        s_sub_u32 s18, s58, s18
        s_cmp_eq_u32 s18, 0
        s_cselect_b32 s19, 10, 9''')
        if l==0 and merged:
            a(f's_mul_i32 s30, s16, {14*32}\ns_add_u32 s30, s30, {ws.FF}')
            wg_wait(a,'s30',112,va=VA,vt=VT)
        j1.j1_body(a,16,18,S_WAVE,None,7,stflags='sc1',om=True,S_N=19)
        a(f's_branch {lj}\n{lj2}:\ns_cmp_ge_u32 s58, {NJ1+NJ2}\ns_cbranch_scc1 {lb1}')
        if l==0:
            lm=a.lab('ml'); ln_=a.lab('mn'); ld=a.lab('md')
            a(f's_sub_u32 s59, s58, {NJ1}\n{lm}:\ns_cmp_ge_u32 s59, {misc.N_WT+misc.N_TB}\ns_cbranch_scc1 {ld}')
            misc.misc_body(a,59,ln_,17,24,False,'sc1')
            a(f'{ln_}:\ns_lshl_b32 s24, s59, 2\ns_add_u32 s24, s24, {ws.TF}')
            wg_flag(a,24,v0t=2,v1t=3)
            a(f's_add_u32 s59, s59, {NJ2}\ns_branch {lm}\n{ld}:')
        a(f's_sub_u32 s16, s58, {NJ1}')
        if l==0:
            a(f"s_load_dwordx2 s[6:7], s[0:1], {KA['x']}\ns_waitcnt lgkmcnt(0)"); srd(a,12,6,1835008); rs,so='s[12:15]','0'
        else: a(f's_mov_b32 s22, {ws.X2}'); rs,so='s[8:11]','s22'
        a(f's_mov_b32 s19, {ws.X1}')
        j2.j2_om(a,16,S_WAVE,rs,so,'s19',NJ2,nx=True,xf=True)
        a(f's_branch {lj}\n{lb1}:\ns_mov_b32 s39, 8000')
        bpre(l)
        a(f's_sub_u32 s16, s58, {NJ1+NJ2}')
        b1.b1_om(a,16,S_WAVE,NB1//4)
        a(f's_waitcnt vmcnt(0) lgkmcnt(0)\ns_barrier\ns_mov_b32 s39, 8000')
        ts(3+7*l)
        a(f's_branch {lj3}\n{lj}:\ns_waitcnt vmcnt(0) lgkmcnt(0)\ns_barrier\ns_mov_b32 s39, 8000')
        ts(3+7*l)
        bpre(l)
        a(f'{lj3}:')
        def bfwait():
            wg_wait(a,ws.BF+240*4,16,va=VA,vt=VT)
            ts(4+7*l)
        fft.fft_main(a,58,'sc1',wait=bfwait)
        a(f's_lshl_b32 s24, s58, 2\ns_add_u32 s24, s24, {ws.GF}')
        wg_flag(a,24)
        ts(5+7*l)
        wg_wait(a,ws.GF,225,va=VA,vt=VT)
        ts(14+l)
        if l==0:
            b3.b3_main(a,ws.X2)
            ts(6)
            lq=a.lab('nln')
            a(f'''s_and_b32 s18, s58, 3
            s_lshr_b32 s59, s58, 2
            s_cmp_eq_u32 s18, 0
            s_cbranch_scc1 {lq}
            s_cmp_eq_u32 s18, 3
            s_cselect_b32 s19, 56, 0
            s_cmp_eq_u32 s18, 1
            s_cselect_b32 s19, 112, s19
            s_add_u32 s59, s59, s19
            s_cmp_ge_u32 s59, 128
            s_cbranch_scc1 {lq}
            s_lshr_b32 s30, s59, 2
            s_lshl_b32 s30, s30, 5
            s_add_u32 s30, s30, {ws.YF}''')
            wg_wait(a,'s30',7,va=VA,vt=VT)
            a('s_lshr_b32 s18, s59, 1\ns_and_b32 s19, s59, 1')
            lay.set_layer(1)
            ln.ln_om(a,18,19,ws.X2)
            a(f's_lshl_b32 s24, s59, 2\ns_add_u32 s24, s24, {ws.LF}')
            wg_flag(a,24)
            a(f'{lq}:')
            ts(7)
            dec_d(); dk.d_weights(a,16,19,S_WAVE,0)
        else:
            a(f"s_load_dwordx2 s[6:7], s[0:1], {KA['out']}\ns_waitcnt lgkmcnt(0)"); srd(a,12,6,1835008)
            b3.b3_main(a,'out')
            ts(13)
    tdump(True)
    a(f'{ex}:\ns_endpgm')
    lay.set_layer(0)
    return a.text()+kd(name,vgpr=256,agpr=256)
if __name__=='__main__':
    import hz
    t='.amdgcn_target "amdgcn-amd-amdhsa--gfx950"\n'+mega_kernel('mega_kernel',tl=True); hz.check(t)
    open('mega.s','w').write(t); print(len(t))
```

```python
from common import *
import fold, misc
from ln import *
import lay
PRE_LDS=fold.FOLD_LDS
def ln4_body(a, S_K, S_W, src_srd, so, mid=None, st=''):
    S_SEG=18; S_IO=19; S_MASK=20; S_ACT=22; TS=24
    XB=[8+8*i for i in range(8)]
    F=[72,88,104,120]; T=[136,144,152,160]
    a(f'''s_mov_b32 s{S_MASK}, 0xffff0000
    v_and_b32 v2, 31, v0
    v_cmp_gt_u32 s[{S_ACT}:{S_ACT+1}], 28, v2
    s_lshl_b32 s{TS}, s{S_K}, 6
    s_lshl_b32 s{TS+1}, s{S_W}, 2
    s_add_u32 s{TS}, s{TS}, s{TS+1}
    v_lshrrev_b32 v3, 5, v0
    v_add_u32 v4, s{TS}, v3
    v_mul_u32_u24 v4, 896, v4
    v_lshlrev_b32 v5, 5, v2
    v_add_u32 v4, v4, v5
    v_mov_b32 v6, 0x10000000
    v_cndmask_b32 v4, v6, v4, s[{S_ACT}:{S_ACT+1}]
    v_add_u32 v7, s{TS+1}, v3
    v_mul_u32_u24 v7, {RS}, v7
    v_add_u32 v7, v7, v5''')
    for i in range(4):
        a(f's_add_u32 s{TS+2}, {so}, {i*16*896}')
        for it in range(2):
            r=XB[2*i+it]
            a(f'buffer_load_dwordx4 v[{r}:{r+3}], v4, {src_srd}, s{TS+2} offen offset:{it*1792}')
            a(f'buffer_load_dwordx4 v[{r+4}:{r+7}], v4, {src_srd}, s{TS+2} offen offset:{it*1792+16}')
    if mid: mid()
    for half in range(2):
        a(f's_waitcnt vmcnt({8 if half==0 else 0})') if not mid else None
        ln_multi(a,[(XB[4*half+i],F[i],T[i]) for i in range(4)],S_MASK,S_ACT)
        a(f's_mov_b64 s[{TS}:{TS+1}], exec\ns_mov_b64 exec, s[{S_ACT}:{S_ACT+1}]')
        for i in range(4):
            q=4*half+i; item=q>>1; it=q&1; r=XB[q]
            a(f'ds_write_b128 v7, v[{r}:{r+3}] offset:{item*16*RS+it*2*RS}')
            a(f'ds_write_b128 v7, v[{r+4}:{r+7}] offset:{item*16*RS+it*2*RS+16}')
        a(f's_mov_b64 exec, s[{TS}:{TS+1}]')
    a('s_waitcnt lgkmcnt(0)\ns_barrier')
    for i in range(4):
        a(f's_lshl_b32 s{S_SEG}, s{S_K}, 1\ns_add_u32 s{S_SEG}, s{S_SEG}, {i>>1}\ns_mov_b32 s{S_IO}, {i&1}')
        emit_images(a,i*16*RS,S_W,S_SEG,S_IO,8,TS,st=st)
def pre_kernel(name, loc=True):
    a=Asm(); a.l.append(head(name)); ex=name+'_exit'; lln=name+'_ln'; lnm=name+'_nm'
    a(f'''s_cmp_ge_u32 s2, 256
    s_cbranch_scc1 {ex}
    s_load_dwordx2 s[4:5], s[0:1], {KA['ws']}
    s_load_dwordx2 s[6:7], s[0:1], {KA['x']}
    v_lshrrev_b32 v1, 6, v0
    v_and_b32 v0, 63, v0
    s_mov_b32 s16, s2
    v_readfirstlane_b32 s17, v1
    s_waitcnt lgkmcnt(0)''')
    srd(a,8,4,0x10000000)
    a(f's_cmp_ge_u32 s16, 224\ns_cbranch_scc1 {lln}')
    for l in (0,1):
        lay.set_layer(l); init_stores(a,'s16',17,24)
    lay.set_layer(0)
    fold.fold_body(a,ex,False,loc,16)
    a(f's_endpgm\n{lln}:')
    srd(a,48,6,1835008)
    a('s_sub_u32 s16, s16, 224')
    ln4_body(a,16,17,'s[48:51]','0')
    for l in (0,1):
        lq=a.lab('m0')
        a(f's_cmp_lg_u32 s16, {31-l}\ns_cbranch_scc1 {lq}')
        lay.set_layer(l); misc.ma0_body(a,17,24)
        a(f'{lq}:')
    lay.set_layer(0)
    a(f's_waitcnt vmcnt(0)\n{ex}:\ns_endpgm')
    return a.text()+kd(name,vgpr=168,agpr=128)
if __name__=='__main__':
    import hz
    t='.amdgcn_target "amdgcn-amd-amdhsa--gfx950"\n'+pre_kernel('pre_kernel'); hz.check(t)
    open('pre.s','w').write(t)
```

```python
from asm import *
from lay import ws
NROLE=30
S_WS=8; S_DBG=12
S_ROLE=16; S_WAVE=17; S_STEP=18; S_LIM=19; S_MODE=20
S_T0=21; S_T1=22; S_T2=23; S_T3=24; S_T4=25; S_T5=26; S_T6=27
S_CNT=28
POLL_LIM=20000

def prologue(a, nwg, exitlab):
    a(f'''s_cmp_ge_u32 s2, {nwg}
    s_cbranch_scc1 {exitlab}
    s_load_dwordx2 s[4:5], s[0:1], 96
    s_load_dwordx2 s[6:7], s[0:1], 88
    v_lshrrev_b32 v1, 6, v0
    v_and_b32 v0, 63, v0
    s_waitcnt lgkmcnt(0)
    v_readfirstlane_b32 s{S_WAVE}, v1
    s_mov_b32 s8, s4
    s_mov_b32 s9, s5
    s_mov_b32 s10, 0x10000000
    s_mov_b32 s11, 0x00020000
    s_mov_b32 s12, s6
    s_mov_b32 s13, s7
    s_mov_b32 s14, 256
    s_mov_b32 s15, 0x00020000''')

def election(a, lds_role, nrole=NROLE):
    L=a.lab
    l_w, l_nocas, l_poll, l_got, l_glob, l_fin, l_none, l_wr = [L('el') for _ in range(8)]
    a(f'''s_cmp_lg_u32 s{S_WAVE}, 0
    s_cbranch_scc1 {l_w}
    s_getreg_b32 s{S_T0}, hwreg(HW_REG_XCC_ID,0,4)
    s_mov_b64 exec, 1
    s_lshl_b32 s{S_T1}, s{S_T0}, 2
    v_mov_b32 v2, s{S_T1}
    v_mov_b32 v3, 1
    v_mov_b32 v6, 64
    buffer_atomic_add v3, v2, s[12:15], 0 offen sc0 sc1
    s_add_u32 s{S_T0}, s{S_T0}, 1
    s_waitcnt vmcnt(0)
    v_readfirstlane_b32 s{S_T2}, v3
    s_nop 3
    s_cmp_lg_u32 s{S_T2}, {nrole-1}
    s_cbranch_scc1 {l_nocas}
    v_mov_b32 v4, s{S_T0}
    v_mov_b32 v5, 0
    buffer_atomic_cmpswap v[4:5], v6, s[12:15], 0 offen sc0 sc1
    s_waitcnt vmcnt(0)
    {l_nocas}:
    s_mov_b32 s{S_CNT}, 200
    {l_poll}:
    buffer_load_dword v4, v6, s[12:15], 0 offen sc0 sc1
    s_waitcnt vmcnt(0)
    v_readfirstlane_b32 s{S_T3}, v4
    s_nop 3
    s_cmp_lg_u32 s{S_T3}, 0
    s_cbranch_scc1 {l_got}
    s_sub_u32 s{S_CNT}, s{S_CNT}, 1
    s_cbranch_scc0 {l_poll}
    v_mov_b32 v4, 100
    v_mov_b32 v5, 0
    buffer_atomic_cmpswap v[4:5], v6, s[12:15], 0 offen sc0 sc1
    s_waitcnt vmcnt(0)
    v_readfirstlane_b32 s{S_T3}, v4
    s_nop 3
    s_cmp_lg_u32 s{S_T3}, 0
    s_cbranch_scc1 {l_got}
    s_mov_b32 s{S_T3}, 100
    {l_got}:
    s_cmp_eq_u32 s{S_T3}, 100
    s_cbranch_scc1 {l_glob}
    s_cmp_lg_u32 s{S_T3}, s{S_T0}
    s_cbranch_scc1 {l_none}
    s_mov_b32 s{S_T4}, s{S_T2}
    s_branch {l_fin}
    {l_glob}:
    v_mov_b32 v3, 1
    v_mov_b32 v6, 68
    buffer_atomic_add v3, v6, s[12:15], 0 offen sc0 sc1
    s_waitcnt vmcnt(0)
    v_readfirstlane_b32 s{S_T4}, v3
    s_nop 3
    s_min_u32 s{S_T4}, s{S_T4}, 255
    s_or_b32 s{S_T4}, s{S_T4}, 0x100
    s_branch {l_fin}
    {l_none}:
    s_mov_b32 s{S_T4}, 255
    {l_fin}:
    v_mov_b32 v2, {lds_role}
    v_mov_b32 v3, s{S_T4}
    ds_write_b32 v2, v3
    s_waitcnt lgkmcnt(0)
    s_mov_b64 exec, -1
    {l_w}:
    s_barrier
    v_mov_b32 v2, {lds_role}
    ds_read_b32 v3, v2
    s_waitcnt lgkmcnt(0)
    v_readfirstlane_b32 s{S_T4}, v3
    s_nop 3
    s_and_b32 s{S_ROLE}, s{S_T4}, 0xff
    s_lshr_b32 s{S_MODE}, s{S_T4}, 8''')

class DsTrack:
    def __init__(s,a): s.a=a; s.q=[]; s.done=0
    def note(s,tag): s.q.append(tag)
    def ds(s,ins,tag): s.a(ins); s.q.append(tag)
    def wait(s,tag):
        i=s.q.index(tag)+1
        if i<=s.done: return
        n=len(s.q)-i
        s.a(f's_waitcnt lgkmcnt({min(n,15)})'); s.done=max(i,len(s.q)-min(n,15))
def load_frags(a, nfr, dst, voff, soff, flags='nt'):
    for f in range(nfr):
        k,b=dst(f)
        for eta in range(2):
            r=(ar if k=='a' else vr)(b+4*eta,4)
            off=((2*f+eta)&3)*1024
            a(f'buffer_load_dwordx4 {r}, v{voff}, s[8:11], s{soff} offen offset:{off} {flags}' if off else f'buffer_load_dwordx4 {r}, v{voff}, s[8:11], s{soff} offen {flags}')
            if ((2*f+eta)&3)==3: a(f's_add_u32 s{soff}, s{soff}, 4096')

LITE={'s':(0,5,6),'v':(0,3,5,6)}
CUR=['s']
def stamp(a, prof, idx):
    if prof=='lite':
        if idx in LITE[CUR[0]]: a(f's_memrealtime s[{40+2*idx}:{41+2*idx}]')
        return
    if prof: a(f"{'s_memrealtime' if prof=='rt' else 's_memtime'} s[{40+2*idx}:{41+2*idx}]")
LS_PROF=LS_PROF0=78080
def prof_init(a, prof, vaddr):
    if not prof: return
    a(f'''s_lshl_b32 s{S_T0}, s{S_WAVE}, 11
    s_add_u32 s{S_T0}, s{S_T0}, {LS_PROF}
    v_lshlrev_b32 v2, 2, v0
    v_add_u32 v{vaddr}, s{S_T0}, v2
    v_mov_b32 v3, {LS_PROF+8192}
    v_cmp_gt_u32 vcc, 8, v0
    s_nop 1
    v_cndmask_b32 v{vaddr}, v3, v{vaddr}, vcc''')
def stamp_flush(a, prof, n, vtmp, vaddr=None):
    if not prof: return
    a('s_waitcnt lgkmcnt(0)')
    for i in range(n): a(f'v_writelane_b32 v{vtmp}, s{40+2*i}, {i}')
    a(f'''s_nop 0
    ds_write_b32 v{vaddr}, v{vtmp}
    v_cmp_gt_u32 vcc, 8, v0
    v_add_u32 v{vtmp}, 32, v{vaddr}
    s_nop 0
    v_cndmask_b32 v{vaddr}, v{vaddr}, v{vtmp}, vcc''')
def prof_dump(a, prof):
    if not prof: return
    a(f'''s_waitcnt lgkmcnt(0) vmcnt(0)
    s_lshl_b32 s{S_T0}, s{S_WAVE}, 11
    s_add_u32 s{S_T0}, s{S_T0}, {LS_PROF}
    v_lshlrev_b32 v2, 5, v0
    v_add_u32 v2, s{S_T0}, v2
    ds_read_b128 v[4:7], v2
    ds_read_b128 v[8:11], v2 offset:16
    s_lshl_b32 s{S_T0}, s{S_ROLE}, 2
    s_add_u32 s{S_T0}, s{S_T0}, s{S_WAVE}
    s_lshl_b32 s{S_T0}, s{S_T0}, 12
    s_add_u32 s{S_T0}, s{S_T0}, {ws.PROF}
    v_lshlrev_b32 v3, 6, v0
    s_waitcnt lgkmcnt(0)
    buffer_store_dwordx4 v[4:7], v3, s[8:11], s{S_T0} offen
    buffer_store_dwordx4 v[8:11], v3, s[8:11], s{S_T0} offen offset:16
    s_waitcnt vmcnt(0)''')

def poll_tail(a, lab_retry, lab_ok, vchk):
    a(f'''v_cmp_eq_u32 vcc, -1, v{vchk}
    s_cbranch_vccz {lab_ok}
    s_sub_u32 s{S_CNT}, s{S_CNT}, 1
    s_cbranch_scc0 {lab_retry}
    s_mov_b32 s{S_LIM}, 0
    {lab_ok}:''')

def hint_poll(a, vaddr, soff, regs, pw, sexp, gap='s_sleep 1'):
    lb=a.lab('hb'); lr=a.lab('hr')
    a(f's_cmp_lg_u32 s{S_WAVE}, {pw}\ns_cbranch_scc1 {lb}')
    n=len(regs)
    a(f's_mov_b32 s{S_CNT}, s{S_LIM}')
    for i,r in enumerate(regs):
        a(f'buffer_load_dword v{r}, v{vaddr}, s[8:11], s{soff} offen sc1')
        if i<n-1: a(gap)
    a(f'{lr}:')
    for i,r in enumerate(regs):
        a(f'''s_waitcnt vmcnt({n-1})
        v_cmp_gt_u32 vcc, s{sexp}, v{r}
        s_cbranch_vccz {lb}
        buffer_load_dword v{r}, v{vaddr}, s[8:11], s{soff} offen sc1''')
    a(f'''s_sub_u32 s{S_CNT}, s{S_CNT}, 1
    s_cbranch_scc0 {lr}
    s_mov_b32 s{S_LIM}, 0
    {lb}:
    s_barrier''')

def store2(a, txt, mode=None):
    if mode is not None:
        for t in txt: a(t+(' sc1' if mode else ''))
        return
    return store2_dyn(a,txt)
def store2_dyn(a, txt):
    l1=a.lab('st'); l2=a.lab('st')
    a(f's_cmp_lg_u32 s{S_MODE}, 0\ns_cbranch_scc1 {l1}')
    for t in txt: a(t)
    a(f's_branch {l2}\n{l1}:')
    for t in txt: a(t+' sc1')
    a(f'{l2}:')

LS_MX=0; LS_XK=8192; LS_T2=36864; LS_SB=51200; LS_SD=59392; LS_ROLE=77824
def score_role(a, prof, nsteps=63, clk=False, mode=None, o={}, first=True, last=True):
    CUR[0]='s'
    hint=o.get('hint',0); hint_sm=o.get('hint_sm',hint); hint_vp=o.get('hint_vp',hint)
    fill=o.get('fill',0); tail=o.get('tail',0); hp_pos=o.get('hp_pos',1); SCM=' sc1' if mode else ''
    IDX=1; A0=4
    ACC=[32,36,40]; PK=44
    TF=48
    KD=62
    SC2=86
    VL16=90; VMXW=91; VMK=92; VMKO=93; VXK=94; VXKO=95; VT2W=96; VT2R=97; VSW=98; VSWM=99; VSR=100; VPST=101; VPOLL=102; VDMA=103
    NEG=104
    PL=62
    WV=120
    def wdst(f): return ('a',8*f) if f<32 else ('v',WV+8*(f-32))
    def wreg(f):
        k,b=wdst(f); return (ar if k=='a' else vr)(b,8)
    S_PO=29; S_PO2=30; S_PS=31; S_PP=32; S_XO=33; S_HO=34
    VHP=107; VHS=108; VONE=109; VPA=110
    L=a.lab
    a(f'''v_lshlrev_b32 v{VL16}, 4, v0
    s_mul_i32 s{S_T0}, s{S_ROLE}, {4*49*2048}
    s_mul_i32 s{S_T1}, s{S_WAVE}, {49*2048}
    s_add_u32 s{S_T0}, s{S_T0}, s{S_T1}
    s_add_u32 s{S_T0}, s{S_T0}, {ws.AI}''')
    km=o.get('km',0)
    KO=list(range(40,47))
    def slot_offsets(sh):
        a(f's_mov_b32 s{S_T1}, s{S_WAVE}')
        for j in range(7):
            a(f's_lshl_b32 s{KO[j]}, s{S_T1}, {sh}')
            if j<6: a(f's_add_u32 s{S_T1}, s{S_T1}, 4\ns_sub_u32 s{S_T2}, s{S_T1}, 7\ns_cselect_b32 s{S_T1}, s{S_T1}, s{S_T2}')
    mg=o.get('merged',0)
    def stream_weights():
        assert km
        S_RDY=47; S_B=48
        a(f'''s_mul_i32 s{S_T1}, s{S_WAVE}, 3
        v_lshrrev_b32 v2, 3, v0
        v_add_u32 v3, s{S_T1}, v2
        s_lshr_b32 s{S_T1}, s{S_WAVE}, 1
        s_add_u32 s{S_T1}, s{S_T1}, 12
        v_mov_b32 v4, s{S_T1}
        v_cmp_eq_u32 vcc, 3, v2
        s_mul_i32 s{S_T2}, s{S_ROLE}, {14*32}
        s_add_u32 s{S_T2}, s{S_T2}, {ws.FF}
        v_cndmask_b32 v3, v3, v4, vcc
        v_lshlrev_b32 v3, 5, v3
        v_and_b32 v4, 7, v0
        v_lshlrev_b32 v4, 2, v4
        v_add3_u32 v3, v3, v4, s{S_T2}
        v_mov_b32 v4, 0x10000000
        v_cmp_gt_u32 vcc, 32, v0
        s_mov_b32 s{S_RDY}, 0
        s_nop 0
        v_cndmask_b32 v3, v4, v3, vcc
        s_mul_i32 s{S_B}, s{S_ROLE}, {4*49*2048}
        s_mul_i32 s{S_T1}, s{S_WAVE}, {49*2048}
        s_add_u32 s{S_B}, s{S_B}, s{S_T1}
        s_add_u32 s{S_B}, s{S_B}, {ws.AI}''')
        slot_offsets(11)
        for st in range(4):
            lr=a.lab('sw'); lo=a.lab('sw'); need=0xff<<(8*st)
            a(f'''s_movk_i32 s{S_CNT}, 8000
            {lr}:
            s_and_b32 s{S_T1}, s{S_RDY}, {hex(need)}
            s_cmp_eq_u32 s{S_T1}, {hex(need)}
            s_cbranch_scc1 {lo}
            buffer_load_dword v2, v3, s[8:11], 0 offen sc1
            s_waitcnt vmcnt(0)
            v_cmp_eq_u32 vcc, 1, v2
            s_sleep 1
            s_mov_b32 s{S_RDY}, vcc_lo
            s_sub_u32 s{S_CNT}, s{S_CNT}, 1
            s_cbranch_scc0 {lr}
            {lo}:''')
            for t in ([2*st,2*st+1] if st<3 else [6]):
                for j in range(7):
                    k_,b=wdst(t*7+j)
                    a(f's_add_u32 s{S_T1}, s{S_B}, s{KO[j]}')
                    for eta in range(2):
                        r=(ar if k_=='a' else vr)(b+4*eta,4)
                        a(f'buffer_load_dwordx4 {r}, v{VL16}, s[8:11], s{S_T1} offen'+(f' offset:{eta*1024}' if eta else '')+' nt')
                a(f's_add_u32 s{S_B}, s{S_B}, {7*2048}')
    if first and not km and not mg: load_frags(a,49,wdst,VL16,S_T0)
    if first and km and not mg:
        slot_offsets(11)
        for t in range(7):
            for j in range(7):
                k_,b=wdst(t*7+j)
                a(f's_add_u32 s{S_T1}, s{S_T0}, s{KO[j]}')
                for eta in range(2):
                    r=(ar if k_=='a' else vr)(b+4*eta,4)
                    a(f'buffer_load_dwordx4 {r}, v{VL16}, s[8:11], s{S_T1} offen'+(f' offset:{eta*1024}' if eta else '')+' nt')
            a(f's_add_u32 s{S_T0}, s{S_T0}, {7*2048}')
    a(f'''v_and_b32 v2, 8, v0
    v_mov_b32 v{IDX}, 0x44444444
    v_mov_b32 v3, 0xeeeeeeee
    v_cmp_ne_u32 vcc, 0, v2
    v_mov_b32 v{NEG}, -1
    v_mov_b32 v{NEG+1}, -1
    v_cndmask_b32 v{IDX}, v{IDX}, v3, vcc
    s_lshl_b32 s{S_T1}, s{S_WAVE}, 10
    v_add_u32 v{VMXW}, s{S_T1}, v{VL16}
    v_mov_b32 v{VPOLL}, v{VMXW}''')
    VID=112
    if o.get('mt6',0):
        a(f'''v_lshrrev_b32 v2, 4, v0
        v_and_b32 v3, 15, v0
        v_lshlrev_b32 v2, 2, v2
        v_sub_u32 v3, v3, v2
        v_mov_b32 v4, 0x3f80
        v_mov_b32 v5, 0x3f800000
        v_mov_b32 v{VID}, 0
        v_mov_b32 v{VID+1}, 0
        v_cmp_eq_u32 vcc, 0, v3
        s_nop 1
        v_cndmask_b32 v{VID}, v{VID}, v4, vcc
        v_cmp_eq_u32 vcc, 1, v3
        s_nop 1
        v_cndmask_b32 v{VID}, v{VID}, v5, vcc
        v_cmp_eq_u32 vcc, 2, v3
        s_nop 1
        v_cndmask_b32 v{VID+1}, v{VID+1}, v4, vcc
        v_cmp_eq_u32 vcc, 3, v3
        s_nop 1
        v_cndmask_b32 v{VID+1}, v{VID+1}, v5, vcc''')
    a(f'''s_movk_i32 s{S_T2}, 4096
    s_cmp_eq_u32 s{S_WAVE}, 3
    s_cselect_b32 s{S_T2}, 0x10000000, s{S_T2}
    v_add_u32 v{VDMA}, s{S_T2}, v{VPOLL}''')
    VPOLL2=106
    a(f'v_mov_b32 v{VPOLL2}, v{VDMA}')
    if km:
        a(f'''s_cmp_eq_u32 s{S_WAVE}, 3
        s_cselect_b32 s{S_T2}, 0, 4096
        s_cselect_b32 s{S_T3}, 0, s{S_WAVE}
        s_lshl_b32 s{S_T3}, s{S_T3}, 10
        s_add_u32 s{S_T2}, s{S_T2}, s{S_T3}
        v_add_u32 v{VPOLL2}, s{S_T2}, v{VL16}''')
    a(f'''v_lshrrev_b32 v2, 4, v0
    v_and_b32 v3, 7, v0
    v_lshlrev_b32 v3, 4, v3
    s_mul_i32 s{S_T1}, s{S_WAVE}, {14*128}
    v_lshlrev_b32 v4, 7, v2
    v_add3_u32 v{VMK}, v4, v3, s{S_T1}
    v_lshrrev_b32 v4, 1, v2
    v_lshlrev_b32 v4, 7, v4
    v_and_b32 v5, 1, v2
    v_lshlrev_b32 v5, 3, v5
    s_add_u32 s{S_T1}, s{S_T1}, {12*128}
    v_add3_u32 v{VMKO}, v4, v3, s{S_T1}
    v_add_u32 v{VMKO}, v{VMKO}, v5
    s_mul_i32 s{S_T1}, s{S_WAVE}, 7168
    s_add_u32 s{S_T1}, s{S_T1}, {LS_XK}
    v_add_u32 v{VXK}, s{S_T1}, v{VL16}
    v_lshlrev_b32 v4, 3, v0
    s_add_u32 s{S_T1}, s{S_T1}, 6144
    v_add_u32 v{VXKO}, s{S_T1}, v4''')
    a(f'''s_mul_i32 s{S_T1}, s{S_WAVE}, 3584
    s_add_u32 s{S_T1}, s{S_T1}, {LS_T2}
    v_and_b32 v3, 15, v0
    v_lshrrev_b32 v4, 2, v3
    v_xor_b32 v4, v4, v2
    v_lshlrev_b32 v4, 3, v4
    v_lshlrev_b32 v5, 5, v3
    v_add3_u32 v{VT2W}, v4, v5, s{S_T1}
    v_and_b32 v4, 3, v0
    v_xor_b32 v4, v4, v2
    v_lshlrev_b32 v4, 3, v4
    v_lshrrev_b32 v5, 2, v0
    v_lshlrev_b32 v5, 5, v5
    v_add3_u32 v{VT2R}, v4, v5, s{S_T1}''')
    a(f'''s_lshl_b32 s{S_T1}, s{S_WAVE}, 11
    s_add_u32 s{S_T1}, s{S_T1}, {LS_SB}
    v_and_b32 v4, 7, v0
    v_lshrrev_b32 v5, 3, v3
    v_lshlrev_b32 v6, 2, v5
    v_add_u32 v6, v6, v2
    v_lshrrev_b32 v7, 1, v6
    v_add_u32 v7, v7, v4
    v_and_b32 v7, 7, v7
    v_lshlrev_b32 v7, 4, v7
    v_lshlrev_b32 v6, 7, v6
    v_add3_u32 v{VSW}, v6, v7, s{S_T1}''')
    a(f'''v_add_u32 v6, 8, v2
    v_lshrrev_b32 v7, 1, v6
    v_add_u32 v7, v7, v4
    v_and_b32 v7, 7, v7
    v_lshlrev_b32 v7, 4, v7
    v_lshlrev_b32 v6, 7, v6
    v_add3_u32 v{VSWM}, v6, v7, s{S_T1}
    v_lshrrev_b32 v6, 1, v2
    v_or_b32 v6, v6, v5
    v_add_u32 v7, {LS_SD}, v{VL16}
    v_cmp_ne_u32 vcc, 0, v6
    s_nop 1
    v_cndmask_b32 v{VSWM}, v{VSWM}, v7, vcc''')
    a(f'''s_lshl_b32 s{S_T1}, s{S_WAVE}, 2
    v_add_u32 v4, s{S_T1}, v2
    v_and_b32 v4, 7, v4
    v_lshrrev_b32 v5, 1, v3
    v_add_u32 v5, v5, v4
    v_and_b32 v5, 7, v5
    v_lshlrev_b32 v5, 4, v5
    v_lshlrev_b32 v6, 7, v3
    v_add_u32 v6, {LS_SB}, v6
    v_add_u32 v{VSR}, v6, v5''')
    a(f'''s_lshr_b32 s{S_T1}, s{S_ROLE}, 2
    s_lshl_b32 s{S_T2}, s{S_T1}, 11
    s_and_b32 s{S_T3}, s{S_ROLE}, 3
    s_lshl_b32 s{S_T3}, s{S_T3}, 8
    s_add_u32 s{S_T2}, s{S_T2}, s{S_T3}
    v_lshrrev_b32 v5, 2, v3
    v_lshlrev_b32 v5, 10, v5
    v_lshrrev_b32 v6, 1, v3
    v_and_b32 v6, 1, v6
    v_lshlrev_b32 v6, 7, v6
    v_lshlrev_b32 v7, 4, v4
    v_add3_u32 v5, v5, v6, v7
    v_and_b32 v6, 1, v3
    v_lshlrev_b32 v8, 3, v6
    v_add3_u32 v5, v5, v8, s{S_T2}
    s_lshl_b32 s{S_T2}, s{S_T1}, 9
    s_and_b32 s{S_T3}, s{S_ROLE}, 1
    s_lshl_b32 s{S_T3}, s{S_T3}, 8
    s_add_u32 s{S_T2}, s{S_T2}, s{S_T3}
    s_lshr_b32 s{S_T3}, s{S_ROLE}, 1
    s_and_b32 s{S_T3}, s{S_T3}, 1
    s_lshl_b32 s{S_T3}, s{S_T3}, 3
    s_add_u32 s{S_T2}, s{S_T2}, s{S_T3}
    s_add_u32 s{S_T2}, s{S_T2}, 8192
    v_lshlrev_b32 v8, 7, v6
    v_add3_u32 v8, v8, v7, s{S_T2}
    v_cmp_gt_u32 vcc, 8, v3
    s_nop 1
    v_cndmask_b32 v5, v8, v5, vcc
    v_mov_b32 v8, 0x10000000
    v_cmp_gt_u32 vcc, 10, v3
    s_nop 1
    v_cndmask_b32 v{VPST}, v8, v5, vcc''')
    a(f'''s_lshl_b32 s{S_T1}, s{S_WAVE}, 11
    s_add_u32 s{S_T1}, s{S_T1}, {LS_SB}
    v_lshlrev_b32 v2, 5, v0
    v_add_u32 v2, s{S_T1}, v2
    v_mov_b32 v4, 0xf149f2ca
    v_mov_b32 v5, v4
    v_mov_b32 v6, v4
    v_mov_b32 v7, v4
    ds_write_b128 v2, v[4:7]
    ds_write_b128 v2, v[4:7] offset:16''')
    def xk_dma(nxt):
        for k in range(14):
            a(f's_add_u32 m0, s{S_T5}, {k*1024}' if k else f's_mov_b32 m0, s{S_T5}')
            off=(k&3)*1024
            a(f's_add_u32 s{S_T6}, s{S_XO}, {k*1024}')
            a(f'buffer_load_dwordx4 v{VL16}, s[8:11], s{S_T6} offen lds')
    lx=L('xk')
    if not first: o['wait_lf'](a)
    a(f'''s_sub_u32 s{S_T1}, s{S_WAVE}, 2
    s_mul_i32 s{S_T1}, s{S_T1}, 14336
    s_add_u32 s{S_XO}, s{S_T1}, {ws.XK}
    s_add_u32 s{S_T5}, s{S_T1}, {LS_XK}
    s_cmp_lt_u32 s{S_WAVE}, 2
    s_cbranch_scc1 {lx}''')
    if first and mg: o['wait_lf0'](a)
    xk_dma(0)
    a(f'{lx}:')
    if first and mg: stream_weights()
    a(f'''s_mov_b32 s{S_STEP}, 0
    s_mov_b32 s{S_LIM}, {POLL_LIM}
    s_mov_b32 s{S_PO}, {ws.MA}
    s_mov_b32 s{S_HO}, {ws.H}
    v_min_u32 v{VHP}, 55, v0
    v_lshlrev_b32 v{VHP}, 2, v{VHP}
    s_lshl_b32 s{S_T1}, s{S_ROLE}, 1
    s_add_u32 s{S_T1}, s{S_T1}, s{S_WAVE}
    s_lshl_b32 s{S_T1}, s{S_T1}, 2
    s_add_u32 s{S_T1}, s{S_T1}, 256
    v_mov_b32 v2, s{S_T1}
    v_mov_b32 v3, 0x10000000
    v_cmp_eq_u32 vcc, 0, v0
    v_mov_b32 v{VONE}, 1
    s_nop 0
    v_cndmask_b32 v{VHS}, v3, v2, vcc''')
    VA={2:107,3:108,4:109,5:118,6:119}; VPF=103; VDUM=111; S_PF=35
    if km:
        assert not (hint or hint_sm or hint_vp) and fill and o.get('mt6') and o.get('sp',1)==2
        slot_offsets(10)
        for j in range(2,7): a(f'v_add_u32 v{VA[j]}, s{KO[j]}, v{VL16}')
    dpf=o.get('dpf',0); xpf=o.get('xpf',0)
    if xpf:
        a(f'''s_lshl_b32 s{S_T1}, s{S_ROLE}, 2
        s_add_u32 s{S_T1}, s{S_T1}, s{S_WAVE}
        s_mul_i32 s{S_T1}, s{S_T1}, {7*64}
        v_lshlrev_b32 v2, 6, v0
        v_add_u32 v2, s{S_T1}, v2
        v_mov_b32 v3, 0x10000000
        v_cmp_gt_u32 vcc, 7, v0
        s_mov_b32 s{S_PF}, {ws.XK+xpf*28672}
        s_nop 0
        v_cndmask_b32 v{VPF}, v3, v2, vcc''')
    if dpf:
        a(f'''s_lshl_b32 s{S_T1}, s{S_ROLE}, 2
        s_add_u32 s{S_T1}, s{S_T1}, s{S_WAVE}
        s_mul_i32 s{S_T1}, s{S_T1}, {56*128}
        v_lshlrev_b32 v2, 7, v0
        v_add_u32 v2, s{S_T1}, v2
        v_mov_b32 v3, 0x10000000
        v_cmp_gt_u32 vcc, 56, v0
        s_mov_b32 s{S_PF}, {ws.DI+dpf*14*32768}
        s_nop 0
        v_cndmask_b32 v{VPF}, v3, v2, vcc''')
    loop=L('sloop'); pr=L('spoll'); pok=L('spok')
    prof_init(a,prof,VPA)
    if clk: a('s_waitcnt vmcnt(0)\ns_memtime s[60:61]\ns_memrealtime s[62:63]\ns_waitcnt lgkmcnt(0)')
    if 'tl' in o: o['tl'][0](2)
    a(f'{loop}:')
    stamp(a,prof,0)
    AC=[32,36,40,86,4,8,114]
    if km:
        if not o.get('kz',0):
            for t in range(7): a(f'v_mov_b64 v[{AC[t]}:{AC[t]+1}], 0\nv_mov_b64 v[{AC[t]+2}:{AC[t]+3}], 0')
    elif fill:
        for r in range(0,8,2): a(f'v_mov_b64 v[{ACC[0]+r}:{ACC[0]+r+1}], 0')
    if hint_vp: a(f's_add_u32 s{S_T1}, s{S_STEP}, 1\nv_mov_b32 v{VONE}, s{S_T1}')
    if hint_sm: hint_poll(a,VHP,S_HO,[4,5,6],0,S_STEP)
    if o.get('sst') is None: stamp(a,prof,6)
    sp=o.get('sp',1)
    if o.get('ssl'):
        s01,s23=o['ssl']; q1=L('ssl'); q2=L('ssl')
        a(f's_cmp_ge_u32 s{S_WAVE}, 2\ns_cbranch_scc1 {q1}\ns_sleep {s01}\ns_branch {q2}\n{q1}:\ns_sleep {s23}\n{q2}:')
    if sp==1:
        a(f'''s_mov_b32 s{S_CNT}, s{S_LIM}
        {pr}:
        buffer_load_dwordx4 v[{PL}:{PL+3}], v{VPOLL}, s[8:11], s{S_PO} offen sc1
        buffer_load_dwordx4 v[{PL+4}:{PL+7}], v{VPOLL2}, s[8:11], s{S_PO} offen sc1
        s_waitcnt vmcnt(1)
        ds_write_b128 v{VMXW}, v[{PL}:{PL+3}]
        v_max3_u32 v2, v{PL}, v{PL+1}, v{PL+2}
        v_max_u32 v2, v2, v{PL+3}
        s_waitcnt vmcnt(0)
        ds_write_b128 v{VMXW}, v[{PL+4}:{PL+7}] offset:4096
        v_max3_u32 v2, v2, v{PL+4}, v{PL+5}
        v_max3_u32 v2, v2, v{PL+6}, v{PL+7}''')
        poll_tail(a,pr,pok,2)
    else:
        def iss(i):
            r=PL+8*i
            a(f'buffer_load_dwordx4 v[{r}:{r+3}], v{VPOLL}, s[8:11], s{S_PO} offen sc1\nbuffer_load_dwordx4 v[{r+4}:{r+7}], v{VPOLL2}, s[8:11], s{S_PO} offen sc1')
        a(f's_mov_b32 s{S_CNT}, s{S_LIM}')
        if prof: a('s_mov_b32 s55, 0')
        if o.get('spw',1): a('s_waitcnt vmcnt(0)')
        for i in range(sp):
            iss(i)
            if i<sp-1 and o.get('spd',3): a(f"s_sleep {o.get('spd',3)}")
        if km and o.get('kz',0):
            for t in range(7): a(f'v_mov_b64 v[{AC[t]}:{AC[t]+1}], 0\nv_mov_b64 v[{AC[t]+2}:{AC[t]+3}], 0')
        a(f'{pr}:')
        poks=[L('spok') for i in range(sp)] if km else [pok]*sp
        for i in range(sp):
            r=PL+8*i
            a(f'''s_waitcnt vmcnt({2*sp-1})
            ds_write_b128 v{VMXW}, v[{r}:{r+3}]
            v_max3_u32 v2, v{r}, v{r+1}, v{r+2}
            v_max_u32 v2, v2, v{r+3}
            s_waitcnt vmcnt({2*sp-2})
            ds_write_b128 v{VMXW}, v[{r+4}:{r+7}] offset:4096
            v_max3_u32 v2, v2, v{r+4}, v{r+5}
            v_max3_u32 v2, v2, v{r+6}, v{r+7}
            v_cmp_eq_u32 vcc, -1, v2
            s_cbranch_vccz {poks[i]}''')
            if prof: a('s_add_u32 s55, s55, 1')
            iss(i)
        a(f'''s_sub_u32 s{S_CNT}, s{S_CNT}, 1
        s_cbranch_scc0 {pr}
        s_mov_b32 s{S_LIM}, 0''')
        if not km: a(f'{pok}:')
    def km_mm(t,j,r): a(f'v_smfmac_f32_16x16x64_bf16 v[{AC[t]}:{AC[t]+3}], v[{r}:{r+3}], {wreg(t*7+j)}, v{IDX}')
    AK=lambda j: A0+4*j
    if km:
        n1=o.get('kn1',5); cont=L('kc')
        for i in range(sp):
            r=PL+8*i
            a(f'{poks[i]}:')
            stamp(a,prof,1)
            if prof: a(f's_mov_b32 s54, s55')
            seq=[(t,j) for j in (0,1) for t in range(7)]
            for (t,j) in seq[:n1]: km_mm(t,j,r+4*j)
            a('s_waitcnt lgkmcnt(0)\ns_barrier')
            for j in range(2,7): a(f'ds_read_b128 v[{AK(j)}:{AK(j)+3}], v{VA[j]}')
            stamp(a,prof,2)
            for (t,j) in seq[n1:]: km_mm(t,j,r+4*j)
            if i<sp-1: a(f's_branch {cont}')
        a(f'{cont}:')
        if o.get('sst')==-1: stamp(a,prof,6)
    else:
        stamp(a,prof,1)
        if prof: a(f's_sub_u32 s54, s{S_LIM}, s{S_CNT}')
        a('s_waitcnt lgkmcnt(0)\ns_barrier')
        for k in range(7): a(f'ds_read_b128 v[{A0+4*k}:{A0+4*k+3}], v{VL16} offset:{k*1024}')
        if not fill:
            for r in range(8): a(f'v_mov_b32 v{ACC[0]+r}, 0')
        stamp(a,prof,2)
    a(f'''s_add_u32 s{S_T0}, s{S_STEP}, 1
    s_and_b32 s{S_T0}, s{S_T0}, 3
    s_mul_i32 s{S_T0}, s{S_T0}, 7168
    s_add_u32 s{S_PO}, s{S_T0}, {ws.MR}
    s_and_b32 s{S_T0}, s{S_STEP}, 3
    s_mul_i32 s{S_T0}, s{S_T0}, 10240
    s_add_u32 s{S_PS}, s{S_T0}, {ws.PR}
    s_add_u32 s{S_T0}, s{S_STEP}, 2
    s_and_b32 s{S_T0}, s{S_T0}, 3
    s_mul_i32 s{S_T0}, s{S_T0}, 10240
    s_add_u32 s{S_PP}, s{S_T0}, {ws.PR}''')
    def keyreg(j,x):
        if j<2: return KD+12*j+4*x
        if km: return 12+4*x if j==2 else 24+2*x
        if j==2: return A0+4*x
        return A0+12+2*x
    def keyread(j,x):
        r=keyreg(j,x)
        if j<3:
            if x==0: return f'ds_read_b128 v[{r}:{r+3}], v{VMK} offset:{j*512}'
            return f'ds_read_b128 v[{r}:{r+3}], v{VXK} offset:{((x-1)*3+j)*1024}'
        if x==0: return f'ds_read_b64 v[{r}:{r+1}], v{VMKO}'
        return f'ds_read_b64 v[{r}:{r+1}], v{VXKO} offset:{(x-1)*512}'
    def tfreg(t): return TF+2*t
    def post(t):
        ac=ACC[t%3]; pk=PK+2*(t&1)
        return ([f'v_cvt_pk_bf16_f32 v{pk}, v{ac}, v{ac+1}', f'v_cvt_pk_bf16_f32 v{pk+1}, v{ac+2}, v{ac+3}'],
                f'ds_write_b64 v{VT2W}, v[{pk}:{pk+1}] offset:{t*512}',
                f'ds_read_b64_tr_b16 v[{tfreg(t)}:{tfreg(t)+1}], v{VT2R} offset:{t*512}')
    SA=[SC2,ACC[1],ACC[2]] if not km else AC[:3]
    npf=o.get('npf',1)
    PFL='\n'.join(f'buffer_load_dword v{VDUM}, v{VPF}, s[8:11], s{S_PF} offen offset:{i*128//npf}' for i in range(npf))+f'\ns_add_u32 s{S_PF}, s{S_PF}, {28672 if xpf else 14*32768}'
    dpf=dpf or xpf
    def smf(j,x):
        c='0' if j==0 else f'v[{SA[x]}:{SA[x]+3}]'
        if j<3: return f'v_mfma_f32_16x16x32_bf16 v[{SA[x]}:{SA[x]+3}], v[{keyreg(j,x)}:{keyreg(j,x)+3}], v[{TF+4*j}:{TF+4*j+3}], {c}'
        return f'v_mfma_f32_16x16x16_bf16 v[{SA[x]}:{SA[x]+3}], v[{keyreg(j,x)}:{keyreg(j,x)+1}], v[{tfreg(6)}:{tfreg(6)+1}], {c}'
    if not fill:
        kq=[keyread(j,x) for j in range(2) for x in range(3)]
        for t in range(7):
            ac=ACC[t%3]
            for k in range(7):
                if t==0: a(f's_waitcnt lgkmcnt({6-k})')
                a(f'v_smfmac_f32_16x16x64_bf16 v[{ac}:{ac+3}], v[{A0+4*k}:{A0+4*k+3}], {wreg(t*7+k)}, v{IDX}')
                fl=[]
                if t>=1:
                    cv,wr,rd=post(t-1)
                    if k==3: fl=cv
                    if k==4: fl=[wr,rd]
                if 1<=t<6 or t==0:
                    nx=ACC[(t+1)%3]
                    if t>=1:
                        if k==0: fl=[f'v_mov_b32 v{nx}, 0',f'v_mov_b32 v{nx+1}, 0']
                        if k==1: fl=[f'v_mov_b32 v{nx+2}, 0',f'v_mov_b32 v{nx+3}, 0']
                if t in (2,3,4) and k in (5,6) and kq: fl=[kq.pop(0)]
                for x in fl: a(x)
        assert not kq
        stamp(a,prof,3)
        cv,wr,rd=post(6)
        a(keyread(2,0)); a(keyread(2,1))
        a('s_waitcnt lgkmcnt(2)')
        a(smf(0,0)); a(keyread(2,2)); a(keyread(3,0))
        a(smf(0,1)); a(keyread(3,1)); a(keyread(3,2))
        a(smf(0,2)); a('s_nop 0')
        a(smf(1,0)); a(cv[0]); a(cv[1])
        a(smf(1,1)); a(wr); a(rd)
        a(smf(1,2))
        a('s_waitcnt lgkmcnt(5)')
        a(smf(2,0)); a(smf(2,1)); a(smf(2,2))
        a('s_waitcnt lgkmcnt(0)')
        a(smf(3,0)); a(smf(3,1)); a(smf(3,2))
        a('s_nop 5')
        for r in range(4): a(f'v_add_f32_dpp v{4+r}, v{SA[0]+r}, v{SA[0]+r} row_ror:8 row_mask:0xf bank_mask:0xf')
        a(f'ds_write_b128 v{VSWM}, v[4:7]')
        for r in range(4): a(f'v_add_f32_dpp v{8+r}, v{SA[1]+r}, v{SA[1]+r} row_ror:8 row_mask:0xf bank_mask:0x3')
        for r in range(4): a(f'v_add_f32_dpp v{8+r}, v{SA[2]+r}, v{SA[2]+r} row_ror:8 row_mask:0xf bank_mask:0xc')
        a(f'ds_write_b128 v{VSW}, v[8:11]')
    elif km:
        T=DsTrack(a)
        for j in range(2,7): T.note(('A',j))
        kq=[(('K',j,x),keyread(j,x)) for j in range(2) for x in range(3)]
        def postk(t):
            ac=AC[t]; pk=PK+2*(t&1)
            return ([f'v_cvt_pk_bf16_f32 v{pk}, v{ac}, v{ac+1}', f'v_cvt_pk_bf16_f32 v{pk+1}, v{ac+2}, v{ac+3}'],
                    f'ds_write_b64 v{VT2W}, v[{pk}:{pk+1}] offset:{t*512}',
                    f'ds_read_b64_tr_b16 v[{tfreg(t)}:{tfreg(t)+1}], v{VT2R} offset:{t*512}')
        kt0=o.get('kt0',1); kb=o.get('kb',0)
        if kb:
            G={}
            def put(t,j,tag,ins): G.setdefault((t,j),[]).append((tag,ins))
            for t in range(1,7):
                cv,wr,rd=postk(t-1); pk=PK+2*((t-1)&1)
                put(t,3,None,cv[0]); put(t,4,None,cv[1])
                put(t,5,('W0',t-1),f'ds_write_b32 v{VT2W}, v{pk} offset:{(t-1)*512}')
                put(t,6,('W1',t-1),f'ds_write_b32 v{VT2W}, v{pk+1} offset:{(t-1)*512+4}')
                if t<6: put(t+1,2,('T',t-1),rd)
            ko=[(1,1),(1,2),(0,0),(0,1),(0,2),(1,0)]
            kp=o.get('kp',[(0,2),(0,3),(0,4),(0,5),(0,6),(1,2)])
            for (jj,x),(t,j) in zip(ko,kp):
                if (jj,x)==(0,0): put(t,j,None,'s_waitcnt vmcnt(0)'+('\n'+PFL if dpf else ''))
                put(t,j,('K',jj,x),keyread(jj,x))
            kq=[]
            if kb==1:
                for j in (2,3,4): put(6,j,('K',2,j-2),keyread(2,j-2))
                put(6,5,('K',3,0),keyread(3,0)); put(6,6,('K',3,1),keyread(3,1))
            if kb==3:
                put(6,3,('K',2,0),keyread(2,0)); put(6,4,('K',2,1),keyread(2,1))
            for t in range(7):
                for j in range(2,7):
                    if t==0: T.wait(('A',j))
                    km_mm(t,j,AK(j))
                    for tag,ins in G.get((t,j),[]):
                        if tag: T.ds(ins,tag)
                        else: a(ins)
                if o.get('sst')==t: stamp(a,prof,6)
        for t in range(7 if not kb else 0):
            for j in range(2,7):
                if t==0: T.wait(('A',j))
                km_mm(t,j,AK(j))
                if t>=1:
                    cv,wr,rd=postk(t-1)
                    if j==3: a(cv[0])
                    if j==4: a(cv[1])
                    if j==5: T.ds(wr,('W',t-1))
                    if j==6: T.ds(rd,('T',t-1))
                if t in (kt0,kt0+1,kt0+2) and j in (2,3) and kq:
                    if t==kt0 and j==2:
                        a('s_waitcnt vmcnt(0)')
                        if dpf: a(PFL)
                    tg,ins=kq.pop(0); T.ds(ins,tg)
                if t==6:
                    if j in (2,3,4): T.ds(keyread(2,j-2),('K',2,j-2))
                    if j==5: T.ds(keyread(3,0),('K',3,0)); T.ds(keyread(3,1),('K',3,1))
            if o.get('sst')==t: stamp(a,prof,6)
        assert not kq
        stamp(a,prof,3)
        cv,_,_=postk(6)
        def S2(j,x):
            T.wait(('K',j,x))
            if j<3: T.wait(('T',2*j+1))
            a(smf(j,x))
        t6=tfreg(6); q0=AC[3]
        KR=lambda j,x: T.ds(keyread(j,x),('K',j,x))
        S2(0,0)
        if kb: T.ds(postk(5)[2],('T',5))
        if kb==2: KR(2,0)
        elif kb==3: KR(2,2)
        else: KR(3,2)
        S2(0,1); a(cv[0]); a(cv[1])
        S2(0,2)
        if kb==2: KR(2,1); a('s_nop 0') if 0 else None
        elif kb==3: KR(3,0)
        else: a('s_nop 0')
        a(f'v_mfma_f32_16x16x16_bf16 v[{q0}:{q0+3}], v[{PK}:{PK+1}], v[{VID}:{VID+1}], 0')
        if kb==2: KR(2,2)
        if kb==3: KR(3,1)
        S2(1,0)
        if kb==2: KR(3,0)
        if kb==3: KR(3,2)
        S2(1,1)
        if kb==2: KR(3,1)
        S2(1,2); a(f'v_cvt_pk_bf16_f32 v{t6}, v{q0}, v{q0+1}')
        if kb==2: KR(3,2)
        S2(2,0); a(f'v_cvt_pk_bf16_f32 v{t6+1}, v{q0+2}, v{q0+3}')
        S2(2,1)
        S2(2,2)
        for x in range(3): S2(3,x)
        for r in range(4): a(f'v_add_f32_dpp v{4+r}, v{SA[0]+r}, v{SA[0]+r} row_ror:8 row_mask:0xf bank_mask:0xf')
        a(f'ds_write_b128 v{VSWM}, v[4:7]')
        for r in range(4): a(f'v_add_f32_dpp v{8+r}, v{SA[1]+r}, v{SA[1]+r} row_ror:8 row_mask:0xf bank_mask:0x3')
        for r in range(4): a(f'v_add_f32_dpp v{8+r}, v{SA[2]+r}, v{SA[2]+r} row_ror:8 row_mask:0xf bank_mask:0xc')
        a(f'ds_write_b128 v{VSW}, v[8:11]')
    else:
        T=DsTrack(a)
        for k in range(7): T.note(('A',k))
        kq=[(('K',j,x),keyread(j,x)) for j in range(2) for x in range(3)]
        def post2(t):
            ac=ACC[t%3]; pk=PK+2*(t&1)
            return ([f'v_cvt_pk_bf16_f32 v{pk}, v{ac}, v{ac+1}', f'v_cvt_pk_bf16_f32 v{pk+1}, v{ac+2}, v{ac+3}'],
                    [f'ds_write_b32 v{VT2W}, v{pk} offset:{t*512}', f'ds_write_b32 v{VT2W}, v{pk+1} offset:{t*512+4}'],
                    f'ds_read_b64_tr_b16 v[{tfreg(t)}:{tfreg(t)+1}], v{VT2R} offset:{t*512}')
        for t in range(7):
            ac=ACC[t%3]
            for k in range(7):
                if t==0: T.wait(('A',k))
                a(f'v_smfmac_f32_16x16x64_bf16 v[{ac}:{ac+3}], v[{A0+4*k}:{A0+4*k+3}], {wreg(t*7+k)}, v{IDX}')
                if t>=1:
                    cv,wr,rd=post2(t-1)
                    nx=ACC[(t+1)%3]
                    if k==0 and t<6: a(f'v_mov_b64 v[{nx}:{nx+1}], 0')
                    if k==1 and t<6: a(f'v_mov_b64 v[{nx+2}:{nx+3}], 0')
                    if k==2: a(cv[0])
                    if k==3: a(cv[1])
                    if k==4: T.ds(wr[0],('W0',t-1))
                    if k==5: T.ds(wr[1],('W1',t-1))
                    if k==6: T.ds(rd,('T',t-1))
                    if t in (2,3,4) and k in (0,1) and kq:
                        if sp>1 and t==2 and k==0:
                            a('s_waitcnt vmcnt(0)')
                            if dpf: a(PFL)
                        tg,ins=kq.pop(0); T.ds(ins,tg)
                if t==6:
                    if k in (0,1,2): T.ds(keyread(2,k),('K',2,k))
                    if k==4: pass
                    if k==5: T.ds(keyread(3,0),('K',3,0))
                    if k==6: T.ds(keyread(3,1),('K',3,1))
        assert not kq
        stamp(a,prof,3)
        cv,_,_=post2(6); _,wr,rd=post(6)
        def S(j,x):
            T.wait(('K',j,x)); T.wait(('T',min(2*j+1,6))); a(smf(j,x))
        if not o.get('mt6',0):
            S(0,0); T.ds(keyread(3,2),('K',3,2))
            S(0,1); a(cv[0]); a(cv[1])
            S(0,2); T.ds(wr,('W',6)); T.ds(rd,('T',6))
            for j in range(1,4):
                for x in range(3): S(j,x)
        else:
            def S2(j,x):
                T.wait(('K',j,x))
                if j<3: T.wait(('T',2*j+1))
                a(smf(j,x))
            t6=tfreg(6); q0=ACC[0]
            S2(0,0); T.ds(keyread(3,2),('K',3,2))
            S2(0,1); a(cv[0]); a(cv[1])
            S2(0,2); a('s_nop 0')
            a(f'v_mfma_f32_16x16x16_bf16 v[{q0}:{q0+3}], v[{PK}:{PK+1}], v[{VID}:{VID+1}], 0')
            S2(1,0); S2(1,1); S2(1,2); a(f'v_cvt_pk_bf16_f32 v{t6}, v{q0}, v{q0+1}')
            S2(2,0); a(f'v_cvt_pk_bf16_f32 v{t6+1}, v{q0+2}, v{q0+3}')
            S2(2,1)
            S2(2,2)
            for x in range(3): S2(3,x)
        for r in range(4): a(f'v_add_f32_dpp v{4+r}, v{SA[0]+r}, v{SA[0]+r} row_ror:8 row_mask:0xf bank_mask:0xf')
        a(f'ds_write_b128 v{VSWM}, v[4:7]')
        for r in range(4): a(f'v_add_f32_dpp v{8+r}, v{SA[1]+r}, v{SA[1]+r} row_ror:8 row_mask:0xf bank_mask:0x3')
        for r in range(4): a(f'v_add_f32_dpp v{8+r}, v{SA[2]+r}, v{SA[2]+r} row_ror:8 row_mask:0xf bank_mask:0xc')
        a(f'ds_write_b128 v{VSW}, v[8:11]')
    a('s_waitcnt lgkmcnt(0)\ns_barrier')
    stamp(a,prof,4)
    lx=L('xk'); lnext=L('snext')
    a(f's_cmp_ge_u32 s{S_WAVE}, 2\ns_cbranch_scc1 {lx}')
    HST=f'buffer_store_dword v{VONE}, v{VHS}, s[8:11], s{S_HO} offen{SCM}'
    hp=lambda pos: HST if (hint_vp and hp_pos==pos) else ''
    a(hp(0))
    for w in range(4): a(f'ds_read_b128 v[{4+4*w}:{7+4*w}], v{VSR} offset:{w*2048}')
    a(f'''s_waitcnt lgkmcnt(2)
    v_pk_add_f32 v[4:5], v[4:5], v[8:9]
    v_pk_add_f32 v[6:7], v[6:7], v[10:11]
    s_waitcnt lgkmcnt(0)
    v_pk_add_f32 v[12:13], v[12:13], v[16:17]
    v_pk_add_f32 v[14:15], v[14:15], v[18:19]
    v_pk_add_f32 v[4:5], v[4:5], v[12:13]
    v_pk_add_f32 v[6:7], v[6:7], v[14:15]
    {hp(1)}
    v_max3_f32 v8, v4, v5, v6
    v_max_f32 v8, v8, v7
    s_nop 1
    v_max_f32_dpp v9, v8, v8 row_ror:4 row_mask:0xf bank_mask:0xf
    v_max_f32_dpp v9, v8, v9 row_ror:8 row_mask:0xf bank_mask:0xf
    v_max_f32_dpp v9, v8, v9 row_ror:12 row_mask:0xf bank_mask:0xf
    s_nop 1
    v_max_f32_dpp v10, v9, v9 row_ror:1 row_mask:0xf bank_mask:0xf
    v_max_f32_dpp v10, v9, v10 row_ror:2 row_mask:0xf bank_mask:0xf
    v_max_f32_dpp v10, v9, v10 row_ror:3 row_mask:0xf bank_mask:0xf
    {hp(2)}
    v_pk_add_f32 v[4:5], v[4:5], v[10:11] op_sel_hi:[1,0] neg_lo:[0,1] neg_hi:[0,1]
    v_pk_add_f32 v[6:7], v[6:7], v[10:11] op_sel_hi:[1,0] neg_lo:[0,1] neg_hi:[0,1]
    v_exp_f32 v4, v4
    v_exp_f32 v5, v5
    v_exp_f32 v6, v6
    v_exp_f32 v7, v7
    {hp(3)}
    v_add_f32 v8, v4, v5
    v_add_f32 v9, v6, v7
    v_add_f32 v8, v8, v9
    s_nop 1
    v_add_f32_dpp v9, v8, v8 row_ror:4 row_mask:0xf bank_mask:0xf
    v_add_f32_dpp v9, v8, v9 row_ror:8 row_mask:0xf bank_mask:0xf
    v_add_f32_dpp v9, v8, v9 row_ror:12 row_mask:0xf bank_mask:0xf
    s_nop 1
    v_add_f32_dpp v10, v9, v9 row_ror:1 row_mask:0xf bank_mask:0xf
    v_add_f32_dpp v10, v9, v10 row_ror:2 row_mask:0xf bank_mask:0xf
    v_add_f32_dpp v10, v9, v10 row_ror:3 row_mask:0xf bank_mask:0xf
    v_rcp_f32 v10, v10
    s_nop 0
    v_pk_mul_f32 v[4:5], v[4:5], v[10:11] op_sel_hi:[1,0]
    v_pk_mul_f32 v[6:7], v[6:7], v[10:11] op_sel_hi:[1,0]
    v_cvt_pk_bf16_f32 v4, v4, v5
    v_cvt_pk_bf16_f32 v5, v6, v7''')
    store2(a,[f'buffer_store_dwordx2 v[4:5], v{VPST}, s[8:11], s{S_PS} offen',
              f'buffer_store_dwordx2 v[{NEG}:{NEG+1}], v{VPST}, s[8:11], s{S_PP} offen'],mode)
    stamp(a,prof,5)
    if o.get('xkbar',0): a('s_barrier')
    a(f's_branch {lnext}\n{lx}:')
    if o.get('xkbar',0): a('s_barrier')
    a(f's_add_u32 s{S_XO}, s{S_XO}, 28672')
    xk_dma(1)
    stamp(a,prof,5)
    a(f'{lnext}:')
    stamp_flush(a,prof,8,2,VPA)
    a(f'''s_add_u32 s{S_STEP}, s{S_STEP}, 1
    s_cmp_lt_u32 s{S_STEP}, {nsteps}
    s_cbranch_scc1 {loop}''')
    if clk:
        a(f'''s_memtime s[64:65]
        s_memrealtime s[66:67]
        s_waitcnt lgkmcnt(0)
        s_sub_u32 s64, s64, s60
        s_sub_u32 s66, s66, s62
        s_lshl_b32 s{S_T0}, s{S_ROLE}, 2
        s_add_u32 s{S_T0}, s{S_T0}, s{S_WAVE}
        s_lshl_b32 s{S_T0}, s{S_T0}, 3
        s_add_u32 s{S_T0}, s{S_T0}, {ws.PROF+0xF0000}
        v_mov_b32 v2, s64
        v_mov_b32 v3, s66
        v_mov_b32 v4, 0
        s_nop 4
        buffer_store_dwordx2 v[2:3], v4, s[8:11], s{S_T0} offen''')
    prof_dump(a,prof)
    if 'tl' in o: o['tl'][0](3); o['tl'][1](4)
    a('s_waitcnt vmcnt(0)')
    a('s_endpgm' if last else 's_barrier')

LV_MX=0; LV_W=8192; LV_R=73728
def value_role(a, prof, nsteps=63, om=False, mode=None, o={}, first=True, last=True):
    CUR[0]='v'
    hint=o.get('hint',0); hint_sm=o.get('hint_sm',hint); hint_vp=o.get('hint_vp',hint); hint_vm=o.get('hint_vm',hint); nx=(o.get('nx',0) if om else 0)
    fill=o.get('fill',0); hm_pos=o.get('hm_pos',1); wi_late=o.get('wi_late',0); SCM=' sc1' if mode else ''
    IDX=1; A0=4
    DF=32
    WB=64
    ACC=[72,76,80,84]; XA=88
    ST=92
    VL16=108; VMXW=109; VPOLL=109; VPOLL2=111; VWL=112; VPX=113; VPM=114; VRW=115; VRR=116; VMS=117
    NEG=118
    VFLAG=120; VZERO=121; VONE=122; VF1=123
    VHP=124; VHM=125; VHS=126; VHV=127; S_HO=57; S_HE=59; S_WF=61; S_W1=62; S_M1=63; VMA=3
    S_DFL=39; S_FF=56
    WV=128
    def wdst(f): return ('a',8*f) if f<32 else ('v',WV+8*(f-32))
    def wreg(f):
        k,b=wdst(f); return (ar if k=='a' else vr)(b,8)
    S_V=29; S_PO=30; S_PS=31; S_MS=32; S_MP=33; S_MA=34; S_DO=35; S_WO=38
    L=a.lab
    a(f'''s_sub_u32 s{S_V}, s{S_ROLE}, 16
    v_lshlrev_b32 v{VL16}, 4, v0
    s_lshl_b32 s{S_T0}, s{S_V}, 2
    s_add_u32 s{S_T0}, s{S_T0}, s{S_WAVE}
    s_mul_i32 s{S_T0}, s{S_T0}, {56*2048}
    s_add_u32 s{S_T0}, s{S_T0}, {ws.CI}''')
    if first and o.get('merged',0):
        lr=L('vw'); lo=L('vw')
        a(f'''s_lshl_b32 s{S_T1}, s{S_WAVE}, 2
        s_add_u32 s{S_T1}, s{S_T1}, 16
        v_lshrrev_b32 v2, 3, v0
        v_add_u32 v2, s{S_T1}, v2
        v_mul_u32_u24 v2, {14*32}, v2
        v_and_b32 v3, 7, v0
        v_lshlrev_b32 v3, 2, v3
        s_lshl_b32 s{S_T1}, s{S_V}, 5
        s_add_u32 s{S_T1}, s{S_T1}, {ws.FF}
        v_add3_u32 v2, v2, v3, s{S_T1}
        v_mov_b32 v3, 0x10000000
        v_cmp_gt_u32 vcc, 32, v0
        s_movk_i32 s{S_CNT}, 8000
        s_nop 0
        v_cndmask_b32 v2, v3, v2, vcc
        {lr}:
        buffer_load_dword v3, v2, s[8:11], 0 offen sc1
        s_waitcnt vmcnt(0)
        v_cmp_eq_u32 vcc, 1, v3
        s_nop 1
        s_cmp_eq_u32 vcc_lo, -1
        s_cbranch_scc1 {lo}
        s_sleep 2
        s_sub_u32 s{S_CNT}, s{S_CNT}, 1
        s_cbranch_scc0 {lr}
        {lo}:''')
    if first: load_frags(a,48,wdst,VL16,S_T0)
    a(f'''s_lshl_b32 s{S_T1}, s{S_WAVE}, 14
    s_add_u32 s{S_T1}, s{S_T1}, {LV_W}''')
    for k in range(16 if first else 0):
        a(f's_add_u32 m0, s{S_T1}, {k*1024}\ns_add_u32 s{S_T2}, s{S_T0}, {k*1024}\nbuffer_load_dwordx4 v{VL16}, s[8:11], s{S_T2} offen lds')
    a(f'''v_add_u32 v{VWL}, s{S_T1}, v{VL16}
    v_and_b32 v2, 8, v0
    v_mov_b32 v{IDX}, 0x44444444
    v_mov_b32 v3, 0xeeeeeeee
    v_cmp_ne_u32 vcc, 0, v2
    v_mov_b32 v{NEG}, -1
    v_mov_b32 v{NEG+1}, -1
    v_cndmask_b32 v{IDX}, v{IDX}, v3, vcc
    s_lshl_b32 s{S_T1}, s{S_WAVE}, 10
    v_add_u32 v{VMXW}, s{S_T1}, v{VL16}
    s_movk_i32 s{S_T2}, 4096
    s_cmp_eq_u32 s{S_WAVE}, 3
    s_cselect_b32 s{S_T2}, 0x10000000, s{S_T2}
    v_add_u32 v{VPOLL2}, s{S_T2}, v{VPOLL}''')
    a(f'''s_lshl_b32 s{S_T1}, s{S_WAVE}, 11
    v_add_u32 v{VPX}, s{S_T1}, v{VL16}
    s_lshl_b32 s{S_T1}, s{S_WAVE}, 9
    s_add_u32 s{S_T1}, s{S_T1}, 8192
    v_lshrrev_b32 v2, 4, v0
    v_and_b32 v3, 15, v0
    v_lshlrev_b32 v4, 7, v2
    v_lshlrev_b32 v5, 4, v3
    v_add3_u32 v4, v4, v5, s{S_T1}
    v_mov_b32 v5, 0x10000000
    v_cmp_gt_u32 vcc, 8, v3
    s_nop 1
    v_cndmask_b32 v{VPM}, v5, v4, vcc''')
    a(f'''s_lshl_b32 s{S_T1}, s{S_WAVE}, 10
    s_add_u32 s{S_T1}, s{S_T1}, {LV_R}
    v_lshlrev_b32 v4, 2, v0
    v_add_u32 v{VRW}, s{S_T1}, v4
    v_add_u32 v{VRR}, {LV_R}, v{VL16}''')
    a(f'''v_lshrrev_b32 v2, 4, v0
    v_lshrrev_b32 v3, 2, v0
    v_and_b32 v3, 1, v3
    v_lshlrev_b32 v3, 2, v3
    v_add_u32 v2, v2, v3
    v_lshlrev_b32 v2, 4, v2
    v_lshrrev_b32 v3, 3, v0
    v_and_b32 v3, 1, v3
    v_lshlrev_b32 v3, 1, v3
    v_lshrrev_b32 v4, 1, v0
    v_and_b32 v4, 1, v4
    v_add_u32 v3, v3, v4
    v_lshlrev_b32 v3, 7, v3
    v_and_b32 v4, 1, v0
    v_lshlrev_b32 v4, 3, v4
    v_add3_u32 v2, v2, v3, v4
    s_lshl_b32 s{S_T1}, s{S_V}, 9
    v_add_u32 v{VMS}, s{S_T1}, v2''')
    a(f'''s_lshl_b32 s{S_T1}, s{S_V}, 15
    s_lshl_b32 s{S_T2}, s{S_WAVE}, 13
    s_add_u32 s{S_DO}, s{S_T1}, s{S_T2}
    s_add_u32 s{S_DO}, s{S_DO}, {ws.DI}
    s_lshl_b32 s{S_T1}, s{S_V}, 13
    s_lshl_b32 s{S_T2}, s{S_WAVE}, 11
    s_add_u32 s{S_WO}, s{S_T1}, s{S_T2}
    s_add_u32 s{S_WO}, s{S_WO}, {ws.WI}
    s_mov_b32 s{S_STEP}, 0
    s_mov_b32 s{S_LIM}, {POLL_LIM}
    s_mov_b32 s{S_PO}, {ws.MA}
    s_mov_b32 s{S_MA}, {ws.MA+7168}
    s_mov_b32 s{S_HO}, {ws.H}
    v_min_u32 v{VHM}, 55, v0
    v_lshlrev_b32 v{VHM}, 2, v{VHM}
    v_and_b32 v{VHP}, 31, v0
    v_lshlrev_b32 v{VHP}, 2, v{VHP}
    v_add_u32 v{VHP}, 256, v{VHP}
    s_lshl_b32 s{S_T1}, s{S_V}, 2
    s_add_u32 s{S_T1}, s{S_T1}, s{S_WAVE}
    s_lshl_b32 s{S_T1}, s{S_T1}, 2
    v_mov_b32 v2, s{S_T1}
    v_mov_b32 v3, 0x10000000
    v_cmp_eq_u32 vcc, 0, v0
    v_mov_b32 v{VONE}, 1
    s_nop 0
    v_cndmask_b32 v{VHS}, v3, v2, vcc''')
    SC=' sc1' if om else ''
    def dpoll():
        lr=L('dfp'); lo=L('dfo')
        a(f'''s_mov_b32 s{S_CNT}, s{S_LIM}
        {lr}:
        buffer_load_dword v{VFLAG}, v{VZERO}, s[8:11], s{S_DFL} offen sc1
        s_waitcnt vmcnt(0)
        v_readfirstlane_b32 s{S_T0}, v{VFLAG}
        s_nop 3
        s_cmp_lg_u32 s{S_T0}, 0
        s_cbranch_scc1 {lo}
        s_sub_u32 s{S_CNT}, s{S_CNT}, 1
        s_cbranch_scc0 {lr}
        s_mov_b32 s{S_LIM}, 0
        {lo}:''')
    if om:
        a(f'''v_mov_b32 v{VZERO}, 0
        v_mov_b32 v{VONE}, 1
        s_lshl_b32 s{S_T1}, s{S_V}, 4
        s_lshl_b32 s{S_T2}, s{S_WAVE}, 2
        s_add_u32 s{S_DFL}, s{S_T1}, s{S_T2}
        s_add_u32 s{S_DFL}, s{S_DFL}, {ws.DF}
        s_lshl_b32 s{S_T1}, s{S_V}, 2
        s_add_u32 s{S_FF}, s{S_T1}, {ws.F}
        s_lshl_b32 s{S_T1}, s{S_WAVE}, 6
        v_add_u32 v2, s{S_T1}, v0
        v_mov_b32 v3, {0 if nx else 64}
        v_cmp_eq_u32 vcc, v2, v3
        v_mov_b32 v3, 0x10000000
        s_nop 0
        v_cndmask_b32 v{VF1}, v3, 0, vcc''')
        if nx: a(f's_mov_b32 s{S_MA}, {ws.MA}\ns_mov_b32 s{S_WF}, {ws.WF-448}')
        if nx==2:
            a(f'''s_sub_u32 s{S_FF}, s{S_FF}, 64
            s_cmp_eq_u32 s{S_WAVE}, 0
            s_cselect_b32 s{S_T1}, 0, 0x10000000
            v_add_u32 v{VMA}, s{S_T1}, v{VMS}''')
        dpoll()
    VPA=110
    prof_init(a,prof,VPA)
    dsplit=o.get('dsplit',0)
    loop=L('vloop'); pr=L('vpoll'); pok=L('vpok'); PL=4 if dsplit else DF
    def dload(q,so):
        return f'buffer_load_dwordx4 v[{DF+4*q}:{DF+4*q+3}], v{VL16}, s[8:11], s{so} offen offset:{(q&3)*1024}{SC}'
    if dsplit:
        for q in range(4): a(dload(q,S_DO))
    if 'tl' in o: o['tl'][0](2)
    a(f'{loop}:')
    stamp(a,prof,0)
    vfill=o.get('vfill',0); S_DO2=60
    if vfill:
        for r in (0,2): a(f'v_mov_b64 v[{ACC[0]+r}:{ACC[0]+r+1}], 0\nv_mov_b64 v[{XA+r}:{XA+r+1}], 0')
    a(f's_add_u32 s{S_HE}, s{S_STEP}, 1')
    if hint_sm or hint_vm: a(f'v_mov_b32 v{VHV}, s{S_HE}')
    if hint_vm: hint_poll(a,VHM,S_HO,[16,17,18],1,S_STEP)
    if o.get('vml'): a(f"s_sleep {o['vml']}")
    a(f'''s_mov_b32 s{S_CNT}, s{S_LIM}
    {pr}:
    buffer_load_dwordx4 v[{PL}:{PL+3}], v{VPOLL}, s[8:11], s{S_PO} offen sc1
    buffer_load_dwordx4 v[{PL+4}:{PL+7}], v{VPOLL2}, s[8:11], s{S_PO} offen sc1
    s_waitcnt vmcnt(1)
    ds_write_b128 v{VMXW}, v[{PL}:{PL+3}]
    v_max3_u32 v2, v{PL}, v{PL+1}, v{PL+2}
    v_max_u32 v2, v2, v{PL+3}
    s_waitcnt vmcnt(0)
    ds_write_b128 v{VMXW}, v[{PL+4}:{PL+7}] offset:4096
    v_max3_u32 v2, v2, v{PL+4}, v{PL+5}
    v_max3_u32 v2, v2, v{PL+6}, v{PL+7}''')
    poll_tail(a,pr,pok,2)
    stamp(a,prof,1)
    a('s_waitcnt lgkmcnt(0)\ns_barrier')
    for k in range(7): a(f'ds_read_b128 v[{A0+4*k}:{A0+4*k+3}], v{VL16} offset:{k*1024}')
    def sread(f,buf):
        b=ST+8*buf; o=(f-48)*2048
        return [f'ds_read_b128 v[{b}:{b+3}], v{VWL} offset:{o}', f'ds_read_b128 v[{b+4}:{b+7}], v{VWL} offset:{o+1024}']
    if not vfill:
        for r in range(4): a(f'v_mov_b32 v{ACC[0]+r}, 0')
        for r in range(4): a(f'v_mov_b32 v{XA+r}, 0')
    def dcheck():
        lok=L('dok')
        a(f'v_readfirstlane_b32 s{S_T0}, v{VFLAG}\ns_nop 3\ns_cmp_lg_u32 s{S_T0}, 0\ns_cbranch_scc1 {lok}')
        dpoll()
        a(f'{lok}:')
    SCX='' if o.get('xpl',0) else SC
    hlp=(o.get('hlp',0) if om else 0); dfl=o.get('dfl',0) if om else 0
    if hlp: SCX=SCM
    SCW=' sc1' if hlp==2 else SCM
    def wi_export(sc=None):
        sc=SCX if sc is None else sc
        a(f'buffer_store_dwordx4 v[{WB}:{WB+3}], v{VL16}, s[8:11], s{S_WO} offen{sc}')
        a(f'buffer_store_dwordx4 v[{WB+4}:{WB+7}], v{VL16}, s[8:11], s{S_WO} offen offset:1024{sc}')
        a(f's_add_u32 s{S_WO}, s{S_WO}, {14*8192}')
    FST=f'buffer_store_dword v{VONE}, v{VF1}, s[8:11], s{S_FF} offen'+(' sc1' if o.get('xpl',0)<2 else '')
    ord2=o.get('ord2',0)
    if om and not nx:
        if not ord2 and not hlp: a(f'{FST}\ns_add_u32 s{S_FF}, s{S_FF}, 64')
        if not dsplit:
            if dfl:
                lq=L('dq'); lr=L('dr'); lo=L('do')
                a(f's_cmp_gt_u32 s{S_STEP}, {dfl}\ns_cbranch_scc1 {lq}')
                dcheck()
                a(f'''s_cmp_lg_u32 s{S_STEP}, {dfl}
                s_cbranch_scc1 {lq}
                s_lshl_b32 s{S_T1}, s{S_V}, 4
                s_lshl_b32 s{S_T2}, s{S_WAVE}, 2
                s_add_u32 s{S_T1}, s{S_T1}, s{S_T2}
                s_add_u32 s{S_T1}, s{S_T1}, {ws.DF+60*224}
                v_and_b32 v2, 3, v0
                v_mul_u32_u24 v2, 224, v2
                s_mov_b32 s{S_CNT}, s{S_LIM}
                {lr}:
                buffer_load_dword v{VFLAG}, v2, s[8:11], s{S_T1} offen sc1
                s_waitcnt vmcnt(0)
                v_cmp_eq_u32 vcc, 0, v{VFLAG}
                s_cbranch_vccz {lo}
                s_sub_u32 s{S_CNT}, s{S_CNT}, 1
                s_cbranch_scc0 {lr}
                s_mov_b32 s{S_LIM}, 0
                {lo}:
                {lq}:''')
            else: dcheck()
    if nx==2:
        l63=L('l63')
        a(f'''s_cmp_lg_u32 s{S_STEP}, {nsteps}
        s_cbranch_scc1 {l63}
        s_add_u32 s{S_T0}, s{S_FF}, 64
        buffer_store_dword v{VONE}, v{VF1}, s[8:11], s{S_T0} offen sc1
        {l63}:''')
        dcheck()
        a(f'''s_cmp_eq_u32 s{S_STEP}, 0
        s_cselect_b32 s{S_W1}, {ws.DUM}, s{S_WO}
        s_cselect_b32 s{S_M1}, {ws.DUM+16384}, s{S_MA}
        s_cselect_b32 s{S_T0}, 0, {14*8192}
        s_add_u32 s{S_WO}, s{S_WO}, s{S_T0}''')
    elif nx:
        l63=L('l63'); l0=L('l0')
        a(f's_cmp_lg_u32 s{S_STEP}, {nsteps}\ns_cbranch_scc1 {l63}\n{FST}\n{l63}:')
        dcheck()
        a(f'buffer_store_dword v{VONE}, v{VHS}, s[8:11], s{S_WF} offen sc1\ns_add_u32 s{S_WF}, s{S_WF}, 224')
        a(f's_cmp_eq_u32 s{S_STEP}, 0\ns_cbranch_scc1 {l0}')
        wi_export()
        a(f's_cmp_lg_u32 s{S_WAVE}, 0\ns_cbranch_scc1 {l0}')
        a(f'buffer_store_dwordx2 v[{ST+8}:{ST+9}], v{VMS}, s[8:11], s{S_MA} offen sc1')
        a(f'{l0}:')
    dl=[]
    for q in range(8):
        off=(q&3)*1024
        so=S_DO if q<4 else S_DO2
        dl.append(f'buffer_load_dwordx4 v[{DF+4*q}:{DF+4*q+3}], v{VL16}, s[8:11], s{so} offen offset:{off}{o.get("dsc",SC)}')
    a(f's_add_u32 s{S_DO2}, s{S_DO}, 4096')
    flagld=f's_add_u32 s{S_DFL}, s{S_DFL}, {14*16}\nbuffer_load_dword v{VFLAG}, v{VZERO}, s[8:11], s{S_DFL} offen sc1'
    dls=o.get('dls')
    wie=(wi_late==2 and om)
    if wie:
        a(f'''s_cmp_eq_u32 s{S_STEP}, 0
        s_cselect_b32 s{S_W1}, {ws.DUM}, s{S_WO}
        s_cselect_b32 s{S_T0}, 0, {14*8192}
        s_add_u32 s{S_WO}, s{S_WO}, s{S_T0}''')
        wst=[f'buffer_store_dwordx4 v[{WB}:{WB+3}], v{VL16}, s[8:11], s{S_W1} offen{SCW}',
             f'buffer_store_dwordx4 v[{WB+4}:{WB+7}], v{VL16}, s[8:11], s{S_W1} offen offset:1024{SCW}']
        wsl=o.get('wsl',[(0,3),(1,3)])
        for q,p_ in enumerate(wsl):
            if p_=='pre0': a(wst[q])
    if vfill and dls and nx!=2:
        for q,p in enumerate(dls):
            if p=='pre': a(dl[q])
        if om and ord2:
            a(flagld)
            if not nx: a(f'{FST}\ns_add_u32 s{S_FF}, s{S_FF}, 64')
    if not vfill:
        for x in dl: a(x)
        if om: a(flagld)
        a(f's_add_u32 s{S_DO}, s{S_DO}, {14*32768}')
    a(f'''s_add_u32 s{S_T0}, s{S_STEP}, 1
    s_and_b32 s{S_T0}, s{S_T0}, 3
    s_mul_i32 s{S_T0}, s{S_T0}, 7168
    s_add_u32 s{S_MS}, s{S_T0}, {ws.MR}
    s_add_u32 s{S_T0}, s{S_STEP}, 3
    s_and_b32 s{S_T0}, s{S_T0}, 3
    s_mul_i32 s{S_T0}, s{S_T0}, 7168
    s_add_u32 s{S_MP}, s{S_T0}, {ws.MR}
    s_and_b32 s{S_T0}, s{S_STEP}, 3
    s_mul_i32 s{S_T0}, s{S_T0}, 10240
    s_add_u32 s{S_PS}, s{S_T0}, {ws.PR}
    s_mov_b32 s{S_PO}, s{S_MS}''')
    stamp(a,prof,2)
    chains=[(0,0),(0,1),(0,2),(0,3),(1,0),(1,1),(1,2)]
    def fidx(tau,hh,k): return hh*14+tau*7+k
    def psum(tau,half,ra,rb):
        o=[]
        for r in range(4): o.append(f'v_permlane32_swap_b32 v{ra+r}, v{rb+r}')
        for r in range(4): o.append(f'v_add_f32 v{ra+r}, v{ra+r}, v{rb+r}')
        d=WB+4*tau+2*half
        o.append(f'v_cvt_pk_bf16_f32 v{d}, v{ra}, v{ra+1}'); o.append(f'v_cvt_pk_bf16_f32 v{d+1}, v{ra+2}, v{ra+3}')
        return o
    if not vfill:
        pend=[]
        lg=7
        for c,(tau,hh) in enumerate(chains):
            ac=ACC[c%4]
            for k in range(7):
                f=fidx(tau,hh,k)
                if c==0: a(f's_waitcnt lgkmcnt({6-k})')
                if f>=48:
                    assert f==48
                    a('s_waitcnt lgkmcnt(0)')
                    b=vr(ST+8,8)
                else: b=wreg(f)
                a(f'v_smfmac_f32_16x16x64_bf16 v[{ac}:{ac+3}], v[{A0+4*k}:{A0+4*k+3}], {b}, v{IDX}')
                fl=[]
                if k==0: fl+=sread(49+c,0)
                if c==3 and k==1: fl+=sread(48,1)
                if c<6 and k in (2,3):
                    nx=ACC[(c+1)%4]; fl+=[f'v_mov_b32 v{nx+2*(k-2)}, 0',f'v_mov_b32 v{nx+2*(k-2)+1}, 0']
                if k>=3 and pend:
                    fl+=pend[:2]; pend=pend[2:]
                for x in fl: a(x)
            a('s_waitcnt lgkmcnt(0)')
            a(f'v_smfmac_f32_16x16x64_bf16 v[{XA}:{XA+3}], v[{A0+4*c}:{A0+4*c+3}], {vr(ST,8)}, v{IDX}')
            for x in pend[:2]: a(x)
            pend=pend[2:]
            if c in (1,3,5):
                assert not pend
                pend=psum(0 if c<4 else 1, 0 if c in (1,5) else 1, ACC[(c-1)%4], ACC[c%4])
        for x in pend: a(x)
        a('s_nop 7')
        for x in psum(1,1,ACC[6%4],XA): a(x)
    else:
        T=DsTrack(a)
        for k in range(7): T.note(('A',k))
        z=lambda r:[f'v_mov_b64 v[{r}:{r+1}], 0',f'v_mov_b64 v[{r+2}:{r+3}], 0']
        p01=psum(0,0,ACC[0],ACC[1]); p23=psum(0,1,ACC[2],ACC[3]); p45=psum(1,0,ACC[0],ACC[1])
        V={}
        def put(c,g0,ops):
            for i,x in enumerate(ops): assert (c,g0+i) not in V; V[(c,g0+i)]=x
        put(0,0,z(ACC[1])); put(1,0,z(ACC[2])); put(2,0,z(ACC[3])); put(2,2,p01[:6]); put(3,0,p01[6:]); put(3,4,z(ACC[0]))
        put(4,0,z(ACC[1])); put(4,2,p23[:6]); put(5,0,p23[6:]); put(5,4,z(ACC[2])); put(6,2,p45[:6])
        M={(c,3):dl[c+1] for c in range(7)}; M[(0,1)]=dl[0]
        if dsplit: M={(0,1):dl[4],(0,3):dl[5],(0,5):dl[6],(1,0):dl[7]}
        if dls:
            M={p:dl[q] for q,p in enumerate(dls) if p!='pre'}
        if wie:
            for q,p_ in enumerate(wsl):
                if p_=='pre': a(wst[q])
                elif p_!='pre0': M[p_]=(M[p_]+'\n' if p_ in M else '')+wst[q]
        if nx==2:
            ops=dl+[flagld,
                f'buffer_store_dword v{VONE}, v{VHS}, s[8:11], s{S_WF} offen sc1\ns_add_u32 s{S_WF}, s{S_WF}, 224',
                f'{FST}\ns_add_u32 s{S_FF}, s{S_FF}, 64',
                f'buffer_store_dwordx4 v[{WB}:{WB+3}], v{VL16}, s[8:11], s{S_W1} offen sc1',
                f'buffer_store_dwordx4 v[{WB+4}:{WB+7}], v{VL16}, s[8:11], s{S_W1} offen offset:1024 sc1',
                f'buffer_store_dwordx2 v[{ST+8}:{ST+9}], v{VMA}, s[8:11], s{S_M1} offen sc1']
            slots=o.get('nxslots') or [(c,k) for c in range(3) for k in range(7)]
            npre=o.get('npre',0)
            for x in ops[:npre]: a(x)
            M={slots[i]:x for i,x in enumerate(ops[npre:])}
        for c,(tau,hh) in enumerate(chains):
            ac=ACC[c%4]
            for k in range(7):
                f=fidx(tau,hh,k)
                if c==0: T.wait(('A',k))
                if f>=48:
                    assert f==48
                    T.wait(('S48',1)); b=vr(ST+8,8)
                else: b=wreg(f)
                a(f'v_smfmac_f32_16x16x64_bf16 v[{ac}:{ac+3}], v[{A0+4*k}:{A0+4*k+3}], {b}, v{IDX}')
                if (c,k) in V: a(V[(c,k)])
                if k==0:
                    r=sread(49+c,0); T.ds(r[0],('X',c,0)); T.ds(r[1],('X',c,1))
                if c==3 and k==1:
                    r=sread(48,1); T.ds(r[0],('S48',0)); T.ds(r[1],('S48',1))
                if (c,k) in M: a(M[(c,k)])
            T.wait(('X',c,1))
            a(f'v_smfmac_f32_16x16x64_bf16 v[{XA}:{XA+3}], v[{A0+4*c}:{A0+4*c+3}], {vr(ST,8)}, v{IDX}')
            if (c,7) in V: a(V[(c,7)])
            if o.get('vst')==c: stamp(a,prof,6)
            if nx==1 and c==o.get('fpos',5): a(f's_waitcnt vmcnt({9 if ord2 else 8})\n{FST}\ns_add_u32 s{S_FF}, s{S_FF}, 64')
        if om and not ord2 and nx!=2:
            if dfl:
                lq=L('nf'); a(f"s_cmp_ge_u32 s{S_STEP}, {dfl}\ns_cbranch_scc1 {lq}"); a(flagld); a(f'{lq}:')
            else: a(flagld)
        a(f's_add_u32 s{S_DO}, s{S_DO}, {14*32768}')
        for x in p45[6:]: a(x)
        a('s_nop 3')
        for x in psum(1,1,ACC[6%4],XA): a(x)
    if not wi_late and not nx: wi_export(' sc1' if hlp==2 else None)
    stamp(a,prof,3)
    fin=L('vfin')
    a(f's_cmp_ge_u32 s{S_STEP}, {nsteps}\ns_cbranch_scc1 {fin}')
    if hint_vp: hint_poll(a,VHP,S_HO,[16,17,18],3,S_HE)
    if o.get('vst') is None: stamp(a,prof,6)
    pr=L('ppoll'); pok=L('ppok')
    O0=ACC[0]; O1=ACC[1]
    vp=o.get('vp',1)
    if o.get('vsl'): a(f"s_sleep {o['vsl']}")
    def piss(b):
        a(f'''buffer_load_dwordx4 v[{b+8}:{b+11}], v{VPM}, s[8:11], s{S_PS} offen sc1
        buffer_load_dwordx4 v[{b}:{b+3}], v{VPX}, s[8:11], s{S_PS} offen sc1
        buffer_load_dwordx4 v[{b+4}:{b+7}], v{VPX}, s[8:11], s{S_PS} offen offset:1024 sc1''')
    def pchk(b,n):
        a(f'''s_waitcnt vmcnt({n+2})
        v_mfma_f32_16x16x32_bf16 v[{O0}:{O0+3}], v[{b+8}:{b+11}], v[{WB}:{WB+3}], 0
        v_max3_u32 v2, v{b+8}, v{b+9}, v{b+10}
        v_mfma_f32_16x16x32_bf16 v[{O1}:{O1+3}], v[{b+8}:{b+11}], v[{WB+4}:{WB+7}], 0
        s_waitcnt vmcnt({n+1})
        v_smfmac_f32_16x16x64_bf16 v[{O0}:{O0+3}], v[{b}:{b+3}], v[{DF}:{DF+7}], v{IDX}
        v_max3_u32 v2, v2, v{b+11}, v{b}
        v_max3_u32 v2, v2, v{b+1}, v{b+2}
        v_smfmac_f32_16x16x64_bf16 v[{O1}:{O1+3}], v[{b}:{b+3}], v[{DF+16}:{DF+23}], v{IDX}
        s_waitcnt vmcnt({n})
        v_smfmac_f32_16x16x64_bf16 v[{O0}:{O0+3}], v[{b+4}:{b+7}], v[{DF+8}:{DF+15}], v{IDX}
        v_max3_u32 v2, v2, v{b+3}, v{b+4}
        v_max3_u32 v2, v2, v{b+5}, v{b+6}
        v_smfmac_f32_16x16x64_bf16 v[{O1}:{O1+3}], v[{b+4}:{b+7}], v[{DF+24}:{DF+31}], v{IDX}
        v_max_u32 v2, v2, v{b+7}''')
    RD=4
    if vp==1:
        a(f's_mov_b32 s{S_CNT}, s{S_LIM}\n{pr}:')
        piss(4); pchk(4,0)
        poll_tail(a,pr,pok,2)
    else:
        RD=DF
        sets=[4,16,ST][:vp]
        a(f's_mov_b32 s{S_CNT}, s{S_LIM}')
        if prof: a('s_mov_b32 s55, 0')
        if o.get('vpw',0): a('s_waitcnt vmcnt(0)')
        for i,b in enumerate(sets):
            piss(b)
            if i<vp-1 and o.get('vpd',3): a(f"s_sleep {o.get('vpd',3)}")
        a(f'{pr}:')
        for b in sets:
            pchk(b,3*(vp-1))
            a(f'v_cmp_eq_u32 vcc, -1, v2\ns_cbranch_vccz {pok}')
            if prof: a('s_add_u32 s55, s55, 1')
            piss(b)
        a(f'''s_sub_u32 s{S_CNT}, s{S_CNT}, 1
        s_cbranch_scc0 {pr}
        s_mov_b32 s{S_LIM}, 0
        {pok}:''')
    stamp(a,prof,4)
    if prof: a(f's_sub_u32 s54, s{S_LIM}, s{S_CNT}' if vp==1 else 's_mov_b32 s54, s55')
    HST=f'buffer_store_dword v{VHV}, v{VHS}, s[8:11], s{S_HO} offen{SCM}'
    hm=lambda pos: HST if ((hint_sm or hint_vm) and hm_pos==pos) else ''
    a(hm(0)) if hm(0) else None
    a('s_nop 4')
    for r in range(4): a(f'v_permlane32_swap_b32 v{O0+r}, v{O1+r}')
    for r in range(4): a(f'v_add_f32 v{O0+r}, v{O0+r}, v{O1+r}')
    a(f'''ds_write2st64_b32 v{VRW}, v{O0}, v{O0+1} offset0:0 offset1:1
    ds_write2st64_b32 v{VRW}, v{O0+2}, v{O0+3} offset0:2 offset1:3
    {hm(1)}
    s_waitcnt lgkmcnt(0)
    s_barrier
    {hm(2)}''')
    nxt=L('vnext')
    a(f's_cmp_lg_u32 s{S_WAVE}, 0\ns_cbranch_scc1 {nxt}')
    for w in range(4): a(f'ds_read_b128 v[{RD+4*w}:{RD+3+4*w}], v{VRR} offset:{w*1024}')
    a(f'''s_waitcnt lgkmcnt(2)
    v_pk_add_f32 v[{RD}:{RD+1}], v[{RD}:{RD+1}], v[{RD+4}:{RD+5}]
    v_pk_add_f32 v[{RD+2}:{RD+3}], v[{RD+2}:{RD+3}], v[{RD+6}:{RD+7}]
    s_waitcnt lgkmcnt(0)
    v_pk_add_f32 v[{RD+8}:{RD+9}], v[{RD+8}:{RD+9}], v[{RD+12}:{RD+13}]
    v_pk_add_f32 v[{RD+10}:{RD+11}], v[{RD+10}:{RD+11}], v[{RD+14}:{RD+15}]
    v_pk_add_f32 v[{RD}:{RD+1}], v[{RD}:{RD+1}], v[{RD+8}:{RD+9}]
    v_pk_add_f32 v[{RD+2}:{RD+3}], v[{RD+2}:{RD+3}], v[{RD+10}:{RD+11}]
    v_cvt_pk_bf16_f32 v{RD}, v{RD}, v{RD+1}
    v_cvt_pk_bf16_f32 v{RD+1}, v{RD+2}, v{RD+3}''')
    store2(a,[f'buffer_store_dwordx2 v[{RD}:{RD+1}], v{VMS}, s[8:11], s{S_MS} offen',
              f'buffer_store_dwordx2 v[{NEG}:{NEG+1}], v{VMS}, s[8:11], s{S_MP} offen']+([] if om else [
              f'buffer_store_dwordx2 v[{RD}:{RD+1}], v{VMS}, s[8:11], s{S_MA} offen']),mode)
    if om and not nx: a(f'buffer_store_dwordx2 v[{RD}:{RD+1}], v{VMS}, s[8:11], s{S_MA} offen{SCX}')
    if nx:
        lq=L('lq')
        a(f'''v_mov_b64 v[{ST+8}:{ST+9}], v[{RD}:{RD+1}]
        s_cmp_lg_u32 s{S_STEP}, {nsteps-1}
        s_cbranch_scc1 {lq}
        s_add_u32 s{S_T0}, s{S_MA}, 7168
        buffer_store_dwordx2 v[{RD}:{RD+1}], v{VMS}, s[8:11], s{S_T0} offen sc1
        {lq}:''')
    a(f'{nxt}:')
    stamp(a,prof,5)
    if dsplit:
        if o.get('dbar',0): a('s_barrier')
        if om: dcheck()
        for q in range(4): a(dload(q,S_DO))
    if wie:
        if o.get('wbar',1): a('s_barrier')
    elif wi_late:
        if not (dsplit and o.get('dbar',0)): a('s_barrier')
        if hlp:
            lq=L('w62'); lq2=L('w62')
            a(f's_cmp_eq_u32 s{S_STEP}, {nsteps-1}\ns_cbranch_scc1 {lq}')
            t=S_WO; wi_export_n=lambda sc: (a(f'buffer_store_dwordx4 v[{WB}:{WB+3}], v{VL16}, s[8:11], s{S_WO} offen{sc}'), a(f'buffer_store_dwordx4 v[{WB+4}:{WB+7}], v{VL16}, s[8:11], s{S_WO} offen offset:1024{sc}'))
            wi_export_n(SCW); a(f's_branch {lq2}\n{lq}:'); wi_export_n(' sc1'); a(f'{lq2}:\ns_add_u32 s{S_WO}, s{S_WO}, {14*8192}')
        else: wi_export()
    a(f's_add_u32 s{S_MA}, s{S_MA}, 7168')
    stamp_flush(a,prof,8,2,VPA)
    a(f'''s_add_u32 s{S_STEP}, s{S_STEP}, 1
    s_branch {loop}
    {fin}:''')
    if wi_late or nx: wi_export(' sc1' if hlp else None)
    a('s_waitcnt vmcnt(0)')
    if hlp: a(f's_mov_b32 s{S_T0}, {ws.WF+62*224}\nbuffer_store_dword v{VONE}, v{VHS}, s[8:11], s{S_T0} offen sc1\nbuffer_store_dword v{VONE}, v{VHS}, s[8:11], s{S_T0} offen offset:224 sc1\ns_waitcnt vmcnt(0)')
    elif nx: a(f'buffer_store_dword v{VONE}, v{VHS}, s[8:11], s{S_WF} offen sc1\nbuffer_store_dword v{VONE}, v{VHS}, s[8:11], s{S_WF} offen offset:224 sc1\ns_waitcnt vmcnt(0)')
    elif om: a(f's_barrier\nbuffer_store_dword v{VONE}, v{VF1}, s[8:11], s{S_FF} offen sc1\ns_waitcnt vmcnt(0)')
    prof_dump(a,prof)
    if 'tl' in o: o['tl'][0](3); o['tl'][1](4)
    a('s_endpgm' if last else 's_barrier')

def helper_role(a, o, last=True):
    L=a.lab; S_J=29; S_S=30; S_PO=31; S_SRC=32; S_SR2=33; S_FL=34
    VL16=1; VF=2; VONE=3; PL=4; DAT=8
    lma=L('hma')
    a(f'''s_sub_u32 s{S_J}, s{S_ROLE}, 30
    s_lshl_b32 s{S_J}, s{S_J}, 2
    s_add_u32 s{S_J}, s{S_J}, s{S_WAVE}
    v_lshlrev_b32 v{VL16}, 4, v0
    v_mov_b32 v{VONE}, 1
    s_mov_b32 s{S_LIM}, {POLL_LIM}
    s_cmp_eq_u32 s{S_J}, 7
    s_cbranch_scc1 {lma}''')
    hlp=o['hlp']; slp=o.get('hslp',0)
    if hlp>=2: a('s_endpgm')
    loop=L('hl'); pr=L('hp'); pok=L('ho')
    a(f'''s_lshl_b32 s{S_T0}, s{S_J}, 10
    s_add_u32 s{S_PO}, s{S_T0}, {ws.MA+2*7168}
    s_lshl_b32 s{S_T0}, s{S_J}, 14
    s_add_u32 s{S_SRC}, s{S_T0}, {ws.WI}
    s_lshl_b32 s{S_T0}, s{S_J}, 5
    s_add_u32 s{S_FL}, s{S_T0}, {ws.WF}
    v_lshlrev_b32 v{VF}, 2, v0
    v_mov_b32 v4, 0x10000000
    v_cmp_gt_u32 vcc, 8, v0
    s_mov_b32 s{S_S}, 0
    s_nop 0
    v_cndmask_b32 v{VF}, v4, v{VF}, vcc
    {loop}:
    s_mov_b32 s{S_CNT}, s{S_LIM}
    {pr}:
    {f's_sleep {slp}' if slp else ''}
    buffer_load_dwordx4 v[{PL}:{PL+3}], v{VL16}, s[8:11], s{S_PO} offen sc1
    s_waitcnt vmcnt(0)
    v_max3_u32 v{PL}, v{PL}, v{PL+1}, v{PL+2}
    v_max_u32 v{PL}, v{PL}, v{PL+3}''')
    poll_tail(a,pr,pok,PL)
    for k in range(16):
        if k%4==0: a(f's_add_u32 s{S_SR2}, s{S_SRC}, {k*1024}')
        a(f'buffer_load_dwordx4 v[{DAT+4*k}:{DAT+4*k+3}], v{VL16}, s[8:11], s{S_SR2} offen offset:{(k&3)*1024} sc1')
    for k in range(16):
        if k%4==0: a(f's_add_u32 s{S_SR2}, s{S_SRC}, {k*1024}')
        a(f's_waitcnt vmcnt(15)')
        a(f'buffer_store_dwordx4 v[{DAT+4*k}:{DAT+4*k+3}], v{VL16}, s[8:11], s{S_SR2} offen offset:{(k&3)*1024} sc1')
    a(f'''s_waitcnt vmcnt(0)
    buffer_store_dword v{VONE}, v{VF}, s[8:11], s{S_FL} offen sc1
    s_add_u32 s{S_FL}, s{S_FL}, 224
    s_add_u32 s{S_SRC}, s{S_SRC}, {14*8192}
    s_add_u32 s{S_PO}, s{S_PO}, 7168
    s_add_u32 s{S_S}, s{S_S}, 1
    s_cmp_lt_u32 s{S_S}, 62
    s_cbranch_scc1 {loop}
    s_waitcnt vmcnt(0)
    s_endpgm''')
    loop=L('ml'); pr=L('mp'); pok=L('mo')
    a(f'''{lma}:
    v_lshlrev_b32 v{VF}, 2, v0
    v_mov_b32 v4, 0x10000000
    v_cmp_gt_u32 vcc, 14, v0
    s_mov_b32 s{S_FL}, {ws.F}
    s_mov_b32 s{S_PO}, {ws.MA+7168}
    v_cndmask_b32 v{VF}, v4, v{VF}, vcc
    s_mov_b32 s{S_S}, 1
    buffer_store_dword v{VONE}, v{VF}, s[8:11], s{S_FL} offen sc1
    v_lshlrev_b32 v5, 2, v0
    v_cmp_gt_u32 vcc, 56, v0
    s_mov_b32 s{S_SRC}, {ws.WF-224}
    s_nop 0
    v_cndmask_b32 v5, v4, v5, vcc
    {loop}:
    s_add_u32 s{S_FL}, s{S_FL}, 64
    s_add_u32 s{S_SR2}, s{S_PO}, 4096
    s_mov_b32 s{S_CNT}, s{S_LIM}
    {pr}:''')
    if slp: a(f's_sleep {slp}')
    so=lambda k: S_PO if k<4 else S_SR2
    for k in range(7): a(f'buffer_load_dwordx4 v[{DAT+4*k}:{DAT+4*k+3}], v{VL16}, s[8:11], s{so(k)} offen offset:{(k&3)*1024} sc1')
    for k in range(7):
        a(f's_waitcnt vmcnt({6-k})')
        r=DAT+4*k
        if k==0: a(f'v_max3_u32 v{PL}, v{r}, v{r+1}, v{r+2}\nv_max_u32 v{PL}, v{PL}, v{r+3}')
        else: a(f'v_max3_u32 v{PL}, v{PL}, v{r}, v{r+1}\nv_max3_u32 v{PL}, v{PL}, v{r+2}, v{r+3}')
    poll_tail(a,pr,pok,PL)
    for k in range(7): a(f'buffer_store_dwordx4 v[{DAT+4*k}:{DAT+4*k+3}], v{VL16}, s[8:11], s{so(k)} offen offset:{(k&3)*1024} sc1')
    if hlp>=2:
        lq=L('hq'); a(f's_cmp_lt_u32 s{S_S}, 2\ns_cbranch_scc1 {lq}\nbuffer_store_dword v{VONE}, v5, s[8:11], s{S_SRC} offen sc1\n{lq}:\ns_add_u32 s{S_SRC}, s{S_SRC}, 224')
    a(f'''s_waitcnt vmcnt(0)
    buffer_store_dword v{VONE}, v{VF}, s[8:11], s{S_FL} offen sc1
    s_add_u32 s{S_PO}, s{S_PO}, 7168
    s_add_u32 s{S_S}, s{S_S}, 1
    s_cmp_lt_u32 s{S_S}, 64
    s_cbranch_scc1 {loop}
    s_waitcnt vmcnt(0)
    s_endpgm''')

def helper_ma(a, o):
    L=a.lab; S_S=30; S_PO=31; S_SRC=32; S_SR2=33; S_FL=34
    VL16=1; VF=2; VONE=3; PL=4; DAT=8; slp=o.get('hslp',0)
    loop=L('ml'); pr=L('mp'); pok=L('mo')
    a(f'''v_lshlrev_b32 v{VL16}, 4, v0
    v_mov_b32 v{VONE}, 1
    s_mov_b32 s{S_LIM}, {POLL_LIM}
    v_lshlrev_b32 v{VF}, 2, v0
    v_mov_b32 v4, 0x10000000
    v_cmp_gt_u32 vcc, 14, v0
    s_mov_b32 s{S_FL}, {ws.F}
    s_mov_b32 s{S_PO}, {ws.MA+7168}
    v_cndmask_b32 v{VF}, v4, v{VF}, vcc
    s_mov_b32 s{S_S}, 1
    buffer_store_dword v{VONE}, v{VF}, s[8:11], s{S_FL} offen sc1
    v_lshlrev_b32 v5, 2, v0
    v_cmp_gt_u32 vcc, 56, v0
    s_mov_b32 s{S_SRC}, {ws.WF-224}
    s_nop 0
    v_cndmask_b32 v5, v4, v5, vcc
    {loop}:
    s_add_u32 s{S_FL}, s{S_FL}, 64
    s_add_u32 s{S_SR2}, s{S_PO}, 4096
    s_mov_b32 s{S_CNT}, s{S_LIM}
    {pr}:''')
    if slp: a(f's_sleep {slp}')
    so=lambda k: S_PO if k<4 else S_SR2
    for k in range(7): a(f'buffer_load_dwordx4 v[{DAT+4*k}:{DAT+4*k+3}], v{VL16}, s[8:11], s{so(k)} offen offset:{(k&3)*1024} sc1')
    for k in range(7):
        a(f's_waitcnt vmcnt({6-k})')
        r=DAT+4*k
        if k==0: a(f'v_max3_u32 v{PL}, v{r}, v{r+1}, v{r+2}\nv_max_u32 v{PL}, v{PL}, v{r+3}')
        else: a(f'v_max3_u32 v{PL}, v{PL}, v{r}, v{r+1}\nv_max3_u32 v{PL}, v{PL}, v{r+2}, v{r+3}')
    poll_tail(a,pr,pok,PL)
    for k in range(7): a(f'buffer_store_dwordx4 v[{DAT+4*k}:{DAT+4*k+3}], v{VL16}, s[8:11], s{so(k)} offen offset:{(k&3)*1024} sc1')
    lq=L('hq'); a(f's_cmp_lt_u32 s{S_S}, 2\ns_cbranch_scc1 {lq}\nbuffer_store_dword v{VONE}, v5, s[8:11], s{S_SRC} offen sc1\n{lq}:\ns_add_u32 s{S_SRC}, s{S_SRC}, 224')
    a(f'''s_waitcnt vmcnt(0)
    buffer_store_dword v{VONE}, v{VF}, s[8:11], s{S_FL} offen sc1
    s_add_u32 s{S_PO}, s{S_PO}, 7168
    s_add_u32 s{S_S}, s{S_S}, 1
    s_cmp_lt_u32 s{S_S}, 64
    s_cbranch_scc1 {loop}
    s_waitcnt vmcnt(0)''')

def roles(a, name, prof, clk, nsteps, om, o):
    l1=name+'_m1'
    if o.get('hlp',0):
        lh=name+'_nh'
        a(f's_cmp_lt_u32 s{S_ROLE}, 30\ns_cbranch_scc1 {lh}')
        helper_role(a,o)
        a(f'{lh}:')
    if not o.get('static',0):
        lv=name+'_val'
        a(f's_cmp_ge_u32 s{S_ROLE}, 16\ns_cbranch_scc1 {lv}')
        score_role(a,prof,nsteps,clk,None,o); a(f'{lv}:'); value_role(a,prof,nsteps,om,None,o); return
    a(f's_cmp_lg_u32 s{S_MODE}, 0\ns_cbranch_scc1 {l1}')
    for mode in (0,1):
        lv=f'{name}_val{mode}'
        if mode: a(f'{l1}:')
        a(f's_cmp_ge_u32 s{S_ROLE}, 16\ns_cbranch_scc1 {lv}')
        score_role(a,prof if mode==0 else False,nsteps,clk and mode==0,mode,o)
        a(f'{lv}:')
        value_role(a,prof if mode==0 else False,nsteps,om,mode,o)
def rec_kernel(name, prof=False, nsteps=63, clk=False, o={}):
    a=Asm(); a.l.append(head(name))
    ex=name+'_exit'
    prologue(a,256,ex)
    election(a,LS_ROLE)
    a(f'''s_cmp_ge_u32 s{S_ROLE}, {NROLE}
    s_cbranch_scc1 {ex}''')
    roles(a,name,prof,clk,nsteps,False,o)
    a(f'{ex}:\ns_endpgm')
    return a.text()+kd(name,vgpr=256,agpr=256)
REC_LDS=78080+8192+256
if __name__=='__main__':
    n='rec_kernel'
    t=f'; @launch kernel={n} grid=(256,1,1) block=(256,1,1) lds={REC_LDS}\n.amdgcn_target "amdgcn-amd-amdhsa--gfx950"\n'+rec_kernel(n,prof=True)
    open('rec_test.s','w').write(t)
    print(len(t))
SNAMES=['poll','B1+rd','tgemm','scores','softmax/dma']
VNAMES=['poll','B1+rd','wgemm','Ppoll+pz','reduce']
```

```python
from common import *
import lay, pre, ln
from rec2 import S_ROLE,S_WAVE,S_MODE,S_T0,S_T1,S_T2,S_T3
def static_role(a):
    a(f'''s_and_b32 s{S_T0}, s2, 7
    s_lshl_b32 s{S_T0}, s{S_T0}, 5
    s_lshr_b32 s{S_T1}, s2, 3
    s_add_u32 s{S_ROLE}, s{S_T0}, s{S_T1}''')
def init_fill(a):
    P=72; Z=76; F=80; VB=84; VT=85
    a(f'''s_lshl_b32 s{S_T0}, s{S_ROLE}, 2
    s_add_u32 s{S_T0}, s{S_T0}, s{S_WAVE}
    s_lshl_b32 s{S_T0}, s{S_T0}, 10
    v_lshlrev_b32 v{VB}, 4, v0
    v_add_u32 v{VB}, s{S_T0}, v{VB}
    v_mov_b32 v{VT}, 0x10000000
    v_and_b32 v{F+3}, 1, v0''')
    for r in range(4): a(f'v_mov_b32 v{P+r}, -1\nv_mov_b32 v{Z+r}, 0')
    for r in range(3): a(f'v_mov_b32 v{F+r}, 0')
    n=[0]; tmp=[86]
    def fill(base,nbytes,reg):
        off=0
        while off<nbytes:
            rem=nbytes-off; va=VB
            if rem<131072:
                va=tmp[0]; tmp[0]+=1
                a(f's_mov_b32 s{S_T1}, {rem}\nv_cmp_gt_u32 vcc, s{S_T1}, v{VB}\ns_nop 1\nv_cndmask_b32 v{va}, v{VT}, v{VB}, vcc')
            a(f's_mov_b32 s{S_T2}, {base+off}\nbuffer_store_dwordx4 v[{reg}:{reg+3}], v{va}, s[8:11], s{S_T2} offen sc1')
            n[0]+=1; off+=131072
    fill(ws.FF,14336,F)
    for l in (0,1):
        lay.set_layer(l); fill(ws.FLG,65536,Z)
    for l in (0,1):
        lay.set_layer(l)
        assert ws.PR==ws.MR+28672
        fill(ws.MR,69632,P); fill(ws.MA+7168,63*7168,P); fill(ws.GT+450*4096,14*4096,Z)
    lay.set_layer(0)
    assert tmp[0]<=100
    return n[0]
def rec_start(a, ts=None):
    L=a.lab; lm=L('m0'); lm2=L('m0')
    a(f"s_load_dwordx2 s[40:41], s[0:1], {KA['x']}\ns_load_dwordx2 s[44:45], s[0:1], {KA['mem0']}\ns_waitcnt lgkmcnt(0)")
    srd(a,48,40,1835008); srd(a,52,44,7168)
    VM=[100,104]; VS=[108,109]
    a(f'''s_lshl_b32 s{S_T0}, s{S_WAVE}, 6
    v_add_u32 v2, s{S_T0}, v0
    s_cmp_ge_u32 s{S_ROLE}, 30
    s_cselect_b32 s{S_T1}, 448, 0''')
    for it in range(2):
        a(f'''v_add_u32 v4, {256*it}, v2
        v_and_b32 v5, 7, v4
        v_mul_u32_u24 v5, 896, v5
        v_lshrrev_b32 v6, 3, v4
        v_lshlrev_b32 v6, 4, v6
        v_add_u32 v5, v5, v6
        v_lshlrev_b32 v6, 4, v4
        v_cmp_gt_u32 vcc, s{S_T1}, v4
        v_mov_b32 v7, 0x10000000
        s_nop 0
        v_cndmask_b32 v5, v7, v5, vcc
        v_cndmask_b32 v{VS[it]}, v7, v6, vcc
        buffer_load_dwordx4 v[{VM[it]}:{VM[it]+3}], v5, s[52:55], 0 offen''')
    init_fill(a)
    def mid():
        lay.set_layer(1); m1=ws.MA; lay.set_layer(0); m0=ws.MA
        a(f'''s_mov_b32 s28, {m1}
        s_cmp_eq_u32 s{S_ROLE}, 31
        s_cselect_b32 s28, {m0}, s28
        s_waitcnt vmcnt(16)
        buffer_store_dwordx4 v[{VM[0]}:{VM[0]+3}], v{VS[0]}, s[8:11], s28 offen sc1
        buffer_store_dwordx4 v[{VM[1]}:{VM[1]+3}], v{VS[1]}, s[8:11], s28 offen sc1
        s_getreg_b32 s29, hwreg(HW_REG_XCC_ID,0,4)
        s_add_u32 s56, s29, 1
        s_lshl_b32 s30, s{S_WAVE}, 6
        v_add_u32 v110, s30, v0
        v_mov_b32 v111, 0x10000000
        v_cmp_eq_u32 vcc, 0, v110
        v_mov_b32 v112, s56
        s_lshl_b32 s30, s{S_ROLE}, 2
        v_cndmask_b32 v111, v111, 0, vcc
        s_waitcnt vmcnt(0)
        s_barrier
        buffer_store_dword v112, v111, s[12:15], s30 offen sc0 sc1''')
        if ts: ts()
    lay.set_layer(0)
    a(f's_mov_b32 s57, s{S_ROLE}')
    pre.ln4_body(a,57,S_WAVE,'s[48:51]','0',mid=mid,st='sc1')
    lr=L('ini'); lo=L('ini'); lt=L('ini')
    a(f'''v_lshlrev_b32 v2, 2, v0
    v_mov_b32 v3, 0x10000000
    v_cmp_gt_u32 vcc, 32, v0
    s_movk_i32 s{S_T0}, 4000
    s_mov_b32 s{S_MODE}, 1
    v_cndmask_b32 v2, v3, v2, vcc
    {lr}:
    buffer_load_dword v3, v2, s[12:15], 0 offen sc0 sc1
    s_waitcnt vmcnt(0)
    v_cmp_ne_u32 vcc, 0, v3
    s_nop 1
    s_cmp_eq_u32 vcc_lo, -1
    s_cbranch_scc1 {lo}
    s_sub_u32 s{S_T0}, s{S_T0}, 1
    s_cbranch_scc0 {lr}
    s_branch {lt}
    {lo}:
    v_cmp_ne_u32 vcc, s56, v3
    s_nop 1
    s_cmp_lg_u32 vcc_lo, 0
    s_cselect_b32 s{S_MODE}, 1, 0
    {lt}:''')
    a(f'''s_lshl_b32 s{S_T0}, s{S_WAVE}, 6
    v_add_u32 v2, s{S_T0}, v0
    v_lshlrev_b32 v3, 2, v2
    v_mov_b32 v4, 0x10000000
    v_cmp_gt_u32 vcc, 4, v2
    v_mov_b32 v5, 1
    s_lshl_b32 s{S_T0}, s{S_ROLE}, 4
    s_add_u32 s{S_T0}, s{S_T0}, {ws.LF}
    v_cndmask_b32 v3, v4, v3, vcc
    s_barrier
    buffer_store_dword v5, v3, s[8:11], s{S_T0} offen sc1''')
```

```python
import sys, os
sys.path.insert(0,os.path.dirname(os.path.abspath(__file__)))
import fold, misc, ln, dk, rec, j1, j2, b1, fft, b3, hz, ok, pre
from lay import ws
NAME='interleave_layers__memory_aug_recurrent_mem_tr__spectral_gfnet__prompt'
STUB=f'cdna_kernels/{NAME}.s.ref'
def kernels_v1():
    WT='sc1'
    K={}
    K['fold_kernel']=(fold.fold_kernel('fold_kernel'),224,fold.FOLD_LDS)
    K['misc_kernel']=(misc.misc_kernel('misc_kernel'),misc.MISC_WG,misc.MISC_LDS)
    K['ln0_kernel']=(ln.ln_kernel('ln0_kernel','x'),128,ln.LN_LDS)
    K['ln1_kernel']=(ln.ln_kernel('ln1_kernel',ws.X2),128,ln.LN_LDS)
    K['d_kernel']=(dk.d_kernel('d_kernel',stflags=WT),224,dk.D_LDS)
    K['rec_kernel']=(rec.rec_kernel('rec_kernel'),256,rec.REC_LDS)
    K['j1_kernel']=(j1.j1_kernel('j1_kernel'),256,j1.J1_LDS)
    K['j2a_kernel']=(j2.j2_kernel('j2a_kernel','x'),256,j2.J2_LDS)
    K['j2b_kernel']=(j2.j2_kernel('j2b_kernel',ws.X2),256,j2.J2_LDS)
    K['b1_kernel']=(b1.b1_kernel('b1_kernel'),256,b1.B1_LDS)
    K['fft_kernel']=(fft.fft_kernel('fft_kernel'),225,fft.FFT_LDS)
    K['b3a_kernel']=(b3.b3_kernel('b3a_kernel',ws.X2),256,b3.B3_LDS)
    K['b3b_kernel']=(b3.b3_kernel('b3b_kernel','out'),256,b3.B3_LDS)
    order=['fold_kernel','misc_kernel','ln0_kernel','d_kernel','rec_kernel','j1_kernel','j2a_kernel','b1_kernel','fft_kernel','b3a_kernel',
           'ln1_kernel','d_kernel','rec_kernel','j1_kernel','j2b_kernel','b1_kernel','fft_kernel','b3b_kernel']
    return K,order
def kernels_v2():
    K,_=kernels_v1()
    K['oa_kernel']=(ok.o_kernel('oa_kernel','x'),256,ok.OK_LDS)
    K['ob_kernel']=(ok.o_kernel('ob_kernel',ws.X2),256,ok.OK_LDS)
    order=['fold_kernel','misc_kernel','ln0_kernel','oa_kernel','b1_kernel','fft_kernel','b3a_kernel',
           'ln1_kernel','ob_kernel','b1_kernel','fft_kernel','b3b_kernel']
    return K,order
def kernels_v3():
    K,_=kernels_v1()
    K['pre_kernel']=(pre.pre_kernel('pre_kernel'),256,pre.PRE_LDS)
    K['oa_kernel']=(ok.o_kernel('oa_kernel','x',do_misc=True),256,ok.OK_LDS)
    K['ob_kernel']=(ok.o_kernel('ob_kernel',ws.X2),256,ok.OK_LDS)
    order=['pre_kernel','oa_kernel','b1_kernel','fft_kernel','b3a_kernel',
           'ln1_kernel','ob_kernel','b1_kernel','fft_kernel','b3b_kernel']
    return K,order
def kernels_v4():
    import lay
    K={}
    K['pre_kernel']=(pre.pre_kernel('pre_kernel'),256,pre.PRE_LDS)
    for l,x in ((0,'a'),(1,'b')):
        lay.set_layer(l)
        K['o%s_kernel'%x]=(ok.o_kernel('o%s_kernel'%x,'x' if l==0 else ws.X2,do_misc=(l==0)),256,ok.OK_LDS)
        K['b1%s_kernel'%x]=(b1.b1_kernel('b1%s_kernel'%x),256,b1.B1_LDS)
        K['fft%s_kernel'%x]=(fft.fft_kernel('fft%s_kernel'%x),225,fft.FFT_LDS)
        K['b3%s_kernel'%x]=(b3.b3_kernel('b3%s_kernel'%x,ws.X2 if l==0 else 'out'),256,b3.B3_LDS)
    K['ln1_kernel']=(ln.ln_kernel('ln1_kernel',ws.X2,init=False),128,ln.LN_LDS)
    lay.set_layer(0)
    order=['pre_kernel','oa_kernel','b1a_kernel','ffta_kernel','b3a_kernel',
           'ln1_kernel','ob_kernel','b1b_kernel','fftb_kernel','b3b_kernel']
    return K,order
def kernels_v5():
    import lay
    K,order=kernels_v4()
    for l,x in ((0,'a'),(1,'b')):
        lay.set_layer(l)
        K['o%s_kernel'%x]=(ok.o_kernel('o%s_kernel'%x,'x' if l==0 else ws.X2,do_misc=(l==0),do_b1=True),256,ok.OK_LDS)
    lay.set_layer(0)
    order=[k for k in order if not k.startswith('b1')]
    return K,order
def kernels_v6(tl=False,o=None):
    import lay, mega
    K={}
    K['pre_kernel']=(pre.pre_kernel('pre_kernel'),256,pre.PRE_LDS)
    K['mega_kernel']=(mega.mega_kernel('mega_kernel',o=o,tl=tl),256,mega.MEGA_LDS)
    lay.set_layer(0)
    return K,['pre_kernel','mega_kernel']
def kernels_v6t(): return kernels_v6(tl=True)
def kernels_v7(tl=False,o=None):
    import lay, mega
    K={}
    K['mega_kernel']=(mega.mega_kernel('mega_kernel',o=o,tl=tl,merged=True),256,mega.MEGA_LDS)
    lay.set_layer(0)
    return K,['mega_kernel']
def kernels_v7t(): return kernels_v7(tl=True)
def assemble_text(K,order):
    hdr=[l for l in open(STUB).read().split('\n') if l.startswith(';') and 'offset' in l or l.startswith('; Kernarg')]
    t='\n'.join(hdr)+'\n'
    for n in order: t+=f'; @launch kernel={n} grid=({K[n][1]},1,1) block=(256,1,1) lds={K[n][2]}\n'
    t+='.amdgcn_target "amdgcn-amd-amdhsa--gfx950"\n'
    body=''.join(K[n][0] for n in dict.fromkeys(order))
    return t+body, body
if __name__=='__main__':
    ver=sys.argv[2] if len(sys.argv)>2 else 'v2'
    K,order=globals()['kernels_'+ver]()
    t,body=assemble_text(K,order)
    hz.check(body)
    out=sys.argv[1] if len(sys.argv)>1 else f'cdna_kernels/{NAME}.s'
    open(out,'w').write(t); print(out,len(t))
```
